```python
import torch

def _softmax(x, axis=-1):
    return torch.softmax(x, dim=axis)
def _gelu(x):
    return torch.nn.functional.gelu(x, approximate="tanh")
def _silu(x):
    return torch.nn.functional.silu(x)
def _sigmoid(x):
    return torch.sigmoid(x)
def _layernorm(x, axis=-1, eps=1e-5):
    m = x.mean(dim=axis, keepdim=True)
    v = x.var(dim=axis, keepdim=True, unbiased=False)
    return (x - m) / torch.sqrt(v + eps)
def _scatter_add(tgt, idx, src, axis=0):
    return tgt.clone().index_add_(axis, idx, src)
def _segment_sum(src, seg, n):
    out = torch.zeros((n,) + src.shape[1:], dtype=src.dtype)
    return out.index_add_(0, seg, src)
def _pad(x, pw):
    flat = tuple(v for pair in reversed(pw) for v in pair)
    return torch.nn.functional.pad(x, flat)

kernel_name = 'standalone__spectral_conv_sgc__graph'

def setup_inputs():

    _w = (lambda a: (lambda t: t.to(torch.bfloat16) if t.is_floating_point() else t)(torch.as_tensor(a)))
    N, deg, D = 50000, 16, 64
    E = N * deg
    rs = (lambda lo, hi, *s: torch.randint(lo, hi, s))(0, N, E).to(torch.int64)
    rd = (lambda lo, hi, *s: torch.randint(lo, hi, s))(0, N, E).to(torch.int64)
    loop = torch.arange(N).to(torch.int64)
    src = torch.cat([rs, loop])
    dst = torch.cat([rd, loop])
    deg_cnt = torch.bincount(dst, minlength=N).to(float)
    dis = 1.0 / (lambda _x: torch.sqrt(torch.as_tensor(_x)))(deg_cnt)
    return {
        "x": _w((lambda *s: torch.randn(*s, dtype=torch.bfloat16) * 0.05)(N, D)),
        "src": _w(src),
        "dst": _w(dst),
        "norm": _w((dis[src] * dis[dst]).to(float)),
        "w": _w((lambda *s: torch.randn(*s, dtype=torch.bfloat16) * 0.05)(D, D)),
    }

def reference(x, src, dst, norm, w):
    N = x.shape[0]
    h = x
    for _ in range(2):
        msg = h[src] * norm[:, None]
        h = _segment_sum(msg, dst, N)
    return h @ w
```

```python
import sys

class Cfg:
    D = 3
    TS = 0
    PF1 = 0
    PF2 = 0
    PF3 = 0
    CLS = 1
    H1FLAG = ""
    RECFLAG = ""
    IMGFLAG = ""
    OUTFLAG = ""

cfg = Cfg()
for a in sys.argv[2:]:
    k, v = a.split("=")
    cur = getattr(cfg, k)
    setattr(cfg, k, int(v) if isinstance(cur, int) else v.replace("+", " "))

N = 50000; E = 850000
NB = 196
CH = 3328
MAG = 85599
REC_OFF = 0
REC_BYTES = 256 * CH * 8
TAB_OFF = 0x680000
WT_OFF = 0x6C0000
IMG_OFF = 0x700000
H1_OFF = 0xB00000
TS_OFF = 0x1200000
WS_USED = 0x1400000
ROWB = N * 128

L_HDR = 0
L_DUMMY = 16
L_NT = 32
L_RECS = 32 + 208 * 8
L_CNT = 35328
L_DH = L_CNT + 4096
L_MISC = L_DH + 256
L_D = L_MISC + 256
L_WT = L_D + 4096
L_TILE = L_WT + 8192
L_END2 = L_WT
L_END3 = L_TILE + 13 * 2048
IMG_BYTES = 16384

out = []
def e(s=""):
    out.append(s)
def vr(a, n=1):
    return f"v{a}" if n == 1 else f"v[{a}:{a+n-1}]"
def sr(a, n=1):
    return f"s{a}" if n == 1 else f"s[{a}:{a+n-1}]"

def srd(d, lo, hi, nrec, off=0):
    if off:
        e(f"s_add_u32 s{d}, s{lo}, 0x{off:x}")
        e(f"s_addc_u32 s{d+1}, s{hi}, 0")
    else:
        e(f"s_mov_b32 s{d}, s{lo}")
        e(f"s_mov_b32 s{d+1}, s{hi}")
    e(f"s_mov_b32 s{d+2}, 0x{nrec:x}")
    e(f"s_mov_b32 s{d+3}, 0x20000")

def scan64(v, first=1):
    sh = first
    while sh <= 8:
        e(f"v_add_u32_dpp v{v}, v{v}, v{v} row_shr:{sh} row_mask:0xf bank_mask:0xf bound_ctrl:0")
        e("s_nop 1")
        sh *= 2
    e(f"v_add_u32_dpp v{v}, v{v}, v{v} row_bcast:15 row_mask:0xa bank_mask:0xf")
    e("s_nop 1")
    e(f"v_add_u32_dpp v{v}, v{v}, v{v} row_bcast:31 row_mask:0xc bank_mask:0xf")
    e("s_nop 1")

def ts_setup(kid, swave, stmp, vtmp):
    pass
def ts(kid, slot, ssrd, swave, vt):
    if not cfg.TS:
        return
    e("s_memrealtime s[96:97]")
    e(f"s_lshl_b32 s98, s2, 4")
    e(f"s_add_u32 s98, s98, s{swave}")
    e(f"s_lshl_b32 s98, s98, 7")
    e(f"s_add_u32 s98, s98, 0x{TS_OFF + kid * 0x80000 + slot * 8:x}")
    e("s_mov_b64 s[100:101], exec")
    e("s_mov_b64 exec, 1")
    e(f"v_mov_b32 v{vt+2}, s98")
    e("s_waitcnt lgkmcnt(0)")
    e(f"v_mov_b32 v{vt}, s96")
    e(f"v_mov_b32 v{vt+1}, s97")
    e(f"buffer_store_dwordx2 v[{vt}:{vt+1}], v{vt+2}, s[{ssrd}:{ssrd+3}], 0 offen")
    e("s_mov_b64 exec, s[100:101]")

def header(name):
    e(f".globl {name}")
    e(".p2align 8")
    e(f".type {name},@function")
    e(f"{name}:")

def desc(name, nv, ns):
    acc = (nv + 3) // 4 * 4
    return f""".amdhsa_kernel {name}
  .amdhsa_next_free_vgpr {nv}
  .amdhsa_next_free_sgpr {ns}
  .amdhsa_accum_offset {acc}
  .amdhsa_group_segment_fixed_size 0
  .amdhsa_kernarg_size 64
  .amdhsa_user_sgpr_count 2
  .amdhsa_user_sgpr_kernarg_segment_ptr 1
  .amdhsa_system_sgpr_workgroup_id_x 1
  .amdhsa_float_denorm_mode_32 3
.end_amdhsa_kernel
"""

K1_STAGE = 1024
K1_LDS = K1_STAGE + CH * 8
def k1():
    name = "sgc_part_kernel"
    header(name)
    SRC, DST, NRM, WS, X = 12, 16, 20, 24, 36
    e("s_cmp_ge_u32 s2, 256")
    e("s_cbranch_scc1 K1_END")
    e("s_load_dwordx4 s[4:7], s[0:1], 8")
    e("s_load_dwordx2 s[8:9], s[0:1], 24")
    e("s_load_dwordx2 s[10:11], s[0:1], 56")
    e("s_load_dwordx2 s[34:35], s[0:1], 0")
    e("s_mul_i32 s3, s2, 832")
    e("v_add_u32 v3, s3, v0")
    e("v_lshlrev_b32 v1, 4, v3")
    e("v_lshlrev_b32 v2, 3, v3")
    e("v_lshlrev_b32 v30, 2, v0")
    e("v_mov_b32 v31, 0")
    e("ds_write_b32 v30, v31")
    e("v_lshrrev_b32 v32, 6, v0")
    e("v_mov_b32 v33, 1")
    e("v_readfirstlane_b32 s30, v32")
    e(f"v_cmp_gt_u32 s[28:29], s31, v3") if False else None
    e(f"s_mov_b32 s31, {E//4}")
    e("s_mov_b32 s32, -196")
    e("s_mov_b32 s33, 0x05040100")
    e("s_mov_b32 s40, 0x07060100")
    e("s_waitcnt lgkmcnt(0)")
    srd(DST, 6, 7, E * 4)
    e(f"buffer_load_dwordx4 v[4:7], v1, s[{DST}:{DST+3}], 0 offen")
    srd(SRC, 4, 5, E * 4)
    e(f"buffer_load_dwordx4 v[8:11], v1, s[{SRC}:{SRC+3}], 0 offen")
    srd(NRM, 8, 9, E * 2)
    e(f"buffer_load_dwordx2 v[12:13], v2, s[{NRM}:{NRM+3}], 0 offen")
    srd(WS, 10, 11, WS_USED)
    srd(X, 34, 35, ROWB)
    ts(0, 0, WS, 30, 40)
    npf = cfg.PF1
    if npf:
        e("s_and_b32 s41, s2, 7")
        e("s_mul_i32 s41, s41, 6272")
        e("s_lshr_b32 s42, s2, 3")
        e("s_mul_i32 s42, s42, 832")
        e("s_add_u32 s41, s41, s42")
        e("v_add_u32 v44, s41, v0")
        for i in range(npf):
            e(f"v_add_u32 v45, {i*32*832}, v44")
            e(f"v_subrev_u32 v46, 50176, v45")
            e(f"v_min_u32 v45, v45, v46")
            e(f"v_lshlrev_b32 v45, 7, v45")
            e(f"buffer_load_dword v{48+i}, v45, s[{X}:{X+3}], 0 offen")
    e("v_cmp_gt_u32 s[28:29], s31, v3")
    e("s_barrier")
    e("s_mov_b64 exec, s[28:29]")
    e(f"s_waitcnt vmcnt({2+npf+ (1 if cfg.TS else 0)})")
    for i in range(4):
        e(f"v_mul_u32_u24 v{34+i}, {MAG}, v{4+i}")
    for i in range(4):
        e(f"v_lshrrev_b32 v{26+i}, 24, v{34+i}")
        e(f"v_lshlrev_b32 v{14+i}, 2, v{26+i}")
        e(f"ds_add_rtn_u32 v{18+i}, v{14+i}, v33")
    for i in range(4):
        e(f"v_mad_i32_i24 v{4+i}, v{26+i}, s32, v{4+i}")
        e(f"v_and_b32 v{34+i}, 0xe0000000, v{34+i}")
    e(f"s_waitcnt vmcnt({npf+ (1 if cfg.TS else 0)})")
    for i in range(4):
        e(f"v_mul_u32_u24 v38, {MAG}, v{8+i}")
        e(f"v_sub_u32 v38, v38, v{34+i}")
        if cfg.CLS:
            e(f"v_lshrrev_b32 v38, 30, v38")
        else:
            e(f"v_mov_b32 v38, 0")
        e(f"v_lshl_or_b32 v38, v{4+i}, 2, v38")
        e(f"v_lshlrev_b32 v{23+2*i}, 2, v38")
        e(f"v_perm_b32 v{22+2*i}, v{12+i//2}, v{8+i}, s{33 if i%2==0 else 40}")
    e("s_mov_b64 exec, -1")
    e("s_waitcnt lgkmcnt(0)")
    ts(0, 1, WS, 30, 40)
    e("s_barrier")
    e("s_cmp_lg_u32 s30, 0")
    e("s_cbranch_scc1 K1_SKIPSCAN")
    e("v_lshlrev_b32 v30, 4, v0")
    e("ds_read_b128 v[4:7], v30")
    e("s_lshl_b32 s3, s2, 10")
    e(f"s_add_u32 s3, s3, 0x{TAB_OFF:x}")
    e("v_add_u32 v31, s3, v30")
    e("s_waitcnt lgkmcnt(0)")
    e("v_add_u32 v9, v4, v5")
    e("v_add_u32 v10, v9, v6")
    e("v_add_u32 v11, v10, v7")
    e("v_mov_b32 v12, v11")
    e("s_nop 1")
    scan64(12)
    e("v_sub_u32 v34, v12, v11")
    e("v_add_u32 v35, v34, v4")
    e("v_add_u32 v36, v34, v9")
    e("v_add_u32 v37, v34, v10")
    e("ds_write_b128 v30, v[34:37]")
    for i in range(4):
        e(f"v_lshl_or_b32 v{8+i}, v{4+i}, 16, v{34+i}")
    e(f"buffer_store_dwordx4 v[8:11], v31, s[{WS}:{WS+3}], 0 offen {cfg.RECFLAG}")
    e("s_waitcnt lgkmcnt(0)")
    e("K1_SKIPSCAN:")
    e("s_barrier")
    e("s_mov_b64 exec, s[28:29]")
    for i in range(4):
        e(f"ds_read_b32 v{34+i}, v{14+i}")
    for i in range(4):
        e(f"s_waitcnt lgkmcnt({3})")
        e(f"v_add_lshl_u32 v{34+i}, v{34+i}, v{18+i}, 3")
        e(f"ds_write_b64 v{34+i}, v[{22+2*i}:{23+2*i}] offset:{K1_STAGE}")
    e("s_mov_b64 exec, -1")
    e("v_lshlrev_b32 v30, 4, v0")
    e(f"s_mul_i32 s3, s2, {CH*8}")
    e("v_add_u32 v31, s3, v30")
    e(f"v_add_u32 v32, {CH*4}, v31")
    e("s_waitcnt lgkmcnt(0)")
    e("s_barrier")
    e(f"ds_read_b128 v[4:7], v30 offset:{K1_STAGE}")
    e(f"ds_read_b128 v[8:11], v30 offset:{K1_STAGE + CH*4}")
    e("s_waitcnt lgkmcnt(1)")
    e(f"buffer_store_dwordx4 v[4:7], v31, s[{WS}:{WS+3}], 0 offen {cfg.RECFLAG}")
    e("s_waitcnt lgkmcnt(0)")
    e(f"buffer_store_dwordx4 v[8:11], v32, s[{WS}:{WS+3}], 0 offen {cfg.RECFLAG}")
    ts(0, 2, WS, 30, 40)
    if cfg.TS:
        e("s_waitcnt vmcnt(0)")
        ts(0, 3, WS, 30, 40)
    e("K1_END:")
    e("s_endpgm")
    return name, 64, 102 if cfg.TS else 48

def hop(H):
    name = "sgc_hop1_kernel" if H == 1 else "sgc_hop2_kernel"
    P = f"H{H}_"
    header(name)
    D = cfg.D
    G, WS, O, WSRD = 8, 12, 20, 24
    sW, sTB, sBB, sNBMAX, s128, sCNT, sT, sNR = 28, 29, 30, 31, 32, 33, 34, 36
    sTOT = 37
    sM = 40
    sNODE = 56
    sTMP = 58
    vLANE, vE, vP, vSEL0, vSEL1, vLOFF, vONE = 1, 2, 3, 4, 5, 6, 7
    vACC = 8
    vPA, vEA, vPB, vEB, vROWA, vROWB, vDUM = 24, 25, 26, 27, 28, 29, 30
    vAD = 31
    vST = 32
    vTS = 36
    vT0 = 40
    vDATA = 40
    vAOP = vDATA + 16 * D
    NV = max(vAOP + 8 * D, 40 + 48)
    vDESC = 40
    vREC = 48
    vRANK = 64
    vX = 72

    e("s_cmp_ge_u32 s2, 256")
    e(f"s_cbranch_scc1 {P}END")
    e("s_load_dwordx2 s[4:5], s[0:1], 56")
    if H == 1:
        e("s_load_dwordx2 s[6:7], s[0:1], 0")
        e("s_load_dwordx2 s[16:17], s[0:1], 32")
    else:
        e("s_load_dwordx2 s[6:7], s[0:1], 40")
    e("s_and_b32 s3, s2, 7")
    e("s_lshl_b32 s3, s3, 5")
    e(f"s_lshr_b32 s{sT}, s2, 3")
    e(f"s_or_b32 s3, s3, s{sT}")
    e(f"v_lshrrev_b32 v{vX}, 6, v0")
    e(f"v_and_b32 v{vLANE}, 63, v0")
    e(f"v_readfirstlane_b32 s{sW}, v{vX}")
    e(f"s_mov_b32 s{s128}, 128")
    e(f"s_mov_b32 s{sBB}, 0")
    e(f"v_lshrrev_b32 v{vX}, 2, v0")
    e(f"s_lshl_b32 s{sT}, s3, 2")
    e(f"s_add_u32 s{sT}, s{sT}, 0x{TAB_OFF:x}")
    e(f"v_lshl_add_u32 v{vX+1}, v{vX}, 10, s{sT}")
    if H == 2:
        e(f"s_lshl_b32 s{sT}, s3, 14")
        e(f"s_add_u32 s{sT}, s{sT}, 0x{IMG_OFF:x}")
        e(f"v_lshl_add_u32 v{vX+2}, v0, 4, s{sT}")
        e(f"v_lshlrev_b32 v{vX+3}, 4, v0")
        e(f"v_add_u32 v{vX+3}, 0x{WT_OFF:x}, v{vX+3}")
        e(f"s_lshl_b32 s{sT}, s{sW}, 10")
        e(f"s_mov_b32 m0, s{sT}")
    e("s_waitcnt lgkmcnt(0)")
    srd(WS, 4, 5, WS_USED)
    if H == 1:
        e(f"buffer_load_dword v{vE}, v{vX+1}, s[{WS}:{WS+3}], 0 offen")
        srd(G, 6, 7, ROWB)
        srd(O, 4, 5, ROWB, H1_OFF)
        srd(WSRD, 16, 17, 8192)
    else:
        e(f"buffer_load_dwordx4 v{vX+2}, s[{WS}:{WS+3}], 0 offen lds")
        e(f"s_add_u32 s{sT}, s{sT}, {L_WT}")
        e(f"s_mov_b32 m0, s{sT}")
        e(f"s_cmp_ge_u32 s{sW}, 8")
        e(f"s_cbranch_scc1 {P}NOWT")
        e(f"buffer_load_dwordx4 v{vX+3}, s[{WS}:{WS+3}], 0 offen lds")
        e(f"{P}NOWT:")
        srd(G, 4, 5, ROWB, H1_OFF)
        srd(O, 6, 7, ROWB)
    ts(H, 0, WS, sW, vTS)
    e(f"v_and_b32 v{vX+4}, 7, v0")
    e(f"v_lshlrev_b32 v{vLOFF}, 4, v{vX+4}")
    e(f"v_mov_b32 v{vONE}, 1")
    e(f"v_mov_b32 v{vDUM}, {L_DUMMY}")
    e(f"v_and_b32 v{vX+4}, 1, v0")
    e(f"v_mov_b32 v{vX+5}, 0x0c0c0302")
    e(f"v_mov_b32 v{vX+6}, 0x03020c0c")
    e(f"v_cmp_eq_u32 vcc, 1, v{vX+4}")
    e(f"v_mov_b32 v{vX+7}, 0x0c0c0c0c")
    e(f"v_and_b32 v{vX+4}, 2, v0")
    e(f"v_cndmask_b32 v{vX+5}, v{vX+5}, v{vX+6}, vcc")
    e(f"v_cmp_eq_u32 vcc, 2, v{vX+4}")
    for i in range(16):
        e(f"v_mov_b32 v{vACC+i}, 0")
    e(f"v_cndmask_b32 v{vSEL0}, v{vX+5}, v{vX+7}, vcc")
    e(f"v_cndmask_b32 v{vSEL1}, v{vX+7}, v{vX+5}, vcc")
    e(f"v_cmp_gt_u32 vcc, 208, v0")
    e(f"s_mov_b64 s[{sNODE}:{sNODE+1}], vcc")
    e(f"v_mov_b32 v{vP}, 0")

    def prefetch(npf, first):
        if not npf: return
        e(f"s_and_b32 s{sT}, s2, 7")
        e(f"s_mul_i32 s{sT}, s{sT}, 6272")
        e(f"s_lshr_b32 s{sT+1}, s2, 3")
        e(f"s_lshl_b32 s{sT+1}, s{sT+1}, 10")
        e(f"s_add_u32 s{sT}, s{sT}, s{sT+1}")
        e(f"v_add_u32 v{vX+8}, s{sT}, v0")
        for i in range(npf):
            e(f"v_add_u32 v{vX+9}, {first + i*32*1024}, v{vX+8}")
            e(f"v_subrev_u32 v{vX+10}, 50176, v{vX+9}")
            e(f"v_min_u32 v{vX+9}, v{vX+9}, v{vX+10}")
            e(f"v_lshlrev_b32 v{vX+9}, 7, v{vX+9}")
            e(f"buffer_load_dword v39, v{vX+9}, s[{G}:{G+3}], 0 offen")

    if H == 2:
        e(f"s_mov_b32 s{sNBMAX}, 0")
        e("s_waitcnt vmcnt(0)")
        e("s_barrier")
        e(f"v_mov_b32 v{vX}, 0")
        e(f"ds_read_b32 v{vX}, v{vX} offset:{L_HDR}")
        e("s_waitcnt lgkmcnt(0)")
        e(f"v_readfirstlane_b32 s{sT}, v{vX}")
        e(f"s_cmp_eq_u32 s{sT}, 1")
        e(f"s_cbranch_scc1 {P}GATHER")
        e("s_barrier")
        e(f"buffer_load_dword v{vE}, v{vX+1}, s[{WS}:{WS+3}], 0 offen")

    e(f"{P}BATCH:")
    e(f"v_mov_b32 v{vX}, 0")
    e(f"v_mov_b32 v{vX+1}, 0")
    e(f"v_mov_b32 v{vX+2}, 0")
    e(f"v_mov_b32 v{vX+3}, 0")
    e(f"v_lshlrev_b32 v{vX+4}, 2, v0")
    e(f"ds_write_b32 v{vX+4}, v{vX} offset:{L_D}")
    e(f"v_lshlrev_b32 v{vX+4}, 4, v0")
    e(f"v_cmp_gt_u32 vcc, 288, v0")
    e(f"s_mov_b64 exec, vcc")
    e(f"ds_write_b128 v{vX+4}, v[{vX}:{vX+3}] offset:{L_CNT}")
    e(f"v_cmp_gt_u32 vcc, 4, v0")
    e(f"s_mov_b64 exec, vcc")
    e(f"v_lshlrev_b32 v{vX+4}, 2, v0")
    e(f"v_mov_b32 v{vX+5}, 0xffff")
    e(f"ds_write_b32 v{vX+4}, v{vX+5} offset:{L_DUMMY}")
    e("s_mov_b64 exec, -1")
    vLEN, vSTART, vNBLK, vQ, vT, vB, vD, vA = vX, vX+1, vX+2, vX+3, vX+4, vX+5, vX+6, vX+7
    e(f"v_lshrrev_b32 v{vSTART}, 2, v0")
    e(f"v_mul_u32_u24 v{vSTART}, {CH}, v{vSTART}")
    e(f"v_and_b32 v{vT}, 3, v0")
    e(f"s_lshl_b32 s{sT}, s{sW}, 8")
    e(f"s_add_u32 s{sT}, s{sT}, {L_D}")
    e("s_waitcnt vmcnt(0)")
    ts(H, 1, WS, sW, vTS)
    e(f"v_lshrrev_b32 v{vLEN}, 16, v{vE}")
    e(f"v_add_u32 v{vNBLK}, 7, v{vLEN}")
    e(f"v_lshrrev_b32 v{vNBLK}, 3, v{vNBLK}")
    e(f"v_mov_b32 v{vQ}, v{vNBLK}")
    e(f"v_and_b32 v{vB}, 0xffff, v{vE}")
    e(f"v_add_u32 v{vSTART}, v{vSTART}, v{vB}")
    scan64(vQ, first=4)
    e(f"v_readlane_b32 s{sTB}, v{vQ}, 63")
    e(f"v_sub_u32 v{vQ}, v{vQ}, v{vNBLK}")
    e(f"v_subrev_u32 v{vQ}, s{sBB}, v{vQ}")
    e(f"{P}DLOOP:")
    e(f"v_add_u32 v{vB}, v{vQ}, v{vT}")
    e(f"v_lshlrev_b32 v{vA}, 3, v{vT}")
    e(f"v_add_u32 v{vD}, v{vSTART}, v{vA}")
    e(f"v_sub_u32 v{vA}, v{vLEN}, v{vA}")
    e(f"v_min_u32 v{vA}, 8, v{vA}")
    e(f"v_lshl_or_b32 v{vD}, v{vD}, 4, v{vA}")
    e(f"v_cmp_lt_u32 s[{sTMP}:{sTMP+1}], v{vT}, v{vNBLK}")
    e(f"v_cmp_gt_u32 vcc, 64, v{vB}")
    e(f"v_and_b32 v{vA}, 7, v{vB}")
    e(f"v_lshrrev_b32 v{vB}, 3, v{vB}")
    e(f"v_lshl_add_u32 v{vA}, v{vA}, 3, v{vB}")
    e(f"v_lshl_add_u32 v{vA}, v{vA}, 2, s{sT}")
    e(f"v_add_u32 v{vT}, 4, v{vT}")
    e(f"s_and_b64 exec, vcc, s[{sTMP}:{sTMP+1}]")
    e(f"ds_write_b32 v{vA}, v{vD}")
    e("s_mov_b64 exec, -1")
    e(f"v_cmp_lt_u32 vcc, v{vT}, v{vNBLK}")
    e(f"s_cbranch_vccnz {P}DLOOP")
    e(f"v_lshrrev_b32 v{vA}, 3, v{vLANE}")
    e(f"v_lshl_add_u32 v{vA}, v{vA}, 5, s{sT}")
    e(f"ds_read_b128 v[{vDESC}:{vDESC+3}], v{vA}")
    e(f"ds_read_b128 v[{vDESC+4}:{vDESC+7}], v{vA} offset:16")
    e(f"s_sub_i32 s{sNR}, s{sTB}, s{sBB}")
    e(f"v_and_b32 v{vT}, 7, v0")
    e("s_waitcnt lgkmcnt(0)")
    for m in range(8):
        e(f"s_cmp_le_i32 s{sNR}, {8*m}")
        e(f"s_cbranch_scc1 {P}LD_DONE")
        e(f"v_and_b32 v{vA}, 15, v{vDESC+m}")
        e(f"v_lshrrev_b32 v{vB}, 4, v{vDESC+m}")
        e(f"v_cmp_lt_u32 s[{sM+2*m}:{sM+2*m+1}], v{vT}, v{vA}")
        e(f"v_add_lshl_u32 v{vB}, v{vB}, v{vT}, 3")
        e(f"s_mov_b64 exec, s[{sM+2*m}:{sM+2*m+1}]")
        e(f"buffer_load_dwordx2 v[{vREC+2*m}:{vREC+2*m+1}], v{vB}, s[{WS}:{WS+3}], 0 offen")
        e("s_mov_b64 exec, -1")
    e(f"{P}LD_DONE:")
    npf = cfg.PF2 if H == 1 else 0
    prefetch(npf, cfg.PF1 * 32 * 832)
    e("s_waitcnt lgkmcnt(0)")
    e("s_barrier")
    e(f"v_mov_b32 v{vA}, s{sTB}")
    e(f"v_mov_b32 v{vB}, {L_MISC+4}")
    e("s_mov_b64 exec, 1")
    e(f"ds_max_u32 v{vB}, v{vA}")
    e(f"s_waitcnt vmcnt({npf})")
    ts(H, 2, WS, sW, vTS)
    def rounds(body, lab):
        for m in range(8):
            e(f"s_cmp_le_i32 s{sNR}, {8*m}")
            e(f"s_cbranch_scc1 {P}{lab}")
            e(f"s_mov_b64 exec, s[{sM+2*m}:{sM+2*m+1}]")
            body(m)
        e(f"{P}{lab}:")
        e("s_mov_b64 exec, -1")
    rounds(lambda m: e(f"ds_add_rtn_u32 v{vRANK+m}, v{vREC+2*m+1}, v{vONE} offset:{L_CNT}"), "RK_DONE")
    e("s_waitcnt lgkmcnt(0)")
    e("s_barrier")
    ts(H, 3, WS, sW, vTS)
    vC = vX
    vDEG, vNP, vSC, vBIN, vDR, vSB = vX+4, vX+5, vX+6, vX+7, vX+8, vX+9
    vBS = vX + 12
    e(f"s_cmp_ge_u32 s{sW}, 4")
    e(f"s_cbranch_scc1 {P}NODE1_DONE")
    e(f"v_lshlrev_b32 v{vX+10}, 4, v0")
    e(f"ds_read_b128 v[{vC}:{vC+3}], v{vX+10} offset:{L_CNT}")
    e(f"v_mov_b32 v{vX+11}, {L_MISC}")
    e("s_waitcnt lgkmcnt(0)")
    e(f"v_add_u32 v{vC+1}, v{vC}, v{vC+1}")
    e(f"v_add_u32 v{vC+2}, v{vC+1}, v{vC+2}")
    e(f"v_add_u32 v{vDEG}, v{vC+2}, v{vC+3}")
    e(f"v_add_u32 v{vNP}, 1, v{vDEG}")
    e(f"v_lshrrev_b32 v{vNP}, 1, v{vNP}")
    e(f"v_mov_b32 v{vSC}, v{vNP}")
    e(f"v_min_u32 v{vBIN}, 63, v{vDEG}")
    e(f"v_sub_u32 v{vBIN}, 63, v{vBIN}")
    scan64(vSC)
    e("s_mov_b64 exec, 0x8000000000000000") if False else None
    e(f"s_mov_b32 exec_lo, 0")
    e(f"s_mov_b32 exec_hi, 0x80000000")
    e(f"ds_add_rtn_u32 v{vSB}, v{vX+11}, v{vSC}")
    e(f"s_mov_b64 exec, s[{sNODE}:{sNODE+1}]")
    e(f"v_lshlrev_b32 v{vBIN}, 2, v{vBIN}")
    e(f"ds_add_rtn_u32 v{vDR}, v{vBIN}, v{vONE} offset:{L_DH}")
    e("s_mov_b64 exec, -1")
    e(f"v_sub_u32 v{vSC}, v{vSC}, v{vNP}")
    e(f"v_and_b32 v{vX+11}, 1, v{vDEG}")
    e(f"v_cmp_eq_u32 vcc, 1, v{vX+11}")
    e(f"v_mov_b32 v{vX+11}, 0xffff")
    e("s_waitcnt lgkmcnt(1)")
    e(f"v_readlane_b32 s{sT}, v{vSB}, 63")
    e(f"s_lshl_b32 s{sT}, s{sT}, 3")
    e(f"s_add_u32 s{sT}, s{sT}, {L_RECS}")
    e(f"v_lshl_add_u32 v{vBS}, v{vSC}, 3, s{sT}")
    e(f"v_lshl_add_u32 v{vBS+1}, v{vC}, 2, v{vBS}")
    e(f"v_lshl_add_u32 v{vBS+2}, v{vC+1}, 2, v{vBS}")
    e(f"v_lshl_add_u32 v{vBS+3}, v{vC+2}, 2, v{vBS}")
    e(f"ds_write_b128 v{vX+10}, v[{vBS}:{vBS+3}] offset:{L_CNT}")
    e(f"v_lshl_add_u32 v{vC}, v{vDEG}, 2, v{vBS}")
    e(f"s_mov_b64 exec, vcc")
    e(f"ds_write_b32 v{vC}, v{vX+11}")
    e("s_mov_b64 exec, -1")
    e("s_waitcnt lgkmcnt(0)")
    e(f"{P}NODE1_DONE:")
    e("s_barrier")
    ts(H, 4, WS, sW, vTS)
    e(f"v_mov_b32 v{vC}, {L_MISC}")
    e(f"ds_read_b64 v[{vC+2}:{vC+3}], v{vC}")
    e(f"v_lshlrev_b32 v{vC+1}, 2, v{vLANE}")
    e(f"ds_read_b32 v{vC+1}, v{vC+1} offset:{L_DH}")
    rounds(lambda m: e(f"ds_read_b32 v{vREC+2*m+1}, v{vREC+2*m+1} offset:{L_CNT}"), "RB_DONE")
    e("s_waitcnt lgkmcnt(0)")
    def wr(m):
        e(f"v_lshl_add_u32 v{vRANK+m}, v{vRANK+m}, 2, v{vREC+2*m+1}")
        e(f"ds_write_b32 v{vRANK+m}, v{vREC+2*m}")
    rounds(wr, "RW_DONE")
    e(f"v_readfirstlane_b32 s{sTOT}, v{vC+2}")
    e(f"v_readfirstlane_b32 s{sNBMAX}, v{vC+3}")
    e(f"s_cmp_ge_u32 s{sW}, 4")
    e(f"s_cbranch_scc1 {P}NODE2_DONE")
    e(f"s_cmp_lg_u32 s{sBB}, 0")
    e(f"s_cbranch_scc1 {P}NODE2_NOSORT")
    e(f"v_mov_b32 v{vC}, v{vC+1}")
    e("s_nop 1")
    scan64(vC)
    e(f"v_sub_u32 v{vC}, v{vC}, v{vC+1}")
    e(f"ds_bpermute_b32 v{vC}, v{vBIN}, v{vC}")
    e("s_waitcnt lgkmcnt(0)")
    e(f"v_add_lshl_u32 v{vP}, v{vC}, v{vDR}, 3")
    e(f"{P}NODE2_NOSORT:")
    e(f"v_lshl_or_b32 v{vC}, v{vNP}, 16, v{vBS}")
    e(f"s_mul_i32 s{sT}, s3, {NB*128}")
    e(f"v_lshl_add_u32 v{vC+1}, v0, 7, s{sT}")
    e(f"v_cmp_gt_u32 vcc, {NB}, v0")
    e(f"v_mov_b32 v{vC+2}, 0x80000000")
    e(f"s_mov_b64 exec, s[{sNODE}:{sNODE+1}]")
    e(f"v_cndmask_b32 v{vC+1}, v{vC+2}, v{vC+1}, vcc")
    e(f"ds_write_b64 v{vP}, v[{vC}:{vC+1}] offset:{L_NT}")
    e("s_mov_b64 exec, -1")
    e(f"{P}NODE2_DONE:")
    if H == 1:
        e(f"s_lshl_b32 s{sTOT}, s{sTOT}, 3")
        e(f"s_add_u32 s{sTOT}, s{sTOT}, {L_RECS}")
        e(f"s_cmp_lg_u32 s{sW}, 4")
        e(f"s_cbranch_scc1 {P}HDR_DONE")
        e(f"s_cmp_le_u32 s{sTOT}, {IMG_BYTES}")
        e(f"s_cselect_b32 s{sT}, 1, 0")
        e(f"s_cmp_le_u32 s{sNBMAX}, 64")
        e(f"s_cselect_b32 s{sT}, s{sT}, 0")
        e(f"v_mov_b32 v{vC}, {L_HDR}")
        e(f"v_mov_b32 v{vC+1}, s{sT}")
        e("s_mov_b64 exec, 1")
        e(f"ds_write_b32 v{vC}, v{vC+1}")
        e("s_mov_b64 exec, -1")
        e(f"{P}HDR_DONE:")
    e("s_waitcnt lgkmcnt(0)")
    e("s_barrier")
    e(f"{P}GATHER:")
    ts(H, 5, WS, sW, vTS)
    e(f"s_cmp_ge_u32 s{sW}, 13")
    e(f"s_cbranch_scc1 {P}HELPER")
    e(f"v_lshrrev_b32 v{vX}, 3, v{vLANE}")
    e(f"s_lshl_b32 s{sT}, s{sW}, 7")
    e(f"v_lshl_add_u32 v{vX}, v{vX}, 3, s{sT}")
    e(f"ds_read_b64 v[{vX+2}:{vX+3}], v{vX} offset:{L_NT}")
    e(f"ds_read_b64 v[{vX+4}:{vX+5}], v{vX} offset:{L_NT+64}")
    e("s_waitcnt lgkmcnt(0)")
    e(f"v_and_b32 v{vPA}, 0xffff, v{vX+2}")
    e(f"v_and_b32 v{vPB}, 0xffff, v{vX+4}")
    e(f"v_lshrrev_b32 v{vX+2}, 16, v{vX+2}")
    e(f"v_lshrrev_b32 v{vX+4}, 16, v{vX+4}")
    e(f"v_lshl_add_u32 v{vEA}, v{vX+2}, 3, v{vPA}")
    e(f"v_lshl_add_u32 v{vEB}, v{vX+4}, 3, v{vPB}")
    e(f"v_max_u32 v{vX}, v{vX+2}, v{vX+4}")
    def rdrec():
        e(f"v_cmp_lt_u32 vcc, v{vPA}, v{vEA}")
        e(f"v_cmp_lt_u32 s[{sTMP}:{sTMP+1}], v{vPB}, v{vEB}")
        e("s_nop 0")
        e(f"v_cndmask_b32 v{vAD}, v{vDUM}, v{vPA}, vcc")
        e(f"ds_read_b64 v[{vST}:{vST+1}], v{vAD}")
        e(f"v_cndmask_b32 v{vAD}, v{vDUM}, v{vPB}, s[{sTMP}:{sTMP+1}]")
        e(f"ds_read_b64 v[{vST+2}:{vST+3}], v{vAD}")
        e(f"v_add_u32 v{vPA}, 8, v{vPA}")
        e(f"v_add_u32 v{vPB}, 8, v{vPB}")
    rdrec()
    e(f"v_max_u32_dpp v{vX}, v{vX}, v{vX} row_ror:8 row_mask:0xf bank_mask:0xf")
    e(f"v_add_u32 v{vROWA}, v{vX+3}, v{vLOFF}")
    e(f"v_add_u32 v{vROWB}, v{vX+5}, v{vLOFF}")
    e(f"v_readlane_b32 s{sCNT}, v{vX}, 0")
    e(f"v_readlane_b32 s{sT}, v{vX}, 16")
    e(f"s_max_u32 s{sCNT}, s{sCNT}, s{sT}")
    e(f"v_readlane_b32 s{sT}, v{vX}, 32")
    e(f"s_max_u32 s{sCNT}, s{sCNT}, s{sT}")
    e(f"v_readlane_b32 s{sT}, v{vX}, 48")
    e(f"s_max_u32 s{sCNT}, s{sCNT}, s{sT}")
    order = [0, 2, 1, 3]
    def issue(slot):
        e("s_waitcnt lgkmcnt(0)")
        for k, r in enumerate(order):
            e(f"v_mad_u32_u16 v{vAD}, v{vST+r}, s{s128}, v{vLOFF}")
            d = vDATA + 16 * slot + 4 * k
            e(f"buffer_load_dwordx4 v[{d}:{d+3}], v{vAD}, s[{G}:{G+3}], 0 offen")
            a = vAOP + 8 * slot + 2 * k
            e(f"v_perm_b32 v{a}, v{vST+r}, v{vST+r}, v{vSEL0}")
            e(f"v_perm_b32 v{a+1}, v{vST+r}, v{vST+r}, v{vSEL1}")
        rdrec()
    def consume(slot, cnt):
        for k, r in enumerate(order):
            e(f"s_waitcnt vmcnt({cnt + 3 - k})")
            d = vDATA + 16 * slot + 4 * k
            a = vAOP + 8 * slot + 2 * k
            acc = vACC + (8 if r >= 2 else 0)
            e(f"v_mfma_f32_4x4x4_16b_bf16 v[{acc}:{acc+3}], v[{a}:{a+1}], v[{d}:{d+1}], v[{acc}:{acc+3}]")
            e(f"v_mfma_f32_4x4x4_16b_bf16 v[{acc+4}:{acc+7}], v[{a}:{a+1}], v[{d+2}:{d+3}], v[{acc+4}:{acc+7}]")
    for s in range(D - 1):
        issue(s)
    e(f"s_sub_i32 s{sCNT}, s{sCNT}, {D-1}")
    e(f"{P}GLOOP:")
    for p in range(D):
        e(f"s_cmp_le_i32 s{sCNT}, {p}")
        e(f"s_cbranch_scc1 {P}DRAIN{p}")
        issue((p + D - 1) % D)
        consume(p, 4 * (D - 1))
    e(f"s_sub_i32 s{sCNT}, s{sCNT}, {D}")
    e(f"s_branch {P}GLOOP")
    for p in range(D):
        e(f"{P}DRAIN{p}:")
        for k in range(D - 1):
            consume((p + k) % D, 4 * (D - 2 - k))
        if p != D - 1:
            e(f"s_branch {P}GDONE")
    e(f"{P}GDONE:")
    e("s_waitcnt lgkmcnt(0)")
    ts(H, 6, WS, sW, vTS)
    e(f"s_add_u32 s{sBB}, s{sBB}, 64")
    e(f"s_cmp_lt_u32 s{sBB}, s{sNBMAX}")
    e(f"s_cbranch_scc1 {P}NEXTB")
    e("s_nop 4")
    for i in range(8):
        e(f"v_cvt_pk_bf16_f32 v{vX+i}, v{vACC+2*i}, v{vACC+2*i+1}")
    if H == 1:
        e(f"buffer_store_dwordx4 v[{vX}:{vX+3}], v{vROWA}, s[{O}:{O+3}], 0 offen {cfg.H1FLAG}")
        e(f"buffer_store_dwordx4 v[{vX+4}:{vX+7}], v{vROWB}, s[{O}:{O+3}], 0 offen {cfg.H1FLAG}")
    else:
        vW = 40
        vq = vX + 8
        e(f"s_lshl_b32 s{sT}, s{sW}, 11")
        e(f"s_add_u32 s{sT}, s{sT}, {L_TILE}")
        e(f"v_lshrrev_b32 v{vq}, 3, v{vLANE}")
        e(f"v_xor_b32 v{vq+1}, v{vq}, v{vLANE}")
        e(f"v_and_b32 v{vq+1}, 7, v{vq+1}")
        e(f"v_lshlrev_b32 v{vq+1}, 4, v{vq+1}")
        e(f"v_lshl_add_u32 v{vq+1}, v{vq}, 7, v{vq+1}")
        e(f"v_add_u32 v{vq+1}, s{sT}, v{vq+1}")
        e(f"ds_write_b128 v{vq+1}, v[{vX}:{vX+3}]")
        e(f"ds_write_b128 v{vq+1}, v[{vX+4}:{vX+7}] offset:1024")
        e(f"v_lshlrev_b32 v{vq+2}, 4, v{vLANE}")
        for i in range(8):
            e(f"ds_read_b128 v[{vW+4*i}:{vW+4*i+3}], v{vq+2} offset:{L_WT + 1024*i}")
        e(f"v_and_b32 v{vq}, 15, v{vLANE}")
        e(f"v_lshrrev_b32 v{vq+3}, 4, v{vLANE}")
        e(f"v_xor_b32 v{vq+4}, v{vq+3}, v{vq}")
        e(f"v_and_b32 v{vq+4}, 7, v{vq+4}")
        e(f"v_lshlrev_b32 v{vq+4}, 4, v{vq+4}")
        e(f"v_lshl_add_u32 v{vq+4}, v{vq}, 7, v{vq+4}")
        e(f"v_add_u32 v{vq+4}, s{sT}, v{vq+4}")
        e(f"v_xor_b32 v{vq+5}, 64, v{vq+4}")
        e(f"ds_read_b128 v[{vX}:{vX+3}], v{vq+4}")
        e(f"ds_read_b128 v[{vX+4}:{vX+7}], v{vq+5}")
        e(f"s_lshl_b32 s{sT}, s{sW}, 7")
        e(f"v_lshl_add_u32 v{vq}, v{vq}, 3, s{sT}")
        e(f"ds_read_b32 v{vq}, v{vq} offset:{L_NT+4}")
        e("s_waitcnt lgkmcnt(0)")
        for mb in range(4):
            e(f"v_mfma_f32_16x16x32_bf16 v[{vACC+4*mb}:{vACC+4*mb+3}], v[{vW+8*mb}:{vW+8*mb+3}], v[{vX}:{vX+3}], 0")
        for mb in range(4):
            e(f"v_mfma_f32_16x16x32_bf16 v[{vACC+4*mb}:{vACC+4*mb+3}], v[{vW+8*mb+4}:{vW+8*mb+7}], v[{vX+4}:{vX+7}], v[{vACC+4*mb}:{vACC+4*mb+3}]")
        e(f"v_lshl_add_u32 v{vq}, v{vq+3}, 4, v{vq}")
        e("s_nop 7")
        for i in range(8):
            e(f"v_cvt_pk_bf16_f32 v{vX+i}, v{vACC+2*i}, v{vACC+2*i+1}")
        e(f"buffer_store_dwordx4 v[{vX}:{vX+3}], v{vq}, s[{O}:{O+3}], 0 offen {cfg.OUTFLAG}")
        e(f"buffer_store_dwordx4 v[{vX+4}:{vX+7}], v{vq}, s[{O}:{O+3}], 0 offen offset:64 {cfg.OUTFLAG}")
    if cfg.TS:
        e("s_waitcnt vmcnt(0)")
        ts(H, 7, WS, sW, vTS)
    e("s_endpgm")
    e(f"{P}HELPER:")
    if H == 1:
        e(f"s_cmp_lg_u32 s{sBB}, 0")
        e(f"s_cbranch_scc1 {P}HELP_DONE")
        e(f"v_subrev_u32 v{vX}, 832, v0")
        e(f"v_lshlrev_b32 v{vX}, 4, v{vX}")
        for i in range(6):
            e(f"ds_read_b128 v[{40+4*i}:{43+4*i}], v{vX} offset:{3072*i}")
        e(f"s_min_u32 s{sTOT}, s{sTOT}, {IMG_BYTES}")
        e(f"s_lshl_b32 s{sT}, s3, 14")
        e(f"s_add_u32 s{sT}, s{sT}, 0x{IMG_OFF:x}")
        for i in range(6):
            e(f"v_add_u32 v{vX+1}, {3072*i}, v{vX}")
            e(f"v_cmp_gt_u32 vcc, s{sTOT}, v{vX+1}")
            e(f"v_add_u32 v{vX+1}, s{sT}, v{vX+1}")
            e(f"v_mov_b32 v{vX+2}, 0x80000000")
            e(f"v_cndmask_b32 v{vX+1}, v{vX+2}, v{vX+1}, vcc")
            e(f"s_waitcnt lgkmcnt({5-i})")
            e(f"buffer_store_dwordx4 v[{40+4*i}:{43+4*i}], v{vX+1}, s[{WS}:{WS+3}], 0 offen {cfg.IMGFLAG}")
        e(f"s_cmp_lg_u32 s{sW}, 15")
        e(f"s_cbranch_scc1 {P}HELP_DONE")
        e(f"s_cmp_ge_u32 s2, 8")
        e(f"s_cbranch_scc1 {P}HELP_DONE")
        e(f"s_and_b32 s{sT}, s2, 1")
        e(f"s_lshl_b32 s{sT}, s{sT}, 12")
        e(f"s_lshr_b32 s{sT+1}, s2, 2")
        e(f"s_lshl_b32 s{sT+1}, s{sT+1}, 6")
        e(f"s_add_u32 s{sT}, s{sT}, s{sT+1}")
        e(f"s_and_b32 s{sT+1}, s2, 2")
        e(f"s_lshl_b32 s{sT+1}, s{sT+1}, 2")
        e(f"s_add_u32 s{sT}, s{sT}, s{sT+1}")
        e(f"v_lshrrev_b32 v{vX}, 4, v{vLANE}")
        e(f"v_lshl_add_u32 v{vX}, v{vX}, 10, s{sT}")
        e(f"v_and_b32 v{vX+1}, 12, v{vLANE}")
        e(f"v_lshl_add_u32 v{vX}, v{vX+1}, 2, v{vX}")
        e(f"v_and_b32 v{vX+1}, 3, v{vLANE}")
        e(f"v_lshl_add_u32 v{vX}, v{vX+1}, 1, v{vX}")
        for j in range(8):
            e(f"buffer_load_ushort v{64+j}, v{vX}, s[{WSRD}:{WSRD+3}], 0 offen offset:{128*j}")
        e(f"s_lshl_b32 s{sT}, s2, 10")
        e(f"s_add_u32 s{sT}, s{sT}, 0x{WT_OFF:x}")
        e(f"v_lshl_add_u32 v{vX}, v{vLANE}, 4, s{sT}")
        e("s_waitcnt vmcnt(0)")
        for j in range(4):
            e(f"v_lshl_or_b32 v{vX+4+j}, v{64+2*j+1}, 16, v{64+2*j}")
        e(f"buffer_store_dwordx4 v[{vX+4}:{vX+7}], v{vX}, s[{WS}:{WS+3}], 0 offen")
        e(f"{P}HELP_DONE:")
    e(f"s_add_u32 s{sBB}, s{sBB}, 64")
    e(f"s_cmp_lt_u32 s{sBB}, s{sNBMAX}")
    e(f"s_cbranch_scc0 {P}END")
    e(f"{P}NEXTB:")
    e("s_waitcnt vmcnt(0) lgkmcnt(0)")
    e("s_barrier")
    e(f"s_branch {P}BATCH")
    e(f"{P}END:")
    e("s_endpgm")
    return name, NV, 102 if cfg.TS else 64

head = open("standalone__spectral_conv_sgc__graph.s.ref").read().split("; Override")[0]
e(head.rstrip())
e(f"; @launch kernel=sgc_part_kernel grid=(256,1,1) block=(832,1,1) lds={K1_LDS}")
e(f"; @launch kernel=sgc_hop1_kernel grid=(256,1,1) block=(1024,1,1) lds={L_END2}")
e(f"; @launch kernel=sgc_hop2_kernel grid=(256,1,1) block=(1024,1,1) lds={L_END3}")
e('.amdgcn_target "amdgcn-amd-amdhsa--gfx950"')
e(".text")
ks = [k1(), hop(1), hop(2)]
e('.section .rodata,"a"')
for k in ks:
    e(".p2align 6")
    e(desc(*k))
open(sys.argv[1], "w").write("\n".join(x for x in out if x is not None) + "\n")
```

```python
import sys
src=open(sys.argv[1]).read()
ka,sa,ma,kb,sb,mb=sys.argv[3].split(',')
WB=int(sys.argv[4]) if len(sys.argv)>4 else None
MULT=8
TS_OFF=0x1600000
lines=src.split('\n')
lines=[l.replace('; @launch grid','; @launch kernel=standalone__spectral_conv_sgc__graph_kernel grid') for l in lines]
idx=[i for i,l in enumerate(lines) if l.startswith('; @launch')]
lines[idx[-1]+1:idx[-1]+1]=['; @launch kernel=probe_kernel grid=(1,1,1) block=(256,1,1) lds=64']
src='\n'.join(lines)
oa=TS_OFF+int(ka)*0x80000+int(sa)*8; ob=TS_OFF+int(kb)*0x80000+int(sb)*8
body=f'''.globl probe_kernel
.p2align 8
.type probe_kernel,@function
probe_kernel:
s_cmp_ge_u32 s2, 1
s_cbranch_scc1 P_END
s_load_dwordx2 s[4:5], s[0:1], 56
v_lshlrev_b32 v1, 11, v0
v_add_u32 v2, 0x{oa:x}, v1
v_add_u32 v3, 0x{ob:x}, v1
v_mov_b32 v40, 0x{oa:x}
s_waitcnt lgkmcnt(0)
s_mov_b32 s8, s4
s_mov_b32 s9, s5
s_mov_b32 s10, 0x1800000
s_mov_b32 s11, 0x20000
buffer_load_dword v41, v40, s[8:11], 0 offen
'''
for w in range(13):
    body+=f'buffer_load_dword v{4+w}, v2, s[8:11], 0 offen offset:{128*w}\n'
    body+=f'buffer_load_dword v{20+w}, v3, s[8:11], 0 offen offset:{128*(w if WB is None else WB)}\n'
body+='s_waitcnt vmcnt(0)\n'
for w in range(13):
    body+=f'v_sub_u32 v{4+w}, v{4+w}, v41\nv_sub_u32 v{20+w}, v{20+w}, v41\n'
for w in range(1,13):
    body+=f'v_{ma}_i32 v4, v4, v{4+w}\nv_{mb}_i32 v20, v20, v{20+w}\n'
ia='0x7fffffff' if ma=='min' else '0x80000000'
ib='0x7fffffff' if mb=='min' else '0x80000000'
body+=f'''v_mov_b32 v42, 0
v_mov_b32 v43, {ia}
v_mov_b32 v44, {ib}
ds_write_b32 v42, v43
ds_write_b32 v42, v44 offset:4
s_waitcnt lgkmcnt(0)
s_barrier
ds_{ma}_i32 v42, v4
ds_{mb}_i32 v42, v20 offset:4
s_waitcnt lgkmcnt(0)
s_barrier
ds_read_b64 v[44:45], v42
s_waitcnt lgkmcnt(0)
v_sub_u32 v44, v45, v44
s_nop 1
v_readfirstlane_b32 s12, v44
s_max_i32 s12, s12, 0
s_min_i32 s12, s12, 5000
s_mul_i32 s12, s12, {MULT}
s_memrealtime s[14:15]
s_waitcnt lgkmcnt(0)
P_SPIN:
s_memrealtime s[16:17]
s_waitcnt lgkmcnt(0)
s_sub_u32 s18, s16, s14
s_cmp_lt_u32 s18, s12
s_cbranch_scc1 P_SPIN
P_END:
s_endpgm
.section .rodata,"a"
.p2align 6
.amdhsa_kernel probe_kernel
  .amdhsa_next_free_vgpr 48
  .amdhsa_next_free_sgpr 32
  .amdhsa_accum_offset 48
  .amdhsa_group_segment_fixed_size 0
  .amdhsa_kernarg_size 64
  .amdhsa_user_sgpr_count 2
  .amdhsa_user_sgpr_kernarg_segment_ptr 1
  .amdhsa_system_sgpr_workgroup_id_x 1
.end_amdhsa_kernel
'''
src=src.replace('.section .rodata,"a"',body,1)
open(sys.argv[2],'w').write(src)
```

```python
import sys

class Cfg:
    D = 3
    TS = 0
    PF1 = 0
    PF2 = 0
    PACE = 4
    EFLAG = ""
    RLFLAG = "sc1"
    OUTFLAG = ""
    SLEEP = 1
cfg = Cfg()
for a in sys.argv[2:]:
    k, v = a.split("=")
    cur = getattr(cfg, k)
    setattr(cfg, k, int(v) if isinstance(cur, int) else v.replace("+", " "))

N = 50000; E = 850000
NB = 196; CH = 3328; MAG = 85599
REC_OFF = 0
TAB_OFF = 0x680000
FLG_OFF = 0x700000
EPO_OFF = 0x710000
H1_OFF = 0x800000
TS_OFF = 0x1200000
WS_USED = 0x1400000
ROWB = N * 128
SPIN_MAX = 1 << 20

L_DUMMY = 16
L_NONCE = 0
L_NT = 32
L_RECS = 32 + 208 * 8
L_CNT = 35328
L_DH = L_CNT + 4096
L_MISC = L_DH + 256
L_D = L_MISC + 256
L_HIST = L_D + 4096
L_ZEND = L_HIST + 1024
L_WT = L_ZEND
L_STAGE = L_WT + 8192
L_TILE = L_STAGE
L_END = L_STAGE + CH * 8
assert L_TILE % 128 == 0

out = []
def e(s=""):
    out.append(s)

def srd(d, lo, hi, nrec, off=0):
    if off:
        e(f"s_add_u32 s{d}, s{lo}, 0x{off:x}")
        e(f"s_addc_u32 s{d+1}, s{hi}, 0")
    else:
        e(f"s_mov_b32 s{d}, s{lo}")
        e(f"s_mov_b32 s{d+1}, s{hi}")
    e(f"s_mov_b32 s{d+2}, 0x{nrec:x}")
    e(f"s_mov_b32 s{d+3}, 0x20000")

def scan64(v, first=1):
    sh = first
    while sh <= 8:
        e(f"v_add_u32_dpp v{v}, v{v}, v{v} row_shr:{sh} row_mask:0xf bank_mask:0xf bound_ctrl:0")
        e("s_nop 1")
        sh *= 2
    e(f"v_add_u32_dpp v{v}, v{v}, v{v} row_bcast:15 row_mask:0xa bank_mask:0xf")
    e("s_nop 1")
    e(f"v_add_u32_dpp v{v}, v{v}, v{v} row_bcast:31 row_mask:0xc bank_mask:0xf")
    e("s_nop 1")

pX, pSRC, pDST, pNRM, pW, pOUT, pDBG, pWS = 64, 66, 68, 70, 72, 74, 76, 78
G, WS, O, T1 = 8, 12, 16, 20
T2, T3 = 24, 4
sW, sTB, sBB, sNBMAX, s128, sCNT, sT, sNR = 28, 29, 30, 31, 32, 33, 34, 36
sHOP, sNONCE, sSPIN = 37, 38, 39
sM = 40
sNODE = 56
sTMP = 58
sI4, sN1, sPN = 60, 61, 62
sVAL = 80
sC0, sC1, sC2, sC3 = 82, 83, 84, 85
vLANE, vE, vP, vSEL0, vSEL1, vLOFF, vONE = 1, 2, 4, 5, 6, 7, 39
vACC = 8
vPA, vEA, vPB, vEB, vROWA, vROWB, vDUM, vAD = 24, 25, 26, 27, 28, 29, 30, 31
vST = 32
vTS = 36
D = cfg.D
vDATA = 40
vAOP = vDATA + 16 * D
vPFD = max(vAOP + 8 * D, 88)
NV = vPFD + 1
vDESC, vREC, vRANK, vX = 40, 48, 64, 72

def ts(slot, dyn=False):
    if not cfg.TS:
        return
    e("s_memrealtime s[96:97]")
    e(f"s_lshl_b32 s98, s2, 4")
    e(f"s_add_u32 s98, s98, s{sW}")
    e(f"s_lshl_b32 s98, s98, 7")
    e(f"s_add_u32 s98, s98, 0x{TS_OFF + slot * 8:x}")
    if dyn:
        e(f"s_mul_i32 s99, s{sHOP}, 24")
        e(f"s_add_u32 s98, s98, s99")
    e("s_mov_b64 s[100:101], exec")
    e("s_mov_b64 exec, 1")
    e(f"v_mov_b32 v{vTS+2}, s98")
    e("s_waitcnt lgkmcnt(0)")
    e(f"v_mov_b32 v{vTS}, s96")
    e(f"v_mov_b32 v{vTS+1}, s97")
    e(f"buffer_store_dwordx2 v[{vTS}:{vTS+1}], v{vTS+2}, s[{WS}:{WS+3}], 0 offen")
    e("s_mov_b64 exec, s[100:101]")

def zero_lds():
    e(f"v_mov_b32 v{vX}, 0")
    e(f"v_mov_b32 v{vX+1}, 0")
    e(f"v_mov_b32 v{vX+2}, 0")
    e(f"v_mov_b32 v{vX+3}, 0")
    e(f"v_lshlrev_b32 v{vX+4}, 4, v0")
    e(f"v_cmp_gt_u32 vcc, {(L_ZEND-L_CNT)//16}, v0")
    e(f"s_mov_b64 exec, vcc")
    e(f"ds_write_b128 v{vX+4}, v[{vX}:{vX+3}] offset:{L_CNT}")
    e("s_mov_b64 exec, -1")

NAME = "standalone__spectral_conv_sgc__graph_kernel"
def body():
    e(f".globl {NAME}")
    e(".p2align 8")
    e(f".type {NAME},@function")
    e(f"{NAME}:")
    e("s_cmp_ge_u32 s2, 256")
    e("s_cbranch_scc1 L_END")
    e("s_load_dwordx16 s[64:79], s[0:1], 0")
    e(f"v_lshrrev_b32 v{vX+5}, 6, v0")
    e(f"s_mul_i32 s{sT}, s2, 832")
    e(f"v_readfirstlane_b32 s{sW}, v{vX+5}")
    e(f"v_add_u32 v40, s{sT}, v0")
    e("v_lshlrev_b32 v41, 4, v40")
    e("v_lshlrev_b32 v42, 3, v40")
    e("s_and_b32 s3, s2, 7")
    e("s_lshl_b32 s3, s3, 5")
    e(f"s_lshr_b32 s{sT}, s2, 3")
    e(f"s_or_b32 s3, s3, s{sT}")
    e(f"s_cmp_ge_u32 s{sW}, 13")
    e("s_waitcnt lgkmcnt(0)")
    e(f"s_mov_b32 s{WS}, s{pWS}")
    e(f"s_mov_b32 s{WS+1}, s{pWS+1}")
    e(f"s_mov_b32 s{WS+2}, 0x{WS_USED:x}")
    e(f"s_mov_b32 s{WS+3}, 0x20000")
    e("s_cbranch_scc1 L_P1H0")
    srd(T1, pDST, pDST+1, E * 4)
    e(f"buffer_load_dwordx4 v[44:47], v41, s[{T1}:{T1+3}], 0 offen {cfg.EFLAG}")
    srd(T2, pSRC, pSRC+1, E * 4)
    e(f"buffer_load_dwordx4 v[48:51], v41, s[{T2}:{T2+3}], 0 offen {cfg.EFLAG}")
    srd(T3, pNRM, pNRM+1, E * 2)
    e(f"buffer_load_dwordx2 v[52:53], v42, s[{T3}:{T3+3}], 0 offen {cfg.EFLAG}")
    e("L_P1H0:")
    srd(G, pX, pX+1, ROWB)
    srd(O, pWS, pWS+1, ROWB, H1_OFF)
    ts(0)
    zero_lds()
    e(f"v_and_b32 v{vLANE}, 63, v0")
    e(f"s_mov_b32 s{s128}, 128")
    e(f"s_mov_b32 s{sBB}, 0")
    e(f"s_mov_b32 s{sHOP}, 0")
    e(f"s_mov_b32 s{sC0}, {E//4}")
    e(f"s_mov_b32 s{sC1}, -196")
    e(f"s_mov_b32 s{sC2}, 0x05040100")
    e(f"s_mov_b32 s{sC3}, 0x07060100")
    e(f"v_cmp_gt_u32 s[{sVAL}:{sVAL+1}], s{sC0}, v40")
    e(f"v_and_b32 v{vX+4}, 7, v0")
    e(f"v_lshlrev_b32 v{vLOFF}, 4, v{vX+4}")
    e(f"v_mov_b32 v{vONE}, 1")
    e(f"v_mov_b32 v{vDUM}, {L_DUMMY}")
    e(f"v_and_b32 v{vX+4}, 1, v0")
    e(f"v_mov_b32 v{vX+5}, 0x0c0c0302")
    e(f"v_mov_b32 v{vX+6}, 0x03020c0c")
    e(f"v_cmp_eq_u32 vcc, 1, v{vX+4}")
    e(f"v_mov_b32 v{vX+7}, 0x0c0c0c0c")
    e(f"v_and_b32 v{vX+4}, 2, v0")
    e(f"v_cndmask_b32 v{vX+5}, v{vX+5}, v{vX+6}, vcc")
    e(f"v_cmp_eq_u32 vcc, 2, v{vX+4}")
    for i in range(16):
        e(f"v_mov_b32 v{vACC+i}, 0")
    e(f"v_cndmask_b32 v{vSEL0}, v{vX+5}, v{vX+7}, vcc")
    e(f"v_cndmask_b32 v{vSEL1}, v{vX+7}, v{vX+5}, vcc")
    e(f"v_cmp_gt_u32 vcc, 208, v0")
    e(f"s_mov_b64 s[{sNODE}:{sNODE+1}], vcc")
    e(f"v_mov_b32 v{vP}, 0")
    e("s_waitcnt lgkmcnt(0)")
    e("s_barrier")
    e(f"s_cmp_ge_u32 s{sW}, 13")
    e("s_cbranch_scc1 L_P1H1")
    tsx = 1 if cfg.TS else 0
    e(f"s_mov_b64 exec, s[{sVAL}:{sVAL+1}]")
    e(f"s_waitcnt vmcnt({2+tsx})")
    for i in range(4):
        e(f"v_mul_u32_u24 v{74+i}, {MAG}, v{44+i}")
    for i in range(4):
        e(f"v_lshrrev_b32 v{70+i}, 24, v{74+i}")
        e(f"v_lshlrev_b32 v{54+i}, 2, v{70+i}")
        e(f"ds_add_rtn_u32 v{58+i}, v{54+i}, v{vONE} offset:{L_HIST}")
    for i in range(4):
        e(f"v_mad_i32_i24 v{44+i}, v{70+i}, s{sC1}, v{44+i}")
        e(f"v_and_b32 v{74+i}, 0xe0000000, v{74+i}")
    e("s_mov_b64 exec, -1")
    e("s_waitcnt lgkmcnt(0)")
    ts(1)
    e("s_barrier")
    e(f"s_cmp_lg_u32 s{sW}, 0")
    e("s_cbranch_scc1 L_P1_NOSCAN")
    e("v_lshlrev_b32 v79, 4, v0")
    e(f"ds_read_b128 v[80:83], v79 offset:{L_HIST}")
    e("s_waitcnt lgkmcnt(0)")
    e("v_add_u32 v85, v80, v81")
    e("v_add_u32 v86, v85, v82")
    e("v_add_u32 v87, v86, v83")
    e("v_mov_b32 v84, v87")
    e("s_nop 1")
    scan64(84)
    e("v_sub_u32 v84, v84, v87")
    e("v_add_u32 v87, v84, v86")
    e("v_add_u32 v86, v84, v85")
    e("v_add_u32 v85, v84, v80")
    e(f"ds_write_b128 v79, v[84:87] offset:{L_HIST}")
    for i in range(4):
        e(f"v_lshl_or_b32 v{80+i}, v{80+i}, 16, v{84+i}")
    e("L_P1_NOSCAN:")
    e(f"s_mov_b64 exec, s[{sVAL}:{sVAL+1}]")
    e(f"s_waitcnt vmcnt({2*tsx})")
    for i in range(4):
        e(f"v_mul_u32_u24 v78, {MAG}, v{48+i}")
        e(f"v_sub_u32 v78, v78, v{74+i}")
        e(f"v_lshrrev_b32 v78, 30, v78")
        e(f"v_lshl_or_b32 v78, v{44+i}, 2, v78")
        e(f"v_lshlrev_b32 v{63+2*i}, 2, v78")
        e(f"v_perm_b32 v{62+2*i}, v{52+i//2}, v{48+i}, s{sC2 if i%2==0 else sC3}")
    e("s_waitcnt lgkmcnt(0)")
    e("s_barrier")
    for i in range(4):
        e(f"ds_read_b32 v{74+i}, v{54+i} offset:{L_HIST}")
    for i in range(4):
        e(f"s_waitcnt lgkmcnt(3)")
        e(f"v_add_lshl_u32 v{74+i}, v{74+i}, v{58+i}, 3")
        e(f"ds_write_b64 v{74+i}, v[{62+2*i}:{63+2*i}] offset:{L_STAGE}")
    e("s_mov_b64 exec, -1")
    e("v_lshlrev_b32 v40, 4, v0")
    e(f"s_mul_i32 s{sT}, s2, {CH*8}")
    e(f"v_add_u32 v41, s{sT}, v40")
    e(f"v_add_u32 v42, {CH*4}, v41")
    e(f"v_add_u32 v40, {L_STAGE}, v40")
    e("s_waitcnt lgkmcnt(0)")
    e("s_barrier")
    e(f"ds_read_b128 v[44:47], v40")
    e(f"ds_read_b128 v[48:51], v40 offset:{CH*4}")
    e("s_waitcnt lgkmcnt(1)")
    e(f"buffer_store_dwordx4 v[44:47], v41, s[{WS}:{WS+3}], 0 offen sc1")
    e("s_waitcnt lgkmcnt(0)")
    e(f"buffer_store_dwordx4 v[48:51], v42, s[{WS}:{WS+3}], 0 offen sc1")
    ts(2)
    e("s_branch L_P1_JOIN")
    e("L_P1H1:")
    e(f"s_cmp_eq_u32 s{sW}, 15")
    e("s_cbranch_scc1 L_P1_NONCE")
    srd(T1, pW, pW+1, 8192)
    e(f"s_sub_u32 s{sT}, s{sW}, 13")
    e(f"s_lshl_b32 s{sT}, s{sT}, 12")
    e(f"v_lshl_add_u32 v40, v{vLANE}, 4, s{sT}")
    for i in range(4):
        e(f"buffer_load_dwordx4 v[{44+4*i}:{47+4*i}], v40, s[{T1}:{T1+3}], 0 offen offset:{1024*i}")
    e(f"s_lshr_b32 s{sT}, s{sT}, 2")
    e(f"v_lshrrev_b32 v41, 3, v{vLANE}")
    e(f"v_lshl_add_u32 v41, v41, 1, s{sT}")
    e(f"v_and_b32 v42, 4, v{vLANE}")
    e(f"v_lshl_add_u32 v41, v42, 10, v41")
    e(f"v_and_b32 v42, 3, v{vLANE}")
    e(f"v_lshl_add_u32 v41, v42, 6, v41")
    for i in range(4):
        e(f"s_waitcnt vmcnt({3-i})")
        for el in range(8):
            off = L_WT + (el >> 2) * 2048 + (el & 3) * 16 + i * 256
            op = "ds_write_b16" if el % 2 == 0 else "ds_write_b16_d16_hi"
            e(f"{op} v41, v{44+4*i+el//2} offset:{off}")
    e("s_branch L_P1H2")
    e("L_P1_NONCE:")
    srd(T1, pDBG, pDBG+1, 256)
    e("s_mov_b64 exec, 1")
    e("v_mov_b32 v40, 0")
    e("v_mov_b32 v46, 0xffff")
    e("v_mov_b32 v47, 0xffff")
    e(f"ds_write_b64 v40, v[46:47] offset:{L_DUMMY}")
    e("s_cmp_lg_u32 s2, 0")
    e("s_cbranch_scc1 L_NONCE_POLL0")
    e(f"v_mov_b32 v41, 0x{EPO_OFF:x}")
    e(f"buffer_load_dword v42, v41, s[{WS}:{WS+3}], 0 offen sc1")
    e(f"s_mov_b32 s{sT}, 0x2c9277b5")
    e("v_mov_b32 v43, 1")
    e("s_waitcnt vmcnt(0)")
    e(f"v_mul_lo_u32 v42, v42, s{sT}")
    e("v_add_u32 v42, 0x3c6ef35f, v42")
    e(f"buffer_store_dwordx2 v[42:43], v40, s[{T1}:{T1+3}], 0 offen sc1")
    e(f"buffer_store_dword v42, v41, s[{WS}:{WS+3}], 0 offen sc1")
    e("s_branch L_NONCE_GOT")
    e("L_NONCE_POLL0:")
    e(f"s_mov_b32 s{sSPIN}, {SPIN_MAX}")
    e("L_NONCE_POLL:")
    e(f"buffer_load_dwordx2 v[42:43], v40, s[{T1}:{T1+3}], 0 offen sc1")
    e(f"s_sub_u32 s{sSPIN}, s{sSPIN}, 1")
    e("s_cbranch_scc1 L_NONCE_GOT")
    e("s_waitcnt vmcnt(0)")
    e("v_cmp_eq_u32 vcc, 1, v43")
    e("s_cbranch_vccnz L_NONCE_GOT")
    e("s_sleep 8")
    e("s_branch L_NONCE_POLL")
    e("L_NONCE_GOT:")
    e("s_waitcnt vmcnt(0)")
    e(f"ds_write_b32 v40, v42 offset:{L_NONCE}")
    e("s_mov_b64 exec, -1")
    e("L_P1H2:")
    e("s_barrier")
    if cfg.PF1:
        e(f"s_and_b32 s{sT}, s2, 7")
        e(f"s_mul_i32 s{sT}, s{sT}, 6272")
        e(f"s_lshr_b32 s{sT+1}, s2, 3")
        e(f"s_mul_i32 s{sT+1}, s{sT+1}, 192")
        e(f"s_add_u32 s{sT}, s{sT}, s{sT+1}")
        e(f"s_sub_u32 s{sT}, s{sT}, 832")
        e(f"v_add_u32 v40, s{sT}, v0")
        for i in range(cfg.PF1):
            e(f"v_add_u32 v41, {i*32*192}, v40")
            e(f"v_subrev_u32 v42, 50176, v41")
            e(f"v_min_u32 v41, v41, v42")
            e(f"v_lshlrev_b32 v41, 7, v41")
            e(f"buffer_load_dword v{vPFD}, v41, s[{G}:{G+3}], 0 offen")
    e("s_barrier")
    e("s_waitcnt lgkmcnt(0)")
    e("s_barrier")
    e("s_branch L_P1_JOIN2")
    e("L_P1_JOIN:")
    e("s_waitcnt vmcnt(0)")
    e("L_P1_JOIN2:")
    e("v_mov_b32 v40, 0")
    e(f"ds_read_b32 v40, v40 offset:{L_NONCE}")
    e(f"v_lshrrev_b32 v{vX}, 2, v0")
    e(f"s_lshl_b32 s{sT}, s3, 3")
    e(f"s_add_u32 s{sT}, s{sT}, 0x{TAB_OFF:x}")
    e(f"v_lshl_add_u32 v{vX+1}, v{vX}, 11, s{sT}")
    e("s_waitcnt lgkmcnt(0)")
    e(f"v_readfirstlane_b32 s{sNONCE}, v40")
    e("s_barrier")
    e(f"s_cmp_lg_u32 s{sW}, 0")
    e("s_cbranch_scc1 L_NOPUB")
    e(f"s_lshl_b32 s{sT}, s2, 11")
    e(f"s_add_u32 s{sT}, s{sT}, 0x{TAB_OFF:x}")
    e(f"v_lshl_add_u32 v41, v0, 5, s{sT}")
    for i in range(4):
        e(f"v_mov_b32 v{44+2*i}, v{80+i}")
        e(f"v_mov_b32 v{45+2*i}, v40")
    e(f"buffer_store_dwordx4 v[44:47], v41, s[{WS}:{WS+3}], 0 offen sc1")
    e(f"buffer_store_dwordx4 v[48:51], v41, s[{WS}:{WS+3}], 0 offen offset:16 sc1")
    e("L_NOPUB:")
    ts(3)
    e(f"s_mov_b32 s{sSPIN}, {SPIN_MAX}")
    e("L_TPOLL:")
    e(f"buffer_load_dwordx2 v[{vE}:{vE+1}], v{vX+1}, s[{WS}:{WS+3}], 0 offen sc1")
    e(f"s_sub_u32 s{sSPIN}, s{sSPIN}, 1")
    e("s_cbranch_scc1 L_TPOLL_FAIL")
    e("s_waitcnt vmcnt(0)")
    e(f"v_cmp_ne_u32 vcc, s{sNONCE}, v{vE+1}")
    e("s_cbranch_vccz L_DECODE")
    if cfg.SLEEP:
        e(f"s_sleep {cfg.SLEEP}")
    e("s_branch L_TPOLL")
    e("L_TPOLL_FAIL:")
    e("s_waitcnt vmcnt(0)")
    e(f"v_mov_b32 v{vE}, 0")
    e("s_branch L_DECODE")

    e("L_BATCH:")
    zero_lds()
    e("s_waitcnt lgkmcnt(0)")
    e("s_barrier")
    e("L_DECODE:")
    ts(4)
    vLEN, vSTART, vNBLK, vQ, vT, vB, vD, vA = vX, vX+1, vX+2, vX+3, vX+4, vX+5, vX+6, vX+7
    e(f"v_lshrrev_b32 v{vLEN}, 16, v{vE}")
    e(f"v_add_u32 v{vNBLK}, 7, v{vLEN}")
    e(f"v_lshrrev_b32 v{vNBLK}, 3, v{vNBLK}")
    e(f"v_mov_b32 v{vQ}, v{vNBLK}")
    e(f"v_lshrrev_b32 v{vSTART}, 2, v0")
    e(f"v_mul_u32_u24 v{vSTART}, {CH}, v{vSTART}")
    sh = 4
    e(f"v_add_u32_dpp v{vQ}, v{vQ}, v{vQ} row_shr:4 row_mask:0xf bank_mask:0xf bound_ctrl:0")
    e(f"v_and_b32 v{vB}, 0xffff, v{vE}")
    e(f"v_add_u32 v{vSTART}, v{vSTART}, v{vB}")
    e(f"v_add_u32_dpp v{vQ}, v{vQ}, v{vQ} row_shr:8 row_mask:0xf bank_mask:0xf bound_ctrl:0")
    e(f"v_and_b32 v{vT}, 3, v0")
    e(f"s_lshl_b32 s{sT}, s{sW}, 8")
    e(f"v_add_u32_dpp v{vQ}, v{vQ}, v{vQ} row_bcast:15 row_mask:0xa bank_mask:0xf")
    e(f"s_add_u32 s{sT}, s{sT}, {L_D}")
    e("s_nop 0")
    e(f"v_add_u32_dpp v{vQ}, v{vQ}, v{vQ} row_bcast:31 row_mask:0xc bank_mask:0xf")
    e("s_nop 0")
    e(f"v_readlane_b32 s{sTB}, v{vQ}, 63")
    e(f"v_sub_u32 v{vQ}, v{vQ}, v{vNBLK}")
    e(f"v_subrev_u32 v{vQ}, s{sBB}, v{vQ}")
    e(f"L_DLOOP:")
    e(f"v_add_u32 v{vB}, v{vQ}, v{vT}")
    e(f"v_lshlrev_b32 v{vA}, 3, v{vT}")
    e(f"v_add_u32 v{vD}, v{vSTART}, v{vA}")
    e(f"v_sub_u32 v{vA}, v{vLEN}, v{vA}")
    e(f"v_min_u32 v{vA}, 8, v{vA}")
    e(f"v_lshl_or_b32 v{vD}, v{vD}, 4, v{vA}")
    e(f"v_cmp_lt_u32 s[{sTMP}:{sTMP+1}], v{vT}, v{vNBLK}")
    e(f"v_cmp_gt_u32 vcc, 64, v{vB}")
    e(f"v_and_b32 v{vA}, 7, v{vB}")
    e(f"v_lshrrev_b32 v{vB}, 3, v{vB}")
    e(f"v_lshl_add_u32 v{vA}, v{vA}, 3, v{vB}")
    e(f"v_lshl_add_u32 v{vA}, v{vA}, 2, s{sT}")
    e(f"v_add_u32 v{vT}, 4, v{vT}")
    e(f"s_and_b64 exec, vcc, s[{sTMP}:{sTMP+1}]")
    e(f"ds_write_b32 v{vA}, v{vD}")
    e("s_mov_b64 exec, -1")
    e(f"v_cmp_lt_u32 vcc, v{vT}, v{vNBLK}")
    e(f"s_cbranch_vccnz L_DLOOP")
    e(f"v_lshrrev_b32 v{vA}, 3, v{vLANE}")
    e(f"v_lshl_add_u32 v{vA}, v{vA}, 5, s{sT}")
    e(f"ds_read_b128 v[{vDESC}:{vDESC+3}], v{vA}")
    e(f"ds_read_b128 v[{vDESC+4}:{vDESC+7}], v{vA} offset:16")
    e(f"s_sub_i32 s{sNR}, s{sTB}, s{sBB}")
    e(f"v_and_b32 v{vT}, 7, v0")
    e("s_waitcnt lgkmcnt(0)")
    for m in range(8):
        e(f"s_cmp_le_i32 s{sNR}, {8*m}")
        e(f"s_cbranch_scc1 L_LD_DONE")
        e(f"v_and_b32 v{vA}, 15, v{vDESC+m}")
        e(f"v_lshrrev_b32 v{vB}, 4, v{vDESC+m}")
        e(f"v_cmp_lt_u32 s[{sM+2*m}:{sM+2*m+1}], v{vT}, v{vA}")
        e(f"v_add_lshl_u32 v{vB}, v{vB}, v{vT}, 3")
        e(f"s_mov_b64 exec, s[{sM+2*m}:{sM+2*m+1}]")
        e(f"buffer_load_dwordx2 v[{vREC+2*m}:{vREC+2*m+1}], v{vB}, s[{WS}:{WS+3}], 0 offen {cfg.RLFLAG}")
        e("s_mov_b64 exec, -1")
    e(f"L_LD_DONE:")
    npf = cfg.PF2
    if npf:
        first = cfg.PF1 * 32 * 192
        e(f"s_and_b32 s{sT}, s2, 7")
        e(f"s_mul_i32 s{sT}, s{sT}, 6272")
        e(f"s_lshr_b32 s{sT+1}, s2, 3")
        e(f"s_lshl_b32 s{sT+1}, s{sT+1}, 8")
        e(f"s_add_u32 s{sT}, s{sT}, s{sT+1}")
        e(f"v_and_b32 v{vX+8}, 15, v0")
        e(f"s_lshl_b32 s{sT+1}, s{sW}, 4")
        e(f"s_add_u32 s{sT}, s{sT}, s{sT+1}")
        e(f"v_add_u32 v{vX+8}, s{sT}, v{vX+8}")
        e(f"v_lshrrev_b32 v{vX+9}, 4, v{vLANE}")
        e(f"v_cmp_gt_u32 vcc, {npf}, v{vX+9}")
        e(f"v_lshlrev_b32 v{vX+9}, 13, v{vX+9}")
        e(f"v_add3_u32 v{vX+9}, v{vX+9}, v{vX+8}, 0")
        e(f"v_add_u32 v{vX+9}, {first}, v{vX+9}")
        e(f"v_subrev_u32 v{vX+10}, 50176, v{vX+9}")
        e(f"v_min_u32 v{vX+9}, v{vX+9}, v{vX+10}")
        e(f"v_lshlrev_b32 v{vX+9}, 7, v{vX+9}")
        e(f"s_mov_b64 exec, vcc")
        e(f"buffer_load_dword v{vPFD}, v{vX+9}, s[{G}:{G+3}], 0 offen")
        e("s_mov_b64 exec, -1")
    e(f"v_mov_b32 v{vA}, s{sTB}")
    e(f"v_mov_b32 v{vB}, {L_MISC+4}")
    e("s_mov_b64 exec, 1")
    e(f"ds_max_u32 v{vB}, v{vA}")
    e(f"s_waitcnt vmcnt({1 if npf else 0})")
    ts(5)
    def rounds(bodyf, lab):
        for m in range(8):
            e(f"s_cmp_le_i32 s{sNR}, {8*m}")
            e(f"s_cbranch_scc1 {lab}")
            e(f"s_mov_b64 exec, s[{sM+2*m}:{sM+2*m+1}]")
            bodyf(m)
        e(f"{lab}:")
        e("s_mov_b64 exec, -1")
    rounds(lambda m: e(f"ds_add_rtn_u32 v{vRANK+m}, v{vREC+2*m+1}, v{vONE} offset:{L_CNT}"), "L_RK_DONE")
    e("s_waitcnt lgkmcnt(0)")
    e("s_barrier")
    ts(6)
    vC = vX
    vDEG, vNP, vSC, vBIN, vDR, vSB = vX+4, vX+5, vX+6, vX+7, vX+8, vX+9
    vBS = vX + 12
    e(f"s_cmp_ge_u32 s{sW}, 4")
    e(f"s_cbranch_scc1 L_NODE1_DONE")
    e(f"v_lshlrev_b32 v{vX+10}, 4, v0")
    e(f"ds_read_b128 v[{vC}:{vC+3}], v{vX+10} offset:{L_CNT}")
    e(f"v_mov_b32 v{vX+11}, {L_MISC}")
    e("s_waitcnt lgkmcnt(0)")
    e(f"v_add_u32 v{vC+1}, v{vC}, v{vC+1}")
    e(f"v_add_u32 v{vC+2}, v{vC+1}, v{vC+2}")
    e(f"v_add_u32 v{vDEG}, v{vC+2}, v{vC+3}")
    e(f"v_add_u32 v{vNP}, 1, v{vDEG}")
    e(f"v_lshrrev_b32 v{vNP}, 1, v{vNP}")
    e(f"v_mov_b32 v{vSC}, v{vNP}")
    e(f"v_min_u32 v{vBIN}, 63, v{vDEG}")
    e(f"v_sub_u32 v{vBIN}, 63, v{vBIN}")
    scan64(vSC)
    e(f"s_mov_b32 exec_lo, 0")
    e(f"s_mov_b32 exec_hi, 0x80000000")
    e(f"ds_add_rtn_u32 v{vSB}, v{vX+11}, v{vSC}")
    e(f"s_mov_b64 exec, s[{sNODE}:{sNODE+1}]")
    e(f"v_lshlrev_b32 v{vBIN}, 2, v{vBIN}")
    e(f"ds_add_rtn_u32 v{vDR}, v{vBIN}, v{vONE} offset:{L_DH}")
    e("s_mov_b64 exec, -1")
    e(f"v_sub_u32 v{vSC}, v{vSC}, v{vNP}")
    e(f"v_and_b32 v{vX+11}, 1, v{vDEG}")
    e(f"v_cmp_eq_u32 vcc, 1, v{vX+11}")
    e(f"v_mov_b32 v{vX+11}, 0xffff")
    e("s_waitcnt lgkmcnt(1)")
    e(f"v_readlane_b32 s{sT}, v{vSB}, 63")
    e(f"s_lshl_b32 s{sT}, s{sT}, 3")
    e(f"s_add_u32 s{sT}, s{sT}, {L_RECS}")
    e(f"v_lshl_add_u32 v{vBS}, v{vSC}, 3, s{sT}")
    e(f"v_lshl_add_u32 v{vBS+1}, v{vC}, 2, v{vBS}")
    e(f"v_lshl_add_u32 v{vBS+2}, v{vC+1}, 2, v{vBS}")
    e(f"v_lshl_add_u32 v{vBS+3}, v{vC+2}, 2, v{vBS}")
    e(f"ds_write_b128 v{vX+10}, v[{vBS}:{vBS+3}] offset:{L_CNT}")
    e(f"v_lshl_add_u32 v{vC}, v{vDEG}, 2, v{vBS}")
    e(f"s_mov_b64 exec, vcc")
    e(f"ds_write_b32 v{vC}, v{vX+11}")
    e("s_mov_b64 exec, -1")
    e("s_waitcnt lgkmcnt(0)")
    e(f"L_NODE1_DONE:")
    e("s_barrier")
    ts(7)
    e(f"v_mov_b32 v{vC}, {L_MISC}")
    e(f"ds_read_b64 v[{vC+2}:{vC+3}], v{vC}")
    e(f"v_lshlrev_b32 v{vC+1}, 2, v{vLANE}")
    e(f"ds_read_b32 v{vC+1}, v{vC+1} offset:{L_DH}")
    rounds(lambda m: e(f"ds_read_b32 v{vREC+2*m+1}, v{vREC+2*m+1} offset:{L_CNT}"), "L_RB_DONE")
    e("s_waitcnt lgkmcnt(0)")
    def wr(m):
        e(f"v_lshl_add_u32 v{vRANK+m}, v{vRANK+m}, 2, v{vREC+2*m+1}")
        e(f"ds_write_b32 v{vRANK+m}, v{vREC+2*m}")
    rounds(wr, "L_RW_DONE")
    e(f"v_readfirstlane_b32 s{sNBMAX}, v{vC+3}")
    e(f"s_cmp_ge_u32 s{sW}, 4")
    e(f"s_cbranch_scc1 L_NODE2_DONE")
    e(f"s_cmp_lg_u32 s{sBB}, 0")
    e(f"s_cbranch_scc1 L_NODE2_NOSORT")
    e(f"v_mov_b32 v{vC}, v{vC+1}")
    e("s_nop 1")
    scan64(vC)
    e(f"v_sub_u32 v{vC}, v{vC}, v{vC+1}")
    e(f"ds_bpermute_b32 v{vC}, v{vBIN}, v{vC}")
    e("s_waitcnt lgkmcnt(0)")
    e(f"v_add_lshl_u32 v{vP}, v{vC}, v{vDR}, 3")
    e(f"L_NODE2_NOSORT:")
    e(f"v_lshl_or_b32 v{vC}, v{vNP}, 16, v{vBS}")
    e(f"s_mul_i32 s{sT}, s3, {NB*128}")
    e(f"v_lshl_add_u32 v{vC+1}, v0, 7, s{sT}")
    e(f"v_cmp_gt_u32 vcc, {NB}, v0")
    e(f"v_mov_b32 v{vC+2}, 0x80000000")
    e(f"s_mov_b64 exec, s[{sNODE}:{sNODE+1}]")
    e(f"v_cndmask_b32 v{vC+1}, v{vC+2}, v{vC+1}, vcc")
    e(f"ds_write_b64 v{vP}, v[{vC}:{vC+1}] offset:{L_NT}")
    e("s_mov_b64 exec, -1")
    e(f"L_NODE2_DONE:")
    e("s_waitcnt lgkmcnt(0)")
    e("s_barrier")
    e(f"L_GATHER:")
    ts(8, True)
    e(f"s_cmp_ge_u32 s{sW}, 13")
    e(f"s_cbranch_scc1 L_HELPER")
    e(f"v_lshrrev_b32 v{vX}, 3, v{vLANE}")
    e(f"s_lshl_b32 s{sT}, s{sW}, 7")
    e(f"v_lshl_add_u32 v{vX}, v{vX}, 3, s{sT}")
    e(f"ds_read_b64 v[{vX+2}:{vX+3}], v{vX} offset:{L_NT}")
    e(f"ds_read_b64 v[{vX+4}:{vX+5}], v{vX} offset:{L_NT+64}")
    e("s_waitcnt lgkmcnt(0)")
    e(f"v_and_b32 v{vPA}, 0xffff, v{vX+2}")
    e(f"v_and_b32 v{vPB}, 0xffff, v{vX+4}")
    e(f"v_lshrrev_b32 v{vX+2}, 16, v{vX+2}")
    e(f"v_lshrrev_b32 v{vX+4}, 16, v{vX+4}")
    e(f"v_lshl_add_u32 v{vEA}, v{vX+2}, 3, v{vPA}")
    e(f"v_lshl_add_u32 v{vEB}, v{vX+4}, 3, v{vPB}")
    e(f"v_max_u32 v{vX}, v{vX+2}, v{vX+4}")
    def rdrec():
        e(f"v_cmp_lt_u32 vcc, v{vPA}, v{vEA}")
        e(f"v_cmp_lt_u32 s[{sTMP}:{sTMP+1}], v{vPB}, v{vEB}")
        e("s_nop 0")
        e(f"v_cndmask_b32 v{vAD}, v{vDUM}, v{vPA}, vcc")
        e(f"ds_read_b64 v[{vST}:{vST+1}], v{vAD}")
        e(f"v_cndmask_b32 v{vAD}, v{vDUM}, v{vPB}, s[{sTMP}:{sTMP+1}]")
        e(f"ds_read_b64 v[{vST+2}:{vST+3}], v{vAD}")
        e(f"v_add_u32 v{vPA}, 8, v{vPA}")
        e(f"v_add_u32 v{vPB}, 8, v{vPB}")
    rdrec()
    e(f"v_max_u32_dpp v{vX}, v{vX}, v{vX} row_ror:8 row_mask:0xf bank_mask:0xf")
    e(f"v_add_u32 v{vROWA}, v{vX+3}, v{vLOFF}")
    e(f"v_add_u32 v{vROWB}, v{vX+5}, v{vLOFF}")
    e(f"v_readlane_b32 s{sCNT}, v{vX}, 0")
    e(f"v_readlane_b32 s{sT}, v{vX}, 16")
    e(f"s_max_u32 s{sCNT}, s{sCNT}, s{sT}")
    e(f"v_readlane_b32 s{sT}, v{vX}, 32")
    e(f"s_max_u32 s{sCNT}, s{sCNT}, s{sT}")
    e(f"v_readlane_b32 s{sT}, v{vX}, 48")
    e(f"s_max_u32 s{sCNT}, s{sCNT}, s{sT}")
    pc = [0]
    if cfg.PACE > 1:
        e(f"s_mov_b32 s{sN1}, s{sCNT}")
        e(f"s_sub_i32 s{sI4}, 0, s{sCNT}")
        e(f"s_cmp_le_u32 s{sNBMAX}, 64")
        e(f"s_cselect_b32 s{sPN}, {cfg.PACE-1}, 0")
    def pace():
        if cfg.PACE > 1:
            lab = f"L_PC{pc[0]}"; pc[0] += 1
            e(f"s_add_i32 s{sI4}, s{sI4}, {cfg.PACE}")
            e(f"{lab}a:")
            e(f"s_cmp_lt_i32 s{sI4}, 0")
            e(f"s_cbranch_scc1 {lab}")
            e(f"s_cmp_eq_u32 s{sPN}, 0")
            e(f"s_cbranch_scc1 {lab}")
            e(f"s_sub_i32 s{sI4}, s{sI4}, s{sN1}")
            e(f"s_sub_u32 s{sPN}, s{sPN}, 1")
            e("s_barrier")
            e(f"s_branch {lab}a")
            e(f"{lab}:")
    order = [0, 2, 1, 3]
    def issue(slot):
        e("s_waitcnt lgkmcnt(0)")
        for k, r in enumerate(order):
            e(f"v_mad_u32_u16 v{vAD}, v{vST+r}, s{s128}, v{vLOFF}")
            d = vDATA + 16 * slot + 4 * k
            e(f"buffer_load_dwordx4 v[{d}:{d+3}], v{vAD}, s[{G}:{G+3}], 0 offen sc1")
            a = vAOP + 8 * slot + 2 * k
            e(f"v_perm_b32 v{a}, v{vST+r}, v{vST+r}, v{vSEL0}")
            e(f"v_perm_b32 v{a+1}, v{vST+r}, v{vST+r}, v{vSEL1}")
        rdrec()
        pace()
    def consume(slot, cnt):
        for k, r in enumerate(order):
            e(f"s_waitcnt vmcnt({cnt + 3 - k})")
            d = vDATA + 16 * slot + 4 * k
            a = vAOP + 8 * slot + 2 * k
            acc = vACC + (8 if r >= 2 else 0)
            e(f"v_mfma_f32_4x4x4_16b_bf16 v[{acc}:{acc+3}], v[{a}:{a+1}], v[{d}:{d+1}], v[{acc}:{acc+3}]")
            e(f"v_mfma_f32_4x4x4_16b_bf16 v[{acc+4}:{acc+7}], v[{a}:{a+1}], v[{d+2}:{d+3}], v[{acc+4}:{acc+7}]")
    for s in range(D - 1):
        issue(s)
    e(f"s_sub_i32 s{sCNT}, s{sCNT}, {D-1}")
    e(f"L_GLOOP:")
    for p in range(D):
        e(f"s_cmp_le_i32 s{sCNT}, {p}")
        e(f"s_cbranch_scc1 L_DRAIN{p}")
        issue((p + D - 1) % D)
        consume(p, 4 * (D - 1))
    e(f"s_sub_i32 s{sCNT}, s{sCNT}, {D}")
    e(f"s_branch L_GLOOP")
    for p in range(D):
        e(f"L_DRAIN{p}:")
        for k in range(D - 1):
            consume((p + k) % D, 4 * (D - 2 - k))
        if p != D - 1:
            e(f"s_branch L_GDONE")
    e(f"L_GDONE:")
    e("s_waitcnt lgkmcnt(0)")
    ts(9, True)
    e(f"s_add_u32 s{sBB}, s{sBB}, 64")
    e(f"s_cmp_lt_u32 s{sBB}, s{sNBMAX}")
    e(f"s_cbranch_scc1 L_NEXTB")
    e("s_nop 4")
    for i in range(8):
        e(f"v_cvt_pk_bf16_f32 v{vX+i}, v{vACC+2*i}, v{vACC+2*i+1}")
    e(f"s_cmp_lg_u32 s{sHOP}, 0")
    e(f"s_cbranch_scc1 L_EPI")
    e(f"buffer_store_dwordx4 v[{vX}:{vX+3}], v{vROWA}, s[{O}:{O+3}], 0 offen sc1")
    e(f"buffer_store_dwordx4 v[{vX+4}:{vX+7}], v{vROWB}, s[{O}:{O+3}], 0 offen sc1")
    for i in range(16):
        e(f"v_mov_b32 v{vACC+i}, 0")
    e("L_SYNC2:")
    srd(G, pWS, pWS+1, ROWB, H1_OFF)
    e(f"s_mov_b32 s{sBB}, 0")
    e(f"s_lshl_b32 s{sT}, s2, 2")
    e(f"s_add_u32 s{sT}, s{sT}, 0x{FLG_OFF:x}")
    e(f"v_lshl_add_u32 v40, v{vLANE}, 12, s{sT}")
    e(f"s_and_b32 s{sT}, s2, 7")
    e(f"s_lshl_b32 s{sT}, s{sT}, 12")
    e(f"s_add_u32 s{sT}, s{sT}, 0x{FLG_OFF:x}")
    e(f"v_lshl_add_u32 v41, v{vLANE}, 4, s{sT}")
    e(f"v_mov_b32 v42, s{sNONCE}")
    e("s_waitcnt vmcnt(0)")
    ts(10)
    srd(O, pOUT, pOUT+1, ROWB)
    e(f"s_mov_b32 s{sHOP}, 1")
    e("s_barrier")
    e(f"s_cmp_lg_u32 s{sW}, 0")
    e("s_cbranch_scc1 L_FDONE")
    e("s_mov_b64 exec, 0xff")
    e(f"buffer_store_dword v42, v40, s[{WS}:{WS+3}], 0 offen sc1")
    e("s_mov_b64 exec, -1")
    e(f"s_mov_b32 s{sSPIN}, {SPIN_MAX}")
    e("L_FPOLL:")
    e(f"buffer_load_dwordx4 v[44:47], v41, s[{WS}:{WS+3}], 0 offen sc1")
    e(f"s_sub_u32 s{sSPIN}, s{sSPIN}, 1")
    e("s_cbranch_scc1 L_FDONE")
    e("s_waitcnt vmcnt(0)")
    e("v_xor_b32 v44, v44, v42")
    e("v_xor_b32 v45, v45, v42")
    e("v_xor_b32 v46, v46, v42")
    e("v_xor_b32 v47, v47, v42")
    e("v_or3_b32 v44, v44, v45, v46")
    e("v_or_b32 v44, v44, v47")
    e("v_cmp_ne_u32 vcc, 0, v44")
    e("s_cbranch_vccz L_FDONE")
    if cfg.SLEEP:
        e(f"s_sleep {cfg.SLEEP}")
    e("s_branch L_FPOLL")
    e("L_FDONE:")
    e("s_waitcnt vmcnt(0)")
    e("s_barrier")
    e(f"s_cmp_le_u32 s{sNBMAX}, 64")
    e("s_cbranch_scc1 L_GATHER")
    e("s_branch L_BATCH")

    e("L_EPI:")
    vW = 40
    vq = vX + 8
    e(f"s_lshl_b32 s{sT}, s{sW}, 11")
    e(f"s_add_u32 s{sT}, s{sT}, {L_TILE}")
    e(f"v_lshrrev_b32 v{vq}, 3, v{vLANE}")
    e(f"v_xor_b32 v{vq+1}, v{vq}, v{vLANE}")
    e(f"v_and_b32 v{vq+1}, 7, v{vq+1}")
    e(f"v_lshlrev_b32 v{vq+1}, 4, v{vq+1}")
    e(f"v_lshl_add_u32 v{vq+1}, v{vq}, 7, v{vq+1}")
    e(f"v_add_u32 v{vq+1}, s{sT}, v{vq+1}")
    e(f"ds_write_b128 v{vq+1}, v[{vX}:{vX+3}]")
    e(f"ds_write_b128 v{vq+1}, v[{vX+4}:{vX+7}] offset:1024")
    e(f"v_lshlrev_b32 v{vq+2}, 4, v{vLANE}")
    for i in range(8):
        e(f"ds_read_b128 v[{vW+4*i}:{vW+4*i+3}], v{vq+2} offset:{L_WT + 1024*i}")
    e(f"v_and_b32 v{vq}, 15, v{vLANE}")
    e(f"v_lshrrev_b32 v{vq+3}, 4, v{vLANE}")
    e(f"v_xor_b32 v{vq+4}, v{vq+3}, v{vq}")
    e(f"v_and_b32 v{vq+4}, 7, v{vq+4}")
    e(f"v_lshlrev_b32 v{vq+4}, 4, v{vq+4}")
    e(f"v_lshl_add_u32 v{vq+4}, v{vq}, 7, v{vq+4}")
    e(f"v_add_u32 v{vq+4}, s{sT}, v{vq+4}")
    e(f"v_xor_b32 v{vq+5}, 64, v{vq+4}")
    e(f"ds_read_b128 v[{vX}:{vX+3}], v{vq+4}")
    e(f"ds_read_b128 v[{vX+4}:{vX+7}], v{vq+5}")
    e(f"s_lshl_b32 s{sT}, s{sW}, 7")
    e(f"v_lshl_add_u32 v{vq}, v{vq}, 3, s{sT}")
    e(f"ds_read_b32 v{vq}, v{vq} offset:{L_NT+4}")
    e("s_waitcnt lgkmcnt(0)")
    for mb in range(4):
        e(f"v_mfma_f32_16x16x32_bf16 v[{vACC+4*mb}:{vACC+4*mb+3}], v[{vW+8*mb}:{vW+8*mb+3}], v[{vX}:{vX+3}], 0")
    for mb in range(4):
        e(f"v_mfma_f32_16x16x32_bf16 v[{vACC+4*mb}:{vACC+4*mb+3}], v[{vW+8*mb+4}:{vW+8*mb+7}], v[{vX+4}:{vX+7}], v[{vACC+4*mb}:{vACC+4*mb+3}]")
    e(f"v_lshl_add_u32 v{vq}, v{vq+3}, 4, v{vq}")
    e("s_nop 7")
    for i in range(8):
        e(f"v_cvt_pk_bf16_f32 v{vX+i}, v{vACC+2*i}, v{vACC+2*i+1}")
    e(f"buffer_store_dwordx4 v[{vX}:{vX+3}], v{vq}, s[{O}:{O+3}], 0 offen {cfg.OUTFLAG}")
    e(f"buffer_store_dwordx4 v[{vX+4}:{vX+7}], v{vq}, s[{O}:{O+3}], 0 offen offset:64 {cfg.OUTFLAG}")
    if cfg.TS:
        e("s_waitcnt vmcnt(0)")
        ts(13)
    e("s_endpgm")
    e("L_HELPER:")
    e(f"s_cmp_le_u32 s{sNBMAX}, 64")
    e("s_cbranch_scc1 L_END")
    e(f"s_add_u32 s{sBB}, s{sBB}, 64")
    e(f"s_cmp_lt_u32 s{sBB}, s{sNBMAX}")
    e(f"s_cbranch_scc1 L_NEXTB")
    e(f"s_cmp_lg_u32 s{sHOP}, 0")
    e("s_cbranch_scc1 L_END")
    e("s_branch L_SYNC2")
    e(f"L_NEXTB:")
    e("s_waitcnt vmcnt(0) lgkmcnt(0)")
    e("s_barrier")
    e(f"s_branch L_BATCH")
    e(f"L_END:")
    e("s_endpgm")

head = open("standalone__spectral_conv_sgc__graph.s.ref").read().split("; Override")[0]
e(head.rstrip())
e(f"; @launch grid=(256,1,1) block=(1024,1,1) lds={L_END}")
e('.amdgcn_target "amdgcn-amd-amdhsa--gfx950"')
e(".text")
body()
e('.section .rodata,"a"')
e(".p2align 6")
acc = (NV + 3) // 4 * 4
e(f""".amdhsa_kernel {NAME}
  .amdhsa_next_free_vgpr {NV}
  .amdhsa_next_free_sgpr {102 if cfg.TS else 88}
  .amdhsa_accum_offset {acc}
  .amdhsa_group_segment_fixed_size 0
  .amdhsa_kernarg_size 64
  .amdhsa_user_sgpr_count 2
  .amdhsa_user_sgpr_kernarg_segment_ptr 1
  .amdhsa_system_sgpr_workgroup_id_x 1
  .amdhsa_float_denorm_mode_32 3
.end_amdhsa_kernel
""")
open(sys.argv[1], "w").write("\n".join(out) + "\n")
```

```python
import sys

class Cfg:
    D = 3
    TS = 0
    PF1 = 0
    PF2 = 0
    PACE = 4
    EFLAG = ""
    RLFLAG = "sc1"
    OUTFLAG = ""
    SLEEP = 1
    PFC = 0
    PFB = 0
    PFM = 1
cfg = Cfg()
for a in sys.argv[2:]:
    k, v = a.split("=")
    cur = getattr(cfg, k)
    setattr(cfg, k, int(v) if isinstance(cur, int) else v.replace("+", " "))

N = 50000; E = 850000
NB = 196; CH = 3328; MAG = 85599
REC_OFF = 0
TAB_OFF = 0x680000
SY_OFF = 0x700000
H1_OFF = 0x800000
TS_OFF = 0x1200000
WS_USED = 0x1400000
ROWB = N * 128
SPIN_MAX = 1 << 20

L_DUMMY = 16
L_NONCE = 0
L_NT = 32
L_RECS = 32 + 208 * 8
L_CNT = 38400
L_DH = L_CNT + 4096
L_MISC = L_DH + 256
L_D = L_MISC + 256
L_HIST = L_D + 4096
L_ZEND = L_HIST + 1024
L_WT = L_ZEND
L_STAGE = L_WT + 8192
L_TILE = L_STAGE
L_END = L_STAGE + CH * 8
assert L_TILE % 128 == 0

out = []
def e(s=""):
    out.append(s)

def srd(d, lo, hi, nrec, off=0):
    if off:
        e(f"s_add_u32 s{d}, s{lo}, 0x{off:x}")
        e(f"s_addc_u32 s{d+1}, s{hi}, 0")
    else:
        e(f"s_mov_b32 s{d}, s{lo}")
        e(f"s_mov_b32 s{d+1}, s{hi}")
    e(f"s_mov_b32 s{d+2}, 0x{nrec:x}")
    e(f"s_mov_b32 s{d+3}, 0x20000")

def scan64(v, first=1):
    sh = first
    while sh <= 8:
        e(f"v_add_u32_dpp v{v}, v{v}, v{v} row_shr:{sh} row_mask:0xf bank_mask:0xf bound_ctrl:0")
        e("s_nop 1")
        sh *= 2
    e(f"v_add_u32_dpp v{v}, v{v}, v{v} row_bcast:15 row_mask:0xa bank_mask:0xf")
    e("s_nop 1")
    e(f"v_add_u32_dpp v{v}, v{v}, v{v} row_bcast:31 row_mask:0xc bank_mask:0xf")
    e("s_nop 1")

pX, pSRC, pDST, pNRM, pW, pOUT, pDBG, pWS = 64, 66, 68, 70, 72, 74, 76, 78
G, WS, O, T1 = 8, 12, 16, 20
T2, T3 = 24, 4
sW, sTB, sBB, sNBMAX, s128, sCNT, sT, sNR = 28, 29, 30, 31, 32, 33, 34, 36
sHOP, sNONCE, sSPIN = 37, 38, 39
sM = 40
sNODE = 56
sTMP = 58
sI4, sN1, sPN = 60, 61, 62
sN0 = 63
sVAL = 80
sC0, sC1, sC2, sC3 = 82, 83, 84, 85
vLANE, vE, vP, vSEL0, vSEL1, vLOFF, vONE = 1, 2, 4, 5, 6, 7, 39
vACC = 8
vPA, vEA, vPB, vEB, vROWA, vROWB, vDUM, vAD = 24, 25, 26, 27, 28, 29, 30, 31
vST = 32
vTS = 36
D = cfg.D
vDATA = 40
vAOP = vDATA + 16 * D
vPFD = max(vAOP + 8 * D, 90)
NV = vPFD + 1
vDESC, vREC, vRANK, vX = 40, 48, 64, 72
vTP = 88

def ts(slot, dyn=False):
    if not cfg.TS:
        return
    e("s_memrealtime s[96:97]")
    e(f"s_lshl_b32 s98, s2, 4")
    e(f"s_add_u32 s98, s98, s{sW}")
    e(f"s_lshl_b32 s98, s98, 7")
    e(f"s_add_u32 s98, s98, 0x{TS_OFF + slot * 8:x}")
    if dyn:
        e(f"s_mul_i32 s99, s{sHOP}, 24")
        e(f"s_add_u32 s98, s98, s99")
    e("s_mov_b64 s[100:101], exec")
    e("s_mov_b64 exec, 1")
    e(f"v_mov_b32 v{vTS+2}, s98")
    e("s_waitcnt lgkmcnt(0)")
    e(f"v_mov_b32 v{vTS}, s96")
    e(f"v_mov_b32 v{vTS+1}, s97")
    e(f"buffer_store_dwordx2 v[{vTS}:{vTS+1}], v{vTS+2}, s[{WS}:{WS+3}], 0 offen")
    e("s_mov_b64 exec, s[100:101]")

def zero_lds():
    e(f"v_mov_b32 v{vX}, 0")
    e(f"v_mov_b32 v{vX+1}, 0")
    e(f"v_mov_b32 v{vX+2}, 0")
    e(f"v_mov_b32 v{vX+3}, 0")
    e(f"v_lshlrev_b32 v{vX+4}, 4, v0")
    e(f"v_cmp_gt_u32 vcc, {(L_ZEND-L_CNT)//16}, v0")
    e(f"s_mov_b64 exec, vcc")
    e(f"ds_write_b128 v{vX+4}, v[{vX}:{vX+3}] offset:{L_CNT}")
    e("s_mov_b64 exec, -1")

lbl = [0]
def arrive(b):
    lab = f"L_ARR{lbl[0]}"; lbl[0] += 1
    e(f"s_and_b32 s{sT}, s2, 7")
    e(f"s_lshl_b32 s{sT}, s{sT}, 8")
    e(f"s_add_u32 s{sT}, s{sT}, 0x{SY_OFF + b*4096:x}")
    e(f"v_mov_b32 v40, s{sT}")
    e(f"v_mov_b32 v41, 1")
    e(f"v_lshlrev_b32 v42, 8, v{vLANE}")
    e(f"v_add_u32 v42, 0x{SY_OFF + b*4096 + 2048:x}, v42")
    e("s_mov_b64 exec, 1")
    e(f"buffer_atomic_add v41, v40, s[{WS}:{WS+3}], 0 offen sc0 sc1")
    e("s_waitcnt vmcnt(0)")
    e("v_cmp_eq_u32 vcc, 31, v41")
    e(f"s_cbranch_vccz {lab}")
    e("s_mov_b64 exec, 0xff")
    e(f"buffer_atomic_add v{vONE}, v42, s[{WS}:{WS+3}], 0 offen sc1")
    e(f"{lab}:")
    e("s_mov_b64 exec, -1")
def rcount(lab):
    e(f"v_mov_b32 v40, {L_MISC+8}")
    e("s_mov_b64 exec, 1")
    e(f"ds_add_rtn_u32 v41, v40, v{vONE}")
    e("s_waitcnt lgkmcnt(0)")
    e("v_cmp_eq_u32 vcc, 13, v41")
    e("s_mov_b64 exec, -1")
    e(f"s_cbranch_vccz {lab}")
    arrive(1)
    e(f"{lab}:")
def poll(b):
    lab = f"L_POLL{lbl[0]}"; lbl[0] += 1
    e(f"s_and_b32 s{sT}, s2, 7")
    e(f"s_lshl_b32 s{sT}, s{sT}, 8")
    e(f"s_add_u32 s{sT}, s{sT}, 0x{SY_OFF + b*4096 + 2048:x}")
    e(f"v_mov_b32 v{vTP}, s{sT}")
    e("s_mov_b64 exec, 1")
    e(f"s_mov_b32 s{sSPIN}, {SPIN_MAX}")
    e(f"{lab}:")
    e(f"buffer_load_dword v{vTP+1}, v{vTP}, s[{WS}:{WS+3}], 0 offen sc1")
    e(f"s_sub_u32 s{sSPIN}, s{sSPIN}, 1")
    e(f"s_cbranch_scc1 {lab}x")
    e("s_waitcnt vmcnt(0)")
    e(f"v_cmp_eq_u32 vcc, 8, v{vTP+1}")
    e(f"s_cbranch_vccnz {lab}x")
    if cfg.SLEEP:
        e(f"s_sleep {cfg.SLEEP}")
    e(f"s_branch {lab}")
    e(f"{lab}x:")
    e("s_waitcnt vmcnt(0)")
    e("s_mov_b64 exec, -1")
def prefetch_rows(first, n):
    if not n: return
    e(f"s_and_b32 s{sT}, s2, 7")
    e(f"s_mul_i32 s{sT}, s{sT}, 6272")
    e(f"s_lshr_b32 s{sT+1}, s2, 3")
    e(f"s_lshl_b32 s{sT+1}, s{sT+1}, 6")
    e(f"v_add_u32 v40, s{sT+1}, v{vLANE}")
    e(f"v_mul_u32_u24 v40, {cfg.PFM}, v40")
    e(f"v_add_u32 v40, s{sT}, v40")
    for i in range(n):
        e(f"v_add_u32 v41, {cfg.PFM*(first + i*2048)}, v40")
        e(f"v_subrev_u32 v42, 50176, v41")
        e(f"v_min_u32 v41, v41, v42")
        e(f"v_lshlrev_b32 v41, 7, v41")
        e(f"buffer_load_dword v{vPFD}, v41, s[{G}:{G+3}], 0 offen")

NAME = "standalone__spectral_conv_sgc__graph_kernel"
def body():
    e(f".globl {NAME}")
    e(".p2align 8")
    e(f".type {NAME},@function")
    e(f"{NAME}:")
    e("s_cmp_ge_u32 s2, 256")
    e("s_cbranch_scc1 L_END")
    e("s_load_dwordx16 s[64:79], s[0:1], 0")
    e(f"v_lshrrev_b32 v{vX+5}, 6, v0")
    e(f"s_lshl_b32 s{sT}, s2, 4")
    e(f"v_readfirstlane_b32 s{sW}, v{vX+5}")
    e(f"v_and_b32 v41, 15, v0")
    e(f"v_lshrrev_b32 v40, 4, v0")
    e(f"v_lshl_add_u32 v40, v40, 12, s{sT}")
    e(f"v_add_u32 v40, v40, v41")
    e("v_lshlrev_b32 v41, 4, v40")
    e("v_lshlrev_b32 v42, 3, v40")
    e("s_and_b32 s3, s2, 7")
    e("s_lshl_b32 s3, s3, 5")
    e(f"s_lshr_b32 s{sT}, s2, 3")
    e(f"s_or_b32 s3, s3, s{sT}")
    e(f"s_cmp_ge_u32 s{sW}, 13")
    e("s_waitcnt lgkmcnt(0)")
    e(f"s_mov_b32 s{WS}, s{pWS}")
    e(f"s_mov_b32 s{WS+1}, s{pWS+1}")
    e(f"s_mov_b32 s{WS+2}, 0x{WS_USED:x}")
    e(f"s_mov_b32 s{WS+3}, 0x20000")
    e("s_cbranch_scc1 L_P1H0")
    srd(T1, pDST, pDST+1, E * 4)
    e(f"buffer_load_dwordx4 v[44:47], v41, s[{T1}:{T1+3}], 0 offen {cfg.EFLAG}")
    srd(T2, pSRC, pSRC+1, E * 4)
    e(f"buffer_load_dwordx4 v[48:51], v41, s[{T2}:{T2+3}], 0 offen {cfg.EFLAG}")
    srd(T3, pNRM, pNRM+1, E * 2)
    e(f"buffer_load_dwordx2 v[52:53], v42, s[{T3}:{T3+3}], 0 offen {cfg.EFLAG}")
    e("L_P1H0:")
    srd(G, pX, pX+1, ROWB)
    srd(O, pWS, pWS+1, ROWB, H1_OFF)
    ts(0)
    zero_lds()
    e(f"v_and_b32 v{vLANE}, 63, v0")
    e(f"s_mov_b32 s{s128}, 128")
    e(f"s_mov_b32 s{sBB}, 0")
    e(f"s_mov_b32 s{sHOP}, 0")
    e(f"s_mov_b32 s{sC0}, {E//4}")
    e(f"s_mov_b32 s{sC1}, -196")
    e(f"s_mov_b32 s{sC2}, 0x05040100")
    e(f"s_mov_b32 s{sC3}, 0x07060100")
    e(f"v_cmp_gt_u32 s[{sVAL}:{sVAL+1}], s{sC0}, v40")
    e(f"v_and_b32 v{vX+4}, 7, v0")
    e(f"v_lshlrev_b32 v{vLOFF}, 4, v{vX+4}")
    e(f"v_mov_b32 v{vONE}, 1")
    e(f"v_and_b32 v{vX+4}, 1, v0")
    e(f"v_mov_b32 v{vX+5}, 0x0c0c0302")
    e(f"v_mov_b32 v{vX+6}, 0x03020c0c")
    e(f"v_cmp_eq_u32 vcc, 1, v{vX+4}")
    e(f"v_mov_b32 v{vX+7}, 0x0c0c0c0c")
    e(f"v_and_b32 v{vX+4}, 2, v0")
    e(f"v_cndmask_b32 v{vX+5}, v{vX+5}, v{vX+6}, vcc")
    e(f"v_cmp_eq_u32 vcc, 2, v{vX+4}")
    for i in range(16):
        e(f"v_mov_b32 v{vACC+i}, 0")
    e(f"v_cndmask_b32 v{vSEL0}, v{vX+5}, v{vX+7}, vcc")
    e(f"v_cndmask_b32 v{vSEL1}, v{vX+7}, v{vX+5}, vcc")
    e(f"v_cmp_gt_u32 vcc, 208, v0")
    e(f"s_mov_b64 s[{sNODE}:{sNODE+1}], vcc")
    e(f"v_mov_b32 v{vP}, 0")
    e("s_waitcnt lgkmcnt(0)")
    e("s_barrier")
    e(f"s_cmp_ge_u32 s{sW}, 13")
    e("s_cbranch_scc1 L_P1H1")
    tsx = 1 if cfg.TS else 0
    e(f"s_mov_b64 exec, s[{sVAL}:{sVAL+1}]")
    e(f"s_waitcnt vmcnt({2+tsx})")
    for i in range(4):
        e(f"v_mul_u32_u24 v{74+i}, {MAG}, v{44+i}")
    for i in range(4):
        e(f"v_lshrrev_b32 v{70+i}, 24, v{74+i}")
        e(f"v_lshlrev_b32 v{54+i}, 2, v{70+i}")
        e(f"ds_add_rtn_u32 v{58+i}, v{54+i}, v{vONE} offset:{L_HIST}")
    for i in range(4):
        e(f"v_mad_i32_i24 v{44+i}, v{70+i}, s{sC1}, v{44+i}")
        e(f"v_and_b32 v{74+i}, 0xe0000000, v{74+i}")
    e("s_mov_b64 exec, -1")
    e("s_waitcnt lgkmcnt(0)")
    ts(1)
    e("s_barrier")
    e(f"s_mov_b64 exec, s[{sVAL}:{sVAL+1}]")
    e(f"s_waitcnt vmcnt({2*tsx})")
    for i in range(4):
        e(f"v_mul_u32_u24 v78, {MAG}, v{48+i}")
        e(f"v_sub_u32 v78, v78, v{74+i}")
        e(f"v_lshrrev_b32 v78, 30, v78")
        e(f"v_lshl_or_b32 v78, v{44+i}, 2, v78")
        e(f"v_lshlrev_b32 v{63+2*i}, 2, v78")
        e(f"v_perm_b32 v{62+2*i}, v{52+i//2}, v{48+i}, s{sC2 if i%2==0 else sC3}")
    e("s_waitcnt lgkmcnt(0)")
    e("s_barrier")
    for i in range(4):
        e(f"ds_read_b32 v{74+i}, v{54+i} offset:{L_HIST}")
    for i in range(4):
        e(f"s_waitcnt lgkmcnt(3)")
        e(f"v_add_lshl_u32 v{74+i}, v{74+i}, v{58+i}, 3")
        e(f"ds_write_b64 v{74+i}, v[{62+2*i}:{63+2*i}] offset:{L_STAGE}")
    e("s_mov_b64 exec, -1")
    e("v_lshlrev_b32 v40, 4, v0")
    e(f"s_mul_i32 s{sT}, s2, {CH*8}")
    e(f"v_add_u32 v41, s{sT}, v40")
    e(f"v_add_u32 v42, {CH*4}, v41")
    e(f"v_add_u32 v40, {L_STAGE}, v40")
    e("s_waitcnt lgkmcnt(0)")
    e("s_barrier")
    e(f"ds_read_b128 v[44:47], v40")
    e(f"ds_read_b128 v[48:51], v40 offset:{CH*4}")
    e("s_waitcnt lgkmcnt(1)")
    e(f"buffer_store_dwordx4 v[44:47], v41, s[{WS}:{WS+3}], 0 offen sc1")
    e("s_waitcnt lgkmcnt(0)")
    e(f"buffer_store_dwordx4 v[48:51], v42, s[{WS}:{WS+3}], 0 offen sc1")
    ts(2)
    e("s_branch L_P1_JOIN")
    e("L_P1H1:")
    e(f"s_cmp_eq_u32 s{sW}, 13")
    e("s_cbranch_scc1 L_P1_W13")
    e(f"s_cmp_eq_u32 s{sW}, 15")
    e("s_cbranch_scc1 L_P1_W15")
    srd(T1, pW, pW+1, 8192)
    e(f"v_lshlrev_b32 v40, 4, v{vLANE}")
    e(f"v_add_u32 v41, 4096, v40")
    for i in range(8):
        e(f"buffer_load_dwordx4 v[{44+4*i}:{47+4*i}], v{40+i//4}, s[{T1}:{T1+3}], 0 offen offset:{1024*(i%4)}")
    e(f"v_lshrrev_b32 v43, 3, v{vLANE}")
    e(f"v_lshlrev_b32 v43, 1, v43")
    e(f"v_and_b32 v42, 4, v{vLANE}")
    e(f"v_lshl_add_u32 v43, v42, 10, v43")
    e(f"v_and_b32 v42, 3, v{vLANE}")
    e(f"v_lshl_add_u32 v43, v42, 6, v43")
    e("s_barrier")
    prefetch_rows(0, cfg.PF1)
    e("s_barrier")
    e("s_barrier")
    prefetch_rows(cfg.PF1 * 2048, cfg.PFB)
    e(f"s_waitcnt vmcnt({cfg.PF1 + cfg.PFB})")
    for i in range(8):
        for el in range(8):
            off = L_WT + (el >> 2) * 2048 + (el & 3) * 16 + (i & 3) * 256 + (i >> 2) * 1024
            op = "ds_write_b16" if el % 2 == 0 else "ds_write_b16_d16_hi"
            e(f"{op} v43, v{44+4*i+el//2} offset:{off}")
    e("s_branch L_P1_JOIN2")
    e("L_P1_W15:")
    e("v_mov_b32 v40, 0")
    e("s_cmp_lg_u32 s2, 0")
    e("s_cbranch_scc1 L_W15_NOINIT")
    srd(T1, pDBG, pDBG+1, 256)
    e(f"v_lshrrev_b32 v41, 3, v{vLANE}")
    e(f"v_lshl_add_u32 v41, v41, 8, v{vLOFF}")
    e(f"v_add_u32 v41, 0x{SY_OFF:x}, v41")
    for k in range(6):
        e(f"buffer_store_dwordx4 v[{vACC}:{vACC+3}], v41, s[{WS}:{WS+3}], 0 offen sc1")
        e(f"v_add_u32 v41, 2048, v41")
    e("s_waitcnt vmcnt(0)")
    e("s_mov_b64 exec, 1")
    e(f"buffer_store_dword v{vONE}, v40, s[{T1}:{T1+3}], 0 offen sc1")
    e("s_mov_b64 exec, -1")
    e("L_W15_NOINIT:")
    e("s_barrier")
    e("s_barrier")
    e("s_barrier")
    e("s_branch L_P1_JOIN2")
    e("L_P1_W13:")
    srd(T1, pDBG, pDBG+1, 256)
    e(f"v_lshlrev_b32 v79, 4, v{vLANE}")
    e(f"s_lshl_b32 s{sT}, s2, 10")
    e(f"s_add_u32 s{sT}, s{sT}, 0x{TAB_OFF:x}")
    e(f"v_add_u32 v78, s{sT}, v79")
    e("v_mov_b32 v77, 0")
    e("s_barrier")
    e(f"ds_read_b128 v[80:83], v79 offset:{L_HIST}")
    e("s_waitcnt lgkmcnt(0)")
    e("v_add_u32 v85, v80, v81")
    e("v_add_u32 v86, v85, v82")
    e("v_add_u32 v87, v86, v83")
    e("v_mov_b32 v84, v87")
    e("s_nop 1")
    scan64(84)
    e("v_sub_u32 v84, v84, v87")
    e("v_add_u32 v87, v84, v86")
    e("v_add_u32 v86, v84, v85")
    e("v_add_u32 v85, v84, v80")
    e(f"ds_write_b128 v79, v[84:87] offset:{L_HIST}")
    for i in range(4):
        e(f"v_lshl_or_b32 v{80+i}, v{80+i}, 16, v{84+i}")
    e(f"buffer_store_dwordx4 v[80:83], v78, s[{WS}:{WS+3}], 0 offen sc1")
    e("s_mov_b64 exec, 1")
    e(f"buffer_load_dword v76, v77, s[{T1}:{T1+3}], 0 offen sc1")
    e("s_waitcnt lgkmcnt(0)")
    e("s_barrier")
    e("s_barrier")
    e(f"s_mov_b32 s{sSPIN}, {SPIN_MAX}")
    e("L_RDY:")
    e("s_waitcnt vmcnt(0)")
    e("v_cmp_eq_u32 vcc, 1, v76")
    e("s_cbranch_vccnz L_RDYX")
    e(f"s_sub_u32 s{sSPIN}, s{sSPIN}, 1")
    e("s_cbranch_scc1 L_RDYX")
    e("s_sleep 2")
    e(f"buffer_load_dword v76, v77, s[{T1}:{T1+3}], 0 offen sc1")
    e("s_branch L_RDY")
    e("L_RDYX:")
    e("s_mov_b64 exec, -1")
    ts(1)
    rcount("L_RC13")
    arrive(0)
    poll(0)
    ts(2)
    e("s_branch L_P1_JOIN2")
    e("L_P1_JOIN:")
    e("s_waitcnt vmcnt(0)")
    rcount("L_RCE")
    if cfg.PFC:
        e(f"s_and_b32 s{sT}, s2, 7")
        e(f"s_mul_i32 s{sT}, s{sT}, 6272")
        e(f"s_lshr_b32 s{sT+1}, s2, 3")
        e(f"s_mul_i32 s{sT+1}, s{sT+1}, 13")
        e(f"s_add_u32 s{sT+1}, s{sT+1}, s{sW}")
        e(f"s_mul_i32 s{sT+1}, s{sT+1}, {cfg.PFC}")
        e(f"s_add_u32 s{sT}, s{sT}, s{sT+1}")
        e(f"v_add_u32 v41, s{sT}, v{vLANE}")
        e(f"v_subrev_u32 v42, 50176, v41")
        e(f"v_min_u32 v41, v41, v42")
        e(f"v_lshlrev_b32 v41, 7, v41")
        e(f"s_mov_b64 exec, 0x{(1<<cfg.PFC)-1:x}")
        e(f"buffer_load_dword v{vPFD}, v41, s[{G}:{G+3}], 0 offen")
        e("s_mov_b64 exec, -1")
    ts(14)
    e("L_P1_JOIN2:")
    e(f"v_and_b32 v{vX}, 60, v0")
    e(f"v_lshl_add_u32 v{vX}, v{vX}, 2, s{sW}")
    e(f"s_lshl_b32 s{sT}, s3, 2")
    e(f"s_add_u32 s{sT}, s{sT}, 0x{TAB_OFF:x}")
    e(f"v_lshl_add_u32 v{vX+1}, v{vX}, 10, s{sT}")
    e("s_waitcnt lgkmcnt(0)")
    e("s_barrier")
    e(f"buffer_load_dword v{vE}, v{vX+1}, s[{WS}:{WS+3}], 0 offen sc1")
    ts(3)
    e(f"s_waitcnt vmcnt({tsx})")
    e("s_branch L_DECODE")

    e("L_BATCH:")
    zero_lds()
    e("s_waitcnt lgkmcnt(0)")
    e("s_barrier")
    e("L_DECODE:")
    ts(4)
    vLEN, vSTART, vNBLK, vQ, vT, vB, vD, vA = vX, vX+1, vX+2, vX+3, vX+4, vX+5, vX+6, vX+7
    e(f"v_lshrrev_b32 v{vLEN}, 16, v{vE}")
    e(f"v_add_u32 v{vNBLK}, 7, v{vLEN}")
    e(f"v_lshrrev_b32 v{vNBLK}, 3, v{vNBLK}")
    e(f"v_mov_b32 v{vQ}, v{vNBLK}")
    e(f"v_and_b32 v{vSTART}, 60, v0")
    e(f"v_lshl_add_u32 v{vSTART}, v{vSTART}, 2, s{sW}")
    e(f"v_mul_u32_u24 v{vSTART}, {CH}, v{vSTART}")
    e(f"v_add_u32_dpp v{vQ}, v{vQ}, v{vQ} row_shr:4 row_mask:0xf bank_mask:0xf bound_ctrl:0")
    e(f"v_and_b32 v{vB}, 0xffff, v{vE}")
    e(f"v_add_u32 v{vSTART}, v{vSTART}, v{vB}")
    e(f"v_add_u32_dpp v{vQ}, v{vQ}, v{vQ} row_shr:8 row_mask:0xf bank_mask:0xf bound_ctrl:0")
    e(f"v_and_b32 v{vT}, 3, v0")
    e(f"s_lshl_b32 s{sT}, s{sW}, 8")
    e(f"v_add_u32_dpp v{vQ}, v{vQ}, v{vQ} row_bcast:15 row_mask:0xa bank_mask:0xf")
    e(f"s_add_u32 s{sT}, s{sT}, {L_D}")
    e("s_nop 0")
    e(f"v_add_u32_dpp v{vQ}, v{vQ}, v{vQ} row_bcast:31 row_mask:0xc bank_mask:0xf")
    e("s_nop 0")
    e(f"v_readlane_b32 s{sTB}, v{vQ}, 63")
    e(f"v_sub_u32 v{vQ}, v{vQ}, v{vNBLK}")
    e(f"v_subrev_u32 v{vQ}, s{sBB}, v{vQ}")
    e(f"L_DLOOP:")
    e(f"v_add_u32 v{vB}, v{vQ}, v{vT}")
    e(f"v_lshlrev_b32 v{vA}, 3, v{vT}")
    e(f"v_add_u32 v{vD}, v{vSTART}, v{vA}")
    e(f"v_sub_u32 v{vA}, v{vLEN}, v{vA}")
    e(f"v_min_u32 v{vA}, 8, v{vA}")
    e(f"v_lshl_or_b32 v{vD}, v{vD}, 4, v{vA}")
    e(f"v_cmp_lt_u32 s[{sTMP}:{sTMP+1}], v{vT}, v{vNBLK}")
    e(f"v_cmp_gt_u32 vcc, 64, v{vB}")
    e(f"v_and_b32 v{vA}, 7, v{vB}")
    e(f"v_lshrrev_b32 v{vB}, 3, v{vB}")
    e(f"v_lshl_add_u32 v{vA}, v{vA}, 3, v{vB}")
    e(f"v_lshl_add_u32 v{vA}, v{vA}, 2, s{sT}")
    e(f"v_add_u32 v{vT}, 4, v{vT}")
    e(f"s_and_b64 exec, vcc, s[{sTMP}:{sTMP+1}]")
    e(f"ds_write_b32 v{vA}, v{vD}")
    e("s_mov_b64 exec, -1")
    e(f"v_cmp_lt_u32 vcc, v{vT}, v{vNBLK}")
    e(f"s_cbranch_vccnz L_DLOOP")
    e(f"v_lshrrev_b32 v{vA}, 3, v{vLANE}")
    e(f"v_lshl_add_u32 v{vA}, v{vA}, 5, s{sT}")
    e(f"ds_read_b128 v[{vDESC}:{vDESC+3}], v{vA}")
    e(f"ds_read_b128 v[{vDESC+4}:{vDESC+7}], v{vA} offset:16")
    e(f"s_sub_i32 s{sNR}, s{sTB}, s{sBB}")
    e(f"v_and_b32 v{vT}, 7, v0")
    e(f"s_cmp_lg_u32 s{sW}, 13")
    e("s_cbranch_scc1 L_NORPOLL")
    poll(1)
    e("L_NORPOLL:")
    e("s_waitcnt lgkmcnt(0)")
    e("s_barrier")
    ts(15)
    for m in range(8):
        e(f"s_cmp_le_i32 s{sNR}, {8*m}")
        e(f"s_cbranch_scc1 L_LD_DONE")
        e(f"v_and_b32 v{vA}, 15, v{vDESC+m}")
        e(f"v_lshrrev_b32 v{vB}, 4, v{vDESC+m}")
        e(f"v_cmp_lt_u32 s[{sM+2*m}:{sM+2*m+1}], v{vT}, v{vA}")
        e(f"v_add_lshl_u32 v{vB}, v{vB}, v{vT}, 3")
        e(f"s_mov_b64 exec, s[{sM+2*m}:{sM+2*m+1}]")
        e(f"buffer_load_dwordx2 v[{vREC+2*m}:{vREC+2*m+1}], v{vB}, s[{WS}:{WS+3}], 0 offen {cfg.RLFLAG}")
        e("s_mov_b64 exec, -1")
    e(f"L_LD_DONE:")
    e(f"v_mov_b32 v{vA}, s{sTB}")
    e(f"v_mov_b32 v{vB}, {L_MISC+4}")
    e("s_mov_b64 exec, 1")
    e(f"ds_max_u32 v{vB}, v{vA}")
    e(f"s_waitcnt vmcnt(0)")
    e("s_mov_b64 exec, -1")
    if cfg.PF2:
        e(f"s_cmp_lt_u32 s{sW}, {16-cfg.PF2}")
        e("s_cbranch_scc1 L_NOPF2")
        e(f"s_and_b32 s{sT}, s2, 7")
        e(f"s_mul_i32 s{sT}, s{sT}, 6272")
        e(f"s_lshr_b32 s{sT+1}, s2, 3")
        e(f"s_lshl_b32 s{sT+1}, s{sT+1}, 6")
        e(f"v_add_u32 v{vX+8}, s{sT+1}, v{vLANE}")
        e(f"s_sub_u32 s{sT+1}, s{sW}, {16-cfg.PF2-cfg.PF1-cfg.PFB}")
        e(f"s_lshl_b32 s{sT+1}, s{sT+1}, 11")
        e(f"v_add_u32 v{vX+8}, s{sT+1}, v{vX+8}")
        e(f"v_mul_u32_u24 v{vX+8}, {cfg.PFM}, v{vX+8}")
        e(f"s_add_u32 s{sT}, s{sT}, {cfg.PFC*416}")
        e(f"v_add_u32 v{vX+8}, s{sT}, v{vX+8}")
        e(f"v_subrev_u32 v{vX+9}, 50176, v{vX+8}")
        e(f"v_min_u32 v{vX+8}, v{vX+8}, v{vX+9}")
        e(f"v_lshlrev_b32 v{vX+8}, 7, v{vX+8}")
        e(f"buffer_load_dword v{vPFD}, v{vX+8}, s[{G}:{G+3}], 0 offen")
        e("L_NOPF2:")
    ts(5)
    def rounds(bodyf, lab):
        for m in range(8):
            e(f"s_cmp_le_i32 s{sNR}, {8*m}")
            e(f"s_cbranch_scc1 {lab}")
            e(f"s_mov_b64 exec, s[{sM+2*m}:{sM+2*m+1}]")
            bodyf(m)
        e(f"{lab}:")
        e("s_mov_b64 exec, -1")
    rounds(lambda m: e(f"ds_add_rtn_u32 v{vRANK+m}, v{vREC+2*m+1}, v{vONE} offset:{L_CNT}"), "L_RK_DONE")
    e("s_waitcnt lgkmcnt(0)")
    e("s_barrier")
    ts(6)
    vC = vX
    vDEG, vNP, vSC, vBIN, vDR, vSB = vX+4, vX+5, vX+6, vX+7, vX+8, vX+9
    vBS = vX + 12
    e(f"s_cmp_ge_u32 s{sW}, 4")
    e(f"s_cbranch_scc1 L_NODE1_DONE")
    e(f"v_lshlrev_b32 v{vX+10}, 4, v0")
    e(f"ds_read_b128 v[{vC}:{vC+3}], v{vX+10} offset:{L_CNT}")
    e(f"v_mov_b32 v{vX+11}, {L_MISC}")
    e("s_waitcnt lgkmcnt(0)")
    e(f"v_add_u32 v{vC+1}, v{vC}, v{vC+1}")
    e(f"v_add_u32 v{vC+2}, v{vC+1}, v{vC+2}")
    e(f"v_add_u32 v{vDEG}, v{vC+2}, v{vC+3}")
    e(f"v_add_u32 v{vSC}, 3, v{vDEG}")
    e(f"v_lshrrev_b32 v{vSC}, 1, v{vSC}")
    e(f"v_mov_b32 v{vNP}, v{vSC}")
    e(f"v_min_u32 v{vBIN}, 63, v{vDEG}")
    e(f"v_sub_u32 v{vBIN}, 63, v{vBIN}")
    scan64(vSC)
    e(f"s_mov_b32 exec_lo, 0")
    e(f"s_mov_b32 exec_hi, 0x80000000")
    e(f"ds_add_rtn_u32 v{vSB}, v{vX+11}, v{vSC}")
    e(f"s_mov_b64 exec, s[{sNODE}:{sNODE+1}]")
    e(f"v_lshlrev_b32 v{vBIN}, 2, v{vBIN}")
    e(f"ds_add_rtn_u32 v{vDR}, v{vBIN}, v{vONE} offset:{L_DH}")
    e("s_mov_b64 exec, -1")
    e(f"v_lshlrev_b32 v{vSC}, 1, v{vSC}")
    e(f"v_sub_u32 v{vC+3}, v{vSC}, v{vDEG}")
    e(f"v_lshlrev_b32 v{vX+11}, 1, v{vNP}")
    e(f"v_sub_u32 v{vSC}, v{vSC}, v{vX+11}")
    e(f"v_mov_b32 v{vTP}, 0xffff")
    e(f"v_mov_b32 v{vTP+1}, 0xffff")
    e("s_waitcnt lgkmcnt(1)")
    e(f"v_readlane_b32 s{sT}, v{vSB}, 63")
    e(f"s_lshl_b32 s{sT}, s{sT}, 3")
    e(f"s_add_u32 s{sT}, s{sT}, {L_RECS}")
    e(f"v_lshl_add_u32 v{vBS}, v{vC+3}, 2, s{sT}")
    e(f"v_lshl_add_u32 v{vBS+1}, v{vC}, 2, v{vBS}")
    e(f"v_lshl_add_u32 v{vBS+2}, v{vC+1}, 2, v{vBS}")
    e(f"v_lshl_add_u32 v{vBS+3}, v{vC+2}, 2, v{vBS}")
    e(f"ds_write_b128 v{vX+10}, v[{vBS}:{vBS+3}] offset:{L_CNT}")
    e(f"v_lshl_add_u32 v{vSC}, v{vSC}, 2, s{sT}")
    e(f"ds_write_b64 v{vSC}, v[{vTP}:{vTP+1}]")
    e(f"ds_write_b32 v{vSC}, v{vTP} offset:8")
    e("s_waitcnt lgkmcnt(0)")
    e(f"L_NODE1_DONE:")
    e("s_barrier")
    ts(7)
    e(f"v_mov_b32 v{vC}, {L_MISC}")
    e(f"ds_read_b64 v[{vC+2}:{vC+3}], v{vC}")
    e(f"v_lshlrev_b32 v{vC+1}, 2, v{vLANE}")
    e(f"ds_read_b32 v{vC+1}, v{vC+1} offset:{L_DH}")
    rounds(lambda m: e(f"ds_read_b32 v{vREC+2*m+1}, v{vREC+2*m+1} offset:{L_CNT}"), "L_RB_DONE")
    e("s_waitcnt lgkmcnt(0)")
    def wr(m):
        e(f"v_lshl_add_u32 v{vRANK+m}, v{vRANK+m}, 2, v{vREC+2*m+1}")
        e(f"ds_write_b32 v{vRANK+m}, v{vREC+2*m}")
    rounds(wr, "L_RW_DONE")
    e(f"v_readfirstlane_b32 s{sNBMAX}, v{vC+3}")
    e(f"s_cmp_ge_u32 s{sW}, 4")
    e(f"s_cbranch_scc1 L_NODE2_DONE")
    e(f"s_cmp_lg_u32 s{sBB}, 0")
    e(f"s_cbranch_scc1 L_NODE2_NOSORT")
    e(f"v_mov_b32 v{vC}, v{vC+1}")
    e("s_nop 1")
    scan64(vC)
    e(f"v_sub_u32 v{vC}, v{vC}, v{vC+1}")
    e(f"ds_bpermute_b32 v{vC}, v{vBIN}, v{vC}")
    e("s_waitcnt lgkmcnt(0)")
    e(f"v_add_lshl_u32 v{vP}, v{vC}, v{vDR}, 3")
    e(f"L_NODE2_NOSORT:")
    e(f"v_lshl_or_b32 v{vC}, v{vNP}, 16, v{vSC}")
    e(f"s_mul_i32 s{sT}, s3, {NB*128}")
    e(f"v_lshl_add_u32 v{vC+1}, v0, 7, s{sT}")
    e(f"v_cmp_gt_u32 vcc, {NB}, v0")
    e(f"v_mov_b32 v{vC+2}, 0x80000000")
    e(f"s_mov_b64 exec, s[{sNODE}:{sNODE+1}]")
    e(f"v_cndmask_b32 v{vC+1}, v{vC+2}, v{vC+1}, vcc")
    e(f"ds_write_b64 v{vP}, v[{vC}:{vC+1}] offset:{L_NT}")
    e("s_mov_b64 exec, -1")
    e(f"L_NODE2_DONE:")
    e("s_waitcnt lgkmcnt(0)")
    e("s_barrier")
    e(f"L_GATHER:")
    ts(8, True)
    e(f"s_cmp_ge_u32 s{sW}, 13")
    e(f"s_cbranch_scc1 L_HELPER")
    e(f"v_lshrrev_b32 v{vX}, 3, v{vLANE}")
    e(f"s_lshl_b32 s{sT}, s{sW}, 7")
    e(f"v_lshl_add_u32 v{vX}, v{vX}, 3, s{sT}")
    e(f"ds_read_b64 v[{vX+2}:{vX+3}], v{vX} offset:{L_NT}")
    e(f"ds_read_b64 v[{vX+4}:{vX+5}], v{vX} offset:{L_NT+64}")
    e("s_waitcnt lgkmcnt(0)")
    e(f"v_and_b32 v{vEA}, 0xffff, v{vX+2}")
    e(f"v_and_b32 v{vEB}, 0xffff, v{vX+4}")
    e(f"v_lshrrev_b32 v{vX+2}, 16, v{vX+2}")
    e(f"v_lshrrev_b32 v{vX+4}, 16, v{vX+4}")
    e(f"v_max_u32 v{vX}, v{vX+2}, v{vX+4}")
    e(f"v_lshl_add_u32 v{vPA}, v{vX+2}, 3, v{vEA}")
    e(f"v_lshl_add_u32 v{vPB}, v{vX+4}, 3, v{vEB}")
    e(f"v_max_u32_dpp v{vX}, v{vX}, v{vX} row_ror:8 row_mask:0xf bank_mask:0xf")
    e(f"v_add_u32 v{vROWA}, v{vX+3}, v{vLOFF}")
    e(f"v_add_u32 v{vROWB}, v{vX+5}, v{vLOFF}")
    e(f"v_readlane_b32 s{sN0}, v{vX}, 0")
    e(f"v_readlane_b32 s{sT}, v{vX}, 16")
    e(f"v_readlane_b32 s{sT+1}, v{vX}, 32")
    e(f"v_readlane_b32 s{sCNT}, v{vX}, 48")
    e(f"s_max_u32 s{sN0}, s{sN0}, s{sT}")
    e(f"s_max_u32 s{sCNT}, s{sCNT}, s{sT+1}")
    e(f"s_max_u32 s{sN0}, s{sN0}, s{sCNT}")
    e(f"s_sub_u32 s{sN0}, s{sN0}, 1")
    e(f"s_max_u32 s{sN0}, s{sN0}, {D-1}")
    e(f"s_lshl_b32 s{sT}, s{sN0}, 3")
    e(f"v_subrev_u32 v{vPA}, s{sT}, v{vPA}")
    e(f"v_subrev_u32 v{vPB}, s{sT}, v{vPB}")
    def rdrec():
        e(f"v_max_i32 v{vAD}, v{vPA}, v{vEA}")
        e(f"ds_read_b64 v[{vST}:{vST+1}], v{vAD}")
        e(f"v_max_i32 v{vAD}, v{vPB}, v{vEB}")
        e(f"ds_read_b64 v[{vST+2}:{vST+3}], v{vAD}")
        e(f"v_add_u32 v{vPA}, 8, v{vPA}")
        e(f"v_add_u32 v{vPB}, 8, v{vPB}")
    rdrec()
    e("L_G2:")
    e(f"s_mov_b32 s{sCNT}, s{sN0}")
    pc = [0]
    if cfg.PACE > 1:
        e(f"s_mov_b32 s{sN1}, s{sCNT}")
        e(f"s_sub_i32 s{sI4}, 0, s{sCNT}")
        e(f"s_cmp_le_u32 s{sNBMAX}, 64")
        e(f"s_cselect_b32 s{sPN}, {cfg.PACE-1}, 0")
    def pace():
        if cfg.PACE > 1:
            lab = f"L_PC{pc[0]}"; pc[0] += 1
            e(f"s_add_i32 s{sI4}, s{sI4}, {cfg.PACE}")
            e(f"{lab}a:")
            e(f"s_cmp_lt_i32 s{sI4}, 0")
            e(f"s_cbranch_scc1 {lab}")
            e(f"s_cmp_eq_u32 s{sPN}, 0")
            e(f"s_cbranch_scc1 {lab}")
            e(f"s_sub_i32 s{sI4}, s{sI4}, s{sN1}")
            e(f"s_sub_u32 s{sPN}, s{sPN}, 1")
            e("s_barrier")
            e(f"s_branch {lab}a")
            e(f"{lab}:")
    order = [0, 2, 1, 3]
    def issue(slot):
        e("s_waitcnt lgkmcnt(0)")
        for k, r in enumerate(order):
            e(f"v_mad_u32_u16 v{vAD}, v{vST+r}, s{s128}, v{vLOFF}")
            d = vDATA + 16 * slot + 4 * k
            e(f"buffer_load_dwordx4 v[{d}:{d+3}], v{vAD}, s[{G}:{G+3}], 0 offen sc1")
            a = vAOP + 8 * slot + 2 * k
            e(f"v_perm_b32 v{a}, v{vST+r}, v{vST+r}, v{vSEL0}")
            e(f"v_perm_b32 v{a+1}, v{vST+r}, v{vST+r}, v{vSEL1}")
        rdrec()
        pace()
    def consume(slot, cnt):
        for k, r in enumerate(order):
            e(f"s_waitcnt vmcnt({cnt + 3 - k})")
            d = vDATA + 16 * slot + 4 * k
            a = vAOP + 8 * slot + 2 * k
            acc = vACC + (8 if r >= 2 else 0)
            e(f"v_mfma_f32_4x4x4_16b_bf16 v[{acc}:{acc+3}], v[{a}:{a+1}], v[{d}:{d+1}], v[{acc}:{acc+3}]")
            e(f"v_mfma_f32_4x4x4_16b_bf16 v[{acc+4}:{acc+7}], v[{a}:{a+1}], v[{d+2}:{d+3}], v[{acc+4}:{acc+7}]")
    for s in range(D - 1):
        issue(s)
    e(f"s_sub_i32 s{sCNT}, s{sCNT}, {D-1}")
    e(f"L_GLOOP:")
    for p in range(D):
        e(f"s_cmp_le_i32 s{sCNT}, {p}")
        e(f"s_cbranch_scc1 L_DRAIN{p}")
        issue((p + D - 1) % D)
        consume(p, 4 * (D - 1))
    e(f"s_sub_i32 s{sCNT}, s{sCNT}, {D}")
    e(f"s_branch L_GLOOP")
    for p in range(D):
        e(f"L_DRAIN{p}:")
        for k in range(D - 1):
            consume((p + k) % D, 4 * (D - 2 - k))
        if p != D - 1:
            e(f"s_branch L_GDONE")
    e(f"L_GDONE:")
    e("s_waitcnt lgkmcnt(0)")
    ts(9, True)
    e(f"s_add_u32 s{sBB}, s{sBB}, 64")
    e(f"s_cmp_lt_u32 s{sBB}, s{sNBMAX}")
    e(f"s_cbranch_scc1 L_NEXTB")
    e("s_nop 4")
    for i in range(8):
        e(f"v_cvt_pk_bf16_f32 v{vX+i}, v{vACC+2*i}, v{vACC+2*i+1}")
    e(f"s_cmp_lg_u32 s{sHOP}, 0")
    e(f"s_cbranch_scc1 L_EPI")
    e(f"buffer_store_dwordx4 v[{vX}:{vX+3}], v{vROWA}, s[{O}:{O+3}], 0 offen sc1")
    e(f"buffer_store_dwordx4 v[{vX+4}:{vX+7}], v{vROWB}, s[{O}:{O+3}], 0 offen sc1")
    for i in range(16):
        e(f"v_mov_b32 v{vACC+i}, 0")
    e(f"s_lshl_b32 s{sT}, s{sN0}, 3")
    e(f"s_add_u32 s{sT}, s{sT}, 8")
    e(f"v_subrev_u32 v{vPA}, s{sT}, v{vPA}")
    e(f"v_subrev_u32 v{vPB}, s{sT}, v{vPB}")
    rdrec()
    e("L_SYNC2:")
    srd(G, pWS, pWS+1, ROWB, H1_OFF)
    e(f"s_mov_b32 s{sBB}, 0")
    e("s_waitcnt vmcnt(0)")
    ts(10)
    srd(O, pOUT, pOUT+1, ROWB)
    e(f"s_mov_b32 s{sHOP}, 1")
    e("s_barrier")
    e(f"s_cmp_lg_u32 s{sW}, 0")
    e("s_cbranch_scc1 L_FDONE")
    arrive(2)
    poll(2)
    e("L_FDONE:")
    e("s_waitcnt vmcnt(0)")
    e("s_barrier")
    ts(11)
    e(f"s_cmp_le_u32 s{sNBMAX}, 64")
    e("s_cbranch_scc1 L_G2")
    e("s_branch L_BATCH")

    e("L_EPI:")
    vW = 40
    vq = vX + 8
    e(f"s_lshl_b32 s{sT}, s{sW}, 11")
    e(f"s_add_u32 s{sT}, s{sT}, {L_TILE}")
    e(f"v_lshrrev_b32 v{vq}, 3, v{vLANE}")
    e(f"v_xor_b32 v{vq+1}, v{vq}, v{vLANE}")
    e(f"v_and_b32 v{vq+1}, 7, v{vq+1}")
    e(f"v_lshlrev_b32 v{vq+1}, 4, v{vq+1}")
    e(f"v_lshl_add_u32 v{vq+1}, v{vq}, 7, v{vq+1}")
    e(f"v_add_u32 v{vq+1}, s{sT}, v{vq+1}")
    e(f"ds_write_b128 v{vq+1}, v[{vX}:{vX+3}]")
    e(f"ds_write_b128 v{vq+1}, v[{vX+4}:{vX+7}] offset:1024")
    e(f"v_lshlrev_b32 v{vq+2}, 4, v{vLANE}")
    for i in range(8):
        e(f"ds_read_b128 v[{vW+4*i}:{vW+4*i+3}], v{vq+2} offset:{L_WT + 1024*i}")
    e(f"v_and_b32 v{vq}, 15, v{vLANE}")
    e(f"v_lshrrev_b32 v{vq+3}, 4, v{vLANE}")
    e(f"v_xor_b32 v{vq+4}, v{vq+3}, v{vq}")
    e(f"v_and_b32 v{vq+4}, 7, v{vq+4}")
    e(f"v_lshlrev_b32 v{vq+4}, 4, v{vq+4}")
    e(f"v_lshl_add_u32 v{vq+4}, v{vq}, 7, v{vq+4}")
    e(f"v_add_u32 v{vq+4}, s{sT}, v{vq+4}")
    e(f"v_xor_b32 v{vq+5}, 64, v{vq+4}")
    e(f"ds_read_b128 v[{vX}:{vX+3}], v{vq+4}")
    e(f"ds_read_b128 v[{vX+4}:{vX+7}], v{vq+5}")
    e(f"s_lshl_b32 s{sT}, s{sW}, 7")
    e(f"v_lshl_add_u32 v{vq}, v{vq}, 3, s{sT}")
    e(f"ds_read_b32 v{vq}, v{vq} offset:{L_NT+4}")
    e("s_waitcnt lgkmcnt(0)")
    for mb in range(4):
        e(f"v_mfma_f32_16x16x32_bf16 v[{vACC+4*mb}:{vACC+4*mb+3}], v[{vW+8*mb}:{vW+8*mb+3}], v[{vX}:{vX+3}], 0")
    for mb in range(4):
        e(f"v_mfma_f32_16x16x32_bf16 v[{vACC+4*mb}:{vACC+4*mb+3}], v[{vW+8*mb+4}:{vW+8*mb+7}], v[{vX+4}:{vX+7}], v[{vACC+4*mb}:{vACC+4*mb+3}]")
    e(f"v_lshl_add_u32 v{vq}, v{vq+3}, 4, v{vq}")
    e("s_nop 7")
    for i in range(8):
        e(f"v_cvt_pk_bf16_f32 v{vX+i}, v{vACC+2*i}, v{vACC+2*i+1}")
    e(f"buffer_store_dwordx4 v[{vX}:{vX+3}], v{vq}, s[{O}:{O+3}], 0 offen {cfg.OUTFLAG}")
    e(f"buffer_store_dwordx4 v[{vX+4}:{vX+7}], v{vq}, s[{O}:{O+3}], 0 offen offset:64 {cfg.OUTFLAG}")
    if cfg.TS:
        e("s_waitcnt vmcnt(0)")
        ts(13)
    e("s_endpgm")
    e("L_HELPER:")
    e(f"s_cmp_le_u32 s{sNBMAX}, 64")
    e("s_cbranch_scc1 L_END")
    e(f"s_add_u32 s{sBB}, s{sBB}, 64")
    e(f"s_cmp_lt_u32 s{sBB}, s{sNBMAX}")
    e(f"s_cbranch_scc1 L_NEXTB")
    e(f"s_cmp_lg_u32 s{sHOP}, 0")
    e("s_cbranch_scc1 L_END")
    e("s_branch L_SYNC2")
    e(f"L_NEXTB:")
    e("s_waitcnt vmcnt(0) lgkmcnt(0)")
    e("s_barrier")
    e(f"s_branch L_BATCH")
    e(f"L_END:")
    e("s_endpgm")

head = open("standalone__spectral_conv_sgc__graph.s.ref").read().split("; Override")[0]
e(head.rstrip())
e(f"; @launch grid=(256,1,1) block=(1024,1,1) lds={L_END}")
e('.amdgcn_target "amdgcn-amd-amdhsa--gfx950"')
e(".text")
body()
e('.section .rodata,"a"')
e(".p2align 6")
acc = (NV + 3) // 4 * 4
e(f""".amdhsa_kernel {NAME}
  .amdhsa_next_free_vgpr {NV}
  .amdhsa_next_free_sgpr {102 if cfg.TS else 88}
  .amdhsa_accum_offset {acc}
  .amdhsa_group_segment_fixed_size 0
  .amdhsa_kernarg_size 64
  .amdhsa_user_sgpr_count 2
  .amdhsa_user_sgpr_kernarg_segment_ptr 1
  .amdhsa_system_sgpr_workgroup_id_x 1
  .amdhsa_float_denorm_mode_32 3
.end_amdhsa_kernel
""")
open(sys.argv[1], "w").write("\n".join(out) + "\n")
```

```python
import sys

class Cfg:
    D = 3
    TS = 0
    PF1 = 0
    PF2 = 4
    PACE = 4
    EFLAG = ""
    RLFLAG = "sc1"
    OUTFLAG = "sc1"
    SLEEP = 1
    CPF = 1
    PFC = 0
    PFB = 0
    PFM = 1
cfg = Cfg()
for a in sys.argv[2:]:
    k, v = a.split("=")
    cur = getattr(cfg, k)
    setattr(cfg, k, int(v) if isinstance(cur, int) else v.replace("+", " "))

N = 50000; E = 850000
NB = 196; CH = 3328; MAG = 85599
REC_OFF = 0
TAB_OFF = 0x680000
SY_OFF = 0x700000
H1_OFF = 0x800000
TS_OFF = 0x1200000
WS_USED = 0x1400000
ROWB = N * 128
SPIN_MAX = 1 << 20

L_DUMMY = 16
L_NONCE = 0
L_NT = 32
L_RECS = 32 + 208 * 8
L_CNT = 38400
L_DH = L_CNT + 4096
L_MISC = L_DH + 256
L_D = L_MISC + 256
L_HIST = L_D + 4096
L_ZEND = L_HIST + 1024
L_WT = L_ZEND
L_STAGE = L_WT + 8192
L_TILE = L_STAGE
L_END = L_STAGE + CH * 8
assert L_TILE % 128 == 0

out = []
def e(s=""):
    out.append(s)

def srd(d, lo, hi, nrec, off=0):
    if off:
        e(f"s_add_u32 s{d}, s{lo}, 0x{off:x}")
        e(f"s_addc_u32 s{d+1}, s{hi}, 0")
    else:
        e(f"s_mov_b32 s{d}, s{lo}")
        e(f"s_mov_b32 s{d+1}, s{hi}")
    e(f"s_mov_b32 s{d+2}, 0x{nrec:x}")
    e(f"s_mov_b32 s{d+3}, 0x20000")

def scan64(v, first=1):
    sh = first
    while sh <= 8:
        e(f"v_add_u32_dpp v{v}, v{v}, v{v} row_shr:{sh} row_mask:0xf bank_mask:0xf bound_ctrl:0")
        e("s_nop 1")
        sh *= 2
    e(f"v_add_u32_dpp v{v}, v{v}, v{v} row_bcast:15 row_mask:0xa bank_mask:0xf")
    e("s_nop 1")
    e(f"v_add_u32_dpp v{v}, v{v}, v{v} row_bcast:31 row_mask:0xc bank_mask:0xf")
    e("s_nop 1")

pX, pSRC, pDST, pNRM, pW, pOUT, pDBG, pWS = 64, 66, 68, 70, 72, 74, 76, 78
G, WS, O, T1 = 8, 12, 16, 20
T2, T3 = 24, 4
sW, sTB, sBB, sNBMAX, s128, sCNT, sT, sNR = 28, 29, 30, 31, 32, 33, 34, 36
sHOP, sNONCE, sSPIN = 37, 38, 39
sM = 40
sNODE = 56
sTMP = 58
sI4, sN1, sPN = 60, 61, 62
sN0 = 63
sVAL = 80
sC0, sC1, sC2, sC3 = 82, 83, 84, 85
vLANE, vE, vP, vSEL0, vSEL1, vLOFF, vONE = 1, 2, 4, 5, 6, 7, 39
vACC = 8
vPA, vEA, vPB, vEB, vROWA, vROWB, vDUM, vAD = 24, 25, 26, 27, 28, 29, 30, 31
vST = 32
vTS = 36
D = cfg.D
vDATA = 40
vAOP = vDATA + 16 * D
vPFD = max(vAOP + 8 * D, 90)
NV = vPFD + 1
vDESC, vREC, vRANK, vX = 40, 48, 64, 72
vTP = 88

def ts(slot, dyn=False):
    if not cfg.TS:
        return
    e("s_memrealtime s[96:97]")
    e(f"s_lshl_b32 s98, s2, 4")
    e(f"s_add_u32 s98, s98, s{sW}")
    e(f"s_lshl_b32 s98, s98, 7")
    e(f"s_add_u32 s98, s98, 0x{TS_OFF + slot * 8:x}")
    if dyn:
        e(f"s_mul_i32 s99, s{sHOP}, 24")
        e(f"s_add_u32 s98, s98, s99")
    e("s_mov_b64 s[100:101], exec")
    e("s_mov_b64 exec, 1")
    e(f"v_mov_b32 v{vTS+2}, s98")
    e("s_waitcnt lgkmcnt(0)")
    e(f"v_mov_b32 v{vTS}, s96")
    e(f"v_mov_b32 v{vTS+1}, s97")
    e(f"buffer_store_dwordx2 v[{vTS}:{vTS+1}], v{vTS+2}, s[{WS}:{WS+3}], 0 offen")
    e("s_mov_b64 exec, s[100:101]")

def zero_lds():
    e(f"v_mov_b32 v{vX}, 0")
    e(f"v_mov_b32 v{vX+1}, 0")
    e(f"v_mov_b32 v{vX+2}, 0")
    e(f"v_mov_b32 v{vX+3}, 0")
    e(f"v_lshlrev_b32 v{vX+4}, 4, v0")
    e(f"v_cmp_gt_u32 vcc, {(L_ZEND-L_CNT)//16}, v0")
    e(f"s_mov_b64 exec, vcc")
    e(f"ds_write_b128 v{vX+4}, v[{vX}:{vX+3}] offset:{L_CNT}")
    e("s_mov_b64 exec, -1")

lbl = [0]
def arrive(b):
    lab = f"L_ARR{lbl[0]}"; lbl[0] += 1
    e(f"s_and_b32 s{sT}, s2, 7")
    e(f"s_lshl_b32 s{sT}, s{sT}, 8")
    e(f"s_add_u32 s{sT}, s{sT}, 0x{SY_OFF + b*4096:x}")
    e(f"v_mov_b32 v40, s{sT}")
    e(f"v_mov_b32 v41, 1")
    e(f"v_lshlrev_b32 v42, 8, v{vLANE}")
    e(f"v_add_u32 v42, 0x{SY_OFF + b*4096 + 2048:x}, v42")
    e("s_mov_b64 exec, 1")
    e(f"buffer_atomic_add v41, v40, s[{WS}:{WS+3}], 0 offen sc0 sc1")
    e("s_waitcnt vmcnt(0)")
    e("v_cmp_eq_u32 vcc, 31, v41")
    e(f"s_cbranch_vccz {lab}")
    e("s_mov_b64 exec, 0xff")
    e(f"buffer_atomic_add v{vONE}, v42, s[{WS}:{WS+3}], 0 offen sc1")
    e(f"{lab}:")
    e("s_mov_b64 exec, -1")
def rcount(lab):
    e(f"v_mov_b32 v40, {L_MISC+8}")
    e("s_mov_b64 exec, 1")
    e(f"ds_add_rtn_u32 v41, v40, v{vONE}")
    e("s_waitcnt lgkmcnt(0)")
    e("v_cmp_eq_u32 vcc, 13, v41")
    e("s_mov_b64 exec, -1")
    e(f"s_cbranch_vccz {lab}")
    arrive(1)
    e(f"{lab}:")
def poll(b):
    lab = f"L_POLL{lbl[0]}"; lbl[0] += 1
    e(f"s_and_b32 s{sT}, s2, 7")
    e(f"s_lshl_b32 s{sT}, s{sT}, 8")
    e(f"s_add_u32 s{sT}, s{sT}, 0x{SY_OFF + b*4096 + 2048:x}")
    e(f"v_mov_b32 v{vTP}, s{sT}")
    e("s_mov_b64 exec, 1")
    e(f"s_mov_b32 s{sSPIN}, {SPIN_MAX}")
    e(f"{lab}:")
    e(f"buffer_load_dword v{vTP+1}, v{vTP}, s[{WS}:{WS+3}], 0 offen sc1")
    e(f"s_sub_u32 s{sSPIN}, s{sSPIN}, 1")
    e(f"s_cbranch_scc1 {lab}x")
    e("s_waitcnt vmcnt(0)")
    e(f"v_cmp_eq_u32 vcc, 8, v{vTP+1}")
    e(f"s_cbranch_vccnz {lab}x")
    if cfg.SLEEP:
        e(f"s_sleep {cfg.SLEEP}")
    e(f"s_branch {lab}")
    e(f"{lab}x:")
    e("s_waitcnt vmcnt(0)")
    e("s_mov_b64 exec, -1")
def prefetch_rows(first, n):
    if not n: return
    e(f"s_and_b32 s{sT}, s2, 7")
    e(f"s_mul_i32 s{sT}, s{sT}, 6272")
    e(f"s_lshr_b32 s{sT+1}, s2, 3")
    e(f"s_lshl_b32 s{sT+1}, s{sT+1}, 6")
    e(f"v_add_u32 v40, s{sT+1}, v{vLANE}")
    e(f"v_mul_u32_u24 v40, {cfg.PFM}, v40")
    e(f"v_add_u32 v40, s{sT}, v40")
    for i in range(n):
        e(f"v_add_u32 v41, {cfg.PFM*(first + i*2048)}, v40")
        e(f"v_subrev_u32 v42, 50176, v41")
        e(f"v_min_u32 v41, v41, v42")
        e(f"v_lshlrev_b32 v41, 7, v41")
        e(f"buffer_load_dword v{vPFD}, v41, s[{G}:{G+3}], 0 offen")

NAME = "standalone__spectral_conv_sgc__graph_kernel"
def body():
    e(f".globl {NAME}")
    e(".p2align 8")
    e(f".type {NAME},@function")
    e(f"{NAME}:")
    e("s_cmp_ge_u32 s2, 256")
    e("s_cbranch_scc1 L_END")
    e("s_load_dwordx16 s[64:79], s[0:1], 0")
    if cfg.CPF:
        e("s_getpc_b64 s[86:87]")
        e("L_PC0:")
        e("v_lshlrev_b32 v41, 7, v0")
        e("v_cmp_gt_u32 vcc, L_END-L_PC0, v41")
        e("s_and_saveexec_b64 s[40:41], vcc")
        e("s_cbranch_execz L_NOCPF")
        e(f"global_load_dword v{vPFD}, v41, s[86:87]")
        e("L_NOCPF:")
        e("s_mov_b64 exec, -1")
    e(f"v_lshrrev_b32 v{vX+5}, 6, v0")
    e(f"s_lshl_b32 s{sT}, s2, 4")
    e(f"v_readfirstlane_b32 s{sW}, v{vX+5}")
    e(f"v_and_b32 v41, 15, v0")
    e(f"v_lshrrev_b32 v40, 4, v0")
    e(f"v_lshl_add_u32 v40, v40, 12, s{sT}")
    e(f"v_add_u32 v40, v40, v41")
    e("v_lshlrev_b32 v41, 4, v40")
    e("v_lshlrev_b32 v42, 3, v40")
    e("s_and_b32 s3, s2, 7")
    e("s_lshl_b32 s3, s3, 5")
    e(f"s_lshr_b32 s{sT}, s2, 3")
    e(f"s_or_b32 s3, s3, s{sT}")
    e(f"s_cmp_ge_u32 s{sW}, 13")
    e("s_waitcnt lgkmcnt(0)")
    e(f"s_mov_b32 s{WS}, s{pWS}")
    e(f"s_mov_b32 s{WS+1}, s{pWS+1}")
    e(f"s_mov_b32 s{WS+2}, 0x{WS_USED:x}")
    e(f"s_mov_b32 s{WS+3}, 0x20000")
    e("s_cbranch_scc1 L_P1H0")
    srd(T1, pDST, pDST+1, E * 4)
    e(f"buffer_load_dwordx4 v[44:47], v41, s[{T1}:{T1+3}], 0 offen {cfg.EFLAG}")
    srd(T2, pSRC, pSRC+1, E * 4)
    e(f"buffer_load_dwordx4 v[48:51], v41, s[{T2}:{T2+3}], 0 offen {cfg.EFLAG}")
    srd(T3, pNRM, pNRM+1, E * 2)
    e(f"buffer_load_dwordx2 v[52:53], v42, s[{T3}:{T3+3}], 0 offen {cfg.EFLAG}")
    e("L_P1H0:")
    srd(G, pX, pX+1, ROWB)
    srd(O, pWS, pWS+1, ROWB, H1_OFF)
    ts(0)
    zero_lds()
    e(f"v_and_b32 v{vLANE}, 63, v0")
    e(f"s_mov_b32 s{s128}, 128")
    e(f"s_mov_b32 s{sBB}, 0")
    e(f"s_mov_b32 s{sHOP}, 0")
    e(f"s_mov_b32 s{sC0}, {E//4}")
    e(f"s_mov_b32 s{sC1}, -196")
    e(f"s_mov_b32 s{sC2}, 0x05040100")
    e(f"s_mov_b32 s{sC3}, 0x07060100")
    e(f"v_cmp_gt_u32 s[{sVAL}:{sVAL+1}], s{sC0}, v40")
    e(f"v_and_b32 v{vX+4}, 7, v0")
    e(f"v_lshlrev_b32 v{vLOFF}, 4, v{vX+4}")
    e(f"v_mov_b32 v{vONE}, 1")
    e(f"v_and_b32 v{vX+4}, 1, v0")
    e(f"v_mov_b32 v{vX+5}, 0x0c0c0302")
    e(f"v_mov_b32 v{vX+6}, 0x03020c0c")
    e(f"v_cmp_eq_u32 vcc, 1, v{vX+4}")
    e(f"v_mov_b32 v{vX+7}, 0x0c0c0c0c")
    e(f"v_and_b32 v{vX+4}, 2, v0")
    e(f"v_cndmask_b32 v{vX+5}, v{vX+5}, v{vX+6}, vcc")
    e(f"v_cmp_eq_u32 vcc, 2, v{vX+4}")
    for i in range(16):
        e(f"v_mov_b32 v{vACC+i}, 0")
    e(f"v_cndmask_b32 v{vSEL0}, v{vX+5}, v{vX+7}, vcc")
    e(f"v_cndmask_b32 v{vSEL1}, v{vX+7}, v{vX+5}, vcc")
    e(f"v_cmp_gt_u32 vcc, 208, v0")
    e(f"s_mov_b64 s[{sNODE}:{sNODE+1}], vcc")
    e(f"v_mov_b32 v{vP}, 0")
    e("s_waitcnt lgkmcnt(0)")
    e("s_barrier")
    e(f"s_cmp_ge_u32 s{sW}, 13")
    e("s_cbranch_scc1 L_P1H1")
    tsx = 1 if cfg.TS else 0
    e(f"s_mov_b64 exec, s[{sVAL}:{sVAL+1}]")
    e(f"s_waitcnt vmcnt({2+tsx})")
    for i in range(4):
        e(f"v_mul_u32_u24 v{74+i}, {MAG}, v{44+i}")
    for i in range(4):
        e(f"v_lshrrev_b32 v{70+i}, 24, v{74+i}")
        e(f"v_lshlrev_b32 v{54+i}, 2, v{70+i}")
        e(f"ds_add_rtn_u32 v{58+i}, v{54+i}, v{vONE} offset:{L_HIST}")
    for i in range(4):
        e(f"v_mad_i32_i24 v{44+i}, v{70+i}, s{sC1}, v{44+i}")
        e(f"v_and_b32 v{74+i}, 0xe0000000, v{74+i}")
    e("s_mov_b64 exec, -1")
    e("s_waitcnt lgkmcnt(0)")
    ts(1)
    e("s_barrier")
    e(f"s_mov_b64 exec, s[{sVAL}:{sVAL+1}]")
    e(f"s_waitcnt vmcnt({2*tsx})")
    for i in range(4):
        e(f"v_mul_u32_u24 v78, {MAG}, v{48+i}")
        e(f"v_sub_u32 v78, v78, v{74+i}")
        e(f"v_lshrrev_b32 v78, 30, v78")
        e(f"v_lshl_or_b32 v78, v{44+i}, 2, v78")
        e(f"v_lshlrev_b32 v{63+2*i}, 2, v78")
        e(f"v_perm_b32 v{62+2*i}, v{52+i//2}, v{48+i}, s{sC2 if i%2==0 else sC3}")
    e("s_waitcnt lgkmcnt(0)")
    e("s_barrier")
    for i in range(4):
        e(f"ds_read_b32 v{74+i}, v{54+i} offset:{L_HIST}")
    for i in range(4):
        e(f"s_waitcnt lgkmcnt(3)")
        e(f"v_add_lshl_u32 v{74+i}, v{74+i}, v{58+i}, 3")
        e(f"ds_write_b64 v{74+i}, v[{62+2*i}:{63+2*i}] offset:{L_STAGE}")
    e("s_mov_b64 exec, -1")
    e("v_lshlrev_b32 v40, 4, v0")
    e(f"s_mul_i32 s{sT}, s2, {CH*8}")
    e(f"v_add_u32 v41, s{sT}, v40")
    e(f"v_add_u32 v42, {CH*4}, v41")
    e(f"v_add_u32 v40, {L_STAGE}, v40")
    e("s_waitcnt lgkmcnt(0)")
    e("s_barrier")
    e(f"ds_read_b128 v[44:47], v40")
    e(f"ds_read_b128 v[48:51], v40 offset:{CH*4}")
    e("s_waitcnt lgkmcnt(1)")
    e(f"buffer_store_dwordx4 v[44:47], v41, s[{WS}:{WS+3}], 0 offen sc1")
    e("s_waitcnt lgkmcnt(0)")
    e(f"buffer_store_dwordx4 v[48:51], v42, s[{WS}:{WS+3}], 0 offen sc1")
    ts(2)
    e("s_branch L_P1_JOIN")
    e("L_P1H1:")
    e(f"s_cmp_eq_u32 s{sW}, 13")
    e("s_cbranch_scc1 L_P1_W13")
    e(f"s_cmp_eq_u32 s{sW}, 15")
    e("s_cbranch_scc1 L_P1_W15")
    srd(T1, pW, pW+1, 8192)
    e(f"v_lshlrev_b32 v40, 4, v{vLANE}")
    e(f"v_add_u32 v41, 4096, v40")
    for i in range(8):
        e(f"buffer_load_dwordx4 v[{44+4*i}:{47+4*i}], v{40+i//4}, s[{T1}:{T1+3}], 0 offen offset:{1024*(i%4)}")
    e(f"v_lshrrev_b32 v43, 3, v{vLANE}")
    e(f"v_lshlrev_b32 v43, 1, v43")
    e(f"v_and_b32 v42, 4, v{vLANE}")
    e(f"v_lshl_add_u32 v43, v42, 10, v43")
    e(f"v_and_b32 v42, 3, v{vLANE}")
    e(f"v_lshl_add_u32 v43, v42, 6, v43")
    e("s_barrier")
    prefetch_rows(0, cfg.PF1)
    e("s_barrier")
    e("s_barrier")
    prefetch_rows(cfg.PF1 * 2048, cfg.PFB)
    e(f"s_waitcnt vmcnt({cfg.PF1 + cfg.PFB})")
    for i in range(8):
        for el in range(8):
            off = L_WT + (el >> 2) * 2048 + (el & 3) * 16 + (i & 3) * 256 + (i >> 2) * 1024
            op = "ds_write_b16" if el % 2 == 0 else "ds_write_b16_d16_hi"
            e(f"{op} v43, v{44+4*i+el//2} offset:{off}")
    e("s_branch L_P1_JOIN2")
    e("L_P1_W15:")
    e("v_mov_b32 v40, 0")
    e("s_cmp_lg_u32 s2, 0")
    e("s_cbranch_scc1 L_W15_NOINIT")
    srd(T1, pDBG, pDBG+1, 256)
    e(f"v_lshrrev_b32 v41, 3, v{vLANE}")
    e(f"v_lshl_add_u32 v41, v41, 8, v{vLOFF}")
    e(f"v_add_u32 v41, 0x{SY_OFF:x}, v41")
    for k in range(6):
        e(f"buffer_store_dwordx4 v[{vACC}:{vACC+3}], v41, s[{WS}:{WS+3}], 0 offen sc1")
        e(f"v_add_u32 v41, 2048, v41")
    e("s_waitcnt vmcnt(0)")
    e("s_mov_b64 exec, 1")
    e(f"buffer_store_dword v{vONE}, v40, s[{T1}:{T1+3}], 0 offen sc1")
    e("s_mov_b64 exec, -1")
    e("L_W15_NOINIT:")
    e("s_barrier")
    e("s_barrier")
    e("s_barrier")
    e("s_branch L_P1_JOIN2")
    e("L_P1_W13:")
    srd(T1, pDBG, pDBG+1, 256)
    e(f"v_lshlrev_b32 v79, 4, v{vLANE}")
    e(f"s_lshl_b32 s{sT}, s2, 10")
    e(f"s_add_u32 s{sT}, s{sT}, 0x{TAB_OFF:x}")
    e(f"v_add_u32 v78, s{sT}, v79")
    e("v_mov_b32 v77, 0")
    e("s_barrier")
    e(f"ds_read_b128 v[80:83], v79 offset:{L_HIST}")
    e("s_waitcnt lgkmcnt(0)")
    e("v_add_u32 v85, v80, v81")
    e("v_add_u32 v86, v85, v82")
    e("v_add_u32 v87, v86, v83")
    e("v_mov_b32 v84, v87")
    e("s_nop 1")
    scan64(84)
    e("v_sub_u32 v84, v84, v87")
    e("v_add_u32 v87, v84, v86")
    e("v_add_u32 v86, v84, v85")
    e("v_add_u32 v85, v84, v80")
    e(f"ds_write_b128 v79, v[84:87] offset:{L_HIST}")
    for i in range(4):
        e(f"v_lshl_or_b32 v{80+i}, v{80+i}, 16, v{84+i}")
    e(f"buffer_store_dwordx4 v[80:83], v78, s[{WS}:{WS+3}], 0 offen sc1")
    e("s_mov_b64 exec, 1")
    e(f"buffer_load_dword v76, v77, s[{T1}:{T1+3}], 0 offen sc1")
    e("s_waitcnt lgkmcnt(0)")
    e("s_barrier")
    e("s_barrier")
    e(f"s_mov_b32 s{sSPIN}, {SPIN_MAX}")
    e("L_RDY:")
    e("s_waitcnt vmcnt(0)")
    e("v_cmp_eq_u32 vcc, 1, v76")
    e("s_cbranch_vccnz L_RDYX")
    e(f"s_sub_u32 s{sSPIN}, s{sSPIN}, 1")
    e("s_cbranch_scc1 L_RDYX")
    e("s_sleep 2")
    e(f"buffer_load_dword v76, v77, s[{T1}:{T1+3}], 0 offen sc1")
    e("s_branch L_RDY")
    e("L_RDYX:")
    e("s_mov_b64 exec, -1")
    ts(1)
    rcount("L_RC13")
    arrive(0)
    poll(0)
    ts(2)
    e("s_branch L_P1_JOIN2")
    e("L_P1_JOIN:")
    e("s_waitcnt vmcnt(0)")
    rcount("L_RCE")
    if cfg.PFC:
        e(f"s_and_b32 s{sT}, s2, 7")
        e(f"s_mul_i32 s{sT}, s{sT}, 6272")
        e(f"s_lshr_b32 s{sT+1}, s2, 3")
        e(f"s_mul_i32 s{sT+1}, s{sT+1}, 13")
        e(f"s_add_u32 s{sT+1}, s{sT+1}, s{sW}")
        e(f"s_mul_i32 s{sT+1}, s{sT+1}, {cfg.PFC}")
        e(f"s_add_u32 s{sT}, s{sT}, s{sT+1}")
        e(f"v_add_u32 v41, s{sT}, v{vLANE}")
        e(f"v_subrev_u32 v42, 50176, v41")
        e(f"v_min_u32 v41, v41, v42")
        e(f"v_lshlrev_b32 v41, 7, v41")
        e(f"s_mov_b64 exec, 0x{(1<<cfg.PFC)-1:x}")
        e(f"buffer_load_dword v{vPFD}, v41, s[{G}:{G+3}], 0 offen")
        e("s_mov_b64 exec, -1")
    ts(14)
    e("L_P1_JOIN2:")
    e(f"v_and_b32 v{vX}, 60, v0")
    e(f"v_lshl_add_u32 v{vX}, v{vX}, 2, s{sW}")
    e(f"s_lshl_b32 s{sT}, s3, 2")
    e(f"s_add_u32 s{sT}, s{sT}, 0x{TAB_OFF:x}")
    e(f"v_lshl_add_u32 v{vX+1}, v{vX}, 10, s{sT}")
    e("s_waitcnt lgkmcnt(0)")
    e("s_barrier")
    e(f"buffer_load_dword v{vE}, v{vX+1}, s[{WS}:{WS+3}], 0 offen sc1")
    ts(3)
    e(f"s_waitcnt vmcnt({tsx})")
    e("s_branch L_DECODE")

    e("L_BATCH:")
    zero_lds()
    e("s_waitcnt lgkmcnt(0)")
    e("s_barrier")
    e("L_DECODE:")
    ts(4)
    vLEN, vSTART, vNBLK, vQ, vT, vB, vD, vA = vX, vX+1, vX+2, vX+3, vX+4, vX+5, vX+6, vX+7
    e(f"v_lshrrev_b32 v{vLEN}, 16, v{vE}")
    e(f"v_add_u32 v{vNBLK}, 7, v{vLEN}")
    e(f"v_lshrrev_b32 v{vNBLK}, 3, v{vNBLK}")
    e(f"v_mov_b32 v{vQ}, v{vNBLK}")
    e(f"v_and_b32 v{vSTART}, 60, v0")
    e(f"v_lshl_add_u32 v{vSTART}, v{vSTART}, 2, s{sW}")
    e(f"v_mul_u32_u24 v{vSTART}, {CH}, v{vSTART}")
    e(f"v_add_u32_dpp v{vQ}, v{vQ}, v{vQ} row_shr:4 row_mask:0xf bank_mask:0xf bound_ctrl:0")
    e(f"v_and_b32 v{vB}, 0xffff, v{vE}")
    e(f"v_add_u32 v{vSTART}, v{vSTART}, v{vB}")
    e(f"v_add_u32_dpp v{vQ}, v{vQ}, v{vQ} row_shr:8 row_mask:0xf bank_mask:0xf bound_ctrl:0")
    e(f"v_and_b32 v{vT}, 3, v0")
    e(f"s_lshl_b32 s{sT}, s{sW}, 8")
    e(f"v_add_u32_dpp v{vQ}, v{vQ}, v{vQ} row_bcast:15 row_mask:0xa bank_mask:0xf")
    e(f"s_add_u32 s{sT}, s{sT}, {L_D}")
    e("s_nop 0")
    e(f"v_add_u32_dpp v{vQ}, v{vQ}, v{vQ} row_bcast:31 row_mask:0xc bank_mask:0xf")
    e("s_nop 0")
    e(f"v_readlane_b32 s{sTB}, v{vQ}, 63")
    e(f"v_sub_u32 v{vQ}, v{vQ}, v{vNBLK}")
    e(f"v_subrev_u32 v{vQ}, s{sBB}, v{vQ}")
    e(f"L_DLOOP:")
    e(f"v_add_u32 v{vB}, v{vQ}, v{vT}")
    e(f"v_lshlrev_b32 v{vA}, 3, v{vT}")
    e(f"v_add_u32 v{vD}, v{vSTART}, v{vA}")
    e(f"v_sub_u32 v{vA}, v{vLEN}, v{vA}")
    e(f"v_min_u32 v{vA}, 8, v{vA}")
    e(f"v_lshl_or_b32 v{vD}, v{vD}, 4, v{vA}")
    e(f"v_cmp_lt_u32 s[{sTMP}:{sTMP+1}], v{vT}, v{vNBLK}")
    e(f"v_cmp_gt_u32 vcc, 64, v{vB}")
    e(f"v_and_b32 v{vA}, 7, v{vB}")
    e(f"v_lshrrev_b32 v{vB}, 3, v{vB}")
    e(f"v_lshl_add_u32 v{vA}, v{vA}, 3, v{vB}")
    e(f"v_lshl_add_u32 v{vA}, v{vA}, 2, s{sT}")
    e(f"v_add_u32 v{vT}, 4, v{vT}")
    e(f"s_and_b64 exec, vcc, s[{sTMP}:{sTMP+1}]")
    e(f"ds_write_b32 v{vA}, v{vD}")
    e("s_mov_b64 exec, -1")
    e(f"v_cmp_lt_u32 vcc, v{vT}, v{vNBLK}")
    e(f"s_cbranch_vccnz L_DLOOP")
    e(f"v_lshrrev_b32 v{vA}, 3, v{vLANE}")
    e(f"v_lshl_add_u32 v{vA}, v{vA}, 5, s{sT}")
    e(f"ds_read_b128 v[{vDESC}:{vDESC+3}], v{vA}")
    e(f"ds_read_b128 v[{vDESC+4}:{vDESC+7}], v{vA} offset:16")
    e(f"s_sub_i32 s{sNR}, s{sTB}, s{sBB}")
    e(f"v_and_b32 v{vT}, 7, v0")
    e(f"s_cmp_lg_u32 s{sW}, 13")
    e("s_cbranch_scc1 L_NORPOLL")
    poll(1)
    e("L_NORPOLL:")
    e("s_waitcnt lgkmcnt(0)")
    e("s_barrier")
    ts(15)
    for m in range(8):
        e(f"s_cmp_le_i32 s{sNR}, {8*m}")
        e(f"s_cbranch_scc1 L_LD_DONE")
        e(f"v_and_b32 v{vA}, 15, v{vDESC+m}")
        e(f"v_lshrrev_b32 v{vB}, 4, v{vDESC+m}")
        e(f"v_cmp_lt_u32 s[{sM+2*m}:{sM+2*m+1}], v{vT}, v{vA}")
        e(f"v_add_lshl_u32 v{vB}, v{vB}, v{vT}, 3")
        e(f"s_mov_b64 exec, s[{sM+2*m}:{sM+2*m+1}]")
        e(f"buffer_load_dwordx2 v[{vREC+2*m}:{vREC+2*m+1}], v{vB}, s[{WS}:{WS+3}], 0 offen {cfg.RLFLAG}")
        e("s_mov_b64 exec, -1")
    e(f"L_LD_DONE:")
    e(f"v_mov_b32 v{vA}, s{sTB}")
    e(f"v_mov_b32 v{vB}, {L_MISC+4}")
    e("s_mov_b64 exec, 1")
    e(f"ds_max_u32 v{vB}, v{vA}")
    e(f"s_waitcnt vmcnt(0)")
    e("s_mov_b64 exec, -1")
    if cfg.PF2:
        e(f"s_cmp_lt_u32 s{sW}, {16-cfg.PF2}")
        e("s_cbranch_scc1 L_NOPF2")
        e(f"s_and_b32 s{sT}, s2, 7")
        e(f"s_mul_i32 s{sT}, s{sT}, 6272")
        e(f"s_lshr_b32 s{sT+1}, s2, 3")
        e(f"s_lshl_b32 s{sT+1}, s{sT+1}, 6")
        e(f"v_add_u32 v{vX+8}, s{sT+1}, v{vLANE}")
        e(f"s_sub_u32 s{sT+1}, s{sW}, {16-cfg.PF2-cfg.PF1-cfg.PFB}")
        e(f"s_lshl_b32 s{sT+1}, s{sT+1}, 11")
        e(f"v_add_u32 v{vX+8}, s{sT+1}, v{vX+8}")
        e(f"v_mul_u32_u24 v{vX+8}, {cfg.PFM}, v{vX+8}")
        e(f"s_add_u32 s{sT}, s{sT}, {cfg.PFC*416}")
        e(f"v_add_u32 v{vX+8}, s{sT}, v{vX+8}")
        e(f"v_subrev_u32 v{vX+9}, 50176, v{vX+8}")
        e(f"v_min_u32 v{vX+8}, v{vX+8}, v{vX+9}")
        e(f"v_lshlrev_b32 v{vX+8}, 7, v{vX+8}")
        e(f"buffer_load_dword v{vPFD}, v{vX+8}, s[{G}:{G+3}], 0 offen")
        e("L_NOPF2:")
    ts(5)
    def rounds(bodyf, lab):
        for m in range(8):
            e(f"s_cmp_le_i32 s{sNR}, {8*m}")
            e(f"s_cbranch_scc1 {lab}")
            e(f"s_mov_b64 exec, s[{sM+2*m}:{sM+2*m+1}]")
            bodyf(m)
        e(f"{lab}:")
        e("s_mov_b64 exec, -1")
    rounds(lambda m: e(f"ds_add_rtn_u32 v{vRANK+m}, v{vREC+2*m+1}, v{vONE} offset:{L_CNT}"), "L_RK_DONE")
    e("s_waitcnt lgkmcnt(0)")
    e("s_barrier")
    ts(6)
    vC = vX
    vDEG, vNP, vSC, vBIN, vDR, vSB = vX+4, vX+5, vX+6, vX+7, vX+8, vX+9
    vBS = vX + 12
    e(f"s_cmp_ge_u32 s{sW}, 4")
    e(f"s_cbranch_scc1 L_NODE1_DONE")
    e(f"v_lshlrev_b32 v{vX+10}, 4, v0")
    e(f"ds_read_b128 v[{vC}:{vC+3}], v{vX+10} offset:{L_CNT}")
    e(f"v_mov_b32 v{vX+11}, {L_MISC}")
    e("s_waitcnt lgkmcnt(0)")
    e(f"v_add_u32 v{vC+1}, v{vC}, v{vC+1}")
    e(f"v_add_u32 v{vC+2}, v{vC+1}, v{vC+2}")
    e(f"v_add_u32 v{vDEG}, v{vC+2}, v{vC+3}")
    e(f"v_add_u32 v{vSC}, 3, v{vDEG}")
    e(f"v_lshrrev_b32 v{vSC}, 1, v{vSC}")
    e(f"v_mov_b32 v{vNP}, v{vSC}")
    e(f"v_min_u32 v{vBIN}, 63, v{vDEG}")
    e(f"v_sub_u32 v{vBIN}, 63, v{vBIN}")
    scan64(vSC)
    e(f"s_mov_b32 exec_lo, 0")
    e(f"s_mov_b32 exec_hi, 0x80000000")
    e(f"ds_add_rtn_u32 v{vSB}, v{vX+11}, v{vSC}")
    e(f"s_mov_b64 exec, s[{sNODE}:{sNODE+1}]")
    e(f"v_lshlrev_b32 v{vBIN}, 2, v{vBIN}")
    e(f"ds_add_rtn_u32 v{vDR}, v{vBIN}, v{vONE} offset:{L_DH}")
    e("s_mov_b64 exec, -1")
    e(f"v_lshlrev_b32 v{vSC}, 1, v{vSC}")
    e(f"v_sub_u32 v{vC+3}, v{vSC}, v{vDEG}")
    e(f"v_lshlrev_b32 v{vX+11}, 1, v{vNP}")
    e(f"v_sub_u32 v{vSC}, v{vSC}, v{vX+11}")
    e(f"v_mov_b32 v{vTP}, 0xffff")
    e(f"v_mov_b32 v{vTP+1}, 0xffff")
    e("s_waitcnt lgkmcnt(1)")
    e(f"v_readlane_b32 s{sT}, v{vSB}, 63")
    e(f"s_lshl_b32 s{sT}, s{sT}, 3")
    e(f"s_add_u32 s{sT}, s{sT}, {L_RECS}")
    e(f"v_lshl_add_u32 v{vBS}, v{vC+3}, 2, s{sT}")
    e(f"v_lshl_add_u32 v{vBS+1}, v{vC}, 2, v{vBS}")
    e(f"v_lshl_add_u32 v{vBS+2}, v{vC+1}, 2, v{vBS}")
    e(f"v_lshl_add_u32 v{vBS+3}, v{vC+2}, 2, v{vBS}")
    e(f"ds_write_b128 v{vX+10}, v[{vBS}:{vBS+3}] offset:{L_CNT}")
    e(f"v_lshl_add_u32 v{vSC}, v{vSC}, 2, s{sT}")
    e(f"ds_write_b64 v{vSC}, v[{vTP}:{vTP+1}]")
    e(f"ds_write_b32 v{vSC}, v{vTP} offset:8")
    e("s_waitcnt lgkmcnt(0)")
    e(f"L_NODE1_DONE:")
    e("s_barrier")
    ts(7)
    e(f"v_mov_b32 v{vC}, {L_MISC}")
    e(f"ds_read_b64 v[{vC+2}:{vC+3}], v{vC}")
    e(f"v_lshlrev_b32 v{vC+1}, 2, v{vLANE}")
    e(f"ds_read_b32 v{vC+1}, v{vC+1} offset:{L_DH}")
    rounds(lambda m: e(f"ds_read_b32 v{vREC+2*m+1}, v{vREC+2*m+1} offset:{L_CNT}"), "L_RB_DONE")
    e("s_waitcnt lgkmcnt(0)")
    def wr(m):
        e(f"v_lshl_add_u32 v{vRANK+m}, v{vRANK+m}, 2, v{vREC+2*m+1}")
        e(f"ds_write_b32 v{vRANK+m}, v{vREC+2*m}")
    rounds(wr, "L_RW_DONE")
    e(f"v_readfirstlane_b32 s{sNBMAX}, v{vC+3}")
    e(f"s_cmp_ge_u32 s{sW}, 4")
    e(f"s_cbranch_scc1 L_NODE2_DONE")
    e(f"s_cmp_lg_u32 s{sBB}, 0")
    e(f"s_cbranch_scc1 L_NODE2_NOSORT")
    e(f"v_mov_b32 v{vC}, v{vC+1}")
    e("s_nop 1")
    scan64(vC)
    e(f"v_sub_u32 v{vC}, v{vC}, v{vC+1}")
    e(f"ds_bpermute_b32 v{vC}, v{vBIN}, v{vC}")
    e("s_waitcnt lgkmcnt(0)")
    e(f"v_add_lshl_u32 v{vP}, v{vC}, v{vDR}, 3")
    e(f"L_NODE2_NOSORT:")
    e(f"v_lshl_or_b32 v{vC}, v{vNP}, 16, v{vSC}")
    e(f"s_mul_i32 s{sT}, s3, {NB*128}")
    e(f"v_lshl_add_u32 v{vC+1}, v0, 7, s{sT}")
    e(f"v_cmp_gt_u32 vcc, {NB}, v0")
    e(f"v_mov_b32 v{vC+2}, 0x80000000")
    e(f"s_mov_b64 exec, s[{sNODE}:{sNODE+1}]")
    e(f"v_cndmask_b32 v{vC+1}, v{vC+2}, v{vC+1}, vcc")
    e(f"ds_write_b64 v{vP}, v[{vC}:{vC+1}] offset:{L_NT}")
    e("s_mov_b64 exec, -1")
    e(f"L_NODE2_DONE:")
    e("s_waitcnt lgkmcnt(0)")
    e("s_barrier")
    e(f"L_GATHER:")
    ts(8, True)
    e(f"s_cmp_ge_u32 s{sW}, 13")
    e(f"s_cbranch_scc1 L_HELPER")
    e(f"v_lshrrev_b32 v{vX}, 3, v{vLANE}")
    e(f"s_lshl_b32 s{sT}, s{sW}, 7")
    e(f"v_lshl_add_u32 v{vX}, v{vX}, 3, s{sT}")
    e(f"ds_read_b64 v[{vX+2}:{vX+3}], v{vX} offset:{L_NT}")
    e(f"ds_read_b64 v[{vX+4}:{vX+5}], v{vX} offset:{L_NT+64}")
    e("s_waitcnt lgkmcnt(0)")
    e(f"v_and_b32 v{vEA}, 0xffff, v{vX+2}")
    e(f"v_and_b32 v{vEB}, 0xffff, v{vX+4}")
    e(f"v_lshrrev_b32 v{vX+2}, 16, v{vX+2}")
    e(f"v_lshrrev_b32 v{vX+4}, 16, v{vX+4}")
    e(f"v_max_u32 v{vX}, v{vX+2}, v{vX+4}")
    e(f"v_lshl_add_u32 v{vPA}, v{vX+2}, 3, v{vEA}")
    e(f"v_lshl_add_u32 v{vPB}, v{vX+4}, 3, v{vEB}")
    e(f"v_max_u32_dpp v{vX}, v{vX}, v{vX} row_ror:8 row_mask:0xf bank_mask:0xf")
    e(f"v_add_u32 v{vROWA}, v{vX+3}, v{vLOFF}")
    e(f"v_add_u32 v{vROWB}, v{vX+5}, v{vLOFF}")
    e(f"v_readlane_b32 s{sN0}, v{vX}, 0")
    e(f"v_readlane_b32 s{sT}, v{vX}, 16")
    e(f"v_readlane_b32 s{sT+1}, v{vX}, 32")
    e(f"v_readlane_b32 s{sCNT}, v{vX}, 48")
    e(f"s_max_u32 s{sN0}, s{sN0}, s{sT}")
    e(f"s_max_u32 s{sCNT}, s{sCNT}, s{sT+1}")
    e(f"s_max_u32 s{sN0}, s{sN0}, s{sCNT}")
    e(f"s_sub_u32 s{sN0}, s{sN0}, 1")
    e(f"s_max_u32 s{sN0}, s{sN0}, {D-1}")
    e(f"s_lshl_b32 s{sT}, s{sN0}, 3")
    e(f"v_subrev_u32 v{vPA}, s{sT}, v{vPA}")
    e(f"v_subrev_u32 v{vPB}, s{sT}, v{vPB}")
    def rdrec():
        e(f"v_max_i32 v{vAD}, v{vPA}, v{vEA}")
        e(f"ds_read_b64 v[{vST}:{vST+1}], v{vAD}")
        e(f"v_max_i32 v{vAD}, v{vPB}, v{vEB}")
        e(f"ds_read_b64 v[{vST+2}:{vST+3}], v{vAD}")
        e(f"v_add_u32 v{vPA}, 8, v{vPA}")
        e(f"v_add_u32 v{vPB}, 8, v{vPB}")
    rdrec()
    e("L_G2:")
    e(f"s_mov_b32 s{sCNT}, s{sN0}")
    pc = [0]
    if cfg.PACE > 1:
        e(f"s_mov_b32 s{sN1}, s{sCNT}")
        e(f"s_sub_i32 s{sI4}, 0, s{sCNT}")
        e(f"s_cmp_le_u32 s{sNBMAX}, 64")
        e(f"s_cselect_b32 s{sPN}, {cfg.PACE-1}, 0")
    def pace():
        if cfg.PACE > 1:
            lab = f"L_PCE{pc[0]}"; pc[0] += 1
            e(f"s_add_i32 s{sI4}, s{sI4}, {cfg.PACE}")
            e(f"{lab}a:")
            e(f"s_cmp_lt_i32 s{sI4}, 0")
            e(f"s_cbranch_scc1 {lab}")
            e(f"s_cmp_eq_u32 s{sPN}, 0")
            e(f"s_cbranch_scc1 {lab}")
            e(f"s_sub_i32 s{sI4}, s{sI4}, s{sN1}")
            e(f"s_sub_u32 s{sPN}, s{sPN}, 1")
            e("s_barrier")
            e(f"s_branch {lab}a")
            e(f"{lab}:")
    order = [0, 2, 1, 3]
    def issue(slot):
        e("s_waitcnt lgkmcnt(0)")
        for k, r in enumerate(order):
            e(f"v_mad_u32_u16 v{vAD}, v{vST+r}, s{s128}, v{vLOFF}")
            d = vDATA + 16 * slot + 4 * k
            e(f"buffer_load_dwordx4 v[{d}:{d+3}], v{vAD}, s[{G}:{G+3}], 0 offen sc1")
            a = vAOP + 8 * slot + 2 * k
            e(f"v_perm_b32 v{a}, v{vST+r}, v{vST+r}, v{vSEL0}")
            e(f"v_perm_b32 v{a+1}, v{vST+r}, v{vST+r}, v{vSEL1}")
        rdrec()
        pace()
    def consume(slot, cnt):
        for k, r in enumerate(order):
            e(f"s_waitcnt vmcnt({cnt + 3 - k})")
            d = vDATA + 16 * slot + 4 * k
            a = vAOP + 8 * slot + 2 * k
            acc = vACC + (8 if r >= 2 else 0)
            e(f"v_mfma_f32_4x4x4_16b_bf16 v[{acc}:{acc+3}], v[{a}:{a+1}], v[{d}:{d+1}], v[{acc}:{acc+3}]")
            e(f"v_mfma_f32_4x4x4_16b_bf16 v[{acc+4}:{acc+7}], v[{a}:{a+1}], v[{d+2}:{d+3}], v[{acc+4}:{acc+7}]")
    for s in range(D - 1):
        issue(s)
    e(f"s_sub_i32 s{sCNT}, s{sCNT}, {D-1}")
    e(f"L_GLOOP:")
    for p in range(D):
        e(f"s_cmp_le_i32 s{sCNT}, {p}")
        e(f"s_cbranch_scc1 L_DRAIN{p}")
        issue((p + D - 1) % D)
        consume(p, 4 * (D - 1))
    e(f"s_sub_i32 s{sCNT}, s{sCNT}, {D}")
    e(f"s_branch L_GLOOP")
    for p in range(D):
        e(f"L_DRAIN{p}:")
        for k in range(D - 1):
            consume((p + k) % D, 4 * (D - 2 - k))
        if p != D - 1:
            e(f"s_branch L_GDONE")
    e(f"L_GDONE:")
    e("s_waitcnt lgkmcnt(0)")
    ts(9, True)
    e(f"s_add_u32 s{sBB}, s{sBB}, 64")
    e(f"s_cmp_lt_u32 s{sBB}, s{sNBMAX}")
    e(f"s_cbranch_scc1 L_NEXTB")
    e("s_nop 4")
    for i in range(8):
        e(f"v_cvt_pk_bf16_f32 v{vX+i}, v{vACC+2*i}, v{vACC+2*i+1}")
    e(f"s_cmp_lg_u32 s{sHOP}, 0")
    e(f"s_cbranch_scc1 L_EPI")
    e(f"buffer_store_dwordx4 v[{vX}:{vX+3}], v{vROWA}, s[{O}:{O+3}], 0 offen sc1")
    e(f"buffer_store_dwordx4 v[{vX+4}:{vX+7}], v{vROWB}, s[{O}:{O+3}], 0 offen sc1")
    for i in range(16):
        e(f"v_mov_b32 v{vACC+i}, 0")
    e(f"s_lshl_b32 s{sT}, s{sN0}, 3")
    e(f"s_add_u32 s{sT}, s{sT}, 8")
    e(f"v_subrev_u32 v{vPA}, s{sT}, v{vPA}")
    e(f"v_subrev_u32 v{vPB}, s{sT}, v{vPB}")
    rdrec()
    e("L_SYNC2:")
    srd(G, pWS, pWS+1, ROWB, H1_OFF)
    e(f"s_mov_b32 s{sBB}, 0")
    e("s_waitcnt vmcnt(0)")
    ts(10)
    srd(O, pOUT, pOUT+1, ROWB)
    e(f"s_mov_b32 s{sHOP}, 1")
    e("s_barrier")
    e(f"s_cmp_lg_u32 s{sW}, 0")
    e("s_cbranch_scc1 L_FDONE")
    arrive(2)
    poll(2)
    e("L_FDONE:")
    e("s_waitcnt vmcnt(0)")
    e("s_barrier")
    ts(11)
    e(f"s_cmp_le_u32 s{sNBMAX}, 64")
    e("s_cbranch_scc1 L_G2")
    e("s_branch L_BATCH")

    e("L_EPI:")
    vW = 40
    vq = vX + 8
    e(f"s_lshl_b32 s{sT}, s{sW}, 11")
    e(f"s_add_u32 s{sT}, s{sT}, {L_TILE}")
    e(f"v_lshrrev_b32 v{vq}, 3, v{vLANE}")
    e(f"v_xor_b32 v{vq+1}, v{vq}, v{vLANE}")
    e(f"v_and_b32 v{vq+1}, 7, v{vq+1}")
    e(f"v_lshlrev_b32 v{vq+1}, 4, v{vq+1}")
    e(f"v_lshl_add_u32 v{vq+1}, v{vq}, 7, v{vq+1}")
    e(f"v_add_u32 v{vq+1}, s{sT}, v{vq+1}")
    e(f"ds_write_b128 v{vq+1}, v[{vX}:{vX+3}]")
    e(f"ds_write_b128 v{vq+1}, v[{vX+4}:{vX+7}] offset:1024")
    e(f"v_lshlrev_b32 v{vq+2}, 4, v{vLANE}")
    for i in range(8):
        e(f"ds_read_b128 v[{vW+4*i}:{vW+4*i+3}], v{vq+2} offset:{L_WT + 1024*i}")
    e(f"v_and_b32 v{vq}, 15, v{vLANE}")
    e(f"v_lshrrev_b32 v{vq+3}, 4, v{vLANE}")
    e(f"v_xor_b32 v{vq+4}, v{vq+3}, v{vq}")
    e(f"v_and_b32 v{vq+4}, 7, v{vq+4}")
    e(f"v_lshlrev_b32 v{vq+4}, 4, v{vq+4}")
    e(f"v_lshl_add_u32 v{vq+4}, v{vq}, 7, v{vq+4}")
    e(f"v_add_u32 v{vq+4}, s{sT}, v{vq+4}")
    e(f"v_xor_b32 v{vq+5}, 64, v{vq+4}")
    e(f"ds_read_b128 v[{vX}:{vX+3}], v{vq+4}")
    e(f"ds_read_b128 v[{vX+4}:{vX+7}], v{vq+5}")
    e(f"s_lshl_b32 s{sT}, s{sW}, 7")
    e(f"v_lshl_add_u32 v{vq}, v{vq}, 3, s{sT}")
    e(f"ds_read_b32 v{vq}, v{vq} offset:{L_NT+4}")
    e("s_waitcnt lgkmcnt(0)")
    for mb in range(4):
        e(f"v_mfma_f32_16x16x32_bf16 v[{vACC+4*mb}:{vACC+4*mb+3}], v[{vW+8*mb}:{vW+8*mb+3}], v[{vX}:{vX+3}], 0")
    for mb in range(4):
        e(f"v_mfma_f32_16x16x32_bf16 v[{vACC+4*mb}:{vACC+4*mb+3}], v[{vW+8*mb+4}:{vW+8*mb+7}], v[{vX+4}:{vX+7}], v[{vACC+4*mb}:{vACC+4*mb+3}]")
    e(f"v_lshl_add_u32 v{vq}, v{vq+3}, 4, v{vq}")
    e("s_nop 7")
    for i in range(8):
        e(f"v_cvt_pk_bf16_f32 v{vX+i}, v{vACC+2*i}, v{vACC+2*i+1}")
    e(f"buffer_store_dwordx4 v[{vX}:{vX+3}], v{vq}, s[{O}:{O+3}], 0 offen {cfg.OUTFLAG}")
    e(f"buffer_store_dwordx4 v[{vX+4}:{vX+7}], v{vq}, s[{O}:{O+3}], 0 offen offset:64 {cfg.OUTFLAG}")
    if cfg.TS:
        e("s_waitcnt vmcnt(0)")
        ts(13)
    e("s_endpgm")
    e("L_HELPER:")
    e(f"s_cmp_le_u32 s{sNBMAX}, 64")
    e("s_cbranch_scc1 L_END")
    e(f"s_add_u32 s{sBB}, s{sBB}, 64")
    e(f"s_cmp_lt_u32 s{sBB}, s{sNBMAX}")
    e(f"s_cbranch_scc1 L_NEXTB")
    e(f"s_cmp_lg_u32 s{sHOP}, 0")
    e("s_cbranch_scc1 L_END")
    e("s_branch L_SYNC2")
    e(f"L_NEXTB:")
    e("s_waitcnt vmcnt(0) lgkmcnt(0)")
    e("s_barrier")
    e(f"s_branch L_BATCH")
    e(f"L_END:")
    e("s_endpgm")


head = open("standalone__spectral_conv_sgc__graph.s.ref").read().split("; Override")[0]
e(head.rstrip())
e(f"; @launch grid=(256,1,1) block=(1024,1,1) lds={L_END}")
e('.amdgcn_target "amdgcn-amd-amdhsa--gfx950"')
e(".text")
body()
e('.section .rodata,"a"')
e(".p2align 6")
acc = (NV + 3) // 4 * 4
e(f""".amdhsa_kernel {NAME}
  .amdhsa_next_free_vgpr {NV}
  .amdhsa_next_free_sgpr {102 if cfg.TS else 88}
  .amdhsa_accum_offset {acc}
  .amdhsa_group_segment_fixed_size 0
  .amdhsa_kernarg_size 64
  .amdhsa_user_sgpr_count 2
  .amdhsa_user_sgpr_kernarg_segment_ptr 1
  .amdhsa_system_sgpr_workgroup_id_x 1
  .amdhsa_float_denorm_mode_32 3
.end_amdhsa_kernel
""")
open(sys.argv[1], "w").write("\n".join(out) + "\n")
```

```python
import sys

class Cfg:
    D = 2
    TS = 0
    PF2 = 4
    PACE = 4
    EFLAG = ""
    OUTFLAG = "sc1"
    SLEEP = 0
    LATE = 1
    HW = 0
    PFE = 0
    SA = 0
    SP = 7
    PFC = 0
    PEER = 0
    OWN = 2
    RW = 0
    CPF = 1
cfg = Cfg()
for a in sys.argv[2:]:
    k, v = a.split("=")
    cur = getattr(cfg, k)
    setattr(cfg, k, int(v) if isinstance(cur, int) else v.replace("+", " "))

N = 50000; E = 850000
NB = 196; CH = 3328; MAG = 85599
CG = 1280
TAB_OFF = 0x680000
SY_OFF = 0x700000
RP_OFF = 0x710000
H1_OFF = 0x800000
TS_OFF = 0x1200000
WS_USED = 0x1400000
ROWB = N * 128
SPIN_FAST = 4096
SPIN_MAX = 1 << 21
GB = 128

L_NT = 0
L_RECS = 1664
L_D = 29184
L_WT = L_D + 8192
L_CNT = L_WT + 8192
L_DH = L_CNT + 4352
L_MISC = L_DH + 256
L_ZEND2 = L_MISC + 256
L_HIST = L_ZEND2
L_STAGE = L_HIST + 1024
L_ZEND = L_STAGE + CG * 24
L_TILE = L_STAGE
L_END = L_ZEND
assert L_TILE % 128 == 0 and L_STAGE < 65536

out = []
def e(s=""):
    out.append(s)

def srd(d, lo, nrec, off=0):
    if off:
        e(f"s_add_u32 s{d}, s{lo}, 0x{off:x}")
        e(f"s_addc_u32 s{d+1}, s{lo+1}, 0")
    else:
        e(f"s_mov_b32 s{d}, s{lo}")
        e(f"s_mov_b32 s{d+1}, s{lo+1}")
    e(f"s_mov_b32 s{d+2}, 0x{nrec:x}")
    e(f"s_mov_b32 s{d+3}, 0x20000")

def dpp_add(v, ctl):
    e(f"v_add_u32_dpp v{v}, v{v}, v{v} {ctl}")
SCAN = [f"row_shr:{s} row_mask:0xf bank_mask:0xf bound_ctrl:0" for s in (1, 2, 4, 8)] + \
       ["row_bcast:15 row_mask:0xa bank_mask:0xf", "row_bcast:31 row_mask:0xc bank_mask:0xf"]
def scan64(v, fill=(), steps=SCAN):
    fill = list(fill)
    for ctl in steps:
        dpp_add(v, ctl)
        if len(fill) >= 2:
            e(fill.pop(0)); e(fill.pop(0))
        elif len(fill) == 1:
            e(fill.pop(0)); e("s_nop 0")
        else:
            e("s_nop 1")
    for f in fill:
        e(f)

T3, G, WS, O, T1, T2 = 4, 8, 12, 16, 20, 24
sW, sTB, sBB, sNBMAX, s128, sCNT, sT, sNR = 28, 29, 30, 31, 32, 33, 34, 36
sHOP, sN0, sSPIN = 37, 38, 39
sM = 40
sNODE = 52
sTMP = 54
sI4, sPN = 56, 57
sVAL = 58
pW, pOUT, pDBG = 60, 62, 64
sC1, sC2, sC3 = 40, 41, 42
sTS = 68
NS = 102 if cfg.TS else 68
vLANE, vE, vP, vSEL0, vSEL1, vLOFF, vONE = 1, 2, 3, 4, 5, 6, 7
vACC = 8
vPA, vEA, vPB, vEB, vROWA, vROWB, vAD, vPFD = 24, 25, 26, 27, 28, 29, 30, 31
vST = 32
vTW, vTR = 36, 37
vTP = 38
D = cfg.D
vDATA = 40
vAOP = vDATA + 16 * D
vW = max(vAOP + 8 * D, 88)
NV = vW + (32 if D == 2 else 16)
assert NV <= 128
vX = 72

def ts(slot, mode=1):
    if cfg.TS == 2 and mode == 1 and slot in (4, 5, 6, 7):
        return
    if cfg.TS == 1 and mode == 2:
        return
    if cfg.TS:
        e(f"s_memrealtime s[{sTS+2*slot}:{sTS+2*slot+1}]")
        e("s_waitcnt lgkmcnt(0)")
def ts_dump():
    if not cfg.TS:
        return
    e("s_waitcnt vmcnt(0)")
    ts(13)
    e(f"s_lshl_b32 s{sT}, s2, 4")
    e(f"s_add_u32 s{sT}, s{sT}, s{sW}")
    e(f"s_lshl_b32 s{sT}, s{sT}, 7")
    e(f"s_add_u32 s{sT}, s{sT}, 0x{TS_OFF:x}")
    e("s_mov_b64 exec, 1")
    e(f"v_mov_b32 v40, s{sT}")
    for i in range(8):
        for j in range(4):
            e(f"v_mov_b32 v{44+4*i+j}, s{sTS+4*i+j}")
        e(f"buffer_store_dwordx4 v[{44+4*i}:{47+4*i}], v40, s[{WS}:{WS+3}], 0 offen offset:{16*i}")

lbl = [0]
def newlab(p):
    lbl[0] += 1
    return f"L_{p}{lbl[0]}"
def spin_tail(loop, done):
    slow = newlab("SLW")
    e(f"s_add_u32 s{sSPIN}, s{sSPIN}, 1")
    e(f"s_cmp_ge_u32 s{sSPIN}, {SPIN_FAST}")
    e(f"s_cbranch_scc1 {slow}")
    if cfg.SLEEP:
        e(f"s_sleep {cfg.SLEEP}")
    e(f"s_branch {loop}")
    e(f"{slow}:")
    e(f"s_cmp_ge_u32 s{sSPIN}, {SPIN_MAX}")
    e(f"s_cbranch_scc1 {done}")
    e("s_sleep 64")
    e(f"s_branch {loop}")
def arrive_a(b, v=40):
    e(f"s_and_b32 s{sT}, s2, 7")
    e(f"s_lshl_b32 s{sT}, s{sT}, 8")
    e(f"s_add_u32 s{sT}, s{sT}, 0x{SY_OFF + b*4096:x}")
    if cfg.SA:
        sa = 66 + (b & 1)
        e(f"s_mov_b32 s{sa}, 1")
        e(f"s_atomic_add s{sa}, s[{WS}:{WS+1}], s{sT} glc")
        return
    e(f"v_mov_b32 v{v}, s{sT}")
    e(f"v_mov_b32 v{v+1}, 1")
    e("s_mov_b64 exec, 1")
    e(f"buffer_atomic_add v{v+1}, v{v}, s[{WS}:{WS+3}], 0 offen sc0 sc1")
def arrive_b(b, v=40, cnt=0):
    lab = newlab("ARR")
    sp = cfg.SP >> b & 1
    e("s_mov_b64 exec, -1" if sp else "s_mov_b64 exec, 0xff")
    e(f"v_lshlrev_b32 v{v+2}, 8, v{vLANE}")
    e(f"v_add_u32 v{v+2}, 0x{(RP_OFF + b*16384) if sp else (SY_OFF + b*4096 + 2048):x}, v{v+2}")
    if cfg.SA:
        e("s_waitcnt lgkmcnt(0)")
        e(f"s_cmp_lg_u32 s{66 + (b & 1)}, 31")
    else:
        e(f"s_waitcnt vmcnt({cnt})")
        e(f"v_readfirstlane_b32 s{sT}, v{v+1}")
        e(f"s_cmp_lg_u32 s{sT}, 31")
    e(f"s_cbranch_scc1 {lab}")
    e(f"buffer_atomic_add v{vONE}, v{v+2}, s[{WS}:{WS+3}], 0 offen sc1")
    e(f"{lab}:")
    e("s_mov_b64 exec, -1")
def arrive(b, mid=None):
    arrive_a(b)
    if mid:
        e(mid)
    arrive_b(b)
def rcount():
    lab = newlab("RC")
    e(f"v_mov_b32 v64, {L_MISC+8}")
    e("s_mov_b64 exec, 1")
    e(f"ds_add_rtn_u32 v65, v64, v{vONE}")
    e("s_waitcnt lgkmcnt(0)")
    e("v_cmp_eq_u32 vcc, 13, v65")
    e("s_mov_b64 exec, -1")
    e(f"s_cbranch_vccz {lab}")
    arrive_a(1, 64)
    arrive_b(1, 64)
    e(f"{lab}:")
def poll_a(b):
    if cfg.SP >> b & 1:
        return
    e(f"s_and_b32 s{sSPIN}, s2, 7")
    e(f"s_lshl_b32 s{sSPIN}, s{sSPIN}, 8")
    e(f"s_add_u32 s{sSPIN}, s{sSPIN}, 0x{SY_OFF + b*4096 + 2048:x}")
    e(f"v_mov_b32 v{vTP}, s{sSPIN}")
    e("s_mov_b64 exec, 1")
    e(f"buffer_load_dword v{vTP+1}, v{vTP}, s[{WS}:{WS+3}], 0 offen sc1")
def poll_b(b):
    lab = newlab("POLL")
    if cfg.SP >> b & 1:
        e(f"s_and_b32 s{sT}, s2, 63")
        e(f"s_lshl_b32 s{sT}, s{sT}, 8")
        e(f"s_add_u32 s{sT}, s{sT}, 0x{RP_OFF + b*16384:x}")
        e(f"s_mov_b32 s{sSPIN}, 0")
        e(f"{lab}:")
        e(f"s_load_dword s{sT+1}, s[{WS}:{WS+1}], s{sT} glc")
        e("s_waitcnt lgkmcnt(0)")
        e(f"s_cmp_eq_u32 s{sT+1}, 8")
        e(f"s_cbranch_scc1 {lab}x")
        spin_tail(lab, lab + "x")
        e(f"{lab}x:")
        return
    e("s_mov_b64 exec, 1")
    e(f"s_mov_b32 s{sSPIN}, 0")
    e(f"s_branch {lab}c")
    e(f"{lab}:")
    e(f"buffer_load_dword v{vTP+1}, v{vTP}, s[{WS}:{WS+3}], 0 offen sc1")
    e(f"{lab}c:")
    e("s_waitcnt vmcnt(0)")
    e(f"v_cmp_eq_u32 vcc, 8, v{vTP+1}")
    e(f"s_cbranch_vccnz {lab}x")
    spin_tail(lab, lab + "x")
    e(f"{lab}x:")
    e("s_mov_b64 exec, -1")
def poll(b):
    poll_a(b)
    poll_b(b)

NAME = "standalone__spectral_conv_sgc__graph_kernel"
def body():
    e(f".globl {NAME}")
    e(".p2align 8")
    e(f".type {NAME},@function")
    e(f"{NAME}:")
    e("s_cmp_ge_u32 s2, 256")
    e("s_cbranch_scc1 L_END")
    e(f"s_load_dwordx2 s[{T1}:{T1+1}], s[0:1], 16")
    e(f"s_load_dwordx2 s[{T2}:{T2+1}], s[0:1], 8")
    e(f"s_load_dwordx2 s[{T3}:{T3+1}], s[0:1], 24")
    e(f"s_lshl_b32 s{sT}, s2, 4")
    e(f"v_and_or_b32 v41, v0, 15, s{sT}")
    e(f"v_lshrrev_b32 v40, 4, v0")
    e(f"v_lshl_add_u32 v40, v40, 12, v41")
    e(f"v_cmp_gt_u32 vcc, 832, v0")
    e("v_lshlrev_b32 v41, 4, v40")
    e("v_lshlrev_b32 v42, 3, v40")
    e(f"s_mov_b32 s{T1+2}, 0x{E*4:x}")
    e(f"s_mov_b32 s{T1+3}, 0x20000")
    e(f"s_mov_b32 s{T2+2}, s{T1+2}")
    e(f"s_mov_b32 s{T2+3}, s{T1+3}")
    e(f"s_lshr_b32 s{T3+2}, s{T1+2}, 1")
    e(f"s_mov_b32 s{T3+3}, s{T1+3}")
    e("s_cbranch_vccz L_P1H0")
    e("s_waitcnt lgkmcnt(0)")
    e(f"buffer_load_dwordx4 v[44:47], v41, s[{T1}:{T1+3}], 0 offen {cfg.EFLAG}")
    if not cfg.LATE:
        e(f"buffer_load_dwordx4 v[48:51], v41, s[{T2}:{T2+3}], 0 offen {cfg.EFLAG}")
        e(f"buffer_load_dwordx2 v[52:53], v42, s[{T3}:{T3+3}], 0 offen {cfg.EFLAG}")
    if cfg.LATE == 2:
        e("s_barrier")
        e(f"buffer_load_dwordx4 v[48:51], v41, s[{T2}:{T2+3}], 0 offen {cfg.EFLAG}")
        e(f"buffer_load_dwordx2 v[52:53], v42, s[{T3}:{T3+3}], 0 offen {cfg.EFLAG}")
        e("s_branch L_P1H00")
        e("L_P1H0:")
        e("s_barrier")
        e("L_P1H00:")
    else:
        e("L_P1H0:")
    e(f"s_load_dwordx2 s[{G}:{G+1}], s[0:1], 0")
    e(f"s_load_dwordx2 s[{WS}:{WS+1}], s[0:1], 56")
    e(f"s_load_dwordx4 s[{pW}:{pW+3}], s[0:1], 32")
    e(f"s_load_dwordx2 s[{pDBG}:{pDBG+1}], s[0:1], 48")
    for i in range(4):
        e(f"v_mov_b32 v{vACC+i}, 0")
    e(f"s_mov_b32 s{WS+2}, 0x{WS_USED:x}")
    e(f"s_mov_b32 s{WS+3}, 0x20000")
    e("s_cmp_lg_u32 s2, 0")
    e("s_cbranch_scc1 L_NOINIT0")
    e("v_cmp_le_u32 vcc, 960, v0")
    e("s_cbranch_vccz L_NOINIT0")
    e(f"v_and_b32 v43, 7, v0")
    e(f"v_lshlrev_b32 v43, 4, v43")
    e(f"v_and_b32 v{vX}, 56, v0")
    e(f"v_lshl_add_u32 v43, v{vX}, 5, v43")
    e(f"v_add_u32 v43, 0x{SY_OFF:x}, v43")
    e("s_waitcnt lgkmcnt(0)")
    for k in range(10 if cfg.PEER else 6):
        e(f"buffer_store_dwordx4 v[{vACC}:{vACC+3}], v43, s[{WS}:{WS+3}], 0 offen sc1")
        e(f"v_add_u32 v43, 2048, v43")
    if cfg.SP:
        e(f"v_and_b32 v43, 63, v0")
        e(f"v_lshlrev_b32 v43, 8, v43")
        for b in range(3):
            if cfg.SP >> b & 1:
                e(f"v_add_u32 v{vX}, 0x{RP_OFF + b*16384:x}, v43")
                e(f"buffer_store_dwordx4 v[{vACC}:{vACC+3}], v{vX}, s[{WS}:{WS+3}], 0 offen sc1")
    e("s_branch L_NOCPF")
    e("L_NOINIT0:")
    if cfg.CPF:
        e("s_getpc_b64 s[54:55]")
        e("L_PC0:")
        e("v_subrev_u32 v43, 960, v0")
        e("v_lshlrev_b32 v43, 7, v43")
        e("v_cmp_gt_u32 vcc, L_END-L_PC0, v43")
        e("s_and_saveexec_b64 s[40:41], vcc")
        e("s_cbranch_execz L_NOCPF")
        e(f"global_load_dword v{vPFD}, v43, s[54:55]")
        e("L_NOCPF:")
        e("s_mov_b64 exec, -1")
    if cfg.TS:
        for i in range(16):
            e(f"s_mov_b64 s[{sTS+2*i}:{sTS+2*i+1}], 0")
    ts(0)
    nz = (L_ZEND - L_CNT) // 16
    for i in range(4, 16):
        e(f"v_mov_b32 v{vACC+i}, 0")
    e(f"v_lshlrev_b32 v{vX+4}, 4, v0")
    assert 2048 < nz <= 3072
    e(f"ds_write_b128 v{vX+4}, v[{vACC}:{vACC+3}] offset:{L_CNT}")
    e(f"ds_write_b128 v{vX+4}, v[{vACC}:{vACC+3}] offset:{L_CNT+16384}")
    e(f"v_add_u32 v{vX+4}, 32768, v{vX+4}")
    e(f"v_cmp_gt_u32 vcc, {nz-2048}, v0")
    e(f"s_mov_b64 exec, vcc")
    e(f"ds_write_b128 v{vX+4}, v[{vACC}:{vACC+3}] offset:{L_CNT}")
    e("s_mov_b64 exec, -1")
    e(f"v_lshrrev_b32 v{vX+5}, 6, v0")
    e("s_and_b32 s3, s2, 7")
    e(f"v_readfirstlane_b32 s{sW}, v{vX+5}")
    e("s_lshl_b32 s3, s3, 5")
    e(f"s_lshr_b32 s{sT}, s2, 3")
    e(f"s_or_b32 s3, s3, s{sT}")
    e(f"v_and_b32 v{vLANE}, 63, v0")
    e(f"s_mov_b32 s{s128}, 128")
    e(f"s_mov_b32 s{sBB}, 0")
    e(f"s_mov_b32 s{sHOP}, 0")
    e(f"s_mov_b32 s{sT}, {E//4}")
    e(f"s_mov_b32 s{sC1}, -196")
    e(f"s_mov_b32 s{sC2}, 0x05040100")
    e(f"s_mov_b32 s{sC3}, 0x07060100")
    e(f"v_cmp_gt_u32 s[{sVAL}:{sVAL+1}], s{sT}, v40")
    e(f"v_and_b32 v{vX+4}, 7, v0")
    e(f"v_lshlrev_b32 v{vLOFF}, 4, v{vX+4}")
    e(f"v_mov_b32 v{vONE}, 1")
    e(f"v_and_b32 v{vX+4}, 1, v0")
    e(f"v_mov_b32 v{vX+5}, 0x0c0c0302")
    e(f"v_mov_b32 v{vX+6}, 0x03020c0c")
    e(f"v_cmp_eq_u32 vcc, 1, v{vX+4}")
    e(f"v_mov_b32 v{vX+7}, 0x0c0c0c0c")
    e(f"v_and_b32 v{vX+4}, 2, v0")
    e(f"v_cndmask_b32 v{vX+5}, v{vX+5}, v{vX+6}, vcc")
    e(f"v_cmp_eq_u32 vcc, 2, v{vX+4}")
    e(f"v_mov_b32 v{vP}, 0")
    e(f"v_mov_b32 v{vTP}, 0")
    e(f"s_mov_b32 s{G+2}, 0x{ROWB:x}")
    e(f"v_cndmask_b32 v{vSEL0}, v{vX+5}, v{vX+7}, vcc")
    e(f"v_cndmask_b32 v{vSEL1}, v{vX+7}, v{vX+5}, vcc")
    e(f"v_cmp_gt_u32 vcc, 208, v0")
    e(f"s_mov_b64 s[{sNODE}:{sNODE+1}], vcc")
    e(f"s_mov_b32 s{G+3}, 0x20000")
    e("s_waitcnt lgkmcnt(0)")
    srd(O, WS, ROWB, H1_OFF)
    e("s_barrier")
    e(f"s_cmp_ge_u32 s{sW}, 13")
    e("s_cbranch_scc1 L_P1H1")
    if cfg.LATE == 1:
        e(f"buffer_load_dwordx4 v[48:51], v41, s[{T2}:{T2+3}], 0 offen {cfg.EFLAG}")
        e(f"buffer_load_dwordx2 v[52:53], v42, s[{T3}:{T3+3}], 0 offen {cfg.EFLAG}")
    e(f"s_mov_b64 exec, s[{sVAL}:{sVAL+1}]")
    e(f"s_waitcnt vmcnt(2)")
    for i in range(4):
        e(f"v_mul_u32_u24 v{74+i}, {MAG}, v{44+i}")
    for i in range(4):
        e(f"v_lshrrev_b32 v{70+i}, 24, v{74+i}")
        e(f"v_lshlrev_b32 v{54+i}, 2, v{70+i}")
        e(f"ds_add_rtn_u32 v{58+i}, v{54+i}, v{vONE} offset:{L_HIST}")
    for i in range(4):
        e(f"v_mad_i32_i24 v{44+i}, v{70+i}, s{sC1}, v{44+i}")
        e(f"v_and_b32 v{74+i}, 0xe0000000, v{74+i}")
        e(f"v_add_u32 v{44+i}, 1, v{44+i}")
    e("s_waitcnt lgkmcnt(0)")
    ts(1)
    e("s_barrier")
    e("s_barrier")
    ts(4, 2)
    for i in range(4):
        e(f"ds_read_b32 v{54+i}, v{54+i} offset:{L_HIST}")
    e(f"s_waitcnt vmcnt(1)")
    ts(5, 2)
    for i in range(4):
        e(f"v_mul_u32_u24 v78, {MAG}, v{48+i}")
        e(f"v_sub_u32 v78, v78, v{74+i}")
        e(f"v_lshrrev_b32 v78, 30, v78")
        e(f"v_lshl_or_b32 v{63+2*i}, v{44+i}, 2, v78")
    e(f"s_waitcnt vmcnt(0) lgkmcnt(0)")
    ts(6, 2)
    for i in range(4):
        e(f"v_perm_b32 v{62+2*i}, v{52+i//2}, v{48+i}, s{sC2 if i%2==0 else sC3}")
        e(f"v_lshl_add_u32 v{58+i}, v{58+i}, 3, v{54+i}")
        e(f"ds_write_b64 v{58+i}, v[{62+2*i}:{63+2*i}] offset:{L_STAGE}")
    e("s_mov_b64 exec, -1")
    e(f"v_mov_b32 v43, {L_MISC+12}")
    e(f"ds_read_b32 v43, v43")
    e(f"v_mul_u32_u24 v52, 24, v0")
    e(f"v_add_u32 v52, {L_STAGE}, v52")
    e(f"v_add_u32 v53, {832*24}, v52")
    e(f"s_mul_i32 s{sT}, s2, {CG*16}")
    e(f"v_lshl_add_u32 v41, v0, 4, s{sT}")
    e(f"v_add_u32 v42, 832, v0")
    e("s_waitcnt lgkmcnt(0)")
    e(f"v_cmp_lt_u32 vcc, v42, v43")
    e(f"v_add_u32 v42, {832*16}, v41")
    ts(7, 2)
    e("s_barrier")
    def rd3(d, a):
        e(f"ds_read_b64 v[{d}:{d+1}], v{a}")
        e(f"ds_read_b64 v[{d+4}:{d+5}], v{a} offset:8")
        e(f"ds_read_b64 v[{d+2}:{d+3}], v{a} offset:16")
    def pk3(d):
        e(f"v_lshl_or_b32 v{d+3}, v{d+3}, 10, v{d+5}")
        e(f"v_lshl_or_b32 v{d+3}, v{d+3}, 10, v{d+1}")
        e(f"v_mov_b32 v{d+1}, v{d+4}")
    rd3(44, 52)
    e("s_cbranch_vccz L_ST1")
    e("s_mov_b64 exec, vcc")
    rd3(56, 53)
    e("s_waitcnt lgkmcnt(0)")
    pk3(56)
    e(f"buffer_store_dwordx4 v[56:59], v42, s[{WS}:{WS+3}], 0 offen sc1")
    e("s_mov_b64 exec, -1")
    e("L_ST1:")
    e("s_waitcnt lgkmcnt(0)")
    pk3(44)
    e(f"buffer_store_dwordx4 v[44:47], v41, s[{WS}:{WS+3}], 0 offen sc1")
    ts(2)
    e("s_waitcnt vmcnt(0)")
    ts(14)
    rcount()
    e("s_branch L_P1_JOIN")
    e("L_P1H1:")
    e(f"s_cmp_eq_u32 s{sW}, 13")
    e("s_cbranch_scc1 L_P1_W13")
    e(f"s_cmp_eq_u32 s{sW}, 15")
    e("s_cbranch_scc1 L_P1_W15")
    srd(T1, pW, 8192)
    e(f"v_lshlrev_b32 v40, 4, v{vLANE}")
    e(f"v_add_u32 v41, 4096, v40")
    for i in range(8):
        e(f"buffer_load_dwordx4 v[{44+4*i}:{47+4*i}], v{40+i//4}, s[{T1}:{T1+3}], 0 offen offset:{1024*(i%4)}")
    e(f"v_lshrrev_b32 v43, 3, v{vLANE}")
    e(f"v_lshlrev_b32 v43, 1, v43")
    e(f"v_lshl_add_u32 v43, v{vLOFF}, 1, v43")
    e("s_barrier")
    e("s_barrier")
    e("s_barrier")
    e(f"s_waitcnt vmcnt(0)")
    for i in range(8):
        for el in range(8):
            off = L_WT + (el & 3) * 2048 + (el >> 2) * 16 + (i & 3) * 256 + (i >> 2) * 1024
            op = "ds_write_b16" if el % 2 == 0 else "ds_write_b16_d16_hi"
            e(f"{op} v43, v{44+4*i+el//2} offset:{off}")
    e("s_branch L_P1_JOIN")
    e("L_P1_W15:")
    e("s_cmp_lg_u32 s2, 0")
    e("s_cbranch_scc1 L_W15_NOINIT")
    srd(T1, pDBG, 256)
    e("s_waitcnt vmcnt(0)")
    e("s_mov_b64 exec, 1")
    e(f"buffer_store_dword v{vONE}, v{vACC}, s[{T1}:{T1+3}], 0 offen sc1")
    e("s_mov_b64 exec, -1")
    e("L_W15_NOINIT:")
    e("s_barrier")
    e("s_barrier")
    e("s_barrier")
    e("s_branch L_P1_JOIN")
    e("L_P1_W13:")
    srd(T1, pDBG, 256)
    e(f"v_lshlrev_b32 v79, 4, v{vLANE}")
    e(f"s_lshl_b32 s{sT}, s2, 10")
    e(f"s_add_u32 s{sT}, s{sT}, 0x{TAB_OFF:x}")
    e(f"v_add_u32 v78, s{sT}, v79")
    e(f"v_mov_b32 v75, {L_MISC+12}")
    e(f"s_mov_b32 s{sT}, 43691")
    e(f"v_mov_b32 v74, {2*43691}")
    e("s_barrier")
    e(f"ds_read_b128 v[80:83], v79 offset:{L_HIST}")
    e("s_waitcnt lgkmcnt(0)")
    for i in range(4):
        e(f"v_mad_u32_u24 v{80+i}, v{80+i}, s{sT}, v74")
    for i in range(4):
        e(f"v_lshrrev_b32 v{80+i}, 17, v{80+i}")
    e("v_add_u32 v85, v80, v81")
    e("v_add_u32 v86, v85, v82")
    e("v_add_u32 v87, v86, v83")
    e("v_mov_b32 v84, v87")
    e("s_nop 1")
    scan64(84)
    e("v_mov_b32 v76, v84")
    e("v_sub_u32 v84, v84, v87")
    e("v_add_u32 v87, v84, v86")
    e("v_add_u32 v86, v84, v85")
    e("v_add_u32 v85, v84, v80")
    for i in range(4):
        e(f"v_mul_u32_u24 v{68+i}, 24, v{84+i}")
    e(f"ds_write_b128 v79, v[68:71] offset:{L_HIST}")
    e(f"s_mov_b32 exec_lo, 0")
    e(f"s_mov_b32 exec_hi, 0x80000000")
    e("ds_write_b32 v75, v76")
    e("s_mov_b64 exec, -1")
    for i in range(4):
        e(f"v_lshl_or_b32 v{80+i}, v{80+i}, 16, v{84+i}")
    e(f"buffer_store_dwordx4 v[80:83], v78, s[{WS}:{WS+3}], 0 offen sc1")
    e("s_waitcnt lgkmcnt(0)")
    e("s_barrier")
    e("s_mov_b64 exec, 1")
    e(f"buffer_load_dword v76, v{vACC}, s[{T1}:{T1+3}], 0 offen sc1")
    e("s_barrier")
    e(f"s_mov_b32 s{sSPIN}, 0")
    e("s_branch L_RDY1")
    e("L_RDY:")
    e(f"buffer_load_dword v76, v{vACC}, s[{T1}:{T1+3}], 0 offen sc1")
    e("L_RDY1:")
    e("s_waitcnt vmcnt(0)")
    e("v_cmp_eq_u32 vcc, 1, v76")
    e("s_cbranch_vccnz L_RDYX")
    spin_tail("L_RDY", "L_RDYX")
    e("L_RDYX:")
    e("s_mov_b64 exec, -1")
    ts(1)
    if cfg.SA:
        rcount()
        arrive(0)
    else:
        arrive_a(0)
        e("s_mov_b64 exec, -1")
        rcount()
        arrive_b(0)
    poll(0)
    ts(2)
    e("L_P1_JOIN:")
    e(f"v_and_b32 v{vX}, 60, v0")
    e(f"v_lshl_add_u32 v{vX}, v{vX}, 2, s{sW}")
    e(f"s_lshl_b32 s{sT}, s3, 2")
    e(f"s_add_u32 s{sT}, s{sT}, 0x{TAB_OFF:x}")
    e(f"v_lshl_add_u32 v{vX+1}, v{vX}, 10, s{sT}")
    e("s_waitcnt lgkmcnt(0)")
    e("s_barrier")
    e(f"buffer_load_dword v{vE}, v{vX+1}, s[{WS}:{WS+3}], 0 offen sc1")
    e("s_branch L_DECODE")

    e("L_BATCH:")
    e(f"v_mov_b32 v{vX}, 0")
    e(f"v_mov_b32 v{vX+1}, 0")
    e(f"v_lshlrev_b32 v{vX+4}, 3, v0")
    e(f"v_cmp_gt_u32 vcc, {(L_ZEND2-L_CNT)//8}, v0")
    e(f"s_mov_b64 exec, vcc")
    e(f"ds_write_b64 v{vX+4}, v[{vX}:{vX+1}] offset:{L_CNT}")
    e("s_mov_b64 exec, -1")
    e("L_DECODE:")
    vNG, vG0, vQ, vT, vB, vA = vX, vX+1, vX+2, vX+3, vX+4, vX+5
    vGR = 40
    vKEY = 48
    vRANK = 54
    vDS = 60
    e(f"v_and_b32 v{vG0}, 60, v0")
    e(f"v_lshl_add_u32 v{vG0}, v{vG0}, 2, s{sW}")
    e(f"v_mul_u32_u24 v{vG0}, {CG}, v{vG0}")
    e(f"v_and_b32 v{vT}, 3, v0")
    e(f"v_add_u32 v{vG0}, v{vG0}, v{vT}")
    e(f"s_lshl_b32 s{sT}, s{sW}, 9")
    e(f"s_add_u32 s{sT}, s{sT}, {L_D}")
    e(f"v_mov_b32 v{vGR+3}, 0")
    e(f"v_mov_b32 v{vGR+7}, 0")
    e("s_waitcnt vmcnt(0)")
    e(f"s_cmp_lg_u32 s{sW}, {cfg.RW}")
    e("s_cbranch_scc1 L_NORP0")
    poll_a(1)
    e("s_mov_b64 exec, -1")
    e("L_NORP0:")
    ts(4)
    e(f"v_lshrrev_b32 v{vNG}, 16, v{vE}")
    e(f"v_lshrrev_b32 v{vQ}, 16, v{vE}")
    e(f"v_and_b32 v{vB}, 0xffff, v{vE}")
    e(f"v_add_u32 v{vG0}, v{vG0}, v{vB}")
    scan64(vQ, fill=[f"v_sub_u32 v{vB}, v{vT}, v{vNG}", f"v_subrev_u32 v{vB}, s{sBB}, v{vB}",
                     f"v_cmp_lt_u32 s[{sTMP}:{sTMP+1}], v{vT}, v{vNG}", f"v_lshl_add_u32 v{vDS}, v{vLANE}, 2, s{sT}"], steps=SCAN[2:])
    e(f"v_readlane_b32 s{sTB}, v{vQ}, 63")
    e(f"v_add_u32 v{vB}, v{vB}, v{vQ}")
    e(f"L_DLOOP:")
    e(f"v_cmp_gt_u32 vcc, s{s128}, v{vB}")
    e(f"v_lshl_add_u32 v{vA}, v{vB}, 2, s{sT}")
    e(f"v_add_u32 v{vT}, 4, v{vT}")
    e(f"s_and_b64 exec, vcc, s[{sTMP}:{sTMP+1}]")
    e(f"ds_write_b32 v{vA}, v{vG0}")
    e("s_mov_b64 exec, -1")
    e(f"v_cmp_lt_u32 s[{sTMP}:{sTMP+1}], v{vT}, v{vNG}")
    e(f"v_add_u32 v{vB}, 4, v{vB}")
    e(f"v_add_u32 v{vG0}, 4, v{vG0}")
    e(f"s_cmp_lg_u64 s[{sTMP}:{sTMP+1}], 0")
    e(f"s_cbranch_scc1 L_DLOOP")
    e(f"ds_read2st64_b32 v[{vDS}:{vDS+1}], v{vDS} offset0:0 offset1:1")
    e(f"s_sub_i32 s{sNR}, s{sTB}, s{sBB}")
    e(f"v_add_u32 v{vA}, 64, v{vLANE}")
    e(f"v_cmp_gt_i32 s[{sM}:{sM+1}], s{sNR}, v{vLANE}")
    e(f"v_cmp_gt_i32 s[{sM+6}:{sM+7}], s{sNR}, v{vA}")
    ts(3)
    e(f"s_cmp_lg_u32 s{sW}, {cfg.RW}")
    e("s_cbranch_scc1 L_NORPOLL")
    poll_b(1)
    e("L_NORPOLL:")
    e("s_waitcnt lgkmcnt(0)")
    e(f"v_lshlrev_b32 v{vDS}, 4, v{vDS}")
    e(f"v_lshlrev_b32 v{vDS+1}, 4, v{vDS+1}")
    e(f"s_cmp_le_i32 s{sNR}, 0")
    e("s_barrier")
    e("s_cbranch_scc1 L_LD_DONE")
    e(f"s_mov_b64 exec, s[{sM}:{sM+1}]")
    e(f"buffer_load_dwordx4 v[{vGR}:{vGR+3}], v{vDS}, s[{WS}:{WS+3}], 0 offen sc1")
    e(f"s_cmp_le_i32 s{sNR}, 64")
    e("s_cbranch_scc1 L_LD_DONE")
    e(f"s_mov_b64 exec, s[{sM+6}:{sM+7}]")
    e(f"buffer_load_dwordx4 v[{vGR+4}:{vGR+7}], v{vDS+1}, s[{WS}:{WS+3}], 0 offen sc1")
    e(f"L_LD_DONE:")
    ts(15)
    e("s_mov_b64 exec, 1")
    e(f"v_mov_b32 v{vA}, s{sTB}")
    e(f"v_mov_b32 v{vB}, {L_MISC+4}")
    e(f"ds_max_u32 v{vB}, v{vA}")
    e("s_mov_b64 exec, -1")
    if cfg.PF2:
        e(f"s_and_b32 s{sT}, s2, 7")
        e(f"s_mul_i32 s{sT}, s{sT}, 6272")
        e(f"s_lshr_b32 s{sT+1}, s2, 3")
        e(f"s_lshl_b32 s{sT+1}, s{sT+1}, 6")
        e(f"s_add_u32 s{sT}, s{sT}, s{sT+1}")
        e(f"s_sub_u32 s{sT+1}, s{sW}, {16-cfg.PF2}")
        e(f"s_lshl_b32 s{sT+1}, s{sT+1}, 11")
        e(f"s_add_u32 s{sT}, s{sT}, s{sT+1}")
        e(f"v_add_u32 v{vX+8}, s{sT}, v{vLANE}")
        e(f"v_subrev_u32 v{vX+9}, 50176, v{vX+8}")
        e(f"v_min_u32 v{vX+8}, v{vX+8}, v{vX+9}")
        e(f"v_lshlrev_b32 v{vX+8}, 7, v{vX+8}")
        e(f"s_cmp_lt_u32 s{sW}, {16-cfg.PF2}")
    if cfg.PF2 and cfg.PFE:
        e("s_cbranch_scc1 L_NOPF2")
        e(f"buffer_load_dword v{vPFD}, v{vX+8}, s[{G}:{G+3}], 0 offen")
        e(f"s_waitcnt vmcnt(1)")
        e("s_branch L_NOPF3")
        e("L_NOPF2:")
        e(f"s_waitcnt vmcnt(0)")
        e("L_NOPF3:")
    else:
        e(f"s_waitcnt vmcnt(0)")
        if cfg.PF2:
            e("s_cbranch_scc1 L_NOPF2")
            e(f"buffer_load_dword v{vPFD}, v{vX+8}, s[{G}:{G+3}], 0 offen")
            e("L_NOPF2:")
    ts(5)
    def second(lab):
        e(f"s_cmp_le_i32 s{sNR}, 64")
        e(f"s_cbranch_scc1 {lab}")
    for r in range(2):
        if r == 1:
            second("L_RK_DONE")
            e("s_mov_b64 exec, -1")
        for s_ in range(3):
            k = 3 * r + s_
            e(f"v_bfe_u32 v{vKEY+k}, v{vGR+4*r+3}, {10*s_}, 10")
        for s_ in range(3):
            k = 3 * r + s_
            e(f"v_cmp_ne_u32 s[{sM+2*k}:{sM+2*k+1}], 0, v{vKEY+k}")
            e(f"v_lshlrev_b32 v{vKEY+k}, 2, v{vKEY+k}")
        for s_ in range(3):
            k = 3 * r + s_
            e(f"s_mov_b64 exec, s[{sM+2*k}:{sM+2*k+1}]")
            e(f"ds_add_rtn_u32 v{vRANK+k}, v{vKEY+k}, v{vONE} offset:{L_CNT}")
    e("L_RK_DONE:")
    e("s_mov_b64 exec, -1")
    def slots(bodyf, lab):
        for k in range(6):
            if k == 3:
                second(lab)
            e(f"s_mov_b64 exec, s[{sM+2*k}:{sM+2*k+1}]")
            bodyf(k)
        e(f"{lab}:")
        e("s_mov_b64 exec, -1")
    vC = vX
    vDEG, vNP, vSC, vBIN, vDR, vSB, vNA = vX+4, vX+5, vX+6, vX+7, vX+8, vX+9, vX+10
    vBS = vX + 12
    e(f"v_lshlrev_b32 v{vNA}, 4, v0")
    e(f"v_mov_b32 v{vX+11}, {L_MISC}")
    e(f"v_mov_b32 v{vTP}, 0xffff")
    e(f"v_mov_b32 v{vTP+1}, 0xffff")
    e(f"s_cmp_ge_u32 s{sW}, 4")
    e("s_waitcnt lgkmcnt(0)")
    e("s_barrier")
    e(f"s_cbranch_scc1 L_NODE1_DONE")
    e(f"ds_read_b128 v[{vC}:{vC+3}], v{vNA} offset:{L_CNT+16}")
    ts(6)
    e("s_waitcnt lgkmcnt(0)")
    e(f"v_add_u32 v{vC+1}, v{vC}, v{vC+1}")
    e(f"v_add_u32 v{vC+2}, v{vC+1}, v{vC+2}")
    e(f"v_add3_u32 v{vSC}, v{vC+2}, v{vC+3}, 3")
    e(f"v_lshrrev_b32 v{vSC}, 1, v{vSC}")
    e(f"v_add_u32 v{vDEG}, v{vC+2}, v{vC+3}")
    e(f"v_mov_b32 v{vNP}, v{vSC}")
    scan64(vSC, fill=[f"v_min_u32 v{vBIN}, 63, v{vDEG}", f"v_sub_u32 v{vBIN}, 63, v{vBIN}",
                      f"v_lshlrev_b32 v{vBIN}, 2, v{vBIN}", f"s_mov_b64 exec, s[{sNODE}:{sNODE+1}]"], steps=SCAN[:2])
    e(f"ds_add_rtn_u32 v{vDR}, v{vBIN}, v{vONE} offset:{L_DH}")
    e("s_mov_b64 exec, -1")
    scan64(vSC, steps=SCAN[2:])
    e(f"s_mov_b32 exec_lo, 0")
    e(f"s_mov_b32 exec_hi, 0x80000000")
    e(f"ds_add_rtn_u32 v{vSB}, v{vX+11}, v{vSC}")
    e("s_mov_b64 exec, -1")
    e(f"v_lshlrev_b32 v{vSC}, 1, v{vSC}")
    e(f"v_sub_u32 v{vC+3}, v{vSC}, v{vDEG}")
    e(f"v_lshlrev_b32 v{vX+11}, 1, v{vNP}")
    e(f"v_sub_u32 v{vSC}, v{vSC}, v{vX+11}")
    e("s_waitcnt lgkmcnt(0)")
    e(f"v_readlane_b32 s{sT}, v{vSB}, 63")
    e(f"s_lshl_b32 s{sT}, s{sT}, 3")
    e(f"s_add_u32 s{sT}, s{sT}, {L_RECS}")
    e(f"v_lshl_add_u32 v{vBS}, v{vC+3}, 2, s{sT}")
    e(f"v_lshl_add_u32 v{vBS+1}, v{vC}, 2, v{vBS}")
    e(f"v_lshl_add_u32 v{vBS+2}, v{vC+1}, 2, v{vBS}")
    e(f"v_lshl_add_u32 v{vBS+3}, v{vC+2}, 2, v{vBS}")
    e(f"ds_write_b128 v{vNA}, v[{vBS}:{vBS+3}] offset:{L_CNT+16}")
    e(f"v_lshl_add_u32 v{vSC}, v{vSC}, 2, s{sT}")
    e(f"ds_write_b64 v{vSC}, v[{vTP}:{vTP+1}]")
    e(f"ds_write_b32 v{vSC}, v{vTP} offset:8")
    e(f"L_NODE1_DONE:")
    e(f"v_mov_b32 v{vC}, {L_MISC+4}")
    e(f"v_lshlrev_b32 v{vC+1}, 2, v{vLANE}")
    e("s_waitcnt lgkmcnt(0)")
    e("s_barrier")
    ts(7)
    e(f"ds_read_b32 v{vC+1}, v{vC+1} offset:{L_DH}")
    e(f"ds_read_b32 v{vC+3}, v{vC}")
    for k in range(6):
        if k == 3:
            second("L_RB_DONE")
        e(f"ds_read_b32 v{vKEY+k}, v{vKEY+k} offset:{L_CNT}")
    e("L_RB_DONE:")
    e(f"s_cmp_ge_u32 s{sW}, 4")
    e(f"s_cbranch_scc1 L_NODE2_DONE")
    e(f"s_cmp_lg_u32 s{sBB}, 0")
    e(f"s_cbranch_scc1 L_NODE2_NOSORT")
    e("s_waitcnt lgkmcnt(4)")
    e(f"v_mov_b32 v{vC}, v{vC+1}")
    e("s_nop 1")
    scan64(vC)
    e(f"v_sub_u32 v{vC}, v{vC}, v{vC+1}")
    e(f"ds_bpermute_b32 v{vC}, v{vBIN}, v{vC}")
    e("s_waitcnt lgkmcnt(0)")
    e(f"v_add_lshl_u32 v{vP}, v{vC}, v{vDR}, 3")
    e(f"L_NODE2_NOSORT:")
    e(f"v_lshl_or_b32 v{vC}, v{vNP}, 16, v{vSC}")
    e(f"s_mul_i32 s{sT}, s3, {NB*128}")
    e(f"v_lshl_add_u32 v{vC+1}, v0, 7, s{sT}")
    e(f"v_cmp_gt_u32 vcc, {NB}, v0")
    e(f"v_mov_b32 v{vC+2}, 0x80000000")
    e(f"s_mov_b64 exec, s[{sNODE}:{sNODE+1}]")
    e(f"v_cndmask_b32 v{vC+1}, v{vC+2}, v{vC+1}, vcc")
    e(f"ds_write_b64 v{vP}, v[{vC}:{vC+1}] offset:{L_NT}")
    e("s_mov_b64 exec, -1")
    e(f"L_NODE2_DONE:")
    e("s_waitcnt lgkmcnt(0)")
    def wr(k):
        e(f"v_lshl_add_u32 v{vRANK+k}, v{vRANK+k}, 2, v{vKEY+k}")
        e(f"ds_write_b32 v{vRANK+k}, v{vGR+4*(k//3)+k%3}")
    slots(wr, "L_RW_DONE")
    e(f"v_readfirstlane_b32 s{sNBMAX}, v{vC+3}")
    e(f"v_lshrrev_b32 v{vX}, 3, v{vLANE}")
    e(f"s_lshl_b32 s{sT}, s{sW}, 7")
    e(f"v_lshl_add_u32 v{vX}, v{vX}, 3, s{sT}")
    e(f"s_cmp_ge_u32 s{sW}, 13")
    e("s_waitcnt lgkmcnt(0)")
    e("s_barrier")
    e(f"s_cbranch_scc1 L_HELPER")
    e(f"ds_read_b64 v[{vX+2}:{vX+3}], v{vX} offset:{L_NT}")
    e(f"ds_read_b64 v[{vX+4}:{vX+5}], v{vX} offset:{L_NT+64}")
    ts(8)
    e("s_waitcnt lgkmcnt(0)")
    e(f"v_lshrrev_b32 v{vX}, 16, v{vX+2}")
    e(f"v_lshrrev_b32 v{vX+1}, 16, v{vX+4}")
    e(f"v_max_u32 v{vX+6}, v{vX}, v{vX+1}")
    e(f"v_and_b32 v{vEA}, 0xffff, v{vX+2}")
    e(f"v_and_b32 v{vEB}, 0xffff, v{vX+4}")
    e(f"v_max_u32_dpp v{vX+6}, v{vX+6}, v{vX+6} row_ror:8 row_mask:0xf bank_mask:0xf")
    e(f"v_lshl_add_u32 v{vPA}, v{vX}, 3, v{vEA}")
    e(f"v_lshl_add_u32 v{vPB}, v{vX+1}, 3, v{vEB}")
    e(f"v_readlane_b32 s{sN0}, v{vX+6}, 0")
    e(f"v_readlane_b32 s{sT}, v{vX+6}, 16")
    e(f"v_readlane_b32 s{sT+1}, v{vX+6}, 32")
    e(f"v_readlane_b32 s{sCNT}, v{vX+6}, 48")
    e(f"s_max_u32 s{sN0}, s{sN0}, s{sT}")
    e(f"s_max_u32 s{sCNT}, s{sCNT}, s{sT+1}")
    e(f"s_max_u32 s{sN0}, s{sN0}, s{sCNT}")
    e(f"s_sub_u32 s{sN0}, s{sN0}, 1")
    e(f"s_max_u32 s{sN0}, s{sN0}, {D}")
    e(f"s_lshl_b32 s{sT}, s{sN0}, 3")
    e(f"v_subrev_u32 v{vPA}, s{sT}, v{vPA}")
    e(f"v_subrev_u32 v{vPB}, s{sT}, v{vPB}")
    def rdrec():
        e(f"v_max_i32 v{vAD}, v{vPA}, v{vEA}")
        e(f"ds_read_b64 v[{vST}:{vST+1}], v{vAD}")
        e(f"v_max_i32 v{vAD}, v{vPB}, v{vEB}")
        e(f"ds_read_b64 v[{vST+2}:{vST+3}], v{vAD}")
        e(f"v_add_u32 v{vPA}, 8, v{vPA}")
        e(f"v_add_u32 v{vPB}, 8, v{vPB}")
    rdrec()
    e(f"v_add_u32 v{vROWA}, v{vX+3}, v{vLOFF}")
    e(f"v_add_u32 v{vROWB}, v{vX+5}, v{vLOFF}")
    e("L_G2:")
    e(f"s_sub_u32 s{sCNT}, s{sN0}, {D}")
    if cfg.PACE > 1:
        e(f"s_sub_i32 s{sI4}, 0, s{sN0}")
        e(f"s_cmp_le_u32 s{sNBMAX}, {GB}")
        e(f"s_cselect_b32 s{sPN}, {cfg.PACE-1}, 0")
    def pace():
        if cfg.PACE > 1:
            lab = newlab("PACE")
            e(f"s_add_i32 s{sI4}, s{sI4}, {cfg.PACE}")
            e(f"{lab}a:")
            e(f"s_cmp_lt_i32 s{sI4}, 0")
            e(f"s_cbranch_scc1 {lab}")
            e(f"s_cmp_eq_u32 s{sPN}, 0")
            e(f"s_cbranch_scc1 {lab}")
            e(f"s_sub_i32 s{sI4}, s{sI4}, s{sN0}")
            e(f"s_sub_u32 s{sPN}, s{sPN}, 1")
            e("s_barrier")
            e(f"s_branch {lab}a")
            e(f"{lab}:")
    order = [0, 2, 1, 3]
    def mm(slot, k):
        d = vDATA + 16 * slot + 4 * k
        a = vAOP + 8 * slot + 2 * k
        acc = vACC + (8 if order[k] >= 2 else 0)
        e(f"v_mfma_f32_4x4x4_16b_bf16 v[{acc}:{acc+3}], v[{a}:{a+1}], v[{d}:{d+1}], v[{acc}:{acc+3}]")
        e(f"v_mfma_f32_4x4x4_16b_bf16 v[{acc+4}:{acc+7}], v[{a}:{a+1}], v[{d+2}:{d+3}], v[{acc+4}:{acc+7}]")
    def ld(slot, k):
        r = order[k]
        d = vDATA + 16 * slot + 4 * k
        a = vAOP + 8 * slot + 2 * k
        e(f"buffer_load_dwordx4 v[{d}:{d+3}], v{vAD}, s[{G}:{G+3}], 0 offen sc1")
        e(f"v_perm_b32 v{a}, v{vST+r}, v{vST+r}, v{vSEL0}")
        e(f"v_perm_b32 v{a+1}, v{vST+r}, v{vST+r}, v{vSEL1}")
    def step(slot, consume):
        e("s_waitcnt lgkmcnt(0)")
        for k in range(4):
            e(f"v_mad_u32_u16 v{vAD}, v{vST+order[k]}, s{s128}, v{vLOFF}")
            if consume:
                e(f"s_waitcnt vmcnt({4*D-1})")
                mm(slot, k)
            ld(slot, k)
        rdrec()
        pace()
    for s in range(D):
        step(s, False)
    e(f"L_GLOOP:")
    for p in range(D):
        e(f"s_cmp_le_i32 s{sCNT}, {p}")
        e(f"s_cbranch_scc1 L_DRAIN{p}")
        step(p, True)
    e(f"s_sub_i32 s{sCNT}, s{sCNT}, {D}")
    e(f"s_branch L_GLOOP")
    for p in range(D):
        e(f"L_DRAIN{p}:")
        for j in range(4 * D):
            e(f"s_waitcnt vmcnt({4*D-1-j})")
            mm((p + j // 4) % D, j % 4)
        if p != D - 1:
            e(f"s_branch L_GDONE")
    e(f"L_GDONE:")
    e(f"s_add_u32 s{sBB}, s{sBB}, {GB}")
    e(f"s_cmp_lt_u32 s{sBB}, s{sNBMAX}")
    e(f"s_cbranch_scc1 L_NEXTB")
    e(f"s_cmp_lg_u32 s{sHOP}, 0")
    e("s_nop 0")
    for i in range(8):
        e(f"v_cvt_pk_bf16_f32 v{40+i}, v{vACC+2*i}, v{vACC+2*i+1}")
    e(f"s_cbranch_scc1 L_EPI")
    e(f"buffer_store_dwordx4 v[40:43], v{vROWA}, s[{O}:{O+3}], 0 offen sc1")
    e(f"buffer_store_dwordx4 v[44:47], v{vROWB}, s[{O}:{O+3}], 0 offen sc1")
    ts(9)
    for i in range(16):
        e(f"v_mov_b32 v{vACC+i}, 0")
    e(f"s_lshl_b32 s{sT}, s{sN0}, 3")
    e(f"s_add_u32 s{sT}, s{sT}, 8")
    e(f"v_subrev_u32 v{vPA}, s{sT}, v{vPA}")
    e(f"v_subrev_u32 v{vPB}, s{sT}, v{vPB}")
    e("s_waitcnt lgkmcnt(0)")
    rdrec()
    e(f"v_lshlrev_b32 v48, 4, v{vLANE}")
    NWPRE = 8 if D == 2 else 4
    def wfrag(mb, kh):
        if D == 2: return vW + 8 * mb + 4 * kh
        return vW + 4 * mb if kh == 0 else 64 + 4 * mb
    for mb in range(4):
        for kh in range(2 if D == 2 else 1):
            r = wfrag(mb, kh)
            e(f"ds_read_b128 v[{r}:{r+3}], v48 offset:{L_WT + 1024*(2*mb+kh)}")
    e(f"s_lshl_b32 s{sT}, s{sW}, 11")
    e(f"s_add_u32 s{sT}, s{sT}, {L_TILE}")
    e(f"v_lshrrev_b32 v48, 3, v{vLANE}")
    e(f"v_xor_b32 v49, v48, v{vLANE}")
    e(f"v_and_b32 v49, 7, v49")
    e(f"v_lshlrev_b32 v49, 4, v49")
    e(f"v_lshl_add_u32 v49, v48, 7, v49")
    e(f"v_add_u32 v{vTW}, s{sT}, v49")
    e(f"v_and_b32 v48, 15, v{vLANE}")
    e(f"v_lshrrev_b32 v49, 4, v{vLANE}")
    e(f"v_xor_b32 v49, v49, v48")
    e(f"v_and_b32 v49, 7, v49")
    e(f"v_lshlrev_b32 v49, 4, v49")
    e(f"v_lshl_add_u32 v49, v48, 7, v49")
    e(f"v_add_u32 v{vTR}, s{sT}, v49")
    if cfg.OWN == 1:
        e("s_waitcnt vmcnt(0)")
        e(f"buffer_load_dword v{vPFD}, v{vROWA}, s[{O}:{O+3}], 0 offen sc1")
        e(f"buffer_load_dword v{vPFD}, v{vROWB}, s[{O}:{O+3}], 0 offen sc1")
    e("L_SYNC2:")
    srd(G, WS, ROWB, H1_OFF)
    e(f"s_mov_b32 s{sBB}, 0")
    e(f"s_mov_b32 s{sHOP}, 1")
    e(f"s_cmp_lg_u32 s{sW}, {cfg.HW}")
    if cfg.OWN != 1:
        e("s_waitcnt vmcnt(0)")
    ts(10)
    e("s_barrier")
    def rows_pf(first_tid, sb):
        e(f"v_subrev_u32 v48, {first_tid}, v0")
        e(f"v_cmp_gt_u32 vcc, {NB}, v48")
        e(f"s_mul_i32 s{sT}, s{sb}, {NB*128}")
        e(f"v_lshl_add_u32 v48, v48, 7, s{sT}")
        e("s_mov_b64 exec, vcc")
        e(f"buffer_load_dword v{vPFD}, v48, s[{G}:{G+3}], 0 offen sc1")
        e("s_mov_b64 exec, -1")
    e("s_cbranch_scc0 L_FARR")
    e(f"s_sub_u32 s{sT}, s{sW}, 4")
    e(f"s_cmp_ge_u32 s{sT}, 4")
    e(f"s_cbranch_scc1 L_FOWN")
    rows_pf(256, 3)
    e("L_FOWN:")
    if cfg.PEER:
        e(f"v_mov_b32 v49, {L_MISC+16}")
        e("s_barrier")
        e(f"s_sub_u32 s{sT}, s{sW}, {8 if cfg.PEER == 1 else 4}")
        e(f"s_cmp_ge_u32 s{sT}, {4 if cfg.PEER == 1 else 8}")
        e(f"s_cbranch_scc1 L_FDONE")
        e("ds_read_b32 v49, v49")
        e(f"s_and_b32 s{sT+1}, s2, 7")
        e("s_waitcnt lgkmcnt(0)")
        e(f"v_readfirstlane_b32 s{sT}, v49")
        e(f"s_and_b32 s{sT}, s{sT}, 0xff")
        e(f"s_mul_i32 s{sT}, s{sT}, 0x101")
        e(f"s_lshr_b32 s{sT}, s{sT}, s{sT+1}")
        e(f"s_and_b32 s{sT}, s{sT}, 0xfe")
        if cfg.PEER == 2:
            e(f"s_cmp_ge_u32 s{sW}, 8")
            e("s_cbranch_scc1 L_FP1")
            e(f"s_sub_u32 s{sI4}, s{sT}, 1")
            e(f"s_and_b32 s{sT}, s{sT}, s{sI4}")
            e("L_FP1:")
        e(f"s_cmp_eq_u32 s{sT}, 0")
        e("s_cbranch_scc1 L_FDONE")
        e(f"s_ff1_i32_b32 s{sT}, s{sT}")
        e(f"s_lshl_b32 s{sT}, s{sT}, 5")
        e(f"s_add_u32 s{sT}, s{sT}, s3")
        e(f"s_and_b32 s{sI4}, s{sT}, 0xff")
        e(f"v_and_b32 v48, 255, v0")
        e(f"v_cmp_gt_u32 vcc, {NB}, v48")
        e(f"s_mul_i32 s{sT}, s{sI4}, {NB*128}")
        e(f"v_lshl_add_u32 v48, v48, 7, s{sT}")
        e("s_mov_b64 exec, vcc")
        e(f"buffer_load_dword v{vPFD}, v48, s[{G}:{G+3}], 0 offen sc1")
        e("s_mov_b64 exec, -1")
    e("s_branch L_FDONE")
    e("L_FARR:")
    if cfg.PEER:
        e(f"s_and_b32 s{sT}, s2, 7")
        e(f"s_lshl_b32 s{sI4}, 1, s{sT}")
        e(f"s_lshl_b32 s{sT}, s{sT}, 8")
        e(f"s_add_u32 s{sT}, s{sT}, 0x{SY_OFF + 2*4096:x}")
        e(f"v_mov_b32 v40, s{sT}")
        e(f"v_mov_b32 v41, 1")
        e(f"s_lshr_b32 s{sT}, s2, 3")
        e(f"s_lshl_b32 s{sT}, s{sT}, 8")
        e(f"s_add_u32 s{sT}, s{sT}, 0x{SY_OFF + 3*4096:x}")
        e("s_mov_b64 exec, 0x100")
        e(f"v_mov_b32 v40, s{sT}")
        e(f"v_mov_b32 v41, s{sI4}")
        e(f"v_mov_b32 v49, {L_MISC+16}")
        e("s_mov_b64 exec, 0x101")
        e(f"buffer_atomic_add v41, v40, s[{WS}:{WS+3}], 0 offen sc0 sc1")
        arrive_b(2)
        e("s_mov_b64 exec, 0x100")
        e("ds_write_b32 v49, v41")
        e("s_mov_b64 exec, -1")
        poll_a(2)
        e("s_waitcnt lgkmcnt(0)")
        e("s_barrier")
        poll_b(2)
    else:
        arrive(2)
        poll(2)
    e("L_FDONE:")
    srd(O, pOUT, ROWB)
    e(f"s_cmp_le_u32 s{sNBMAX}, {GB}")
    e("s_barrier")
    ts(11)
    e("s_cbranch_scc1 L_G2")
    e("s_branch L_BATCH")

    e("L_EPI:")
    ts(12)
    e(f"ds_write_b128 v{vTW}, v[40:43]")
    e(f"ds_write_b128 v{vTW}, v[44:47] offset:1024")
    e(f"v_xor_b32 v{vAD}, 64, v{vTR}")
    e(f"ds_read_b128 v[40:43], v{vTR}")
    e(f"ds_read_b128 v[44:47], v{vAD}")
    if D != 2:
        e(f"v_lshlrev_b32 v{vAD}, 4, v{vLANE}")
        for mb in range(4):
            r = wfrag(mb, 1)
            e(f"ds_read_b128 v[{r}:{r+3}], v{vAD} offset:{L_WT + 1024*(2*mb+1)}")
    e(f"v_lshrrev_b32 v{vAD}, 4, v{vLANE}")
    e(f"s_lshl_b32 s{sT}, s{sW}, 7")
    e(f"v_lshl_add_u32 v{vAD}, v{vAD}, 5, s{sT}")
    e(f"ds_read_b128 v[48:51], v{vAD} offset:{L_NT}")
    e(f"ds_read_b128 v[52:55], v{vAD} offset:{L_NT+16}")
    e(f"v_and_b32 v{vAD}, 15, v{vLANE}")
    e(f"v_lshlrev_b32 v{vAD}, 3, v{vAD}")
    e(f"s_waitcnt lgkmcnt({3 if D == 2 else 7})")
    for mb in range(4):
        r = wfrag(mb, 0)
        e(f"v_mfma_f32_16x16x32_bf16 v[{vACC+4*mb}:{vACC+4*mb+3}], v[40:43], v[{r}:{r+3}], 0")
    e("s_waitcnt lgkmcnt(2)")
    for mb in range(4):
        r = wfrag(mb, 1)
        e(f"v_mfma_f32_16x16x32_bf16 v[{vACC+4*mb}:{vACC+4*mb+3}], v[44:47], v[{r}:{r+3}], v[{vACC+4*mb}:{vACC+4*mb+3}]")
    e("s_waitcnt lgkmcnt(0)")
    for r in range(4):
        e(f"v_add_u32 v{48+2*r}, v{49+2*r}, v{vAD}")
    e("s_nop 2")
    for r in range(4):
        e(f"v_cvt_pk_bf16_f32 v{56+2*r}, v{vACC+r}, v{vACC+4+r}")
        e(f"v_cvt_pk_bf16_f32 v{57+2*r}, v{vACC+8+r}, v{vACC+12+r}")
        e(f"buffer_store_dwordx2 v[{56+2*r}:{57+2*r}], v{48+2*r}, s[{O}:{O+3}], 0 offen {cfg.OUTFLAG}")
    e("L_FIN:")
    ts_dump()
    e("s_endpgm")
    e("L_HELPER:")
    e(f"s_cmp_le_u32 s{sNBMAX}, {GB}")
    e("s_cbranch_scc1 L_FIN")
    e(f"s_add_u32 s{sBB}, s{sBB}, {GB}")
    e(f"s_cmp_lt_u32 s{sBB}, s{sNBMAX}")
    e(f"s_cbranch_scc1 L_NEXTB")
    e(f"s_cmp_lg_u32 s{sHOP}, 0")
    e("s_cbranch_scc1 L_FIN")
    e("s_branch L_SYNC2")
    e(f"L_NEXTB:")
    e("s_waitcnt vmcnt(0) lgkmcnt(0)")
    e("s_barrier")
    e(f"s_branch L_BATCH")
    e(f"L_END:")
    e("s_endpgm")

head = open("standalone__spectral_conv_sgc__graph.s.ref").read().split("; Override")[0]
e(head.rstrip())
e(f"; @launch grid=(256,1,1) block=(1024,1,1) lds={L_END}")
e('.amdgcn_target "amdgcn-amd-amdhsa--gfx950"')
e(".text")
body()
e('.section .rodata,"a"')
e(".p2align 6")
acc = (NV + 3) // 4 * 4
e(f""".amdhsa_kernel {NAME}
  .amdhsa_next_free_vgpr {NV}
  .amdhsa_next_free_sgpr {NS}
  .amdhsa_accum_offset {acc}
  .amdhsa_group_segment_fixed_size 0
  .amdhsa_kernarg_size 64
  .amdhsa_user_sgpr_count 2
  .amdhsa_user_sgpr_kernarg_segment_ptr 1
  .amdhsa_system_sgpr_workgroup_id_x 1
  .amdhsa_float_denorm_mode_32 3
.end_amdhsa_kernel
""")
open(sys.argv[1], "w").write("\n".join(out) + "\n")
```

```python
import sys

class Cfg:
    D = 2
    TS = 0
    PF2 = 4
    PACE = 4
    EFLAG = ""
    OUTFLAG = "sc1"
    SLEEP = 0
    LATE = 1
    HW = 0
    PFE = 0
    SA = 0
    WST = 32
    DEF = 1
    SP = 7
    PFC = 0
    PEER = 0
    OWN = 2
    RW = 1
    CPF = 1
cfg = Cfg()
for a in sys.argv[2:]:
    k, v = a.split("=")
    cur = getattr(cfg, k)
    setattr(cfg, k, int(v) if isinstance(cur, int) else v.replace("+", " "))

N = 50000; E = 850000
NB = 196; CH = 3328; MAG = 85599
CG = 1280
TAB_OFF = 0x680000
SY_OFF = 0x700000
RP_OFF = 0x710000
H1_OFF = 0x800000
TS_OFF = 0x1200000
WS_USED = 0x1400000
ROWB = N * 128
SPIN_FAST = 4096
SPIN_MAX = 1 << 21
GB = 128

L_NT = 0
L_RECS = 1664
L_D = 29184
L_WT = L_D + 8192
L_CNT = L_WT + 8192
L_DH = L_CNT + 4352
L_MISC = L_DH + 256
L_ZEND2 = L_MISC + 256
L_HIST = L_ZEND2
L_STAGE = L_HIST + 1024
L_ZEND = L_STAGE + CG * 24
L_TILE = L_STAGE
L_END = L_ZEND
assert L_TILE % 128 == 0 and L_STAGE < 65536

out = []
def e(s=""):
    out.append(s)

def srd(d, lo, nrec, off=0):
    if off:
        e(f"s_add_u32 s{d}, s{lo}, 0x{off:x}")
        e(f"s_addc_u32 s{d+1}, s{lo+1}, 0")
    else:
        e(f"s_mov_b32 s{d}, s{lo}")
        e(f"s_mov_b32 s{d+1}, s{lo+1}")
    e(f"s_mov_b32 s{d+2}, 0x{nrec:x}")
    e(f"s_mov_b32 s{d+3}, 0x20000")

def dpp_add(v, ctl):
    e(f"v_add_u32_dpp v{v}, v{v}, v{v} {ctl}")
SCAN = [f"row_shr:{s} row_mask:0xf bank_mask:0xf bound_ctrl:0" for s in (1, 2, 4, 8)] + \
       ["row_bcast:15 row_mask:0xa bank_mask:0xf", "row_bcast:31 row_mask:0xc bank_mask:0xf"]
def scan64(v, fill=(), steps=SCAN):
    fill = list(fill)
    for ctl in steps:
        dpp_add(v, ctl)
        if len(fill) >= 2:
            e(fill.pop(0)); e(fill.pop(0))
        elif len(fill) == 1:
            e(fill.pop(0)); e("s_nop 0")
        else:
            e("s_nop 1")
    for f in fill:
        e(f)

T3, G, WS, O, T1, T2 = 4, 8, 12, 16, 20, 24
sW, sTB, sBB, sNBMAX, s128, sCNT, sT, sNR = 28, 29, 30, 31, 32, 33, 34, 36
sHOP, sN0, sSPIN = 37, 38, 39
sM = 40
sNODE = 52
sTMP = 54
sI4, sPN = 56, 57
sMODE = 66
sVAL = 58
pW, pOUT, pDBG = 60, 62, 64
sC1, sC2, sC3 = 40, 41, 42
sTS = 68
NS = 102 if cfg.TS else 68
vLANE, vE, vP, vSEL0, vSEL1, vLOFF, vONE = 1, 2, 3, 4, 5, 6, 7
vACC = 8
vPA, vEA, vPB, vEB, vROWA, vROWB, vAD, vPFD = 24, 25, 26, 27, 28, 29, 30, 31
vST = 32
vTW, vTR = 36, 37
vTP = 38
D = cfg.D
vDATA = 40
vAOP = vDATA + 16 * D
vW = max(vAOP + 8 * D, 88)
NV = vW + (32 if D == 2 else 16)
assert NV <= 128
vX = 72
vTA, vE2 = 62, 63

def ts(slot, mode=1):
    if cfg.TS == 2 and mode == 1 and slot in (4, 5, 6, 7):
        return
    if cfg.TS == 1 and mode == 2:
        return
    if cfg.TS:
        e(f"s_memrealtime s[{sTS+2*slot}:{sTS+2*slot+1}]")
        e("s_waitcnt lgkmcnt(0)")
def ts_dump():
    if not cfg.TS:
        return
    e("s_waitcnt vmcnt(0)")
    ts(13)
    e(f"s_lshl_b32 s{sT}, s2, 4")
    e(f"s_add_u32 s{sT}, s{sT}, s{sW}")
    e(f"s_lshl_b32 s{sT}, s{sT}, 7")
    e(f"s_add_u32 s{sT}, s{sT}, 0x{TS_OFF:x}")
    e("s_mov_b64 exec, 1")
    e(f"v_mov_b32 v40, s{sT}")
    for i in range(8):
        for j in range(4):
            e(f"v_mov_b32 v{44+4*i+j}, s{sTS+4*i+j}")
        e(f"buffer_store_dwordx4 v[{44+4*i}:{47+4*i}], v40, s[{WS}:{WS+3}], 0 offen offset:{16*i}")

lbl = [0]
def newlab(p):
    lbl[0] += 1
    return f"L_{p}{lbl[0]}"
def spin_tail(loop, done):
    slow = newlab("SLW")
    e(f"s_add_u32 s{sSPIN}, s{sSPIN}, 1")
    e(f"s_cmp_ge_u32 s{sSPIN}, {SPIN_FAST}")
    e(f"s_cbranch_scc1 {slow}")
    if cfg.SLEEP:
        e(f"s_sleep {cfg.SLEEP}")
    e(f"s_branch {loop}")
    e(f"{slow}:")
    e(f"s_cmp_ge_u32 s{sSPIN}, {SPIN_MAX}")
    e(f"s_cbranch_scc1 {done}")
    e("s_sleep 64")
    e(f"s_branch {loop}")
def arrive_a(b, v=40):
    e(f"s_and_b32 s{sT}, s2, 7")
    e(f"s_lshl_b32 s{sT}, s{sT}, 8")
    e(f"s_add_u32 s{sT}, s{sT}, 0x{SY_OFF + b*cfg.WST:x}")
    if cfg.SA:
        sa = 67
        e(f"s_mov_b32 s{sa}, 1")
        e(f"s_atomic_add s{sa}, s[{WS}:{WS+1}], s{sT} glc")
        return
    e(f"v_mov_b32 v{v}, s{sT}")
    e(f"v_mov_b32 v{v+1}, 1")
    e("s_mov_b64 exec, 1")
    e(f"buffer_atomic_add v{v+1}, v{v}, s[{WS}:{WS+3}], 0 offen sc0 sc1")
def arrive_b(b, v=40, cnt=0):
    lab = newlab("ARR")
    sp = cfg.SP >> b & 1
    e("s_mov_b64 exec, -1" if sp else "s_mov_b64 exec, 0xff")
    e(f"v_lshlrev_b32 v{v+2}, 8, v{vLANE}")
    e(f"v_add_u32 v{v+2}, 0x{SY_OFF + 2048 + b*cfg.WST:x}, v{v+2}")
    if cfg.SA:
        e("s_waitcnt lgkmcnt(0)")
        e(f"s_cmp_lg_u32 s67, 31")
    else:
        e(f"s_waitcnt vmcnt({cnt})")
        e(f"v_readfirstlane_b32 s{sT}, v{v+1}")
        e(f"s_cmp_lg_u32 s{sT}, 31")
    e(f"s_cbranch_scc1 {lab}")
    e(f"buffer_atomic_add v{vONE}, v{v+2}, s[{WS}:{WS+3}], 0 offen sc1")
    e(f"{lab}:")
    e("s_mov_b64 exec, -1")
def arrive(b, mid=None):
    arrive_a(b)
    if mid:
        e(mid)
    arrive_b(b)
def rcount():
    lab = newlab("RC")
    e(f"v_mov_b32 v64, {L_MISC+8}")
    e("s_mov_b64 exec, 1")
    e(f"ds_add_rtn_u32 v65, v64, v{vONE}")
    e("s_waitcnt lgkmcnt(0)")
    e("v_cmp_eq_u32 vcc, 13, v65")
    e("s_mov_b64 exec, -1")
    e(f"s_cbranch_vccz {lab}")
    arrive_a(1, 64)
    if cfg.DEF:
        e("s_mov_b64 exec, -1")
        e(f"s_mov_b32 s{sPN}, 1")
    else:
        arrive_b(1, 64)
    e(f"{lab}:")
def poll_a(b):
    if cfg.SP >> b & 1:
        return
    e(f"s_and_b32 s{sSPIN}, s2, 7")
    e(f"s_lshl_b32 s{sSPIN}, s{sSPIN}, 8")
    e(f"s_add_u32 s{sSPIN}, s{sSPIN}, 0x{SY_OFF + 2048 + b*cfg.WST:x}")
    e(f"v_mov_b32 v{vTP}, s{sSPIN}")
    e("s_mov_b64 exec, 1")
    e(f"buffer_load_dword v{vTP+1}, v{vTP}, s[{WS}:{WS+3}], 0 offen sc1")
def poll_b(b):
    lab = newlab("POLL")
    if cfg.SP >> b & 1:
        e(f"s_and_b32 s{sT}, s2, 63")
        e(f"s_lshl_b32 s{sT}, s{sT}, 8")
        e(f"s_add_u32 s{sT}, s{sT}, 0x{SY_OFF + 2048 + b*cfg.WST:x}")
        e(f"s_mov_b32 s{sSPIN}, 0")
        e(f"{lab}:")
        e(f"s_load_dword s{sT+1}, s[{WS}:{WS+1}], s{sT} glc")
        e("s_waitcnt lgkmcnt(0)")
        e(f"s_cmp_eq_u32 s{sT+1}, 8")
        e(f"s_cbranch_scc1 {lab}x")
        spin_tail(lab, lab + "x")
        e(f"{lab}x:")
        return
    e("s_mov_b64 exec, 1")
    e(f"s_mov_b32 s{sSPIN}, 0")
    e(f"s_branch {lab}c")
    e(f"{lab}:")
    e(f"buffer_load_dword v{vTP+1}, v{vTP}, s[{WS}:{WS+3}], 0 offen sc1")
    e(f"{lab}c:")
    e("s_waitcnt vmcnt(0)")
    e(f"v_cmp_eq_u32 vcc, 8, v{vTP+1}")
    e(f"s_cbranch_vccnz {lab}x")
    spin_tail(lab, lab + "x")
    e(f"{lab}x:")
    e("s_mov_b64 exec, -1")
def poll(b):
    poll_a(b)
    poll_b(b)

NAME = "standalone__spectral_conv_sgc__graph_kernel"
def body():
    e(f".globl {NAME}")
    e(".p2align 8")
    e(f".type {NAME},@function")
    e(f"{NAME}:")
    e("s_cmp_ge_u32 s2, 256")
    e("s_cbranch_scc1 L_END")
    e(f"s_load_dwordx2 s[{T1}:{T1+1}], s[0:1], 16")
    e(f"s_load_dwordx2 s[{T2}:{T2+1}], s[0:1], 8")
    e(f"s_load_dwordx2 s[{T3}:{T3+1}], s[0:1], 24")
    e(f"s_load_dwordx2 s[{WS}:{WS+1}], s[0:1], 56")
    if cfg.CPF:
        e("s_getpc_b64 s[54:55]")
        e("L_PC0:")
        e("v_lshlrev_b32 v43, 7, v0")
        e("v_cmp_gt_u32 vcc, L_END-L_PC0, v43")
        e("s_and_saveexec_b64 s[40:41], vcc")
        e("s_cbranch_execz L_NOCPF")
        e(f"global_load_dword v{vPFD}, v43, s[54:55]")
        e("L_NOCPF:")
        e("s_mov_b64 exec, -1")
    nz = (L_ZEND - L_CNT) // 16
    assert 2048 < nz <= 3072
    for i in range(4):
        e(f"v_mov_b32 v{vACC+i}, 0")
    e(f"v_lshlrev_b32 v54, 4, v0")
    e(f"ds_write_b128 v54, v[{vACC}:{vACC+3}] offset:{L_CNT}")
    e(f"s_lshl_b32 s{sT}, s2, 4")
    e(f"v_and_or_b32 v41, v0, 15, s{sT}")
    e(f"v_lshrrev_b32 v40, 4, v0")
    e(f"v_lshl_add_u32 v40, v40, 12, v41")
    e(f"v_cmp_gt_u32 vcc, 832, v0")
    e("v_lshlrev_b32 v41, 4, v40")
    e("v_lshlrev_b32 v42, 3, v40")
    e(f"s_mov_b32 s{T1+2}, 0x{E*4:x}")
    e(f"s_mov_b32 s{T1+3}, 0x20000")
    e(f"s_mov_b32 s{T2+2}, s{T1+2}")
    e(f"s_mov_b32 s{T2+3}, s{T1+3}")
    e(f"s_lshr_b32 s{T3+2}, s{T1+2}, 1")
    e(f"s_mov_b32 s{T3+3}, s{T1+3}")
    e(f"s_mov_b32 s{WS+2}, 0x{WS_USED:x}")
    e(f"s_mov_b32 s{WS+3}, s{T1+3}")
    if cfg.TS:
        for i in range(16):
            e(f"s_mov_b64 s[{sTS+2*i}:{sTS+2*i+1}], 0")
    e("s_cmp_eq_u32 s2, 0")
    e("s_waitcnt lgkmcnt(0)")
    e("s_cbranch_vccz L_H0")
    e(f"buffer_load_dwordx4 v[44:47], v41, s[{T1}:{T1+3}], 0 offen {cfg.EFLAG}")
    e("s_barrier")
    e(f"buffer_load_dwordx4 v[48:51], v41, s[{T2}:{T2+3}], 0 offen {cfg.EFLAG}")
    e(f"buffer_load_dwordx2 v[52:53], v42, s[{T3}:{T3+3}], 0 offen {cfg.EFLAG}")
    e("s_branch L_E0")
    e("L_H0:")
    e("s_cbranch_scc0 L_H1")
    e(f"v_cmp_gt_u32 vcc, 960, v0")
    e("s_cbranch_vccnz L_H1")
    e(f"v_and_b32 v40, 7, v0")
    e(f"v_and_b32 v43, 56, v0")
    e(f"v_lshl_add_u32 v43, v43, 1, v40")
    e(f"v_lshlrev_b32 v43, 4, v43")
    e(f"s_mov_b32 s{sT}, 0x{SY_OFF:x}")
    e("L_ZLOOP:")
    e(f"buffer_store_dwordx4 v[{vACC}:{vACC+3}], v43, s[{WS}:{WS+3}], s{sT} offen sc1")
    e(f"s_addk_i32 s{sT}, 2048")
    e(f"s_cmp_lt_u32 s{sT}, 0x{SY_OFF + 9*2048:x}")
    e("s_cbranch_scc1 L_ZLOOP")
    e("L_H1:")
    e("s_barrier")
    e("s_branch L_P1H1")
    e("L_E0:")
    ts(0)
    assert L_ZEND - (L_CNT + 16384) <= 2 * 13312
    e(f"ds_write_b128 v54, v[{vACC}:{vACC+3}] offset:{L_CNT+16384}")
    e(f"v_add_u32 v54, {L_ZEND-13312}, v54")
    e(f"ds_write_b128 v54, v[{vACC}:{vACC+3}]")
    e(f"v_cmp_gt_u32 vcc, {E//4}, v40")
    e(f"v_mov_b32 v{vONE}, 1")
    e(f"s_mov_b32 s{sC1}, -196")
    e(f"s_mov_b32 s{sC2}, 0x05040100")
    e(f"s_mov_b32 s{sC3}, 0x07060100")
    e(f"s_mov_b64 exec, vcc")
    e(f"s_waitcnt vmcnt(2)")
    for i in range(4):
        e(f"v_mul_u32_u24 v{74+i}, {MAG}, v{44+i}")
    for i in range(4):
        e(f"v_lshrrev_b32 v{70+i}, 24, v{74+i}")
        e(f"v_lshlrev_b32 v{54+i}, 2, v{70+i}")
        e(f"ds_add_rtn_u32 v{58+i}, v{54+i}, v{vONE} offset:{L_HIST}")
    for i in range(4):
        e(f"v_mad_i32_i24 v{44+i}, v{70+i}, s{sC1}, v{44+i}")
        e(f"v_and_b32 v{74+i}, 0xe0000000, v{74+i}")
        e(f"v_add_u32 v{44+i}, 1, v{44+i}")
    e("s_waitcnt lgkmcnt(0)")
    ts(1)
    e("s_barrier")
    e("s_barrier")
    ts(4, 2)
    for i in range(4):
        e(f"ds_read_b32 v{54+i}, v{54+i} offset:{L_HIST}")
    e(f"s_waitcnt vmcnt(1)")
    ts(5, 2)
    for i in range(4):
        e(f"v_mul_u32_u24 v78, {MAG}, v{48+i}")
        e(f"v_sub_u32 v78, v78, v{74+i}")
        e(f"v_lshrrev_b32 v78, 30, v78")
        e(f"v_lshl_or_b32 v{63+2*i}, v{44+i}, 2, v78")
    e(f"s_waitcnt vmcnt(0) lgkmcnt(0)")
    ts(6, 2)
    for i in range(4):
        e(f"v_perm_b32 v{62+2*i}, v{52+i//2}, v{48+i}, s{sC2 if i%2==0 else sC3}")
        e(f"v_lshl_add_u32 v{58+i}, v{58+i}, 3, v{54+i}")
        e(f"ds_write_b64 v{58+i}, v[{62+2*i}:{63+2*i}] offset:{L_STAGE}")
    e("s_mov_b64 exec, -1")
    e(f"v_mov_b32 v43, {L_MISC+12}")
    e(f"ds_read_b32 v43, v43")
    e(f"v_mul_u32_u24 v52, 24, v0")
    e(f"v_add_u32 v52, {L_STAGE}, v52")
    e(f"v_add_u32 v53, {832*24}, v52")
    e(f"s_mul_i32 s{sT}, s2, {CG*16}")
    e(f"v_lshl_add_u32 v41, v0, 4, s{sT}")
    e(f"v_add_u32 v42, 832, v0")
    e("s_waitcnt lgkmcnt(0)")
    e(f"v_cmp_lt_u32 vcc, v42, v43")
    e(f"v_add_u32 v42, {832*16}, v41")
    ts(7, 2)
    e("s_barrier")
    def rd3(d, a):
        e(f"ds_read_b64 v[{d}:{d+1}], v{a}")
        e(f"ds_read_b64 v[{d+4}:{d+5}], v{a} offset:8")
        e(f"ds_read_b64 v[{d+2}:{d+3}], v{a} offset:16")
    def pk3(d):
        e(f"v_lshl_or_b32 v{d+3}, v{d+3}, 10, v{d+5}")
        e(f"v_lshl_or_b32 v{d+3}, v{d+3}, 10, v{d+1}")
        e(f"v_mov_b32 v{d+1}, v{d+4}")
    rd3(44, 52)
    e("s_cbranch_vccz L_ST1")
    e("s_mov_b64 exec, vcc")
    rd3(56, 53)
    e("s_waitcnt lgkmcnt(0)")
    pk3(56)
    e(f"buffer_store_dwordx4 v[56:59], v42, s[{WS}:{WS+3}], 0 offen sc1")
    e("s_mov_b64 exec, -1")
    e("L_ST1:")
    e("s_waitcnt lgkmcnt(0)")
    pk3(44)
    e(f"buffer_store_dwordx4 v[44:47], v41, s[{WS}:{WS+3}], 0 offen sc1")
    ts(2)
    e("s_branch L_P1_JOIN")
    e("L_P1H1:")
    e(f"s_load_dwordx2 s[{O}:{O+1}], s[0:1], 48")
    e(f"s_movk_i32 s{O+2}, 256")
    e(f"s_mov_b32 s{O+3}, s{T1+3}")
    e(f"v_and_b32 v{vLANE}, 63, v0")
    e(f"v_and_b32 v40, 7, v0")
    e(f"v_lshlrev_b32 v{vLOFF}, 4, v40")
    e(f"v_mov_b32 v{vONE}, 1")
    e(f"v_cmp_gt_u32 vcc, 960, v0")
    e("s_cbranch_vccnz L_P1H2")
    e("s_cmp_lg_u32 s2, 0")
    e("s_cbranch_scc1 L_W15_B")
    for i in range(4):
        e(f"v_mov_b32 v{56+i}, 1")
    e("s_mov_b64 exec, 0xff")
    e("s_waitcnt vmcnt(0) lgkmcnt(0)")
    e(f"buffer_store_dwordx4 v[56:59], v{vLOFF}, s[{O}:{O+3}], 0 offen sc1")
    e("s_mov_b64 exec, -1")
    e("L_W15_B:")
    e("s_barrier")
    e("s_barrier")
    e("s_barrier")
    e("s_waitcnt lgkmcnt(0)")
    e("s_branch L_P1_JOIN")
    e("L_P1H2:")
    e(f"s_load_dwordx2 s[{pW}:{pW+1}], s[0:1], 32")
    e(f"v_cmp_gt_u32 vcc, 896, v0")
    e("s_waitcnt lgkmcnt(0)")
    e("s_cbranch_vccnz L_P1_W13")
    srd(T1, pW, 8192)
    e(f"v_lshlrev_b32 v40, 4, v{vLANE}")
    e(f"v_add_u32 v41, 4096, v40")
    for i in range(8):
        e(f"buffer_load_dwordx4 v[{44+4*i}:{47+4*i}], v{40+i//4}, s[{T1}:{T1+3}], 0 offen offset:{1024*(i%4)}")
    e(f"v_lshrrev_b32 v43, 3, v{vLANE}")
    e(f"v_lshlrev_b32 v43, 1, v43")
    e(f"v_lshl_add_u32 v43, v{vLOFF}, 1, v43")
    e("s_barrier")
    e("s_barrier")
    e("s_barrier")
    e(f"s_waitcnt vmcnt(0)")
    for i in range(8):
        for el in range(8):
            off = L_WT + (el & 3) * 2048 + (el >> 2) * 16 + (i & 3) * 256 + (i >> 2) * 1024
            op = "ds_write_b16" if el % 2 == 0 else "ds_write_b16_d16_hi"
            e(f"{op} v43, v{44+4*i+el//2} offset:{off}")
    e("s_branch L_P1_JOIN")
    e("L_P1_W13:")
    e(f"v_lshlrev_b32 v79, 4, v{vLANE}")
    e(f"s_lshl_b32 s{sT}, s2, 10")
    e(f"s_add_u32 s{sT}, s{sT}, 0x{TAB_OFF:x}")
    e(f"v_add_u32 v78, s{sT}, v79")
    e(f"v_mov_b32 v75, {L_MISC+12}")
    e(f"s_mov_b32 s{sT}, 43691")
    e(f"v_mov_b32 v74, {2*43691}")
    e("s_barrier")
    e(f"ds_read_b128 v[80:83], v79 offset:{L_HIST}")
    e("s_waitcnt lgkmcnt(0)")
    for i in range(4):
        e(f"v_mad_u32_u24 v{80+i}, v{80+i}, s{sT}, v74")
    for i in range(4):
        e(f"v_lshrrev_b32 v{80+i}, 17, v{80+i}")
    e("v_add_u32 v85, v80, v81")
    e("v_add_u32 v86, v85, v82")
    e("v_add_u32 v87, v86, v83")
    e("v_mov_b32 v84, v87")
    e("s_nop 1")
    scan64(84)
    e("v_mov_b32 v76, v84")
    e("v_sub_u32 v84, v84, v87")
    e("v_add_u32 v87, v84, v86")
    e("v_add_u32 v86, v84, v85")
    e("v_add_u32 v85, v84, v80")
    for i in range(4):
        e(f"v_mul_u32_u24 v{68+i}, 24, v{84+i}")
    e(f"ds_write_b128 v79, v[68:71] offset:{L_HIST}")
    e(f"s_mov_b32 exec_lo, 0")
    e(f"s_mov_b32 exec_hi, 0x80000000")
    e("ds_write_b32 v75, v76")
    e("s_mov_b64 exec, -1")
    for i in range(4):
        e(f"v_lshl_or_b32 v{80+i}, v{80+i}, 16, v{84+i}")
    e(f"buffer_store_dwordx4 v[80:83], v78, s[{WS}:{WS+3}], 0 offen sc1")
    e("s_waitcnt lgkmcnt(0)")
    e("s_barrier")
    e("s_mov_b64 exec, 1")
    e(f"buffer_load_dword v76, v{vACC}, s[{O}:{O+3}], 0 offen sc1")
    e("s_barrier")
    e(f"s_mov_b32 s{sSPIN}, 0")
    e("s_branch L_RDY1")
    e("L_RDY:")
    e(f"buffer_load_dword v76, v{vACC}, s[{O}:{O+3}], 0 offen sc1")
    e("L_RDY1:")
    e("s_waitcnt vmcnt(0)")
    e("v_cmp_eq_u32 vcc, 1, v76")
    e("s_cbranch_vccnz L_RDYX")
    spin_tail("L_RDY", "L_RDYX")
    e("L_RDYX:")
    e("s_mov_b64 exec, -1")
    ts(1)
    e("L_P1_JOIN:")
    e(f"s_load_dwordx2 s[{G}:{G+1}], s[0:1], 0")
    e(f"s_load_dwordx2 s[{pOUT}:{pOUT+1}], s[0:1], 40")
    e(f"v_lshrrev_b32 v{vX+5}, 6, v0")
    e("s_and_b32 s3, s2, 7")
    e(f"v_readfirstlane_b32 s{sW}, v{vX+5}")
    e("s_lshl_b32 s3, s3, 5")
    e(f"s_lshr_b32 s{sT}, s2, 3")
    e(f"s_or_b32 s3, s3, s{sT}")
    e(f"v_and_b32 v{vLANE}, 63, v0")
    e(f"s_mov_b32 s{s128}, 128")
    e(f"s_mov_b32 s{sBB}, 0")
    e(f"s_mov_b32 s{sHOP}, 0")
    e(f"s_mov_b32 s{sMODE}, 0")
    for i in range(4, 16):
        e(f"v_mov_b32 v{vACC+i}, 0")
    e(f"v_and_b32 v{vX+4}, 7, v0")
    e(f"v_lshlrev_b32 v{vLOFF}, 4, v{vX+4}")
    e(f"v_and_b32 v{vX+4}, 1, v0")
    e(f"v_mov_b32 v{vX+5}, 0x0c0c0302")
    e(f"v_mov_b32 v{vX+6}, 0x03020c0c")
    e(f"v_cmp_eq_u32 vcc, 1, v{vX+4}")
    e(f"v_mov_b32 v{vX+7}, 0x0c0c0c0c")
    e(f"v_and_b32 v{vX+4}, 2, v0")
    e(f"v_cndmask_b32 v{vX+5}, v{vX+5}, v{vX+6}, vcc")
    e(f"v_cmp_eq_u32 vcc, 2, v{vX+4}")
    e(f"v_mov_b32 v{vP}, 0")
    e(f"s_mov_b32 s{G+2}, 0x{ROWB:x}")
    e(f"v_cndmask_b32 v{vSEL0}, v{vX+5}, v{vX+7}, vcc")
    e(f"v_cndmask_b32 v{vSEL1}, v{vX+7}, v{vX+5}, vcc")
    e(f"v_cmp_gt_u32 vcc, 208, v0")
    e(f"s_mov_b64 s[{sNODE}:{sNODE+1}], vcc")
    e(f"s_mov_b32 s{G+3}, 0x20000")
    srd(O, WS, ROWB, H1_OFF)
    e(f"v_and_b32 v{vX}, 60, v0")
    e(f"v_lshl_add_u32 v{vX}, v{vX}, 2, s{sW}")
    e(f"s_lshl_b32 s{sT}, s3, 2")
    e(f"s_add_u32 s{sT}, s{sT}, 0x{TAB_OFF:x}")
    e(f"v_lshl_add_u32 v{vTA}, v{vX}, 10, s{sT}")
    e(f"s_cmp_lg_u32 s{sW}, 0")
    e("s_waitcnt vmcnt(0) lgkmcnt(0)")
    ts(14)
    e("s_barrier")
    e("s_cbranch_scc1 L_NOARR")
    arrive_a(1, 64)
    e("s_mov_b64 exec, -1")
    e(f"buffer_load_dword v{vE}, v{vTA}, s[{WS}:{WS+3}], 0 offen sc1")
    arrive_b(1, 64, 1)
    e("s_branch L_DECODE")
    e("L_NOARR:")
    e(f"buffer_load_dword v{vE}, v{vTA}, s[{WS}:{WS+3}], 0 offen sc1")
    e("s_branch L_DECODE")

    e("L_BATCH:")
    e(f"s_mov_b32 s{sMODE}, 2")
    e(f"v_mov_b32 v{vX}, 0")
    e(f"v_mov_b32 v{vX+1}, 0")
    e(f"v_lshlrev_b32 v{vX+4}, 3, v0")
    e(f"v_cmp_gt_u32 vcc, {(L_ZEND2-L_CNT)//8}, v0")
    e(f"s_mov_b64 exec, vcc")
    e(f"ds_write_b64 v{vX+4}, v[{vX}:{vX+1}] offset:{L_CNT}")
    e("s_mov_b64 exec, -1")
    e("L_DECODE:")
    vNG, vG0, vQ, vT, vB, vA = vX, vX+1, vX+2, vX+3, vX+4, vX+5
    vGR = 40
    vKEY = 48
    vRANK = 54
    vDS = 60
    e(f"v_and_b32 v{vG0}, 60, v0")
    e(f"v_lshl_add_u32 v{vG0}, v{vG0}, 2, s{sW}")
    e(f"v_mul_u32_u24 v{vG0}, {CG}, v{vG0}")
    e(f"v_and_b32 v{vT}, 3, v0")
    e(f"v_add_u32 v{vG0}, v{vG0}, v{vT}")
    e(f"s_lshl_b32 s{sT}, s{sW}, 9")
    e(f"s_add_u32 s{sT}, s{sT}, {L_D}")
    e(f"v_mov_b32 v{vGR+3}, 0")
    e(f"v_mov_b32 v{vGR+7}, 0")
    e("s_waitcnt vmcnt(0)")
    ts(4)
    e(f"v_lshrrev_b32 v{vNG}, 16, v{vE}")
    e(f"v_lshrrev_b32 v{vQ}, 16, v{vE}")
    e(f"v_and_b32 v{vB}, 0xffff, v{vE}")
    e(f"v_add_u32 v{vG0}, v{vG0}, v{vB}")
    scan64(vQ, fill=[f"v_sub_u32 v{vB}, v{vT}, v{vNG}", f"v_subrev_u32 v{vB}, s{sBB}, v{vB}",
                     f"v_cmp_lt_u32 s[{sTMP}:{sTMP+1}], v{vT}, v{vNG}", f"v_lshl_add_u32 v{vDS}, v{vLANE}, 2, s{sT}"], steps=SCAN[2:])
    e(f"v_readlane_b32 s{sTB}, v{vQ}, 63")
    e(f"v_add_u32 v{vB}, v{vB}, v{vQ}")
    e(f"L_DLOOP:")
    e(f"v_cmp_gt_u32 vcc, s{s128}, v{vB}")
    e(f"v_lshl_add_u32 v{vA}, v{vB}, 2, s{sT}")
    e(f"v_add_u32 v{vT}, 4, v{vT}")
    e(f"v_add_u32 v{vB}, 4, v{vB}")
    e(f"s_and_b64 exec, vcc, s[{sTMP}:{sTMP+1}]")
    e(f"ds_write_b32 v{vA}, v{vG0}")
    e("s_mov_b64 exec, -1")
    e(f"v_cmp_lt_u32 s[{sTMP}:{sTMP+1}], v{vT}, v{vNG}")
    e(f"v_cmp_gt_i32 vcc, s{s128}, v{vB}")
    e(f"v_add_u32 v{vG0}, 4, v{vG0}")
    e(f"s_and_b64 s[{sTMP}:{sTMP+1}], s[{sTMP}:{sTMP+1}], vcc")
    e(f"s_cbranch_scc1 L_DLOOP")
    e(f"ds_read2st64_b32 v[{vDS}:{vDS+1}], v{vDS} offset0:0 offset1:1")
    e(f"s_sub_i32 s{sNR}, s{sTB}, s{sBB}")
    e(f"v_add_u32 v{vA}, 64, v{vLANE}")
    e(f"v_cmp_gt_i32 s[{sM}:{sM+1}], s{sNR}, v{vLANE}")
    e(f"v_cmp_gt_i32 s[{sM+6}:{sM+7}], s{sNR}, v{vA}")
    ts(3)
    e("s_waitcnt lgkmcnt(0)")
    e(f"v_lshlrev_b32 v{vDS}, 4, v{vDS}")
    e(f"v_lshlrev_b32 v{vDS+1}, 4, v{vDS+1}")
    e(f"s_cmp_eq_u32 s{sMODE}, 1")
    e("s_cbranch_scc1 L_NOA6")
    e(f"s_cmp_lg_u32 s{sW}, {cfg.RW}")
    e("s_cbranch_scc1 L_NORPOLL")
    poll(1)
    e("L_NORPOLL:")
    e("s_barrier")
    e("L_NOA6:")
    e(f"s_cmp_le_i32 s{sNR}, 0")
    e("s_cbranch_scc1 L_LD_DONE")
    e(f"s_mov_b64 exec, s[{sM}:{sM+1}]")
    e(f"buffer_load_dwordx4 v[{vGR}:{vGR+3}], v{vDS}, s[{WS}:{WS+3}], 0 offen sc1")
    e(f"s_cmp_le_i32 s{sNR}, 64")
    e("s_cbranch_scc1 L_LD_DONE")
    e(f"s_mov_b64 exec, s[{sM+6}:{sM+7}]")
    e(f"buffer_load_dwordx4 v[{vGR+4}:{vGR+7}], v{vDS+1}, s[{WS}:{WS+3}], 0 offen sc1")
    e(f"L_LD_DONE:")
    e("s_mov_b64 exec, -1")
    e(f"s_cmp_lg_u32 s{sMODE}, 0")
    e("s_cbranch_scc1 L_NOVER")
    e(f"buffer_load_dword v{vE2}, v{vTA}, s[{WS}:{WS+3}], 0 offen sc1")
    ts(15)
    if cfg.PF2:
        e(f"s_and_b32 s{sT}, s2, 7")
        e(f"s_mul_i32 s{sT}, s{sT}, 6272")
        e(f"s_lshr_b32 s{sT+1}, s2, 3")
        e(f"s_lshl_b32 s{sT+1}, s{sT+1}, 6")
        e(f"s_add_u32 s{sT}, s{sT}, s{sT+1}")
        e(f"s_sub_u32 s{sT+1}, s{sW}, {16-cfg.PF2}")
        e(f"s_lshl_b32 s{sT+1}, s{sT+1}, 11")
        e(f"s_add_u32 s{sT}, s{sT}, s{sT+1}")
        e(f"v_add_u32 v{vX+8}, s{sT}, v{vLANE}")
        e(f"v_subrev_u32 v{vX+9}, 50176, v{vX+8}")
        e(f"v_min_u32 v{vX+8}, v{vX+8}, v{vX+9}")
        e(f"v_lshlrev_b32 v{vX+8}, 7, v{vX+8}")
    e(f"s_mov_b32 s{sMODE}, 1")
    e(f"s_waitcnt vmcnt(0)")
    e(f"v_cmp_ne_u32 vcc, v{vE}, v{vE2}")
    e(f"v_mov_b32 v{vE}, v{vE2}")
    e("s_cbranch_vccnz L_DECODE")
    if cfg.PF2:
        e(f"s_cmp_lt_u32 s{sW}, {16-cfg.PF2}")
        e("s_cbranch_scc1 L_NOPF2")
        e(f"buffer_load_dword v{vPFD}, v{vX+8}, s[{G}:{G+3}], 0 offen")
    e("s_branch L_NOPF2")
    e("L_NOVER:")
    e(f"s_waitcnt vmcnt(0)")
    e("L_NOPF2:")
    ts(5)
    def second(lab):
        e(f"s_cmp_le_i32 s{sNR}, 64")
        e(f"s_cbranch_scc1 {lab}")
    for r in range(2):
        if r == 1:
            second("L_RK_DONE")
            e("s_mov_b64 exec, -1")
        for s_ in range(3):
            k = 3 * r + s_
            e(f"v_bfe_u32 v{vKEY+k}, v{vGR+4*r+3}, {10*s_}, 10")
        for s_ in range(3):
            k = 3 * r + s_
            e(f"v_cmp_ne_u32 s[{sM+2*k}:{sM+2*k+1}], 0, v{vKEY+k}")
            e(f"v_lshlrev_b32 v{vKEY+k}, 2, v{vKEY+k}")
        for s_ in range(3):
            k = 3 * r + s_
            e(f"s_mov_b64 exec, s[{sM+2*k}:{sM+2*k+1}]")
            e(f"ds_add_rtn_u32 v{vRANK+k}, v{vKEY+k}, v{vONE} offset:{L_CNT}")
    e("L_RK_DONE:")
    e("s_mov_b64 exec, 1")
    e(f"v_mov_b32 v{vA}, s{sTB}")
    e(f"v_mov_b32 v{vB}, {L_MISC+4}")
    e(f"ds_max_u32 v{vB}, v{vA}")
    e("s_mov_b64 exec, -1")
    def slots(bodyf, lab):
        for k in range(6):
            if k == 3:
                second(lab)
            e(f"s_mov_b64 exec, s[{sM+2*k}:{sM+2*k+1}]")
            bodyf(k)
        e(f"{lab}:")
        e("s_mov_b64 exec, -1")
    vC = vX
    vDEG, vNP, vSC, vBIN, vDR, vSB, vNA = vX+4, vX+5, vX+6, vX+7, vX+8, vX+9, vX+10
    vBS = vX + 12
    e(f"v_lshlrev_b32 v{vNA}, 4, v0")
    e(f"v_mov_b32 v{vX+11}, {L_MISC}")
    e(f"v_mov_b32 v{vTP}, 0xffff")
    e(f"v_mov_b32 v{vTP+1}, 0xffff")
    e(f"s_cmp_ge_u32 s{sW}, 4")
    e("s_waitcnt lgkmcnt(0)")
    e("s_barrier")
    e(f"s_cbranch_scc1 L_NODE1_DONE")
    e(f"ds_read_b128 v[{vC}:{vC+3}], v{vNA} offset:{L_CNT+16}")
    ts(6)
    e("s_waitcnt lgkmcnt(0)")
    e(f"v_add_u32 v{vC+1}, v{vC}, v{vC+1}")
    e(f"v_add_u32 v{vC+2}, v{vC+1}, v{vC+2}")
    e(f"v_add3_u32 v{vSC}, v{vC+2}, v{vC+3}, 3")
    e(f"v_lshrrev_b32 v{vSC}, 1, v{vSC}")
    e(f"v_add_u32 v{vDEG}, v{vC+2}, v{vC+3}")
    e(f"v_mov_b32 v{vNP}, v{vSC}")
    scan64(vSC, fill=[f"v_min_u32 v{vBIN}, 63, v{vDEG}", f"v_sub_u32 v{vBIN}, 63, v{vBIN}",
                      f"v_lshlrev_b32 v{vBIN}, 2, v{vBIN}", f"s_mov_b64 exec, s[{sNODE}:{sNODE+1}]"], steps=SCAN[:2])
    e(f"ds_add_rtn_u32 v{vDR}, v{vBIN}, v{vONE} offset:{L_DH}")
    e("s_mov_b64 exec, -1")
    scan64(vSC, steps=SCAN[2:])
    e(f"s_mov_b32 exec_lo, 0")
    e(f"s_mov_b32 exec_hi, 0x80000000")
    e(f"ds_add_rtn_u32 v{vSB}, v{vX+11}, v{vSC}")
    e("s_mov_b64 exec, -1")
    e(f"v_lshlrev_b32 v{vSC}, 1, v{vSC}")
    e(f"v_sub_u32 v{vC+3}, v{vSC}, v{vDEG}")
    e(f"v_lshlrev_b32 v{vX+11}, 1, v{vNP}")
    e(f"v_sub_u32 v{vSC}, v{vSC}, v{vX+11}")
    e("s_waitcnt lgkmcnt(0)")
    e(f"v_readlane_b32 s{sT}, v{vSB}, 63")
    e(f"s_lshl_b32 s{sT}, s{sT}, 3")
    e(f"s_add_u32 s{sT}, s{sT}, {L_RECS}")
    e(f"v_lshl_add_u32 v{vBS}, v{vC+3}, 2, s{sT}")
    e(f"v_lshl_add_u32 v{vBS+1}, v{vC}, 2, v{vBS}")
    e(f"v_lshl_add_u32 v{vBS+2}, v{vC+1}, 2, v{vBS}")
    e(f"v_lshl_add_u32 v{vBS+3}, v{vC+2}, 2, v{vBS}")
    e(f"ds_write_b128 v{vNA}, v[{vBS}:{vBS+3}] offset:{L_CNT+16}")
    e(f"v_lshl_add_u32 v{vSC}, v{vSC}, 2, s{sT}")
    e(f"ds_write_b64 v{vSC}, v[{vTP}:{vTP+1}]")
    e(f"ds_write_b32 v{vSC}, v{vTP} offset:8")
    e(f"L_NODE1_DONE:")
    e(f"v_mov_b32 v{vC}, {L_MISC+4}")
    e(f"v_lshlrev_b32 v{vC+1}, 2, v{vLANE}")
    e("s_waitcnt lgkmcnt(0)")
    e("s_barrier")
    ts(7)
    e(f"ds_read_b32 v{vC+1}, v{vC+1} offset:{L_DH}")
    e(f"ds_read_b32 v{vC+3}, v{vC}")
    for k in range(6):
        if k == 3:
            second("L_RB_DONE")
        e(f"ds_read_b32 v{vKEY+k}, v{vKEY+k} offset:{L_CNT}")
    e("L_RB_DONE:")
    e(f"s_cmp_ge_u32 s{sW}, 4")
    e(f"s_cbranch_scc1 L_NODE2_DONE")
    e(f"s_cmp_lg_u32 s{sBB}, 0")
    e(f"s_cbranch_scc1 L_NODE2_NOSORT")
    e("s_waitcnt lgkmcnt(4)")
    e(f"v_mov_b32 v{vC}, v{vC+1}")
    e("s_nop 1")
    scan64(vC)
    e(f"v_sub_u32 v{vC}, v{vC}, v{vC+1}")
    e(f"ds_bpermute_b32 v{vC}, v{vBIN}, v{vC}")
    e("s_waitcnt lgkmcnt(0)")
    e(f"v_add_lshl_u32 v{vP}, v{vC}, v{vDR}, 3")
    e(f"L_NODE2_NOSORT:")
    e(f"v_lshl_or_b32 v{vC}, v{vNP}, 16, v{vSC}")
    e(f"s_mul_i32 s{sT}, s3, {NB*128}")
    e(f"v_lshl_add_u32 v{vC+1}, v0, 7, s{sT}")
    e(f"v_cmp_gt_u32 vcc, {NB}, v0")
    e(f"v_mov_b32 v{vC+2}, 0x80000000")
    e(f"s_mov_b64 exec, s[{sNODE}:{sNODE+1}]")
    e(f"v_cndmask_b32 v{vC+1}, v{vC+2}, v{vC+1}, vcc")
    e(f"ds_write_b64 v{vP}, v[{vC}:{vC+1}] offset:{L_NT}")
    e("s_mov_b64 exec, -1")
    e(f"L_NODE2_DONE:")
    e("s_waitcnt lgkmcnt(0)")
    def wr(k):
        e(f"v_lshl_add_u32 v{vRANK+k}, v{vRANK+k}, 2, v{vKEY+k}")
        e(f"ds_write_b32 v{vRANK+k}, v{vGR+4*(k//3)+k%3}")
    slots(wr, "L_RW_DONE")
    e(f"v_readfirstlane_b32 s{sNBMAX}, v{vC+3}")
    e(f"v_lshrrev_b32 v{vX}, 3, v{vLANE}")
    e(f"s_lshl_b32 s{sT}, s{sW}, 7")
    e(f"v_lshl_add_u32 v{vX}, v{vX}, 3, s{sT}")
    e(f"s_cmp_ge_u32 s{sW}, 13")
    e("s_waitcnt lgkmcnt(0)")
    e("s_barrier")
    e(f"s_cbranch_scc1 L_HELPER")
    e(f"ds_read_b64 v[{vX+2}:{vX+3}], v{vX} offset:{L_NT}")
    e(f"ds_read_b64 v[{vX+4}:{vX+5}], v{vX} offset:{L_NT+64}")
    ts(8)
    e("s_waitcnt lgkmcnt(0)")
    e(f"v_lshrrev_b32 v{vX}, 16, v{vX+2}")
    e(f"v_lshrrev_b32 v{vX+1}, 16, v{vX+4}")
    e(f"v_max_u32 v{vX+6}, v{vX}, v{vX+1}")
    e(f"v_and_b32 v{vEA}, 0xffff, v{vX+2}")
    e(f"v_and_b32 v{vEB}, 0xffff, v{vX+4}")
    e(f"v_max_u32_dpp v{vX+6}, v{vX+6}, v{vX+6} row_ror:8 row_mask:0xf bank_mask:0xf")
    e(f"v_lshl_add_u32 v{vPA}, v{vX}, 3, v{vEA}")
    e(f"v_lshl_add_u32 v{vPB}, v{vX+1}, 3, v{vEB}")
    e(f"v_readlane_b32 s{sN0}, v{vX+6}, 0")
    e(f"v_readlane_b32 s{sT}, v{vX+6}, 16")
    e(f"v_readlane_b32 s{sT+1}, v{vX+6}, 32")
    e(f"v_readlane_b32 s{sCNT}, v{vX+6}, 48")
    e(f"s_max_u32 s{sN0}, s{sN0}, s{sT}")
    e(f"s_max_u32 s{sCNT}, s{sCNT}, s{sT+1}")
    e(f"s_max_u32 s{sN0}, s{sN0}, s{sCNT}")
    e(f"s_sub_u32 s{sN0}, s{sN0}, 1")
    e(f"s_max_u32 s{sN0}, s{sN0}, {D}")
    e(f"s_lshl_b32 s{sT}, s{sN0}, 3")
    e(f"v_subrev_u32 v{vPA}, s{sT}, v{vPA}")
    e(f"v_subrev_u32 v{vPB}, s{sT}, v{vPB}")
    def rdrec():
        e(f"v_max_i32 v{vAD}, v{vPA}, v{vEA}")
        e(f"ds_read_b64 v[{vST}:{vST+1}], v{vAD}")
        e(f"v_max_i32 v{vAD}, v{vPB}, v{vEB}")
        e(f"ds_read_b64 v[{vST+2}:{vST+3}], v{vAD}")
        e(f"v_add_u32 v{vPA}, 8, v{vPA}")
        e(f"v_add_u32 v{vPB}, 8, v{vPB}")
    rdrec()
    e(f"v_add_u32 v{vROWA}, v{vX+3}, v{vLOFF}")
    e(f"v_add_u32 v{vROWB}, v{vX+5}, v{vLOFF}")
    e("L_G2:")
    e(f"s_sub_u32 s{sCNT}, s{sN0}, {D}")
    if cfg.PACE > 1:
        e(f"s_sub_i32 s{sI4}, 0, s{sN0}")
        e(f"s_cmp_le_u32 s{sNBMAX}, {GB}")
        e(f"s_cselect_b32 s{sPN}, {cfg.PACE-1}, 0")
    def pace():
        if cfg.PACE > 1:
            lab = newlab("PACE")
            e(f"s_add_i32 s{sI4}, s{sI4}, {cfg.PACE}")
            e(f"{lab}a:")
            e(f"s_cmp_lt_i32 s{sI4}, 0")
            e(f"s_cbranch_scc1 {lab}")
            e(f"s_cmp_eq_u32 s{sPN}, 0")
            e(f"s_cbranch_scc1 {lab}")
            e(f"s_sub_i32 s{sI4}, s{sI4}, s{sN0}")
            e(f"s_sub_u32 s{sPN}, s{sPN}, 1")
            e("s_barrier")
            e(f"s_branch {lab}a")
            e(f"{lab}:")
    order = [0, 2, 1, 3]
    def mm(slot, k):
        d = vDATA + 16 * slot + 4 * k
        a = vAOP + 8 * slot + 2 * k
        acc = vACC + (8 if order[k] >= 2 else 0)
        e(f"v_mfma_f32_4x4x4_16b_bf16 v[{acc}:{acc+3}], v[{a}:{a+1}], v[{d}:{d+1}], v[{acc}:{acc+3}]")
        e(f"v_mfma_f32_4x4x4_16b_bf16 v[{acc+4}:{acc+7}], v[{a}:{a+1}], v[{d+2}:{d+3}], v[{acc+4}:{acc+7}]")
    def ld(slot, k):
        r = order[k]
        d = vDATA + 16 * slot + 4 * k
        a = vAOP + 8 * slot + 2 * k
        e(f"buffer_load_dwordx4 v[{d}:{d+3}], v{vAD}, s[{G}:{G+3}], 0 offen sc1")
        e(f"v_perm_b32 v{a}, v{vST+r}, v{vST+r}, v{vSEL0}")
        e(f"v_perm_b32 v{a+1}, v{vST+r}, v{vST+r}, v{vSEL1}")
    def step(slot, consume):
        e("s_waitcnt lgkmcnt(0)")
        for k in range(4):
            e(f"v_mad_u32_u16 v{vAD}, v{vST+order[k]}, s{s128}, v{vLOFF}")
            if consume:
                e(f"s_waitcnt vmcnt({4*D-1})")
                mm(slot, k)
            ld(slot, k)
        rdrec()
        pace()
    for s in range(D):
        step(s, False)
    e(f"L_GLOOP:")
    for p in range(D):
        e(f"s_cmp_le_i32 s{sCNT}, {p}")
        e(f"s_cbranch_scc1 L_DRAIN{p}")
        step(p, True)
    e(f"s_sub_i32 s{sCNT}, s{sCNT}, {D}")
    e(f"s_branch L_GLOOP")
    for p in range(D):
        e(f"L_DRAIN{p}:")
        for j in range(4 * D):
            e(f"s_waitcnt vmcnt({4*D-1-j})")
            mm((p + j // 4) % D, j % 4)
        if p != D - 1:
            e(f"s_branch L_GDONE")
    e(f"L_GDONE:")
    e(f"s_add_u32 s{sBB}, s{sBB}, {GB}")
    e(f"s_cmp_lt_u32 s{sBB}, s{sNBMAX}")
    e(f"s_cbranch_scc1 L_NEXTB")
    e(f"s_cmp_lg_u32 s{sHOP}, 0")
    e("s_nop 0")
    for i in range(8):
        e(f"v_cvt_pk_bf16_f32 v{40+i}, v{vACC+2*i}, v{vACC+2*i+1}")
    e(f"s_cbranch_scc1 L_EPI")
    e(f"buffer_store_dwordx4 v[40:43], v{vROWA}, s[{O}:{O+3}], 0 offen sc1")
    e(f"buffer_store_dwordx4 v[44:47], v{vROWB}, s[{O}:{O+3}], 0 offen sc1")
    ts(9)
    for i in range(16):
        e(f"v_mov_b32 v{vACC+i}, 0")
    e(f"s_lshl_b32 s{sT}, s{sN0}, 3")
    e(f"s_add_u32 s{sT}, s{sT}, 8")
    e(f"v_subrev_u32 v{vPA}, s{sT}, v{vPA}")
    e(f"v_subrev_u32 v{vPB}, s{sT}, v{vPB}")
    e("s_waitcnt lgkmcnt(0)")
    rdrec()
    e(f"v_lshlrev_b32 v48, 4, v{vLANE}")
    NWPRE = 8 if D == 2 else 4
    def wfrag(mb, kh):
        if D == 2: return vW + 8 * mb + 4 * kh
        return vW + 4 * mb if kh == 0 else 64 + 4 * mb
    for mb in range(4):
        for kh in range(2 if D == 2 else 1):
            r = wfrag(mb, kh)
            e(f"ds_read_b128 v[{r}:{r+3}], v48 offset:{L_WT + 1024*(2*mb+kh)}")
    e(f"s_lshl_b32 s{sT}, s{sW}, 11")
    e(f"s_add_u32 s{sT}, s{sT}, {L_TILE}")
    e(f"v_lshrrev_b32 v48, 3, v{vLANE}")
    e(f"v_xor_b32 v49, v48, v{vLANE}")
    e(f"v_and_b32 v49, 7, v49")
    e(f"v_lshlrev_b32 v49, 4, v49")
    e(f"v_lshl_add_u32 v49, v48, 7, v49")
    e(f"v_add_u32 v{vTW}, s{sT}, v49")
    e(f"v_and_b32 v48, 15, v{vLANE}")
    e(f"v_lshrrev_b32 v49, 4, v{vLANE}")
    e(f"v_xor_b32 v49, v49, v48")
    e(f"v_and_b32 v49, 7, v49")
    e(f"v_lshlrev_b32 v49, 4, v49")
    e(f"v_lshl_add_u32 v49, v48, 7, v49")
    e(f"v_add_u32 v{vTR}, s{sT}, v49")
    if cfg.OWN == 1:
        e("s_waitcnt vmcnt(0)")
        e(f"buffer_load_dword v{vPFD}, v{vROWA}, s[{O}:{O+3}], 0 offen sc1")
        e(f"buffer_load_dword v{vPFD}, v{vROWB}, s[{O}:{O+3}], 0 offen sc1")
    e("L_SYNC2:")
    srd(G, WS, ROWB, H1_OFF)
    e(f"s_mov_b32 s{sBB}, 0")
    e(f"s_mov_b32 s{sHOP}, 1")
    e(f"s_cmp_lg_u32 s{sW}, {cfg.HW}")
    if cfg.OWN != 1:
        e("s_waitcnt vmcnt(0)")
    ts(10)
    e("s_barrier")
    def rows_pf(first_tid, sb):
        e(f"v_subrev_u32 v48, {first_tid}, v0")
        e(f"v_cmp_gt_u32 vcc, {NB}, v48")
        e(f"s_mul_i32 s{sT}, s{sb}, {NB*128}")
        e(f"v_lshl_add_u32 v48, v48, 7, s{sT}")
        e("s_mov_b64 exec, vcc")
        e(f"buffer_load_dword v{vPFD}, v48, s[{G}:{G+3}], 0 offen sc1")
        e("s_mov_b64 exec, -1")
    e("s_cbranch_scc0 L_FARR")
    e(f"s_sub_u32 s{sT}, s{sW}, 4")
    e(f"s_cmp_ge_u32 s{sT}, 4")
    e(f"s_cbranch_scc1 L_FOWN")
    rows_pf(256, 3)
    e("L_FOWN:")
    if cfg.PEER:
        e(f"v_mov_b32 v49, {L_MISC+16}")
        e("s_barrier")
        e(f"s_sub_u32 s{sT}, s{sW}, {8 if cfg.PEER == 1 else 4}")
        e(f"s_cmp_ge_u32 s{sT}, {4 if cfg.PEER == 1 else 8}")
        e(f"s_cbranch_scc1 L_FDONE")
        e("ds_read_b32 v49, v49")
        e(f"s_and_b32 s{sT+1}, s2, 7")
        e("s_waitcnt lgkmcnt(0)")
        e(f"v_readfirstlane_b32 s{sT}, v49")
        e(f"s_and_b32 s{sT}, s{sT}, 0xff")
        e(f"s_mul_i32 s{sT}, s{sT}, 0x101")
        e(f"s_lshr_b32 s{sT}, s{sT}, s{sT+1}")
        e(f"s_and_b32 s{sT}, s{sT}, 0xfe")
        if cfg.PEER == 2:
            e(f"s_cmp_ge_u32 s{sW}, 8")
            e("s_cbranch_scc1 L_FP1")
            e(f"s_sub_u32 s{sI4}, s{sT}, 1")
            e(f"s_and_b32 s{sT}, s{sT}, s{sI4}")
            e("L_FP1:")
        e(f"s_cmp_eq_u32 s{sT}, 0")
        e("s_cbranch_scc1 L_FDONE")
        e(f"s_ff1_i32_b32 s{sT}, s{sT}")
        e(f"s_lshl_b32 s{sT}, s{sT}, 5")
        e(f"s_add_u32 s{sT}, s{sT}, s3")
        e(f"s_and_b32 s{sI4}, s{sT}, 0xff")
        e(f"v_and_b32 v48, 255, v0")
        e(f"v_cmp_gt_u32 vcc, {NB}, v48")
        e(f"s_mul_i32 s{sT}, s{sI4}, {NB*128}")
        e(f"v_lshl_add_u32 v48, v48, 7, s{sT}")
        e("s_mov_b64 exec, vcc")
        e(f"buffer_load_dword v{vPFD}, v48, s[{G}:{G+3}], 0 offen sc1")
        e("s_mov_b64 exec, -1")
    e("s_branch L_FDONE")
    e("L_FARR:")
    if cfg.PEER:
        e(f"s_and_b32 s{sT}, s2, 7")
        e(f"s_lshl_b32 s{sI4}, 1, s{sT}")
        e(f"s_lshl_b32 s{sT}, s{sT}, 8")
        e(f"s_add_u32 s{sT}, s{sT}, 0x{SY_OFF + 2*4096:x}")
        e(f"v_mov_b32 v40, s{sT}")
        e(f"v_mov_b32 v41, 1")
        e(f"s_lshr_b32 s{sT}, s2, 3")
        e(f"s_lshl_b32 s{sT}, s{sT}, 8")
        e(f"s_add_u32 s{sT}, s{sT}, 0x{SY_OFF + 3*4096:x}")
        e("s_mov_b64 exec, 0x100")
        e(f"v_mov_b32 v40, s{sT}")
        e(f"v_mov_b32 v41, s{sI4}")
        e(f"v_mov_b32 v49, {L_MISC+16}")
        e("s_mov_b64 exec, 0x101")
        e(f"buffer_atomic_add v41, v40, s[{WS}:{WS+3}], 0 offen sc0 sc1")
        arrive_b(2)
        e("s_mov_b64 exec, 0x100")
        e("ds_write_b32 v49, v41")
        e("s_mov_b64 exec, -1")
        poll_a(2)
        e("s_waitcnt lgkmcnt(0)")
        e("s_barrier")
        poll_b(2)
    else:
        arrive(2)
        poll(2)
    e("L_FDONE:")
    srd(O, pOUT, ROWB)
    e(f"s_cmp_le_u32 s{sNBMAX}, {GB}")
    e("s_barrier")
    ts(11)
    e("s_cbranch_scc1 L_G2")
    e("s_branch L_BATCH")

    e("L_EPI:")
    ts(12)
    e(f"ds_write_b128 v{vTW}, v[40:43]")
    e(f"ds_write_b128 v{vTW}, v[44:47] offset:1024")
    e(f"v_xor_b32 v{vAD}, 64, v{vTR}")
    e(f"ds_read_b128 v[40:43], v{vTR}")
    e(f"ds_read_b128 v[44:47], v{vAD}")
    if D != 2:
        e(f"v_lshlrev_b32 v{vAD}, 4, v{vLANE}")
        for mb in range(4):
            r = wfrag(mb, 1)
            e(f"ds_read_b128 v[{r}:{r+3}], v{vAD} offset:{L_WT + 1024*(2*mb+1)}")
    e(f"v_lshrrev_b32 v{vAD}, 4, v{vLANE}")
    e(f"s_lshl_b32 s{sT}, s{sW}, 7")
    e(f"v_lshl_add_u32 v{vAD}, v{vAD}, 5, s{sT}")
    e(f"ds_read_b128 v[48:51], v{vAD} offset:{L_NT}")
    e(f"ds_read_b128 v[52:55], v{vAD} offset:{L_NT+16}")
    e(f"v_and_b32 v{vAD}, 15, v{vLANE}")
    e(f"v_lshlrev_b32 v{vAD}, 3, v{vAD}")
    e(f"s_waitcnt lgkmcnt({3 if D == 2 else 7})")
    for mb in range(4):
        r = wfrag(mb, 0)
        e(f"v_mfma_f32_16x16x32_bf16 v[{vACC+4*mb}:{vACC+4*mb+3}], v[40:43], v[{r}:{r+3}], 0")
    e("s_waitcnt lgkmcnt(2)")
    for mb in range(4):
        r = wfrag(mb, 1)
        e(f"v_mfma_f32_16x16x32_bf16 v[{vACC+4*mb}:{vACC+4*mb+3}], v[44:47], v[{r}:{r+3}], v[{vACC+4*mb}:{vACC+4*mb+3}]")
    e("s_waitcnt lgkmcnt(0)")
    for r in range(4):
        e(f"v_add_u32 v{48+2*r}, v{49+2*r}, v{vAD}")
    e("s_nop 2")
    for r in range(4):
        e(f"v_cvt_pk_bf16_f32 v{56+2*r}, v{vACC+r}, v{vACC+4+r}")
        e(f"v_cvt_pk_bf16_f32 v{57+2*r}, v{vACC+8+r}, v{vACC+12+r}")
        e(f"buffer_store_dwordx2 v[{56+2*r}:{57+2*r}], v{48+2*r}, s[{O}:{O+3}], 0 offen {cfg.OUTFLAG}")
    e("L_FIN:")
    ts_dump()
    e("s_endpgm")
    e("L_HELPER:")
    e(f"s_cmp_le_u32 s{sNBMAX}, {GB}")
    e("s_cbranch_scc1 L_FIN")
    e(f"s_add_u32 s{sBB}, s{sBB}, {GB}")
    e(f"s_cmp_lt_u32 s{sBB}, s{sNBMAX}")
    e(f"s_cbranch_scc1 L_NEXTB")
    e(f"s_cmp_lg_u32 s{sHOP}, 0")
    e("s_cbranch_scc1 L_FIN")
    e("s_branch L_SYNC2")
    e(f"L_NEXTB:")
    e("s_waitcnt vmcnt(0) lgkmcnt(0)")
    e("s_barrier")
    e(f"s_branch L_BATCH")
    e(f"L_END:")
    e("s_endpgm")

head = open("standalone__spectral_conv_sgc__graph.s.ref").read().split("; Override")[0]
e(head.rstrip())
e(f"; @launch grid=(256,1,1) block=(1024,1,1) lds={L_END}")
e('.amdgcn_target "amdgcn-amd-amdhsa--gfx950"')
e(".text")
body()
e('.section .rodata,"a"')
e(".p2align 6")
acc = (NV + 3) // 4 * 4
e(f""".amdhsa_kernel {NAME}
  .amdhsa_next_free_vgpr {NV}
  .amdhsa_next_free_sgpr {NS}
  .amdhsa_accum_offset {acc}
  .amdhsa_group_segment_fixed_size 0
  .amdhsa_kernarg_size 64
  .amdhsa_user_sgpr_count 2
  .amdhsa_user_sgpr_kernarg_segment_ptr 1
  .amdhsa_system_sgpr_workgroup_id_x 1
  .amdhsa_float_denorm_mode_32 3
.end_amdhsa_kernel
""")
open(sys.argv[1], "w").write("\n".join(out) + "\n")
```

```python
import sys

class Cfg:
    D = 2
    TS = 0
    PF2 = 4
    PACE = 4
    EFLAG = ""
    OUTFLAG = "sc1"
    SLEEP = 0
    LATE = 1
    HW = 0
    PFE = 0
    SA = 0
    WST = 32
    DEF = 1
    ENT = 0
    CLI = 1
    RN = 3
    TYP = "RS"
    POL = -1
    SPL = 3
    XMASK = 0
    PFA = 0
    PFM = 1
    SP = 7
    PFC = 0
    PEER = 0
    OWN = 2
    RW = 1
    CPF = 1
cfg = Cfg()
for a in sys.argv[2:]:
    k, v = a.split("=")
    cur = getattr(cfg, k)
    setattr(cfg, k, int(v) if isinstance(cur, int) else v.replace("+", " "))

N = 50000; E = 850000
NB = 196; CH = 3328; MAG = 85599
CG = 1280
TAB_OFF = 0x680000
SY_OFF = 0x700000
RP_OFF = 0x710000
PR_OFF = 0x720000
H1_OFF = 0x800000
H1B = 784 * 16384
TS_OFF = 0x1600000
WS_USED = 0x1800000
ROWB = N * 128
SPIN_FAST = 4096
SPIN_MAX = 1 << 21
GB = 128

SPL = cfg.SPL
NW = SPL + -(-(NB - 8 * SPL) // 16)
NNORM = NW - SPL
NSLOT = 8 * SPL + 16 * NNORM
assert NW <= 16
L_NT = 0
L_D = 2048
L_WT = L_D + 8192
L_CNT = L_WT + 8192
L_DH = L_CNT + 4352
L_MISC = L_DH + 256
L_ZEND2 = L_MISC + 256
L_Q = L_ZEND2
L_HIST = L_ZEND2
L_STAGE = L_HIST + 1024
L_ZEND = L_STAGE + CG * 24
L_RECS = L_STAGE
RDELTA = 27648
L_TILE = L_RECS + 2 * RDELTA
L_END = L_TILE + NW * 2048
assert L_TILE % 128 == 0 and L_RECS + RDELTA < 65536 and RDELTA % 512 == 0 and L_RECS % 16 == 0

out = []
def e(s=""):
    out.append(s)

def srd(d, lo, nrec, off=0):
    if off:
        e(f"s_add_u32 s{d}, s{lo}, 0x{off:x}")
        e(f"s_addc_u32 s{d+1}, s{lo+1}, 0")
    else:
        e(f"s_mov_b32 s{d}, s{lo}")
        e(f"s_mov_b32 s{d+1}, s{lo+1}")
    e(f"s_mov_b32 s{d+2}, 0x{nrec:x}")
    e(f"s_mov_b32 s{d+3}, 0x20000")

def dpp_add(v, ctl):
    e(f"v_add_u32_dpp v{v}, v{v}, v{v} {ctl}")
SCAN = [f"row_shr:{s} row_mask:0xf bank_mask:0xf bound_ctrl:0" for s in (1, 2, 4, 8)] + \
       ["row_bcast:15 row_mask:0xa bank_mask:0xf", "row_bcast:31 row_mask:0xc bank_mask:0xf"]
def scan64(v, fill=(), steps=SCAN):
    fill = list(fill)
    for ctl in steps:
        dpp_add(v, ctl)
        if len(fill) >= 2:
            e(fill.pop(0)); e(fill.pop(0))
        elif len(fill) == 1:
            e(fill.pop(0)); e("s_nop 0")
        else:
            e("s_nop 1")
    for f in fill:
        e(f)

T3, G, WS, O, T1, T2 = 4, 8, 12, 16, 20, 24
sW, sTB, sBB, sNBMAX, s128, sCNT, sT, sNR = 28, 29, 30, 31, 32, 33, 34, 36
sHOP, sN0, sSPIN = 37, 38, 39
sM = 40
sNODE = 52
sTMP = 54
sI4, sPN = 56, 57
sMODE = 66
sSTR = 64
sQ = 59
sK, sSEL = 60, 61
sVAL = 58
pW, pOUT, pDBG = 60, 62, 64
sC1, sC2, sC3 = 40, 41, 42
sTS = 68
NS = 102 if cfg.TS else 68
vLANE, vE, vP, vSEL0, vSEL1, vLOFF, vONE = 1, 2, 3, 4, 5, 6, 7
vACC = 8
vPA, vEA, vPB, vEB, vROWA, vROWB, vAD, vPFD = 24, 25, 26, 27, 28, 29, 30, 31
vST = 120
vTW, vTR = 36, 37
vTP = 38
D = cfg.D
vDATA = 40
vAOP = vDATA + 16 * D
vW = max(vAOP + 8 * D, 88)
NV = 128
assert D == 2 and vW + 32 <= vST
assert NV <= 128
vX = 72
vTA, vE2 = 62, 63

def ts(slot, mode=1):
    if cfg.TS == 2 and mode == 1 and slot in (4, 5, 6, 7):
        return
    if cfg.TS == 1 and mode == 2:
        return
    if cfg.TS:
        e(f"s_memrealtime s[{sTS+2*slot}:{sTS+2*slot+1}]")
        e("s_waitcnt lgkmcnt(0)")
def ts_dump():
    if not cfg.TS:
        return
    e("s_waitcnt vmcnt(0)")
    ts(13)
    e(f"s_lshl_b32 s{sT}, s2, 4")
    e(f"s_add_u32 s{sT}, s{sT}, s{sW}")
    e(f"s_lshl_b32 s{sT}, s{sT}, 7")
    e(f"s_add_u32 s{sT}, s{sT}, 0x{TS_OFF:x}")
    e("s_mov_b64 exec, 1")
    e(f"v_mov_b32 v40, s{sT}")
    for i in range(8):
        for j in range(4):
            e(f"v_mov_b32 v{44+4*i+j}, s{sTS+4*i+j}")
        e(f"buffer_store_dwordx4 v[{44+4*i}:{47+4*i}], v40, s[{WS}:{WS+3}], 0 offen offset:{16*i}")

lbl = [0]
def newlab(p):
    lbl[0] += 1
    return f"L_{p}{lbl[0]}"
def spin_tail(loop, done):
    slow = newlab("SLW")
    e(f"s_add_u32 s{sSPIN}, s{sSPIN}, 1")
    e(f"s_cmp_ge_u32 s{sSPIN}, {SPIN_FAST}")
    e(f"s_cbranch_scc1 {slow}")
    if cfg.SLEEP:
        e(f"s_sleep {cfg.SLEEP}")
    e(f"s_branch {loop}")
    e(f"{slow}:")
    e(f"s_cmp_ge_u32 s{sSPIN}, {SPIN_MAX}")
    e(f"s_cbranch_scc1 {done}")
    e("s_sleep 64")
    e(f"s_branch {loop}")
def arrive_a(b, v=40):
    e(f"s_and_b32 s{sT}, s2, 7")
    e(f"s_lshl_b32 s{sT}, s{sT}, 8")
    e(f"s_add_u32 s{sT}, s{sT}, 0x{SY_OFF + b*cfg.WST:x}")
    if cfg.SA:
        sa = 67
        e(f"s_mov_b32 s{sa}, 1")
        e(f"s_atomic_add s{sa}, s[{WS}:{WS+1}], s{sT} glc")
        return
    e(f"v_mov_b32 v{v}, s{sT}")
    e(f"v_mov_b32 v{v+1}, 1")
    e("s_mov_b64 exec, 1")
    e(f"buffer_atomic_add v{v+1}, v{v}, s[{WS}:{WS+3}], 0 offen sc0 sc1")
def arrive_b(b, v=40, cnt=0):
    lab = newlab("ARR")
    sp = cfg.SP >> b & 1
    e("s_mov_b64 exec, -1" if sp else "s_mov_b64 exec, 0xff")
    e(f"v_lshlrev_b32 v{v+2}, 8, v{vLANE}")
    e(f"v_add_u32 v{v+2}, 0x{SY_OFF + 2048 + b*cfg.WST:x}, v{v+2}")
    if cfg.SA:
        e("s_waitcnt lgkmcnt(0)")
        e(f"s_cmp_lg_u32 s67, 31")
    else:
        e(f"s_waitcnt vmcnt({cnt})")
        e(f"v_readfirstlane_b32 s{sT}, v{v+1}")
        e(f"s_cmp_lg_u32 s{sT}, 31")
    e(f"s_cbranch_scc1 {lab}")
    e(f"buffer_atomic_add v{vONE}, v{v+2}, s[{WS}:{WS+3}], 0 offen sc1")
    e(f"{lab}:")
    e("s_mov_b64 exec, -1")
def arrive(b, mid=None):
    arrive_a(b)
    if mid:
        e(mid)
    arrive_b(b)
def rcount():
    lab = newlab("RC")
    e(f"v_mov_b32 v64, {L_MISC+8}")
    e("s_mov_b64 exec, 1")
    e(f"ds_add_rtn_u32 v65, v64, v{vONE}")
    e("s_waitcnt lgkmcnt(0)")
    e("v_cmp_eq_u32 vcc, 13, v65")
    e("s_mov_b64 exec, -1")
    e(f"s_cbranch_vccz {lab}")
    arrive_a(1, 64)
    if cfg.DEF:
        e("s_mov_b64 exec, -1")
        e(f"s_mov_b32 s{sPN}, 1")
    else:
        arrive_b(1, 64)
    e(f"{lab}:")
def poll_a(b):
    if cfg.SP >> b & 1:
        return
    e(f"s_and_b32 s{sSPIN}, s2, 7")
    e(f"s_lshl_b32 s{sSPIN}, s{sSPIN}, 8")
    e(f"s_add_u32 s{sSPIN}, s{sSPIN}, 0x{SY_OFF + 2048 + b*cfg.WST:x}")
    e(f"v_mov_b32 v{vTP}, s{sSPIN}")
    e("s_mov_b64 exec, 1")
    e(f"buffer_load_dword v{vTP+1}, v{vTP}, s[{WS}:{WS+3}], 0 offen sc1")
def poll_b(b):
    lab = newlab("POLL")
    if cfg.SP >> b & 1:
        e(f"s_and_b32 s{sT}, s2, 63")
        e(f"s_lshl_b32 s{sT}, s{sT}, 8")
        e(f"s_add_u32 s{sT}, s{sT}, 0x{SY_OFF + 2048 + b*cfg.WST:x}")
        e(f"s_mov_b32 s{sSPIN}, 0")
        e(f"{lab}:")
        e(f"s_load_dword s{sT+1}, s[{WS}:{WS+1}], s{sT} glc")
        e("s_waitcnt lgkmcnt(0)")
        e(f"s_cmp_eq_u32 s{sT+1}, 8")
        e(f"s_cbranch_scc1 {lab}x")
        spin_tail(lab, lab + "x")
        e(f"{lab}x:")
        return
    e("s_mov_b64 exec, 1")
    e(f"s_mov_b32 s{sSPIN}, 0")
    e(f"s_branch {lab}c")
    e(f"{lab}:")
    e(f"buffer_load_dword v{vTP+1}, v{vTP}, s[{WS}:{WS+3}], 0 offen sc1")
    e(f"{lab}c:")
    e("s_waitcnt vmcnt(0)")
    e(f"v_cmp_eq_u32 vcc, 8, v{vTP+1}")
    e(f"s_cbranch_vccnz {lab}x")
    spin_tail(lab, lab + "x")
    e(f"{lab}x:")
    e("s_mov_b64 exec, -1")
def poll(b):
    poll_a(b)
    poll_b(b)

def probe_off(d):
    e(f"s_lshr_b32 s{d}, s2, 6")
    e(f"s_lshl_b32 s{d}, s{d}, 6")
    e(f"s_add_u32 s{d}, s{d}, s2")
    e(f"s_lshl_b32 s{d}, s{d}, 7")
    e(f"s_add_u32 s{d}, s{d}, 0x{PR_OFF:x}")
def pf_addr(v, first_wave, base_instr):
    e(f"s_lshr_b32 s{sT}, s2, 3")
    e(f"s_lshl_b32 s{sT}, s{sT}, 6")
    e(f"s_sub_u32 s{sT+1}, s{sW}, {first_wave - base_instr}")
    e(f"s_lshl_b32 s{sT+1}, s{sT+1}, 11")
    e(f"s_add_u32 s{sT}, s{sT}, s{sT+1}")
    e(f"v_add_u32 v{v}, s{sT}, v{vLANE}")
    if cfg.PFM == 2:
        e(f"v_lshlrev_b32 v{v}, 1, v{v}")
    if cfg.PFM == 3:
        e(f"v_lshrrev_b32 v{v+1}, 1, v{v}")
        e(f"v_add_u32 v{v}, v{v}, v{v+1}")
    if cfg.CLI:
        e(f"v_and_b32 v{v+1}, 1, v{v}")
        e(f"v_lshrrev_b32 v{v}, 1, v{v}")
        e(f"v_mul_u32_u24 v{v+1}, 25088, v{v+1}")
        e(f"v_add_u32 v{v}, v{v}, v{v+1}")
    e(f"s_and_b32 s{sT}, s2, 7")
    e(f"s_mul_i32 s{sT}, s{sT}, 6272")
    e(f"v_add_u32 v{v}, s{sT}, v{v}")
    e(f"v_subrev_u32 v{v+1}, 50176, v{v}")
    e(f"v_min_u32 v{v}, v{v}, v{v+1}")
    e(f"v_lshlrev_b32 v{v}, 7, v{v}")

NAME = "standalone__spectral_conv_sgc__graph_kernel"
def body():
    e(f".globl {NAME}")
    e(".p2align 8")
    e(f".type {NAME},@function")
    e(f"{NAME}:")
    def cpf():
        if cfg.CPF:
            e("s_getpc_b64 s[54:55]")
            e("L_PC0:")
            e("v_lshlrev_b32 v43, 7, v0")
            e("v_cmp_gt_u32 vcc, L_END-L_PC0, v43")
            e("s_and_saveexec_b64 s[40:41], vcc")
            e("s_cbranch_execz L_NOCPF")
            e(f"global_load_dword v{vPFD}, v43, s[54:55]")
            e("L_NOCPF:")
            e("s_mov_b64 exec, -1")
    def zero1():
        for i in range(4):
            e(f"v_mov_b32 v{vACC+i}, 0")
        e(f"v_lshlrev_b32 v54, 4, v0")
        e(f"ds_write_b128 v54, v[{vACC}:{vACC+3}] offset:{L_CNT}")
    def ld_dst():
        e(f"buffer_load_dwordx4 v[44:47], v41, s[{T1}:{T1+3}], 0 offen {cfg.EFLAG}")
    def ld_sn():
        e(f"buffer_load_dwordx4 v[48:51], v41, s[{T2}:{T2+3}], 0 offen {cfg.EFLAG}")
        e(f"buffer_load_dwordx2 v[52:53], v42, s[{T3}:{T3+3}], 0 offen {cfg.EFLAG}")
    def sn_consts():
        e("v_lshrrev_b32 v42, 1, v41")
        e(f"s_mov_b64 s[{T2+2}:{T2+3}], s[{T1+2}:{T1+3}]")
        e(f"s_lshr_b32 s{T3+2}, s{T1+2}, 1")
        e(f"s_mov_b32 s{T3+3}, s{T1+3}")
    if cfg.TS:
        e(f"s_memrealtime s[{sTS}:{sTS+1}]")
    e(f"s_load_dwordx2 s[{T1}:{T1+1}], s[0:1], 16")
    if cfg.ENT != 1:
        e(f"s_load_dwordx2 s[{T2}:{T2+1}], s[0:1], 8")
        e(f"s_load_dwordx2 s[{T3}:{T3+1}], s[0:1], 24")
    e("s_cmpk_ge_u32 s2, 256")
    e("s_cbranch_scc1 L_END")
    if cfg.ENT == 0:
        e(f"s_load_dwordx2 s[{WS}:{WS+1}], s[0:1], 56")
        cpf()
        zero1()
    e(f"s_lshl_b32 s{sT}, s2, 4")
    e(f"v_and_or_b32 v41, v0, 15, s{sT}")
    e(f"v_lshrrev_b32 v40, 4, v0")
    e(f"v_lshl_add_u32 v40, v40, 12, v41")
    e("v_lshlrev_b32 v41, 4, v40")
    e(f"s_mov_b32 s{T1+2}, 0x{E*4:x}")
    e(f"s_mov_b32 s{T1+3}, 0x20000")
    if cfg.ENT == 2:
        sn_consts()
    e("s_waitcnt lgkmcnt(0)")
    ld_dst()
    if cfg.ENT == 2:
        ld_sn()
    if cfg.ENT == 1:
        e(f"s_load_dwordx2 s[{T2}:{T2+1}], s[0:1], 8")
        e(f"s_load_dwordx2 s[{T3}:{T3+1}], s[0:1], 24")
    if cfg.ENT != 0:
        e(f"s_load_dwordx2 s[{WS}:{WS+1}], s[0:1], 56")
        cpf()
        zero1()
    if cfg.ENT != 2:
        sn_consts()
    e(f"v_cmp_gt_u32 vcc, 832, v0")
    e(f"s_mov_b32 s{WS+2}, 0x{WS_USED:x}")
    e(f"s_mov_b32 s{WS+3}, s{T1+3}")
    if cfg.TS:
        for i in range(1, 16):
            e(f"s_mov_b64 s[{sTS+2*i}:{sTS+2*i+1}], 0")
    e("s_cmp_eq_u32 s2, 0")
    e("s_waitcnt lgkmcnt(0)")
    e("s_cbranch_vccz L_H0")
    e("s_barrier")
    if cfg.ENT != 2:
        ld_sn()
    e("s_branch L_E0")
    e("L_H0:")
    e("s_cbranch_scc0 L_H1")
    e(f"v_cmp_gt_u32 vcc, 960, v0")
    e("s_cbranch_vccnz L_H1")
    e(f"v_and_b32 v40, 7, v0")
    e(f"v_and_b32 v43, 56, v0")
    e(f"v_lshl_add_u32 v43, v43, 1, v40")
    e(f"v_lshlrev_b32 v43, 4, v43")
    e(f"s_mov_b32 s{sT}, 0x{SY_OFF:x}")
    e("L_ZLOOP:")
    e(f"buffer_store_dwordx4 v[{vACC}:{vACC+3}], v43, s[{WS}:{WS+3}], s{sT} offen sc1")
    e(f"s_addk_i32 s{sT}, 2048")
    e(f"s_cmp_lt_u32 s{sT}, 0x{SY_OFF + 9*2048:x}")
    e("s_cbranch_scc1 L_ZLOOP")
    e("L_H1:")
    e("s_barrier")
    e("s_branch L_P1H1")
    e("L_E0:")
    assert L_ZEND - (L_CNT + 16384) <= 2 * 13312
    e(f"ds_write_b128 v54, v[{vACC}:{vACC+3}] offset:{L_CNT+16384}")
    e(f"v_add_u32 v54, {L_ZEND-13312}, v54")
    e(f"ds_write_b128 v54, v[{vACC}:{vACC+3}]")
    e(f"v_cmp_gt_u32 vcc, {E//4}, v40")
    e(f"v_mov_b32 v{vONE}, 1")
    e(f"s_mov_b32 s{sC1}, -196")
    e(f"s_mov_b32 s{sC2}, 0x05040100")
    e(f"s_mov_b32 s{sC3}, 0x07060100")
    e(f"s_mov_b64 exec, vcc")
    e(f"s_waitcnt vmcnt(2)")
    for i in range(4):
        e(f"v_mul_u32_u24 v{74+i}, {MAG}, v{44+i}")
    for i in range(4):
        e(f"v_lshrrev_b32 v{70+i}, 24, v{74+i}")
        e(f"v_lshlrev_b32 v{54+i}, 2, v{70+i}")
        e(f"ds_add_rtn_u32 v{58+i}, v{54+i}, v{vONE} offset:{L_HIST}")
    for i in range(4):
        e(f"v_mad_i32_i24 v{44+i}, v{70+i}, s{sC1}, v{44+i}")
        e(f"v_and_b32 v{74+i}, 0xe0000000, v{74+i}")
        e(f"v_add_u32 v{44+i}, 1, v{44+i}")
    e("s_waitcnt lgkmcnt(0)")
    ts(1)
    e("s_barrier")
    e("s_barrier")
    ts(4, 2)
    for i in range(4):
        e(f"ds_read_b32 v{54+i}, v{54+i} offset:{L_HIST}")
    e(f"s_waitcnt vmcnt(1)")
    ts(5, 2)
    for i in range(4):
        e(f"v_mul_u32_u24 v78, {MAG}, v{48+i}")
        e(f"v_sub_u32 v78, v78, v{74+i}")
        if cfg.CLI:
            e(f"v_bfe_u32 v78, v78, 29, 2")
        else:
            e(f"v_lshrrev_b32 v78, 30, v78")
        e(f"v_lshl_or_b32 v{63+2*i}, v{44+i}, 2, v78")
    e(f"s_waitcnt vmcnt(0) lgkmcnt(0)")
    ts(6, 2)
    for i in range(4):
        e(f"v_perm_b32 v{62+2*i}, v{52+i//2}, v{48+i}, s{sC2 if i%2==0 else sC3}")
        e(f"v_lshl_add_u32 v{58+i}, v{58+i}, 3, v{54+i}")
        e(f"ds_write_b64 v{58+i}, v[{62+2*i}:{63+2*i}] offset:{L_STAGE}")
    e("s_mov_b64 exec, -1")
    e(f"v_mov_b32 v43, {L_MISC+12}")
    e(f"ds_read_b32 v43, v43")
    e(f"v_mul_u32_u24 v52, 24, v0")
    e(f"v_add_u32 v52, {L_STAGE}, v52")
    e(f"v_add_u32 v53, {832*24}, v52")
    e(f"s_mul_i32 s{sT}, s2, {CG*16}")
    e(f"v_lshl_add_u32 v41, v0, 4, s{sT}")
    e(f"v_add_u32 v42, 832, v0")
    e("s_waitcnt lgkmcnt(0)")
    e(f"v_cmp_lt_u32 vcc, v42, v43")
    e(f"v_add_u32 v42, {832*16}, v41")
    ts(7, 2)
    e("s_barrier")
    def rd3(d, a):
        e(f"ds_read_b64 v[{d}:{d+1}], v{a}")
        e(f"ds_read_b64 v[{d+4}:{d+5}], v{a} offset:8")
        e(f"ds_read_b64 v[{d+2}:{d+3}], v{a} offset:16")
    def pk3(d):
        e(f"v_lshl_or_b32 v{d+3}, v{d+3}, 10, v{d+5}")
        e(f"v_lshl_or_b32 v{d+3}, v{d+3}, 10, v{d+1}")
        e(f"v_mov_b32 v{d+1}, v{d+4}")
    rd3(44, 52)
    e("s_cbranch_vccz L_ST1")
    e("s_mov_b64 exec, vcc")
    rd3(56, 53)
    e("s_waitcnt lgkmcnt(0)")
    pk3(56)
    e(f"buffer_store_dwordx4 v[56:59], v42, s[{WS}:{WS+3}], 0 offen sc1")
    e("s_mov_b64 exec, -1")
    e("L_ST1:")
    e("s_waitcnt lgkmcnt(0)")
    pk3(44)
    e(f"buffer_store_dwordx4 v[44:47], v41, s[{WS}:{WS+3}], 0 offen sc1")
    ts(2)
    e("s_branch L_P1_JOIN")
    e("L_P1H1:")
    e(f"s_load_dwordx2 s[{O}:{O+1}], s[0:1], 48")
    e(f"s_movk_i32 s{O+2}, 256")
    e(f"s_mov_b32 s{O+3}, s{T1+3}")
    e(f"v_and_b32 v{vLANE}, 63, v0")
    e(f"v_and_b32 v40, 7, v0")
    e(f"v_lshlrev_b32 v{vLOFF}, 4, v40")
    e(f"v_mov_b32 v{vONE}, 1")
    e(f"v_cmp_gt_u32 vcc, 960, v0")
    e("s_cbranch_vccnz L_P1H2")
    e("s_cmp_lg_u32 s2, 0")
    e("s_cbranch_scc1 L_W15_B")
    for i in range(4):
        e(f"v_mov_b32 v{56+i}, 1")
    e("s_mov_b64 exec, 0xff")
    e("s_waitcnt vmcnt(0) lgkmcnt(0)")
    e(f"buffer_store_dwordx4 v[56:59], v{vLOFF}, s[{O}:{O+3}], 0 offen sc1")
    e("s_mov_b64 exec, -1")
    e(f"v_and_b32 v40, 15, v0")
    e(f"v_and_b32 v41, 16, v0")
    e(f"v_lshlrev_b32 v40, 9, v40")
    e(f"v_lshl_add_u32 v40, v41, 9, v40")
    e(f"s_mov_b32 s{sT}, 0x{PR_OFF:x}")
    e(f"buffer_load_dword v{vPFD}, v40, s[{WS}:{WS+3}], s{sT} offen")
    e(f"s_load_dword s{sSPIN}, s[{WS}:{WS+1}], s{sT} glc")
    e("L_W15_B:")
    e("s_barrier")
    e("s_barrier")
    e("s_barrier")
    e("s_waitcnt lgkmcnt(0)")
    e("s_branch L_P1_JOIN")
    e("L_P1H2:")
    e(f"s_load_dwordx2 s[{pW}:{pW+1}], s[0:1], 32")
    e(f"v_cmp_gt_u32 vcc, 896, v0")
    e("s_waitcnt lgkmcnt(0)")
    e("s_cbranch_vccnz L_P1_W13")
    srd(T1, pW, 8192)
    e(f"v_lshlrev_b32 v40, 4, v{vLANE}")
    e(f"v_add_u32 v41, 4096, v40")
    for i in range(8):
        e(f"buffer_load_dwordx4 v[{44+4*i}:{47+4*i}], v{40+i//4}, s[{T1}:{T1+3}], 0 offen offset:{1024*(i%4)}")
    e(f"v_lshrrev_b32 v43, 3, v{vLANE}")
    e(f"v_lshlrev_b32 v43, 1, v43")
    e(f"v_lshl_add_u32 v43, v{vLOFF}, 1, v43")
    e("s_barrier")
    e("s_barrier")
    e("s_barrier")
    e(f"s_waitcnt vmcnt(0)")
    for i in range(8):
        for el in range(8):
            off = L_WT + (el & 3) * 2048 + (el >> 2) * 16 + (i & 3) * 256 + (i >> 2) * 1024
            op = "ds_write_b16" if el % 2 == 0 else "ds_write_b16_d16_hi"
            e(f"{op} v43, v{44+4*i+el//2} offset:{off}")
    e("s_branch L_P1_JOIN")
    e("L_P1_W13:")
    e(f"v_lshlrev_b32 v79, 4, v{vLANE}")
    e(f"s_lshl_b32 s{sT}, s2, 10")
    e(f"s_add_u32 s{sT}, s{sT}, 0x{TAB_OFF:x}")
    e(f"v_add_u32 v78, s{sT}, v79")
    e(f"v_mov_b32 v75, {L_MISC+12}")
    e(f"s_mov_b32 s{sT}, 43691")
    e(f"v_mov_b32 v74, {2*43691}")
    e("s_barrier")
    e(f"ds_read_b128 v[80:83], v79 offset:{L_HIST}")
    e("s_waitcnt lgkmcnt(0)")
    for i in range(4):
        e(f"v_mad_u32_u24 v{80+i}, v{80+i}, s{sT}, v74")
    for i in range(4):
        e(f"v_lshrrev_b32 v{80+i}, 17, v{80+i}")
    e("v_add_u32 v85, v80, v81")
    e("v_add_u32 v86, v85, v82")
    e("v_add_u32 v87, v86, v83")
    e("v_mov_b32 v84, v87")
    e("s_nop 1")
    scan64(84)
    e("v_mov_b32 v76, v84")
    e("v_sub_u32 v84, v84, v87")
    e("v_add_u32 v87, v84, v86")
    e("v_add_u32 v86, v84, v85")
    e("v_add_u32 v85, v84, v80")
    for i in range(4):
        e(f"v_mul_u32_u24 v{68+i}, 24, v{84+i}")
    e(f"ds_write_b128 v79, v[68:71] offset:{L_HIST}")
    e(f"s_mov_b32 exec_lo, 0")
    e(f"s_mov_b32 exec_hi, 0x80000000")
    e("ds_write_b32 v75, v76")
    e("s_mov_b64 exec, -1")
    for i in range(4):
        e(f"v_lshl_or_b32 v{80+i}, v{80+i}, 16, v{84+i}")
    e(f"buffer_store_dwordx4 v[80:83], v78, s[{WS}:{WS+3}], 0 offen sc1")
    e("s_waitcnt lgkmcnt(0)")
    e("s_barrier")
    e("s_mov_b64 exec, 1")
    e(f"buffer_load_dword v76, v{vACC}, s[{O}:{O+3}], 0 offen sc1")
    e("s_barrier")
    e(f"s_mov_b32 s{sSPIN}, 0")
    e("s_branch L_RDY1")
    e("L_RDY:")
    e(f"buffer_load_dword v76, v{vACC}, s[{O}:{O+3}], 0 offen sc1")
    e("L_RDY1:")
    e("s_waitcnt vmcnt(0)")
    e("v_cmp_eq_u32 vcc, 1, v76")
    e("s_cbranch_vccnz L_RDYX")
    spin_tail("L_RDY", "L_RDYX")
    e("L_RDYX:")
    e("s_mov_b64 exec, -1")
    ts(1)
    e("L_P1_JOIN:")
    e(f"s_load_dwordx2 s[{G}:{G+1}], s[0:1], 0")
    e(f"s_load_dwordx2 s[{pOUT}:{pOUT+1}], s[0:1], 40")
    e(f"v_lshrrev_b32 v{vX+5}, 6, v0")
    e("s_and_b32 s3, s2, 7")
    e(f"v_readfirstlane_b32 s{sW}, v{vX+5}")
    e("s_lshl_b32 s3, s3, 5")
    e(f"s_lshr_b32 s{sT}, s2, 3")
    e(f"s_or_b32 s3, s3, s{sT}")
    e(f"v_and_b32 v{vLANE}, 63, v0")
    e(f"s_mov_b32 s{s128}, 128")
    e(f"s_mov_b32 s{sBB}, 0")
    e(f"s_mov_b32 s{sHOP}, 0")
    e(f"s_mov_b32 s{sMODE}, 0")
    for i in range(4, 16):
        e(f"v_mov_b32 v{vACC+i}, 0")
    e(f"v_and_b32 v{vX+4}, 7, v0")
    e(f"v_lshlrev_b32 v{vLOFF}, 4, v{vX+4}")
    e(f"v_and_b32 v{vX+4}, 1, v0")
    e(f"v_mov_b32 v{vX+5}, 0x0c0c0302")
    e(f"v_mov_b32 v{vX+6}, 0x03020c0c")
    e(f"v_cmp_eq_u32 vcc, 1, v{vX+4}")
    e(f"v_mov_b32 v{vX+7}, 0x0c0c0c0c")
    e(f"v_and_b32 v{vX+4}, 2, v0")
    e(f"v_cndmask_b32 v{vX+5}, v{vX+5}, v{vX+6}, vcc")
    e(f"v_cmp_eq_u32 vcc, 2, v{vX+4}")
    e(f"v_mov_b32 v{vP}, 0")
    e(f"s_mov_b32 s{G+2}, 0x{ROWB:x}")
    e(f"v_cndmask_b32 v{vSEL0}, v{vX+5}, v{vX+7}, vcc")
    e(f"v_cndmask_b32 v{vSEL1}, v{vX+7}, v{vX+5}, vcc")
    e(f"v_cmp_gt_u32 vcc, {NSLOT}, v0")
    e(f"s_mov_b64 s[{sNODE}:{sNODE+1}], vcc")
    e(f"s_mov_b32 s{G+3}, 0x20000")
    srd(O, WS, H1B, H1_OFF)
    e(f"v_and_b32 v{vX}, 60, v0")
    e(f"v_lshl_add_u32 v{vX}, v{vX}, 2, s{sW}")
    e(f"s_lshl_b32 s{sT}, s3, 2")
    e(f"s_add_u32 s{sT}, s{sT}, 0x{TAB_OFF:x}")
    e(f"v_lshl_add_u32 v{vTA}, v{vX}, 10, s{sT}")
    e(f"s_cmp_lg_u32 s{sW}, 0")
    e("s_waitcnt vmcnt(0) lgkmcnt(0)")
    ts(14)
    e("s_barrier")
    e("s_cbranch_scc1 L_NOARR")
    arrive_a(1, 64)
    e("s_mov_b64 exec, -1")
    e(f"buffer_load_dword v{vE}, v{vTA}, s[{WS}:{WS+3}], 0 offen sc1")
    arrive_b(1, 64, 1)
    e("s_branch L_DECODE")
    e("L_NOARR:")
    e(f"buffer_load_dword v{vE}, v{vTA}, s[{WS}:{WS+3}], 0 offen sc1")
    e("s_cmp_lg_u32 s2, 0")
    e("s_cbranch_scc1 L_DECODE")
    e(f"s_lshl_b32 s{sT}, s{sW}, 9")
    e(f"s_add_u32 s{sT}, s{sT}, 0x{PR_OFF:x}")
    e(f"s_add_u32 s{sT+1}, s{sT}, 8192")
    e(f"s_memtime s[40:41]")
    e(f"s_load_dword s46, s[{WS}:{WS+1}], s{sT} glc")
    e("s_waitcnt lgkmcnt(0)")
    e(f"s_memtime s[42:43]")
    e(f"s_load_dword s46, s[{WS}:{WS+1}], s{sT+1} glc")
    e("s_waitcnt lgkmcnt(0)")
    e(f"s_memtime s[44:45]")
    e("s_lshl_b32 s42, s42, 1")
    e("s_sub_u32 s40, s42, s40")
    e("s_waitcnt lgkmcnt(0)")
    e("s_sub_u32 s40, s40, s44")
    e("s_min_i32 s40, s40, 200")
    e("s_max_i32 s40, s40, -200")
    e(f"v_mov_b32 v40, {L_MISC+20}")
    e("v_mov_b32 v41, s40")
    e("s_mov_b64 exec, 1")
    e("ds_add_u32 v40, v41")
    e("s_mov_b64 exec, -1")
    e("s_branch L_DECODE")

    e("L_BATCH:")
    e(f"s_mov_b32 s{sMODE}, 2")
    e(f"v_mov_b32 v{vX}, 0")
    e(f"v_mov_b32 v{vX+1}, 0")
    e(f"v_lshlrev_b32 v{vX+4}, 3, v0")
    e(f"v_cmp_gt_u32 vcc, {(L_ZEND2-L_CNT)//8}, v0")
    e(f"s_mov_b64 exec, vcc")
    e(f"ds_write_b64 v{vX+4}, v[{vX}:{vX+1}] offset:{L_CNT}")
    e("s_mov_b64 exec, -1")
    e("L_DECODE:")
    vNG, vG0, vQ, vT, vB, vA = vX, vX+1, vX+2, vX+3, vX+4, vX+5
    vGR = 40
    vKEY = 48
    vRANK = 54
    vDS = 60
    e(f"v_and_b32 v{vG0}, 60, v0")
    e(f"v_lshl_add_u32 v{vG0}, v{vG0}, 2, s{sW}")
    e(f"v_mul_u32_u24 v{vG0}, {CG}, v{vG0}")
    e(f"v_and_b32 v{vT}, 3, v0")
    e(f"v_add_u32 v{vG0}, v{vG0}, v{vT}")
    e(f"s_lshl_b32 s{sT}, s{sW}, 9")
    e(f"s_add_u32 s{sT}, s{sT}, {L_D}")
    e(f"v_mov_b32 v{vGR+3}, 0")
    e(f"v_mov_b32 v{vGR+7}, 0")
    e("s_waitcnt vmcnt(0)")
    ts(4)
    e(f"v_lshrrev_b32 v{vNG}, 16, v{vE}")
    e(f"v_lshrrev_b32 v{vQ}, 16, v{vE}")
    e(f"v_and_b32 v{vB}, 0xffff, v{vE}")
    e(f"v_add_u32 v{vG0}, v{vG0}, v{vB}")
    scan64(vQ, fill=[f"v_sub_u32 v{vB}, v{vT}, v{vNG}", f"v_subrev_u32 v{vB}, s{sBB}, v{vB}",
                     f"v_cmp_lt_u32 s[{sTMP}:{sTMP+1}], v{vT}, v{vNG}", f"v_lshl_add_u32 v{vDS}, v{vLANE}, 2, s{sT}"], steps=SCAN[2:])
    e(f"v_readlane_b32 s{sTB}, v{vQ}, 63")
    e(f"v_add_u32 v{vB}, v{vB}, v{vQ}")
    e(f"L_DLOOP:")
    e(f"v_cmp_gt_u32 vcc, s{s128}, v{vB}")
    e(f"v_lshl_add_u32 v{vA}, v{vB}, 2, s{sT}")
    e(f"v_add_u32 v{vT}, 4, v{vT}")
    e(f"v_add_u32 v{vB}, 4, v{vB}")
    e(f"s_and_b64 exec, vcc, s[{sTMP}:{sTMP+1}]")
    e(f"ds_write_b32 v{vA}, v{vG0}")
    e("s_mov_b64 exec, -1")
    e(f"v_cmp_lt_u32 s[{sTMP}:{sTMP+1}], v{vT}, v{vNG}")
    e(f"v_cmp_gt_i32 vcc, s{s128}, v{vB}")
    e(f"v_add_u32 v{vG0}, 4, v{vG0}")
    e(f"s_and_b64 s[{sTMP}:{sTMP+1}], s[{sTMP}:{sTMP+1}], vcc")
    e(f"s_cbranch_scc1 L_DLOOP")
    e(f"ds_read2st64_b32 v[{vDS}:{vDS+1}], v{vDS} offset0:0 offset1:1")
    e(f"s_sub_i32 s{sNR}, s{sTB}, s{sBB}")
    e(f"v_add_u32 v{vA}, 64, v{vLANE}")
    e(f"v_cmp_gt_i32 s[{sM}:{sM+1}], s{sNR}, v{vLANE}")
    e(f"v_cmp_gt_i32 s[{sM+6}:{sM+7}], s{sNR}, v{vA}")
    ts(3)
    e("s_waitcnt lgkmcnt(0)")
    e(f"v_lshlrev_b32 v{vDS}, 4, v{vDS}")
    e(f"v_lshlrev_b32 v{vDS+1}, 4, v{vDS+1}")
    e(f"s_cmp_eq_u32 s{sMODE}, 1")
    e("s_cbranch_scc1 L_NOA6")
    if cfg.PFA:
        e(f"s_cmp_lt_u32 s{sW}, {16-cfg.PFA}")
        e("s_cbranch_scc1 L_NOPFA")
        pf_addr(vX+8, 16-cfg.PFA, 0)
        e(f"buffer_load_dword v{vPFD}, v{vX+8}, s[{G}:{G+3}], 0 offen")
        e("L_NOPFA:")
    e(f"s_cmp_lg_u32 s{sW}, {cfg.RW}")
    e("s_cbranch_scc1 L_NORPOLL")
    poll(1)
    e("L_NORPOLL:")
    e("s_barrier")
    e("L_NOA6:")
    e(f"s_cmp_le_i32 s{sNR}, 0")
    e("s_cbranch_scc1 L_LD_DONE")
    e(f"s_mov_b64 exec, s[{sM}:{sM+1}]")
    e(f"buffer_load_dwordx4 v[{vGR}:{vGR+3}], v{vDS}, s[{WS}:{WS+3}], 0 offen sc1")
    e(f"s_cmp_le_i32 s{sNR}, 64")
    e("s_cbranch_scc1 L_LD_DONE")
    e(f"s_mov_b64 exec, s[{sM+6}:{sM+7}]")
    e(f"buffer_load_dwordx4 v[{vGR+4}:{vGR+7}], v{vDS+1}, s[{WS}:{WS+3}], 0 offen sc1")
    e(f"L_LD_DONE:")
    e("s_mov_b64 exec, -1")
    e(f"s_cmp_lg_u32 s{sMODE}, 0")
    e("s_cbranch_scc1 L_NOVER")
    e(f"buffer_load_dword v{vE2}, v{vTA}, s[{WS}:{WS+3}], 0 offen sc1")
    ts(15)
    e(f"s_xor_b32 s{sT}, s{sW}, 2")
    e(f"s_or_b32 s{sT}, s{sT}, s2")
    e("s_cbranch_scc1 L_NOPUB")
    e(f"v_mov_b32 v{vX+8}, {L_MISC+20}")
    e(f"ds_read_b32 v{vX+8}, v{vX+8}")
    e(f"v_lshlrev_b32 v{vX+9}, 8, v{vLANE}")
    e(f"s_mov_b32 s{sT}, 0x{SY_OFF + 2048:x}")
    e("s_waitcnt lgkmcnt(0)")
    e(f"v_lshrrev_b32 v{vX+8}, 31, v{vX+8}")
    if cfg.POL >= 0:
        e(f"v_mov_b32 v{vX+8}, {cfg.POL}")
    e(f"v_or_b32 v{vX+8}, 2, v{vX+8}")
    e(f"buffer_atomic_add v{vX+8}, v{vX+9}, s[{WS}:{WS+3}], s{sT} offen sc1")
    e("L_NOPUB:")
    if cfg.PF2:
        pf_addr(vX+8, 16-cfg.PF2, cfg.PFA)
    e(f"s_mov_b32 s{sMODE}, 1")
    e(f"s_waitcnt vmcnt(0)")
    e(f"v_cmp_ne_u32 vcc, v{vE}, v{vE2}")
    e(f"v_mov_b32 v{vE}, v{vE2}")
    e("s_cbranch_vccnz L_DECODE")
    if cfg.PF2:
        e(f"s_cmp_lt_u32 s{sW}, {16-cfg.PF2}")
        e("s_cbranch_scc1 L_NOPF2")
        e(f"buffer_load_dword v{vPFD}, v{vX+8}, s[{G}:{G+3}], 0 offen")
    e("s_branch L_NOPF2")
    e("L_NOVER:")
    e(f"s_waitcnt vmcnt(0)")
    e("L_NOPF2:")
    ts(5)
    def second(lab):
        e(f"s_cmp_le_i32 s{sNR}, 64")
        e(f"s_cbranch_scc1 {lab}")
    for r in range(2):
        if r == 1:
            second("L_RK_DONE")
            e("s_mov_b64 exec, -1")
        for s_ in range(3):
            k = 3 * r + s_
            e(f"v_bfe_u32 v{vKEY+k}, v{vGR+4*r+3}, {10*s_}, 10")
        for s_ in range(3):
            k = 3 * r + s_
            e(f"v_cmp_ne_u32 s[{sM+2*k}:{sM+2*k+1}], 0, v{vKEY+k}")
            e(f"v_lshlrev_b32 v{vKEY+k}, 2, v{vKEY+k}")
        for s_ in range(3):
            k = 3 * r + s_
            e(f"s_mov_b64 exec, s[{sM+2*k}:{sM+2*k+1}]")
            e(f"ds_add_rtn_u32 v{vRANK+k}, v{vKEY+k}, v{vONE} offset:{L_CNT}")
    e("L_RK_DONE:")
    e("s_mov_b64 exec, 1")
    e(f"v_mov_b32 v{vA}, s{sTB}")
    e(f"v_mov_b32 v{vB}, {L_MISC+4}")
    e(f"ds_max_u32 v{vB}, v{vA}")
    e("s_mov_b64 exec, -1")
    def slots(bodyf, lab):
        for k in range(6):
            if k == 3:
                second(lab)
            e(f"s_mov_b64 exec, s[{sM+2*k}:{sM+2*k+1}]")
            bodyf(k)
        e(f"{lab}:")
        e("s_mov_b64 exec, -1")
    vC = vX
    vDEG, vNP, vSC, vBIN, vDR, vSB, vNA = vX+4, vX+5, vX+6, vX+7, vX+8, vX+9, vX+10
    vBS = vX + 12
    e(f"v_lshlrev_b32 v{vNA}, 4, v0")
    e(f"v_mov_b32 v{vX+11}, {L_MISC}")
    e(f"v_mov_b32 v{vTP}, 0xffff")
    e(f"v_mov_b32 v{vTP+1}, 0xffff")
    e(f"s_cmp_ge_u32 s{sW}, 4")
    e("s_waitcnt lgkmcnt(0)")
    e("s_barrier")
    e(f"s_cbranch_scc1 L_NODE1_DONE")
    e(f"ds_read_b128 v[{vC}:{vC+3}], v{vNA} offset:{L_CNT+16}")
    ts(6)
    e("s_waitcnt lgkmcnt(0)")
    e(f"v_add_u32 v{vC+1}, v{vC}, v{vC+1}")
    e(f"v_add_u32 v{vC+2}, v{vC+1}, v{vC+2}")
    e(f"v_add3_u32 v{vSC}, v{vC+2}, v{vC+3}, 3")
    e(f"v_lshrrev_b32 v{vSC}, 1, v{vSC}")
    e(f"v_add_u32 v{vDEG}, v{vC+2}, v{vC+3}")
    e(f"v_mov_b32 v{vNP}, v{vSC}")
    scan64(vSC, fill=[f"v_min_u32 v{vBIN}, 63, v{vDEG}", f"v_sub_u32 v{vBIN}, 63, v{vBIN}",
                      f"v_lshlrev_b32 v{vBIN}, 2, v{vBIN}", f"s_mov_b64 exec, s[{sNODE}:{sNODE+1}]"], steps=SCAN[:2])
    e(f"ds_add_rtn_u32 v{vDR}, v{vBIN}, v{vONE} offset:{L_DH}")
    e("s_mov_b64 exec, -1")
    scan64(vSC, steps=SCAN[2:])
    e(f"s_mov_b32 exec_lo, 0")
    e(f"s_mov_b32 exec_hi, 0x80000000")
    e(f"ds_add_rtn_u32 v{vSB}, v{vX+11}, v{vSC}")
    e("s_mov_b64 exec, -1")
    e(f"v_lshlrev_b32 v{vSC}, 1, v{vSC}")
    e(f"v_sub_u32 v{vC+3}, v{vSC}, v{vDEG}")
    e(f"v_lshlrev_b32 v{vX+11}, 1, v{vNP}")
    e(f"v_sub_u32 v{vSC}, v{vSC}, v{vX+11}")
    e("s_waitcnt lgkmcnt(0)")
    e(f"v_readlane_b32 s{sT}, v{vSB}, 63")
    e(f"s_lshl_b32 s{sT}, s{sT}, 3")
    e(f"s_add_u32 s{sT}, s{sT}, {L_RECS}")
    e(f"v_lshl_add_u32 v{vBS}, v{vC+3}, 2, s{sT}")
    e(f"v_lshl_add_u32 v{vBS+1}, v{vC}, 2, v{vBS}")
    e(f"v_lshl_add_u32 v{vBS+2}, v{vC+1}, 2, v{vBS}")
    e(f"v_lshl_add_u32 v{vBS+3}, v{vC+2}, 2, v{vBS}")
    e(f"ds_write_b128 v{vNA}, v[{vBS}:{vBS+3}] offset:{L_CNT+16}")
    e(f"v_lshl_add_u32 v{vSC}, v{vSC}, 2, s{sT}")
    e(f"ds_write_b64 v{vSC}, v[{vTP}:{vTP+1}]")
    e(f"ds_write_b32 v{vSC}, v{vTP} offset:8")
    e(f"L_NODE1_DONE:")
    e(f"v_mov_b32 v{vC}, {L_MISC+4}")
    e(f"v_lshlrev_b32 v{vC+1}, 2, v{vLANE}")
    e("s_waitcnt lgkmcnt(0)")
    e("s_barrier")
    ts(7)
    e(f"ds_read_b32 v{vC+1}, v{vC+1} offset:{L_DH}")
    e(f"ds_read_b32 v{vC+3}, v{vC}")
    for k in range(6):
        if k == 3:
            second("L_RB_DONE")
        e(f"ds_read_b32 v{vKEY+k}, v{vKEY+k} offset:{L_CNT}")
    e("L_RB_DONE:")
    e(f"s_cmp_ge_u32 s{sW}, 4")
    e(f"s_cbranch_scc1 L_NODE2_DONE")
    e(f"s_cmp_lg_u32 s{sBB}, 0")
    e(f"s_cbranch_scc1 L_NODE2_NOSORT")
    e("s_waitcnt lgkmcnt(4)")
    e(f"v_mov_b32 v{vC}, v{vC+1}")
    e("s_nop 1")
    scan64(vC)
    e(f"v_sub_u32 v{vC}, v{vC}, v{vC+1}")
    e(f"ds_bpermute_b32 v{vC}, v{vBIN}, v{vC}")
    e(f"s_movk_i32 s{sT}, {NNORM*16}")
    e("s_waitcnt lgkmcnt(0)")
    if SPL:
        e(f"v_add_u32 v{vP}, v{vC}, v{vDR}")
        e(f"v_and_b32 v{vC}, 0xf8, v{vP}")
        e(f"v_add3_u32 v{vC}, v{vC}, v{vP}, s{sT}")
        e(f"v_cmp_gt_u32 vcc, {8*SPL}, v{vP}")
        e(f"v_subrev_u32 v{vP}, {8*SPL}, v{vP}")
        e("s_nop 0")
        e(f"v_cndmask_b32 v{vP}, v{vP}, v{vC}, vcc")
        e(f"v_lshlrev_b32 v{vP}, 3, v{vP}")
    else:
        e(f"v_add_lshl_u32 v{vP}, v{vC}, v{vDR}, 3")
    e(f"L_NODE2_NOSORT:")
    e(f"v_lshl_or_b32 v{vC}, v{vNP}, 16, v{vSC}")
    e(f"s_mul_i32 s{sT}, s3, {NB*128}")
    e(f"v_lshl_add_u32 v{vC+1}, v0, 7, s{sT}")
    e(f"v_cmp_gt_u32 vcc, {NB}, v0")
    e(f"v_mov_b32 v{vC+2}, 0x80000000")
    e(f"s_mov_b64 exec, s[{sNODE}:{sNODE+1}]")
    e(f"v_cndmask_b32 v{vC+1}, v{vC+2}, v{vC+1}, vcc")
    e(f"ds_write_b64 v{vP}, v[{vC}:{vC+1}] offset:{L_NT}")
    if SPL:
        e(f"v_cmp_le_u32 vcc, {NNORM*128}, v{vP}")
        e(f"v_mov_b32 v{vC+1}, v{vC+2}")
        e("s_and_b64 exec, exec, vcc")
        e(f"ds_write_b64 v{vP}, v[{vC}:{vC+1}] offset:{L_NT+64}")
    e("s_mov_b64 exec, -1")
    e(f"L_NODE2_DONE:")
    e("s_waitcnt lgkmcnt(0)")
    def wr(k):
        e(f"v_lshl_add_u32 v{vRANK+k}, v{vRANK+k}, 2, v{vKEY+k}")
        e(f"ds_write_b32 v{vRANK+k}, v{vGR+4*(k//3)+k%3}")
    slots(wr, "L_RW_DONE")
    e(f"v_readfirstlane_b32 s{sNBMAX}, v{vC+3}")
    e(f"v_lshrrev_b32 v{vX}, 3, v{vLANE}")
    e(f"s_lshl_b32 s{sT}, s{sW}, 7")
    e(f"v_lshl_add_u32 v{vX}, v{vX}, 3, s{sT}")
    e(f"s_cmp_ge_u32 s{sW}, {NNORM}")
    e(f"s_cselect_b32 s{sSTR+1}, 1, 0")
    e(f"s_lshl_b32 s{sSTR}, 8, s{sSTR+1}")
    e(f"s_cmp_ge_u32 s{sW}, {NW}")
    e("s_waitcnt lgkmcnt(0)")
    e("s_barrier")
    e(f"s_cbranch_scc1 L_HELPER")
    e(f"ds_read_b64 v[{vX+2}:{vX+3}], v{vX} offset:{L_NT}")
    e(f"ds_read_b64 v[{vX+4}:{vX+5}], v{vX} offset:{L_NT+64}")
    ts(8)
    e("s_waitcnt lgkmcnt(0)")
    e(f"v_lshrrev_b32 v{vX}, 16, v{vX+2}")
    e(f"v_lshrrev_b32 v{vX+1}, 16, v{vX+4}")
    e(f"v_max_u32 v{vX+6}, v{vX}, v{vX+1}")
    e(f"v_and_b32 v{vEA}, 0xffff, v{vX+2}")
    e(f"v_and_b32 v{vEB}, 0xffff, v{vX+4}")
    e(f"v_max_u32_dpp v{vX+6}, v{vX+6}, v{vX+6} row_ror:8 row_mask:0xf bank_mask:0xf")
    e(f"v_lshl_add_u32 v{vPA}, v{vX}, 3, v{vEA}")
    e(f"v_lshl_add_u32 v{vPB}, v{vX+1}, 3, v{vEB}")
    e(f"v_readlane_b32 s{sN0}, v{vX+6}, 0")
    e(f"v_readlane_b32 s{sT}, v{vX+6}, 16")
    e(f"v_readlane_b32 s{sT+1}, v{vX+6}, 32")
    e(f"v_readlane_b32 s{sCNT}, v{vX+6}, 48")
    e(f"s_max_u32 s{sN0}, s{sN0}, s{sT}")
    e(f"s_max_u32 s{sCNT}, s{sCNT}, s{sT+1}")
    e(f"s_max_u32 s{sN0}, s{sN0}, s{sCNT}")
    e(f"s_sub_u32 s{sN0}, s{sN0}, 1")
    e(f"s_add_u32 s{sN0}, s{sN0}, s{sSTR+1}")
    e(f"s_lshr_b32 s{sN0}, s{sN0}, s{sSTR+1}")
    e(f"s_max_u32 s{sN0}, s{sN0}, {D}")
    e(f"s_mul_i32 s{sT}, s{sN0}, s{sSTR}")
    e(f"s_sub_u32 s{sT+1}, s{sT}, s{sSTR}")
    e(f"s_add_u32 s{sT+1}, s{sT+1}, 8")
    e(f"v_subrev_u32 v{vPA}, s{sT}, v{vPA}")
    e(f"v_subrev_u32 v{vPB}, s{sT+1}, v{vPB}")
    def rdrec(h):
        for pv, ev, d in ((vPA, vEA, vST), (vPB, vEB, vST + 4)):
            e(f"v_max_i32 v{vAD}, v{pv}, v{ev}")
            if h == 0:
                e(f"ds_read_b64 v[{d}:{d+1}], v{vAD}")
            else:
                e(f"ds_read2st64_b64 v[{d}:{d+3}], v{vAD} offset0:0 offset1:{RDELTA//512}")
        e(f"v_add_u32 v{vPA}, s{sSTR}, v{vPA}")
        e(f"v_add_u32 v{vPB}, s{sSTR}, v{vPB}")
    e(f"s_cmp_lg_u32 s{sHOP}, 0")
    e("s_cbranch_scc1 L_MBENC")
    rdrec(0)
    for src, d0 in ((vX+3, vROWA), (vX+5, vROWB)):
        e(f"v_add_u32 v{d0}, v{src}, v{vLOFF}")
    def pace():
        if cfg.PACE > 1:
            lab = newlab("PACE")
            e(f"s_add_i32 s{sI4}, s{sI4}, {cfg.PACE}")
            e(f"{lab}a:")
            e(f"s_cmp_lt_i32 s{sI4}, 0")
            e(f"s_cbranch_scc1 {lab}")
            e(f"s_cmp_eq_u32 s{sPN}, 0")
            e(f"s_cbranch_scc1 {lab}")
            e(f"s_sub_i32 s{sI4}, s{sI4}, s{sN0}")
            e(f"s_sub_u32 s{sPN}, s{sPN}, 1")
            e("s_barrier")
            e(f"s_branch {lab}a")
            e(f"{lab}:")
    recreg = [vST, vST + 4, vST + 1, vST + 5]
    def mm(slot, k):
        d = vDATA + 16 * slot + 4 * k
        a = vAOP + 8 * slot + 2 * k
        acc = vACC + (8 if k & 1 else 0)
        e(f"v_mfma_f32_4x4x4_16b_bf16 v[{acc}:{acc+3}], v[{a}:{a+1}], v[{d}:{d+1}], v[{acc}:{acc+3}]")
        e(f"v_mfma_f32_4x4x4_16b_bf16 v[{acc+4}:{acc+7}], v[{a}:{a+1}], v[{d+2}:{d+3}], v[{acc+4}:{acc+7}]")
    def step(h, slot, consume):
        e("s_waitcnt lgkmcnt(0)")
        for k in range(4):
            r = recreg[k]
            d = vDATA + 16 * slot + 4 * k
            a = vAOP + 8 * slot + 2 * k
            if h == 0:
                e(f"v_mad_u32_u16 v{vAD}, v{r}, s{s128}, v{vLOFF}")
            else:
                e(f"v_add_u32 v{vAD}, v{r+2}, v{vLOFF}")
            if consume:
                e(f"s_waitcnt vmcnt({4*D-1})")
                mm(slot, k)
            e(f"buffer_load_dwordx4 v[{d}:{d+3}], v{vAD}, s[{G}:{G+3}], 0 offen" + (" sc1" if h else ""))
            e(f"v_perm_b32 v{a}, v{r}, v{r}, v{vSEL0}")
            e(f"v_perm_b32 v{a+1}, v{r}, v{r}, v{vSEL1}")
        rdrec(h)
        pace()
    def gloop(h):
        e(f"s_sub_u32 s{sCNT}, s{sN0}, {D}")
        if cfg.PACE > 1:
            e(f"s_sub_i32 s{sI4}, 0, s{sN0}")
            e(f"s_cmp_le_u32 s{sNBMAX}, {GB}")
            e(f"s_cselect_b32 s{sPN}, {cfg.PACE-1}, 0")
        for s_ in range(D):
            step(h, s_, False)
        e(f"L_GLOOP{h}:")
        for p in range(D):
            e(f"s_cmp_le_i32 s{sCNT}, {p}")
            e(f"s_cbranch_scc1 L_DRAIN{p}")
            step(h, p, True)
        e(f"s_sub_i32 s{sCNT}, s{sCNT}, {D}")
        e(f"s_branch L_GLOOP{h}")
    gloop(0)
    for p in range(D):
        e(f"L_DRAIN{p}:")
        e(f"v_mov_b32 v{vTP}, {L_Q}")
        e(f"ds_read_b32 v{vTP}, v{vTP}")
        for j in range(4 * D):
            e(f"s_waitcnt vmcnt({4*D-1-j})")
            mm((p + j // 4) % D, j % 4)
        if p != D - 1:
            e(f"s_branch L_GDONE")
    e(f"L_GDONE:")
    e(f"s_add_u32 s{sBB}, s{sBB}, {GB}")
    e(f"s_cmp_lt_u32 s{sBB}, s{sNBMAX}")
    e(f"s_cbranch_scc1 L_NEXTB")
    if SPL:
        e(f"s_cmp_eq_u32 s{sSTR+1}, 0")
        e("s_cbranch_scc1 L_NOCOMB")
        for i in range(8):
            e(f"v_add_f32 v{vACC+i}, v{vACC+i}, v{vACC+8+i}")
        e("L_NOCOMB:")
    e(f"s_cmp_lg_u32 s{sHOP}, 0")
    e("s_nop 0")
    for i in range(8):
        e(f"v_cvt_pk_bf16_f32 v{40+i}, v{vACC+2*i}, v{vACC+2*i+1}")
    e(f"s_cbranch_scc1 L_EPI")
    e(f"s_mov_b32 s{sT}, {25088*128}")
    e(f"s_movk_i32 s{sT+1}, {cfg.RN*128}")
    for o, d, m in ((vROWA, 50, "vcc"), (vROWB, 51, f"s[{sTMP}:{sTMP+1}]")):
        e(f"v_cmp_le_u32 {m}, s{sT}, v{o}")
        e(f"v_and_b32 v48, 0x7fffe000, v{o}")
        e(f"v_lshrrev_b32 v49, 7, v{o}")
        e(f"v_add_u32 v{d}, v48, v{o}")
        e(f"v_cndmask_b32 v48, 0, -1, {m}")
        e(f"v_xor_b32 v{d+2}, v48, v49")
    e("s_waitcnt lgkmcnt(0)")
    for d in (50, 51):
        e(f"v_xor_b32 v{d+2}, v{d+2}, v{vTP}")
        e(f"v_and_b32 v{d+2}, 0x2000, v{d+2}")
        e(f"v_or_b32 v{d}, v{d}, v{d+2}")
    e(f"buffer_store_dwordx4 v[40:43], v50, s[{O}:{O+3}], 0 offen sc1")
    e(f"buffer_store_dwordx4 v[44:47], v51, s[{O}:{O+3}], 0 offen sc1")
    if cfg.RN:
        for o, d, q in ((vROWA, 50, 40), (vROWB, 51, 44)):
            lab = newlab("ST")
            e(f"v_and_b32 v48, 0x380, v{o}")
            e(f"v_cmp_gt_u32 vcc, s{sT+1}, v48")
            e(f"v_xor_b32 v{d}, 0x2000, v{d}")
            e(f"s_and_saveexec_b64 s[{sTMP}:{sTMP+1}], vcc")
            e(f"s_cbranch_execz {lab}")
            e(f"buffer_store_dwordx4 v[{q}:{q+3}], v{d}, s[{O}:{O+3}], 0 offen sc1")
            e(f"{lab}:")
            e("s_mov_b64 exec, -1")
    ts(9)
    for i in range(16):
        e(f"v_mov_b32 v{vACC+i}, 0")
    e(f"s_add_u32 s{sT}, s{sN0}, 1")
    e(f"s_mul_i32 s{sT}, s{sT}, s{sSTR}")
    e(f"v_subrev_u32 v{vPA}, s{sT}, v{vPA}")
    e(f"v_subrev_u32 v{vPB}, s{sT}, v{vPB}")
    e(f"v_lshlrev_b32 v48, 4, v{vLANE}")
    NWPRE = 8 if D == 2 else 4
    def wfrag(mb, kh):
        if D == 2: return vW + 8 * mb + 4 * kh
        return vW + 4 * mb if kh == 0 else 64 + 4 * mb
    for mb in range(4):
        for kh in range(2 if D == 2 else 1):
            r = wfrag(mb, kh)
            e(f"ds_read_b128 v[{r}:{r+3}], v48 offset:{L_WT + 1024*(2*mb+kh)}")
    e(f"s_lshl_b32 s{sT}, s{sW}, 11")
    e(f"s_add_u32 s{sT}, s{sT}, {L_TILE}")
    e(f"v_lshrrev_b32 v48, 3, v{vLANE}")
    e(f"v_xor_b32 v49, v48, v{vLANE}")
    e(f"v_and_b32 v49, 7, v49")
    e(f"v_lshlrev_b32 v49, 4, v49")
    e(f"v_lshl_add_u32 v49, v48, 7, v49")
    e(f"v_add_u32 v{vTW}, s{sT}, v49")
    e(f"v_and_b32 v48, 15, v{vLANE}")
    e(f"v_lshrrev_b32 v49, 4, v{vLANE}")
    e(f"v_xor_b32 v49, v49, v48")
    e(f"v_and_b32 v49, 7, v49")
    e(f"v_lshlrev_b32 v49, 4, v49")
    e(f"v_lshl_add_u32 v49, v48, 7, v49")
    e(f"v_add_u32 v{vTR}, s{sT}, v49")
    if cfg.OWN == 1:
        e("s_waitcnt vmcnt(0)")
        e(f"buffer_load_dword v{vPFD}, v{vROWA}, s[{O}:{O+3}], 0 offen sc1")
        e(f"buffer_load_dword v{vPFD}, v{vROWB}, s[{O}:{O+3}], 0 offen sc1")
    def enc(w, d, t):
        e(f"v_and_b32 v{d}, 0xffff, v{w}")
        e(f"v_and_b32 v{t}, 7, v{w}")
        e(f"v_cmp_le_u32 vcc, s{sT}, v{d}")
        e(f"v_cmp_gt_u32 s[{sTMP}:{sTMP+1}], {cfg.RN}, v{t}")
        e(f"v_and_b32 v{t}, 0xffc0, v{w}")
        e(f"v_add_lshl_u32 v{d}, v{d}, v{t}, 7")
        e(f"s_andn2_b64 vcc, vcc, s[{sTMP}:{sTMP+1}]")
        e(f"s_and_b64 s[{sTMP}:{sTMP+1}], s[{sTMP}:{sTMP+1}], s[{sK}:{sK+1}]")
        e(f"s_or_b64 vcc, vcc, s[{sTMP}:{sTMP+1}]")
        e(f"v_cndmask_b32 v{t}, v{vTP}, v{vTP+1}, vcc")
        e(f"v_xor_b32 v{t}, v{t}, v{w}")
        e(f"v_and_or_b32 v{d}, v{t}, s{sT+1}, v{d}")
    def enc_setup():
        e(f"v_mov_b32 v{vTP}, {L_Q}")
        e(f"ds_read_b32 v{vTP}, v{vTP}")
        e(f"v_mov_b32 v48, {L_MISC}")
        e("ds_read_b32 v48, v48")
        e(f"s_bfe_i32 s{sK}, s2, 0x10002")
        e(f"s_mov_b32 s{sK+1}, s{sK}")
        e(f"s_movk_i32 s{sT}, 25088")
        e(f"s_movk_i32 s{sT+1}, 0x2000")
        e(f"v_lshlrev_b32 v49, 4, v0")
        e("s_waitcnt lgkmcnt(0)")
        e(f"v_readfirstlane_b32 s{sSPIN}, v48")
        e(f"v_not_b32 v{vTP+1}, v{vTP}")
        e(f"s_lshl_b32 s{sSPIN}, s{sSPIN}, 3")
        e(f"s_lshl_b32 s{sI4}, s{sW}, 10")
    def enc_pass(nwaves):
        lab = newlab("ENC")
        e(f"{lab}:")
        e(f"s_cmp_ge_u32 s{sI4}, s{sSPIN}")
        e(f"s_cbranch_scc1 {lab}x")
        e(f"ds_read_b128 v[52:55], v49 offset:{L_RECS}")
        e(f"s_add_u32 s{sI4}, s{sI4}, {nwaves*1024}")
        e("s_waitcnt lgkmcnt(0)")
        for i in range(4):
            enc(52 + i, 56 + i, 60)
        e(f"ds_write_b128 v49, v[56:59] offset:{L_RECS+RDELTA}")
        e(f"v_add_u32 v49, {nwaves*1024}, v49")
        e(f"s_branch {lab}")
        e(f"{lab}x:")
    enc_setup()
    enc_pass(NW)
    if cfg.OWN:
        e(f"v_subrev_u32 v48, 256, v0")
        e(f"s_mul_i32 s{sI4}, s3, {NB}")
        e(f"v_add_u32 v52, s{sI4}, v48")
        enc(52, 53, 60)
    e("L_SYNC2:")
    srd(G, WS, H1B, H1_OFF)
    e(f"s_mov_b32 s{sBB}, 0")
    e(f"s_mov_b32 s{sHOP}, 1")
    e(f"s_cmp_lg_u32 s{sW}, {cfg.HW}")
    e("s_waitcnt vmcnt(0) lgkmcnt(0)")
    ts(10)
    e("s_barrier")
    e("s_cbranch_scc0 L_FARR")
    if cfg.OWN:
        e(f"s_sub_u32 s{sT}, s{sW}, 4")
        e(f"s_cmp_ge_u32 s{sT}, 4")
        e(f"s_cbranch_scc1 L_FDONE")
        e(f"v_cmp_gt_u32 vcc, {NB}, v48")
        e("s_mov_b64 exec, vcc")
        e(f"buffer_load_dword v{vPFD}, v53, s[{G}:{G+3}], 0 offen sc1")
        e("s_mov_b64 exec, -1")
    e("s_branch L_FDONE")
    e("L_FARR:")
    arrive(2)
    poll(2)
    e("L_FDONE:")
    srd(O, pOUT, ROWB)
    e(f"s_cmp_gt_u32 s{sNBMAX}, {GB}")
    e("s_cbranch_scc1 L_C1MB")
    rdrec(1)
    e("s_barrier")
    ts(11)
    e("L_G2:")
    gloop(1)
    e("L_C1MB:")
    e("s_barrier")
    e("s_branch L_BATCH")
    e("L_MBENC:")
    enc_setup()
    enc_pass(NW)
    e("s_waitcnt lgkmcnt(0)")
    e("s_barrier")
    rdrec(1)
    e("s_branch L_G2")

    e("L_EPI:")
    ts(12)
    e(f"ds_write_b128 v{vTW}, v[40:43]")
    e(f"ds_write_b128 v{vTW}, v[44:47] offset:1024")
    e(f"v_xor_b32 v{vAD}, 64, v{vTR}")
    e(f"ds_read_b128 v[40:43], v{vTR}")
    e(f"ds_read_b128 v[44:47], v{vAD}")
    if D != 2:
        e(f"v_lshlrev_b32 v{vAD}, 4, v{vLANE}")
        for mb in range(4):
            r = wfrag(mb, 1)
            e(f"ds_read_b128 v[{r}:{r+3}], v{vAD} offset:{L_WT + 1024*(2*mb+1)}")
    e(f"v_lshrrev_b32 v{vAD}, 4, v{vLANE}")
    e(f"s_lshl_b32 s{sT}, s{sW}, 7")
    e(f"v_lshl_add_u32 v{vAD}, v{vAD}, 5, s{sT}")
    e(f"ds_read_b128 v[48:51], v{vAD} offset:{L_NT}")
    e(f"ds_read_b128 v[52:55], v{vAD} offset:{L_NT+16}")
    e(f"v_and_b32 v{vAD}, 15, v{vLANE}")
    e(f"v_lshlrev_b32 v{vAD}, 3, v{vAD}")
    e(f"s_waitcnt lgkmcnt({3 if D == 2 else 7})")
    for mb in range(4):
        r = wfrag(mb, 0)
        e(f"v_mfma_f32_16x16x32_bf16 v[{vACC+4*mb}:{vACC+4*mb+3}], v[40:43], v[{r}:{r+3}], 0")
    e("s_waitcnt lgkmcnt(2)")
    for mb in range(4):
        r = wfrag(mb, 1)
        e(f"v_mfma_f32_16x16x32_bf16 v[{vACC+4*mb}:{vACC+4*mb+3}], v[44:47], v[{r}:{r+3}], v[{vACC+4*mb}:{vACC+4*mb+3}]")
    e("s_waitcnt lgkmcnt(0)")
    for r in range(4):
        e(f"v_add_u32 v{48+2*r}, v{49+2*r}, v{vAD}")
    e("s_nop 2")
    for r in range(4):
        e(f"v_cvt_pk_bf16_f32 v{56+2*r}, v{vACC+r}, v{vACC+4+r}")
        e(f"v_cvt_pk_bf16_f32 v{57+2*r}, v{vACC+8+r}, v{vACC+12+r}")
        e(f"buffer_store_dwordx2 v[{56+2*r}:{57+2*r}], v{48+2*r}, s[{O}:{O+3}], 0 offen {cfg.OUTFLAG}")
    e("L_FIN:")
    ts_dump()
    e("s_endpgm")
    e("L_HELPER:")
    assert NW <= 15 and cfg.PACE > 1
    e(f"s_cmp_lg_u32 s{sW}, 15")
    e("s_cbranch_scc1 L_HELP1")
    e(f"s_and_b32 s{sT}, s2, 63")
    e(f"s_lshl_b32 s{sT}, s{sT}, 8")
    e(f"s_add_u32 s{sT}, s{sT}, 0x{SY_OFF + 2048:x}")
    e(f"s_mov_b32 s{sSPIN}, 0")
    e("L_QP:")
    e(f"s_load_dword s{sT+1}, s[{WS}:{WS+1}], s{sT} glc")
    e("s_waitcnt lgkmcnt(0)")
    e(f"s_cmp_lg_u32 s{sT+1}, 0")
    e("s_cbranch_scc1 L_QPX")
    spin_tail("L_QP", "L_QPX")
    e("L_QPX:")
    e(f"s_bfe_i32 s{sT+1}, s{sT+1}, 0x10000")
    e(f"v_mov_b32 v40, {L_Q}")
    e(f"v_mov_b32 v41, s{sT+1}")
    e(f"ds_write_b32 v40, v41")
    e("s_waitcnt lgkmcnt(0)")
    e("L_HELP1:")
    e(f"s_cmp_le_u32 s{sNBMAX}, {GB}")
    e("s_cbranch_scc1 L_FIN")
    e(f"s_cmp_eq_u32 s{sHOP}, 0")
    e("s_cbranch_scc1 L_HELP2")
    e("s_barrier")
    e("L_HELP2:")
    e(f"s_add_u32 s{sBB}, s{sBB}, {GB}")
    e(f"s_cmp_lt_u32 s{sBB}, s{sNBMAX}")
    e(f"s_cbranch_scc1 L_NEXTB")
    e(f"s_cmp_lg_u32 s{sHOP}, 0")
    e("s_cbranch_scc1 L_FIN")
    e("v_mov_b32 v53, 0")
    e("s_branch L_SYNC2")
    e(f"L_NEXTB:")
    e("s_waitcnt vmcnt(0) lgkmcnt(0)")
    e("s_barrier")
    e(f"s_branch L_BATCH")
    e(f"L_END:")
    e("s_endpgm")

head = open("standalone__spectral_conv_sgc__graph.s.ref").read().split("; Override")[0]
e(head.rstrip())
e(f"; @launch grid=(256,1,1) block=(1024,1,1) lds={L_END}")
e('.amdgcn_target "amdgcn-amd-amdhsa--gfx950"')
e(".text")
body()
e('.section .rodata,"a"')
e(".p2align 6")
acc = (NV + 3) // 4 * 4
e(f""".amdhsa_kernel {NAME}
  .amdhsa_next_free_vgpr {NV}
  .amdhsa_next_free_sgpr {NS}
  .amdhsa_accum_offset {acc}
  .amdhsa_group_segment_fixed_size 0
  .amdhsa_kernarg_size 64
  .amdhsa_user_sgpr_count 2
  .amdhsa_user_sgpr_kernarg_segment_ptr 1
  .amdhsa_system_sgpr_workgroup_id_x 1
  .amdhsa_float_denorm_mode_32 3
.end_amdhsa_kernel
""")
open(sys.argv[1], "w").write("\n".join(out) + "\n")
```

```python
import sys

class Cfg:
    D = 2
    TS = 0
    PF2 = 4
    DW = 1
    RL = 1
    NPR = 3
    SKP = 1
    HN = 1
    PACE = 7
    EFLAG = ""
    OUTFLAG = "sc1"
    SLEEP = 0
    LATE = 1
    HW = 0
    PFE = 0
    SA = 0
    WST = 32
    DEF = 1
    ENT = 0
    CLI = 1
    RN = 4
    TYP = "RS"
    POL = -1
    SPL = 5
    XMASK = 0
    PFA = 0
    PFM = 1
    SP = 7
    PFC = 0
    PEER = 0
    OWN = 2
    RW = 1
    CPF = 1
cfg = Cfg()
for a in sys.argv[2:]:
    k, v = a.split("=")
    cur = getattr(cfg, k)
    setattr(cfg, k, int(v) if isinstance(cur, int) else v.replace("+", " "))

N = 50000; E = 850000
NB = 196; CH = 3328; MAG = 85599
CG = 1280
TAB_OFF = 0x680000
SY_OFF = 0x700000
RP_OFF = 0x710000
HS_OFF = 0x760000
PR_OFF = 0x720000
H1_OFF = 0x800000
H1B = 784 * 16384
TS_OFF = 0x1600000
WS_USED = 0x1800000
ROWB = N * 128
SPIN_FAST = 4096
SPIN_MAX = 1 << 21
GB = 128

SPL = cfg.SPL
NW = SPL + -(-(NB - 8 * SPL) // 16)
NNORM = NW - SPL
NSLOT = 8 * SPL + 16 * NNORM
assert NW <= 16
L_NT = 0
L_D = 2048
L_WT = L_D + 8192
L_CNT = L_WT + 8192
L_DH = L_CNT + 4352
L_MISC = L_DH + 256
L_ZEND2 = L_MISC + 256
L_Q = L_ZEND2
L_HIST = L_ZEND2
L_STAGE = L_HIST + 1024
L_ZEND = L_STAGE + CG * 24
L_RECS = L_STAGE
RDELTA = 27648
L_TILE = L_RECS + 2 * RDELTA
L_END = L_TILE + NW * 2048
assert L_TILE % 128 == 0 and L_RECS + RDELTA < 65536 and RDELTA % 512 == 0 and L_RECS % 16 == 0

out = []
def e(s=""):
    out.append(s)

def srd(d, lo, nrec, off=0):
    if off:
        e(f"s_add_u32 s{d}, s{lo}, 0x{off:x}")
        e(f"s_addc_u32 s{d+1}, s{lo+1}, 0")
    else:
        e(f"s_mov_b32 s{d}, s{lo}")
        e(f"s_mov_b32 s{d+1}, s{lo+1}")
    e(f"s_mov_b32 s{d+2}, 0x{nrec:x}")
    e(f"s_mov_b32 s{d+3}, 0x20000")

def dpp_add(v, ctl):
    e(f"v_add_u32_dpp v{v}, v{v}, v{v} {ctl}")
SCAN = [f"row_shr:{s} row_mask:0xf bank_mask:0xf bound_ctrl:0" for s in (1, 2, 4, 8)] + \
       ["row_bcast:15 row_mask:0xa bank_mask:0xf", "row_bcast:31 row_mask:0xc bank_mask:0xf"]
def scan64(v, fill=(), steps=SCAN):
    fill = list(fill)
    for ctl in steps:
        dpp_add(v, ctl)
        if len(fill) >= 2:
            e(fill.pop(0)); e(fill.pop(0))
        elif len(fill) == 1:
            e(fill.pop(0)); e("s_nop 0")
        else:
            e("s_nop 1")
    for f in fill:
        e(f)

T3, G, WS, O, T1, T2 = 4, 8, 12, 16, 20, 24
sW, sTB, sBB, sNBMAX, s128, sCNT, sT, sNR = 28, 29, 30, 31, 32, 33, 34, 36
sHOP, sN0, sSPIN = 37, 38, 39
sM = 40
sNODE = 52
sTMP = 54
sI4, sPN = 56, 57
sMODE = 66
sSTR = 64
sQ = 59
sK, sSEL = 60, 61
sVAL = 58
pW, pOUT, pDBG = 60, 62, 64
sC1, sC2, sC3 = 40, 41, 42
sTS = 68
NS = 102 if cfg.TS else 68
vLANE, vE, vP, vSEL0, vSEL1, vLOFF, vONE = 1, 2, 3, 4, 5, 6, 7
vACC = 8
vPA, vEA, vPB, vEB, vROWA, vROWB, vAD, vPFD = 24, 25, 26, 27, 28, 29, 30, 31
vST = 120
vTW, vTR = 36, 37
vQM, vQA = 32, 33
vTP = 38
D = cfg.D
vDATA = 40
vAOP = vDATA + 16 * D
vW = max(vAOP + 8 * D, 88)
NV = 128
assert D == 2 and vW + 32 <= vST
assert NV <= 128
vX = 72
vTA, vE2 = 62, 63

def ts(slot, mode=1):
    if cfg.TS == 2 and mode == 1 and slot in (4, 5, 6, 7):
        return
    if cfg.TS == 1 and mode == 2:
        return
    if cfg.TS:
        e(f"s_memrealtime s[{sTS+2*slot}:{sTS+2*slot+1}]")
        e("s_waitcnt lgkmcnt(0)")
def ts_dump():
    if not cfg.TS:
        return
    e("s_waitcnt vmcnt(0)")
    ts(13)
    e(f"s_lshl_b32 s{sT}, s2, 4")
    e(f"s_add_u32 s{sT}, s{sT}, s{sW}")
    e(f"s_lshl_b32 s{sT}, s{sT}, 7")
    e(f"s_add_u32 s{sT}, s{sT}, 0x{TS_OFF:x}")
    e("s_mov_b64 exec, 1")
    e(f"v_mov_b32 v40, s{sT}")
    for i in range(8):
        for j in range(4):
            e(f"v_mov_b32 v{44+4*i+j}, s{sTS+4*i+j}")
        e(f"buffer_store_dwordx4 v[{44+4*i}:{47+4*i}], v40, s[{WS}:{WS+3}], 0 offen offset:{16*i}")

lbl = [0]
def newlab(p):
    lbl[0] += 1
    return f"L_{p}{lbl[0]}"
def spin_tail(loop, done):
    slow = newlab("SLW")
    e(f"s_add_u32 s{sSPIN}, s{sSPIN}, 1")
    e(f"s_cmp_ge_u32 s{sSPIN}, {SPIN_FAST}")
    e(f"s_cbranch_scc1 {slow}")
    if cfg.SLEEP:
        e(f"s_sleep {cfg.SLEEP}")
    e(f"s_branch {loop}")
    e(f"{slow}:")
    e(f"s_cmp_ge_u32 s{sSPIN}, {SPIN_MAX}")
    e(f"s_cbranch_scc1 {done}")
    e("s_sleep 64")
    e(f"s_branch {loop}")
def arrive_a(b, v=40):
    e(f"s_and_b32 s{sT}, s2, 7")
    e(f"s_lshl_b32 s{sT}, s{sT}, 8")
    e(f"s_add_u32 s{sT}, s{sT}, 0x{SY_OFF + b*cfg.WST:x}")
    if cfg.SA:
        sa = 67
        e(f"s_mov_b32 s{sa}, 1")
        e(f"s_atomic_add s{sa}, s[{WS}:{WS+1}], s{sT} glc")
        return
    e(f"v_mov_b32 v{v}, s{sT}")
    e(f"v_mov_b32 v{v+1}, 1")
    e("s_mov_b64 exec, 1")
    e(f"buffer_atomic_add v{v+1}, v{v}, s[{WS}:{WS+3}], 0 offen sc0 sc1")
def arrive_b(b, v=40, cnt=0, after=None):
    lab = newlab("ARR")
    sp = cfg.SP >> b & 1
    e("s_mov_b64 exec, -1" if sp else "s_mov_b64 exec, 0xff")
    e(f"v_lshlrev_b32 v{v+2}, 8, v{vLANE}")
    e(f"v_add_u32 v{v+2}, 0x{SY_OFF + 2048 + b*cfg.WST:x}, v{v+2}")
    if cfg.SA:
        e("s_waitcnt lgkmcnt(0)")
        e(f"s_cmp_lg_u32 s67, 31")
    else:
        e(f"s_waitcnt vmcnt({cnt})")
        e(f"v_readfirstlane_b32 s{sT}, v{v+1}")
        e(f"s_cmp_lg_u32 s{sT}, 31")
    e(f"s_cbranch_scc1 {lab}")
    e(f"buffer_atomic_add v{vONE}, v{v+2}, s[{WS}:{WS+3}], 0 offen sc1")
    if after:
        for x in after:
            e(x)
    e(f"{lab}:")
    e("s_mov_b64 exec, -1")
def arrive(b, mid=None):
    arrive_a(b)
    if mid:
        e(mid)
    arrive_b(b)
def rcount():
    lab = newlab("RC")
    e(f"v_mov_b32 v64, {L_MISC+8}")
    e("s_mov_b64 exec, 1")
    e(f"ds_add_rtn_u32 v65, v64, v{vONE}")
    e("s_waitcnt lgkmcnt(0)")
    e("v_cmp_eq_u32 vcc, 13, v65")
    e("s_mov_b64 exec, -1")
    e(f"s_cbranch_vccz {lab}")
    arrive_a(1, 64)
    if cfg.DEF:
        e("s_mov_b64 exec, -1")
        e(f"s_mov_b32 s{sPN}, 1")
    else:
        arrive_b(1, 64)
    e(f"{lab}:")
def poll_a(b):
    if cfg.SP >> b & 1:
        return
    e(f"s_and_b32 s{sSPIN}, s2, 7")
    e(f"s_lshl_b32 s{sSPIN}, s{sSPIN}, 8")
    e(f"s_add_u32 s{sSPIN}, s{sSPIN}, 0x{SY_OFF + 2048 + b*cfg.WST:x}")
    e(f"v_mov_b32 v{vTP}, s{sSPIN}")
    e("s_mov_b64 exec, 1")
    e(f"buffer_load_dword v{vTP+1}, v{vTP}, s[{WS}:{WS+3}], 0 offen sc1")
def poll_b(b):
    lab = newlab("POLL")
    if cfg.SP >> b & 1:
        e(f"s_and_b32 s{sT}, s2, 63")
        e(f"s_lshl_b32 s{sT}, s{sT}, 8")
        e(f"s_add_u32 s{sT}, s{sT}, 0x{SY_OFF + 2048 + b*cfg.WST:x}")
        e(f"s_mov_b32 s{sSPIN}, 0")
        e(f"{lab}:")
        e(f"s_load_dword s{sT+1}, s[{WS}:{WS+1}], s{sT} glc")
        e("s_waitcnt lgkmcnt(0)")
        e(f"s_cmp_eq_u32 s{sT+1}, 8")
        e(f"s_cbranch_scc1 {lab}x")
        spin_tail(lab, lab + "x")
        e(f"{lab}x:")
        return
    e("s_mov_b64 exec, 1")
    e(f"s_mov_b32 s{sSPIN}, 0")
    e(f"s_branch {lab}c")
    e(f"{lab}:")
    e(f"buffer_load_dword v{vTP+1}, v{vTP}, s[{WS}:{WS+3}], 0 offen sc1")
    e(f"{lab}c:")
    e("s_waitcnt vmcnt(0)")
    e(f"v_cmp_eq_u32 vcc, 8, v{vTP+1}")
    e(f"s_cbranch_vccnz {lab}x")
    spin_tail(lab, lab + "x")
    e(f"{lab}x:")
    e("s_mov_b64 exec, -1")
def poll(b):
    poll_a(b)
    poll_b(b)

def probe_off(d):
    e(f"s_lshr_b32 s{d}, s2, 6")
    e(f"s_lshl_b32 s{d}, s{d}, 6")
    e(f"s_add_u32 s{d}, s{d}, s2")
    e(f"s_lshl_b32 s{d}, s{d}, 7")
    e(f"s_add_u32 s{d}, s{d}, 0x{PR_OFF:x}")
def pf_addr(v, first_wave, base_instr):
    e(f"s_lshr_b32 s{sT}, s2, 3")
    e(f"s_lshl_b32 s{sT}, s{sT}, 6")
    e(f"s_sub_u32 s{sT+1}, s{sW}, {first_wave - base_instr}")
    e(f"s_lshl_b32 s{sT+1}, s{sT+1}, 11")
    e(f"s_add_u32 s{sT}, s{sT}, s{sT+1}")
    e(f"v_add_u32 v{v}, s{sT}, v{vLANE}")
    if cfg.PFM == 2:
        e(f"v_lshlrev_b32 v{v}, 1, v{v}")
    if cfg.PFM == 3:
        e(f"v_lshrrev_b32 v{v+1}, 1, v{v}")
        e(f"v_add_u32 v{v}, v{v}, v{v+1}")
    if cfg.CLI:
        e(f"v_and_b32 v{v+1}, 1, v{v}")
        e(f"v_lshrrev_b32 v{v}, 1, v{v}")
        e(f"v_mul_u32_u24 v{v+1}, 25088, v{v+1}")
        e(f"v_add_u32 v{v}, v{v}, v{v+1}")
    e(f"s_and_b32 s{sT}, s2, 7")
    e(f"s_mul_i32 s{sT}, s{sT}, 6272")
    e(f"v_add_u32 v{v}, s{sT}, v{v}")
    e(f"v_subrev_u32 v{v+1}, 50176, v{v}")
    e(f"v_min_u32 v{v}, v{v}, v{v+1}")
    e(f"v_lshlrev_b32 v{v}, 7, v{v}")

NAME = "standalone__spectral_conv_sgc__graph_kernel"
def body():
    e(f".globl {NAME}")
    e(".p2align 8")
    e(f".type {NAME},@function")
    e(f"{NAME}:")
    def cpf():
        if cfg.CPF:
            e("s_getpc_b64 s[54:55]")
            e("L_PC0:")
            e("v_lshlrev_b32 v43, 7, v0")
            e("v_cmp_gt_u32 vcc, L_END-L_PC0, v43")
            e("s_and_saveexec_b64 s[40:41], vcc")
            e("s_cbranch_execz L_NOCPF")
            e(f"global_load_dword v{vPFD}, v43, s[54:55]")
            e("L_NOCPF:")
            e("s_mov_b64 exec, -1")
    def zero1():
        for i in range(4):
            e(f"v_mov_b32 v{vACC+i}, 0")
        e(f"v_lshlrev_b32 v54, 4, v0")
        e(f"ds_write_b128 v54, v[{vACC}:{vACC+3}] offset:{L_CNT}")
    def ld_dst():
        e(f"buffer_load_dwordx4 v[44:47], v41, s[{T1}:{T1+3}], 0 offen {cfg.EFLAG}")
    def ld_sn():
        e(f"buffer_load_dwordx4 v[48:51], v41, s[{T2}:{T2+3}], 0 offen {cfg.EFLAG}")
        e(f"buffer_load_dwordx2 v[52:53], v42, s[{T3}:{T3+3}], 0 offen {cfg.EFLAG}")
    def sn_consts():
        e("v_lshrrev_b32 v42, 1, v41")
        e(f"s_mov_b64 s[{T2+2}:{T2+3}], s[{T1+2}:{T1+3}]")
        e(f"s_lshr_b32 s{T3+2}, s{T1+2}, 1")
        e(f"s_mov_b32 s{T3+3}, s{T1+3}")
    if cfg.TS:
        e(f"s_memrealtime s[{sTS}:{sTS+1}]")
    e(f"s_load_dwordx2 s[{T1}:{T1+1}], s[0:1], 16")
    if cfg.ENT != 1:
        e(f"s_load_dwordx2 s[{T2}:{T2+1}], s[0:1], 8")
        e(f"s_load_dwordx2 s[{T3}:{T3+1}], s[0:1], 24")
    e("s_cmpk_ge_u32 s2, 256")
    e("s_cbranch_scc1 L_END")
    if cfg.ENT == 0:
        e(f"s_load_dwordx2 s[{WS}:{WS+1}], s[0:1], 56")
        e(f"s_load_dwordx2 s[{O}:{O+1}], s[0:1], 48")
        cpf()
        zero1()
    e(f"s_lshl_b32 s{sT}, s2, 4")
    e(f"v_and_or_b32 v41, v0, 15, s{sT}")
    e(f"v_lshrrev_b32 v40, 4, v0")
    e(f"v_lshl_add_u32 v40, v40, 12, v41")
    e("v_lshlrev_b32 v41, 4, v40")
    e(f"s_mov_b32 s{T1+2}, 0x{E*4:x}")
    e(f"s_mov_b32 s{T1+3}, 0x20000")
    if cfg.ENT == 2:
        sn_consts()
    e("s_waitcnt lgkmcnt(0)")
    ld_dst()
    if cfg.ENT == 2:
        ld_sn()
    if cfg.ENT == 1:
        e(f"s_load_dwordx2 s[{T2}:{T2+1}], s[0:1], 8")
        e(f"s_load_dwordx2 s[{T3}:{T3+1}], s[0:1], 24")
    if cfg.ENT != 0:
        e(f"s_load_dwordx2 s[{WS}:{WS+1}], s[0:1], 56")
        cpf()
        zero1()
    if cfg.ENT != 2:
        sn_consts()
    e(f"v_cmp_gt_u32 vcc, 832, v0")
    e(f"s_mov_b32 s{WS+2}, 0x{WS_USED:x}")
    e(f"s_mov_b32 s{WS+3}, s{T1+3}")
    if cfg.TS:
        for i in range(1, 16):
            e(f"s_mov_b64 s[{sTS+2*i}:{sTS+2*i+1}], 0")
    e("s_cmp_lt_u32 s2, 2")
    e("s_waitcnt lgkmcnt(0)")
    e("s_cbranch_vccz L_H0")
    e("s_barrier")
    if cfg.ENT != 2:
        ld_sn()
    e("s_branch L_E0")
    e("L_H0:")
    e(f"s_movk_i32 s{O+2}, 256")
    e(f"s_mov_b32 s{O+3}, s{T1+3}")
    e("s_cbranch_scc0 L_H05")
    e(f"v_cmp_gt_u32 vcc, 960, v0")
    e("s_cbranch_vccnz L_H05")
    e(f"v_and_b32 v40, 7, v0")
    e(f"v_and_b32 v43, 56, v0")
    e(f"v_lshl_add_u32 v43, v43, 1, v40")
    e(f"v_lshlrev_b32 v43, 4, v43")
    e(f"s_mul_i32 s{sT}, s2, 0x{HS_OFF - SY_OFF:x}")
    e(f"s_add_u32 s{sT}, s{sT}, 0x{SY_OFF:x}")
    e(f"s_add_u32 s{sT+1}, s{sT}, {9*2048}")
    e("L_ZLOOP:")
    e(f"buffer_store_dwordx4 v[{vACC}:{vACC+3}], v43, s[{WS}:{WS+3}], s{sT} offen sc1")
    e(f"s_addk_i32 s{sT}, 2048")
    e(f"s_cmp_lt_u32 s{sT}, s{sT+1}")
    e("s_cbranch_scc1 L_ZLOOP")
    e("L_H05:")
    if cfg.DW:
        e(f"buffer_load_dword v{vPFD}, v{vACC}, s[{O}:{O+3}], 0 offen offset:128")
    e("L_H1:")
    e("s_barrier")
    e("s_branch L_P1H1")
    e("L_E0:")
    assert L_ZEND - (L_CNT + 16384) <= 2 * 13312
    e(f"ds_write_b128 v54, v[{vACC}:{vACC+3}] offset:{L_CNT+16384}")
    e(f"v_add_u32 v54, {L_ZEND-13312}, v54")
    e(f"ds_write_b128 v54, v[{vACC}:{vACC+3}]")
    e(f"v_cmp_gt_u32 vcc, {E//4}, v40")
    e(f"v_mov_b32 v{vONE}, 1")
    e(f"s_mov_b32 s{sC1}, -196")
    e(f"s_mov_b32 s{sC2}, 0x05040100")
    e(f"s_mov_b32 s{sC3}, 0x07060100")
    e(f"s_mov_b64 exec, vcc")
    e(f"s_waitcnt vmcnt(2)")
    for i in range(4):
        e(f"v_mul_u32_u24 v{74+i}, {MAG}, v{44+i}")
    for i in range(4):
        e(f"v_lshrrev_b32 v{70+i}, 24, v{74+i}")
        e(f"v_lshlrev_b32 v{54+i}, 2, v{70+i}")
        e(f"ds_add_rtn_u32 v{58+i}, v{54+i}, v{vONE} offset:{L_HIST}")
    for i in range(4):
        e(f"v_mad_i32_i24 v{44+i}, v{70+i}, s{sC1}, v{44+i}")
        e(f"v_and_b32 v{74+i}, 0xe0000000, v{74+i}")
        e(f"v_add_u32 v{44+i}, 1, v{44+i}")
    e("s_waitcnt lgkmcnt(0)")
    ts(1)
    e("s_barrier")
    e("s_barrier")
    ts(4, 2)
    for i in range(4):
        e(f"ds_read_b32 v{54+i}, v{54+i} offset:{L_HIST}")
    e(f"s_waitcnt vmcnt(1)")
    ts(5, 2)
    for i in range(4):
        e(f"v_mul_u32_u24 v78, {MAG}, v{48+i}")
        e(f"v_sub_u32 v78, v78, v{74+i}")
        if cfg.CLI:
            e(f"v_bfe_u32 v78, v78, 29, 2")
        else:
            e(f"v_lshrrev_b32 v78, 30, v78")
        e(f"v_lshl_or_b32 v{63+2*i}, v{44+i}, 2, v78")
    e(f"s_waitcnt vmcnt(0) lgkmcnt(0)")
    ts(6, 2)
    for i in range(4):
        e(f"v_perm_b32 v{62+2*i}, v{52+i//2}, v{48+i}, s{sC2 if i%2==0 else sC3}")
        e(f"v_lshl_add_u32 v{58+i}, v{58+i}, 3, v{54+i}")
        e(f"ds_write_b64 v{58+i}, v[{62+2*i}:{63+2*i}] offset:{L_STAGE}")
    e("s_mov_b64 exec, -1")
    e(f"v_mov_b32 v43, {L_MISC+12}")
    e(f"ds_read_b32 v43, v43")
    e(f"v_mul_u32_u24 v52, 24, v0")
    e(f"v_add_u32 v52, {L_STAGE}, v52")
    e(f"v_add_u32 v53, {832*24}, v52")
    e(f"s_mul_i32 s{sT}, s2, {CG*16}")
    e(f"v_lshl_add_u32 v41, v0, 4, s{sT}")
    e(f"v_add_u32 v42, 832, v0")
    e("s_waitcnt lgkmcnt(0)")
    e(f"v_cmp_lt_u32 vcc, v42, v43")
    e(f"v_add_u32 v42, {832*16}, v41")
    ts(7, 2)
    e("s_barrier")
    def rd3(d, a):
        e(f"ds_read_b64 v[{d}:{d+1}], v{a}")
        e(f"ds_read_b64 v[{d+4}:{d+5}], v{a} offset:8")
        e(f"ds_read_b64 v[{d+2}:{d+3}], v{a} offset:16")
    def pk3(d):
        e(f"v_lshl_or_b32 v{d+3}, v{d+3}, 10, v{d+5}")
        e(f"v_lshl_or_b32 v{d+3}, v{d+3}, 10, v{d+1}")
        e(f"v_mov_b32 v{d+1}, v{d+4}")
    rd3(44, 52)
    e("s_cbranch_vccz L_ST1")
    e("s_mov_b64 exec, vcc")
    rd3(56, 53)
    e("s_waitcnt lgkmcnt(0)")
    pk3(56)
    e(f"buffer_store_dwordx4 v[56:59], v42, s[{WS}:{WS+3}], 0 offen sc1")
    e("s_mov_b64 exec, -1")
    e("L_ST1:")
    e("s_waitcnt lgkmcnt(0)")
    pk3(44)
    e(f"buffer_store_dwordx4 v[44:47], v41, s[{WS}:{WS+3}], 0 offen sc1")
    ts(2)
    e("s_branch L_P1_JOIN")
    e("L_P1H1:")
    e(f"v_and_b32 v{vLANE}, 63, v0")
    e(f"v_and_b32 v40, 7, v0")
    e(f"v_lshlrev_b32 v{vLOFF}, 4, v40")
    e(f"v_mov_b32 v{vONE}, 1")
    e(f"v_cmp_gt_u32 vcc, 960, v0")
    e("s_cbranch_vccnz L_P1H2")
    e("s_cmp_lg_u32 s2, 0")
    e("s_cbranch_scc1 L_W15_B")
    for i in range(4):
        e(f"v_mov_b32 v{56+i}, 1")
    e("s_mov_b64 exec, 0xff")
    e(f"s_waitcnt vmcnt({1 if cfg.DW else 0})")
    e(f"buffer_store_dwordx4 v[56:59], v{vLOFF}, s[{O}:{O+3}], 0 offen sc1")
    e("s_mov_b64 exec, -1")
    e("L_W15_B:")
    e("s_barrier")
    e("s_barrier")
    e("s_barrier")
    e("s_waitcnt lgkmcnt(0)")
    e("s_branch L_P1_JOIN")
    e("L_P1H2:")
    e(f"s_load_dwordx2 s[{pW}:{pW+1}], s[0:1], 32")
    e(f"v_cmp_gt_u32 vcc, 896, v0")
    e("s_waitcnt lgkmcnt(0)")
    e("s_cbranch_vccnz L_P1_W13")
    srd(T1, pW, 8192)
    e(f"v_lshlrev_b32 v40, 4, v{vLANE}")
    e(f"v_add_u32 v41, 4096, v40")
    for i in range(8):
        e(f"buffer_load_dwordx4 v[{44+4*i}:{47+4*i}], v{40+i//4}, s[{T1}:{T1+3}], 0 offen offset:{1024*(i%4)}")
    e(f"v_lshrrev_b32 v43, 3, v{vLANE}")
    e(f"v_lshlrev_b32 v43, 1, v43")
    e(f"v_lshl_add_u32 v43, v{vLOFF}, 1, v43")
    e("s_barrier")
    e("s_barrier")
    e("s_barrier")
    e(f"s_waitcnt vmcnt(0)")
    for i in range(8):
        for el in range(8):
            off = L_WT + (el & 3) * 2048 + (el >> 2) * 16 + (i & 3) * 256 + (i >> 2) * 1024
            op = "ds_write_b16" if el % 2 == 0 else "ds_write_b16_d16_hi"
            e(f"{op} v43, v{44+4*i+el//2} offset:{off}")
    e("s_branch L_P1_JOIN")
    e("L_P1_W13:")
    e(f"v_lshlrev_b32 v79, 4, v{vLANE}")
    e(f"s_lshl_b32 s{sT}, s2, 10")
    e(f"s_add_u32 s{sT}, s{sT}, 0x{TAB_OFF:x}")
    e(f"v_add_u32 v78, s{sT}, v79")
    e(f"v_mov_b32 v75, {L_MISC+12}")
    e(f"s_mov_b32 s{sT}, 43691")
    e(f"v_mov_b32 v74, {2*43691}")
    e("s_barrier")
    e(f"ds_read_b128 v[80:83], v79 offset:{L_HIST}")
    e("s_waitcnt lgkmcnt(0)")
    for i in range(4):
        e(f"v_mad_u32_u24 v{80+i}, v{80+i}, s{sT}, v74")
    for i in range(4):
        e(f"v_lshrrev_b32 v{80+i}, 17, v{80+i}")
    e("v_add_u32 v85, v80, v81")
    e("v_add_u32 v86, v85, v82")
    e("v_add_u32 v87, v86, v83")
    e("v_mov_b32 v84, v87")
    e("s_nop 1")
    scan64(84)
    e("v_mov_b32 v76, v84")
    e("v_sub_u32 v84, v84, v87")
    e("v_add_u32 v87, v84, v86")
    e("v_add_u32 v86, v84, v85")
    e("v_add_u32 v85, v84, v80")
    for i in range(4):
        e(f"v_mul_u32_u24 v{68+i}, 24, v{84+i}")
    e(f"ds_write_b128 v79, v[68:71] offset:{L_HIST}")
    e(f"s_mov_b32 exec_lo, 0")
    e(f"s_mov_b32 exec_hi, 0x80000000")
    e("ds_write_b32 v75, v76")
    e("s_mov_b64 exec, -1")
    for i in range(4):
        e(f"v_lshl_or_b32 v{80+i}, v{80+i}, 16, v{84+i}")
    e(f"buffer_store_dwordx4 v[80:83], v78, s[{WS}:{WS+3}], 0 offen sc1")
    e("s_waitcnt lgkmcnt(0)")
    e("s_barrier")
    e("s_mov_b64 exec, 1")
    if not cfg.RL:
        e(f"buffer_load_dword v76, v{vACC}, s[{O}:{O+3}], 0 offen sc1")
    e("s_barrier")
    e(f"s_mov_b32 s{sSPIN}, 0")
    if not cfg.RL:
        e("s_branch L_RDY1")
    e("L_RDY:")
    e(f"buffer_load_dword v76, v{vACC}, s[{O}:{O+3}], 0 offen sc1")
    e("L_RDY1:")
    e("s_waitcnt vmcnt(0)")
    e("v_cmp_eq_u32 vcc, 1, v76")
    e("s_cbranch_vccnz L_RDYX")
    spin_tail("L_RDY", "L_RDYX")
    e("L_RDYX:")
    e("s_mov_b64 exec, -1")
    ts(1)
    e("L_P1_JOIN:")
    e(f"s_load_dwordx2 s[{G}:{G+1}], s[0:1], 0")
    e(f"s_load_dwordx2 s[{pOUT}:{pOUT+1}], s[0:1], 40")
    e(f"v_lshrrev_b32 v{vX+5}, 6, v0")
    e("s_and_b32 s3, s2, 7")
    e(f"v_readfirstlane_b32 s{sW}, v{vX+5}")
    e("s_lshl_b32 s3, s3, 5")
    e(f"s_lshr_b32 s{sT}, s2, 3")
    e(f"s_or_b32 s3, s3, s{sT}")
    e(f"v_and_b32 v{vLANE}, 63, v0")
    e(f"s_mov_b32 s{s128}, 128")
    e(f"s_mov_b32 s{sBB}, 0")
    e(f"s_mov_b32 s{sHOP}, 0")
    e(f"s_mov_b32 s{sMODE}, 0")
    for i in range(4, 16):
        e(f"v_mov_b32 v{vACC+i}, 0")
    e(f"v_and_b32 v{vX+4}, 7, v0")
    e(f"v_lshlrev_b32 v{vLOFF}, 4, v{vX+4}")
    e(f"v_and_b32 v{vX+4}, 1, v0")
    e(f"v_mov_b32 v{vX+5}, 0x0c0c0302")
    e(f"v_mov_b32 v{vX+6}, 0x03020c0c")
    e(f"v_cmp_eq_u32 vcc, 1, v{vX+4}")
    e(f"v_mov_b32 v{vX+7}, 0x0c0c0c0c")
    e(f"v_and_b32 v{vX+4}, 2, v0")
    e(f"v_cndmask_b32 v{vX+5}, v{vX+5}, v{vX+6}, vcc")
    e(f"v_cmp_eq_u32 vcc, 2, v{vX+4}")
    e(f"v_mov_b32 v{vP}, 0")
    e(f"s_and_b32 s{sT}, s2, 7")
    e(f"s_lshl_b32 s{sT}, s{sT}, 8")
    e(f"s_add_u32 s{sQ-1}, s{sT}, 0x{SY_OFF + 96:x}")
    e(f"s_mov_b32 s{G+2}, 0x{ROWB:x}")
    e(f"v_cndmask_b32 v{vSEL0}, v{vX+5}, v{vX+7}, vcc")
    e(f"v_cndmask_b32 v{vSEL1}, v{vX+7}, v{vX+5}, vcc")
    e(f"v_cmp_gt_u32 vcc, {NSLOT}, v0")
    e(f"s_mov_b64 s[{sNODE}:{sNODE+1}], vcc")
    e(f"s_mov_b32 s{G+3}, 0x20000")
    srd(O, WS, H1B, H1_OFF)
    e(f"v_and_b32 v{vX}, 60, v0")
    e(f"v_lshl_add_u32 v{vX}, v{vX}, 2, s{sW}")
    e(f"s_lshl_b32 s{sT}, s3, 2")
    e(f"s_add_u32 s{sT}, s{sT}, 0x{TAB_OFF:x}")
    e(f"v_lshl_add_u32 v{vTA}, v{vX}, 10, s{sT}")
    e(f"v_mov_b32 v64, {cfg.WST - 96}")
    e(f"v_add_u32 v64, s{sQ-1}, v64")
    e(f"v_mov_b32 v65, 1")
    e(f"s_cmp_lg_u32 s{sW}, 0")
    e(f"s_cselect_b64 exec, -1, 1")
    e("s_waitcnt vmcnt(0) lgkmcnt(0)")
    ts(14)
    e("s_barrier")
    e("s_cbranch_scc1 L_NOARR")
    e(f"buffer_atomic_add v65, v64, s[{WS}:{WS+3}], 0 offen sc0 sc1")
    e("s_mov_b64 exec, -1")
    e(f"buffer_load_dword v{vE}, v{vTA}, s[{WS}:{WS+3}], 0 offen sc1")
    arrive_b(1, 64, 1, ["s_waitcnt vmcnt(1)", "s_branch L_DECODE"])
    e("s_waitcnt vmcnt(0)")
    e("s_branch L_DECODE")
    e("L_NOARR:")
    e(f"buffer_load_dword v{vE}, v{vTA}, s[{WS}:{WS+3}], 0 offen sc1")
    e("s_waitcnt vmcnt(0)")
    e("s_branch L_DECODE")

    e("L_BATCH:")
    e(f"s_mov_b32 s{sMODE}, 2")
    e(f"v_mov_b32 v{vX}, 0")
    e(f"v_mov_b32 v{vX+1}, 0")
    e(f"v_lshlrev_b32 v{vX+4}, 3, v0")
    e(f"v_cmp_gt_u32 vcc, {(L_ZEND2-L_CNT)//8}, v0")
    e(f"s_mov_b64 exec, vcc")
    e(f"ds_write_b64 v{vX+4}, v[{vX}:{vX+1}] offset:{L_CNT}")
    e("s_mov_b64 exec, -1")
    e("L_DECODE:")
    vNG, vG0, vQ, vT, vB, vA = vX, vX+1, vX+2, vX+3, vX+4, vX+5
    vGR = 40
    vKEY = 48
    vRANK = 54
    vDS = 60
    e(f"v_and_b32 v{vG0}, 60, v0")
    e(f"v_lshl_add_u32 v{vG0}, v{vG0}, 2, s{sW}")
    e(f"v_mul_u32_u24 v{vG0}, {CG}, v{vG0}")
    e(f"v_and_b32 v{vT}, 3, v0")
    e(f"v_add_u32 v{vG0}, v{vG0}, v{vT}")
    e(f"s_lshl_b32 s{sT}, s{sW}, 9")
    e(f"s_add_u32 s{sT}, s{sT}, {L_D}")
    e(f"v_mov_b32 v{vGR+3}, 0")
    e(f"v_mov_b32 v{vGR+7}, 0")
    ts(4)
    e(f"v_lshrrev_b32 v{vNG}, 16, v{vE}")
    e(f"v_lshrrev_b32 v{vQ}, 16, v{vE}")
    e(f"v_and_b32 v{vB}, 0xffff, v{vE}")
    e(f"v_add_u32 v{vG0}, v{vG0}, v{vB}")
    scan64(vQ, fill=[f"v_sub_u32 v{vB}, v{vT}, v{vNG}", f"v_subrev_u32 v{vB}, s{sBB}, v{vB}",
                     f"v_cmp_lt_u32 s[{sTMP}:{sTMP+1}], v{vT}, v{vNG}", f"v_lshl_add_u32 v{vDS}, v{vLANE}, 2, s{sT}"], steps=SCAN[2:])
    e(f"v_readlane_b32 s{sTB}, v{vQ}, 63")
    e(f"v_add_u32 v{vB}, v{vB}, v{vQ}")
    e(f"L_DLOOP:")
    e(f"v_cmp_gt_u32 vcc, s{s128}, v{vB}")
    e(f"v_lshl_add_u32 v{vA}, v{vB}, 2, s{sT}")
    e(f"v_add_u32 v{vT}, 4, v{vT}")
    e(f"v_add_u32 v{vB}, 4, v{vB}")
    e(f"s_and_b64 exec, vcc, s[{sTMP}:{sTMP+1}]")
    e(f"ds_write_b32 v{vA}, v{vG0}")
    e("s_mov_b64 exec, -1")
    e(f"v_cmp_lt_u32 s[{sTMP}:{sTMP+1}], v{vT}, v{vNG}")
    e(f"v_cmp_gt_i32 vcc, s{s128}, v{vB}")
    e(f"v_add_u32 v{vG0}, 4, v{vG0}")
    e(f"s_and_b64 s[{sTMP}:{sTMP+1}], s[{sTMP}:{sTMP+1}], vcc")
    e(f"s_cbranch_scc1 L_DLOOP")
    e(f"ds_read2st64_b32 v[{vDS}:{vDS+1}], v{vDS} offset0:0 offset1:1")
    e(f"s_sub_i32 s{sNR}, s{sTB}, s{sBB}")
    e(f"v_add_u32 v{vA}, 64, v{vLANE}")
    e(f"v_cmp_gt_i32 s[{sM}:{sM+1}], s{sNR}, v{vLANE}")
    e(f"v_cmp_gt_i32 s[{sM+6}:{sM+7}], s{sNR}, v{vA}")
    ts(3)
    e("s_waitcnt lgkmcnt(0)")
    e(f"v_lshlrev_b32 v{vDS}, 4, v{vDS}")
    e(f"v_lshlrev_b32 v{vDS+1}, 4, v{vDS+1}")
    e(f"s_cmp_eq_u32 s{sMODE}, 1")
    e("s_cbranch_scc1 L_NOA6")
    if cfg.PFA:
        e(f"s_cmp_lt_u32 s{sW}, {16-cfg.PFA}")
        e("s_cbranch_scc1 L_NOPFA")
        pf_addr(vX+8, 16-cfg.PFA, 0)
        e(f"buffer_load_dword v{vPFD}, v{vX+8}, s[{G}:{G+3}], 0 offen")
        e("L_NOPFA:")
    e(f"s_cmp_lg_u32 s{sW}, {cfg.RW}")
    e("s_cbranch_scc1 L_NORPOLL")
    poll(1)
    e("L_NORPOLL:")
    e("s_barrier")
    e("L_NOA6:")
    e(f"s_cmp_le_i32 s{sNR}, 0")
    e("s_cbranch_scc1 L_LD_DONE")
    e(f"s_mov_b64 exec, s[{sM}:{sM+1}]")
    e(f"buffer_load_dwordx4 v[{vGR}:{vGR+3}], v{vDS}, s[{WS}:{WS+3}], 0 offen sc1")
    e(f"s_cmp_le_i32 s{sNR}, 64")
    e("s_cbranch_scc1 L_LD_DONE")
    e(f"s_mov_b64 exec, s[{sM+6}:{sM+7}]")
    e(f"buffer_load_dwordx4 v[{vGR+4}:{vGR+7}], v{vDS+1}, s[{WS}:{WS+3}], 0 offen sc1")
    e(f"L_LD_DONE:")
    e("s_mov_b64 exec, -1")
    e(f"s_cmp_lg_u32 s{sMODE}, 0")
    e("s_cbranch_scc1 L_NOVER")
    e(f"buffer_load_dword v{vE2}, v{vTA}, s[{WS}:{WS+3}], 0 offen sc1")
    ts(15)

    if cfg.PF2:
        pf_addr(vX+8, 16-cfg.PF2, cfg.PFA)
    e(f"s_mov_b32 s{sMODE}, 1")
    e(f"s_waitcnt vmcnt(0)")
    e(f"v_cmp_ne_u32 vcc, v{vE}, v{vE2}")
    e(f"v_mov_b32 v{vE}, v{vE2}")
    e("s_cbranch_vccnz L_DECODE")
    if cfg.PF2:
        e(f"s_cmp_lt_u32 s{sW}, {16-cfg.PF2}")
        e("s_cbranch_scc1 L_NOPF2")
        e(f"buffer_load_dword v{vPFD}, v{vX+8}, s[{G}:{G+3}], 0 offen")
    e("s_branch L_NOPF2")
    e("L_NOVER:")
    e(f"s_waitcnt vmcnt(0)")
    e("L_NOPF2:")
    ts(5)
    def second(lab):
        e(f"s_cmp_le_i32 s{sNR}, 64")
        e(f"s_cbranch_scc1 {lab}")
    for r in range(2):
        if r == 1:
            second("L_RK_DONE")
            e("s_mov_b64 exec, -1")
        for s_ in range(3):
            k = 3 * r + s_
            e(f"v_bfe_u32 v{vKEY+k}, v{vGR+4*r+3}, {10*s_}, 10")
        for s_ in range(3):
            k = 3 * r + s_
            e(f"v_cmp_ne_u32 s[{sM+2*k}:{sM+2*k+1}], 0, v{vKEY+k}")
            e(f"v_lshlrev_b32 v{vKEY+k}, 2, v{vKEY+k}")
        for s_ in range(3):
            k = 3 * r + s_
            e(f"s_mov_b64 exec, s[{sM+2*k}:{sM+2*k+1}]")
            e(f"ds_add_rtn_u32 v{vRANK+k}, v{vKEY+k}, v{vONE} offset:{L_CNT}")
    e("L_RK_DONE:")
    e("s_mov_b64 exec, 1")
    e(f"v_mov_b32 v{vA}, s{sTB}")
    e(f"v_mov_b32 v{vB}, {L_MISC+4}")
    e(f"ds_max_u32 v{vB}, v{vA}")
    e("s_mov_b64 exec, -1")
    def slots(bodyf, lab):
        for k in range(6):
            if k == 3:
                second(lab)
            e(f"s_mov_b64 exec, s[{sM+2*k}:{sM+2*k+1}]")
            bodyf(k)
        e(f"{lab}:")
        e("s_mov_b64 exec, -1")
    vC = vX
    vDEG, vNP, vSC, vBIN, vDR, vSB, vNA = vX+4, vX+5, vX+6, vX+7, vX+8, vX+9, vX+10
    vBS = vX + 12
    e(f"v_lshlrev_b32 v{vNA}, 4, v0")
    e(f"v_mov_b32 v{vX+11}, {L_MISC}")
    e(f"v_mov_b32 v{vTP}, 0xffff")
    e(f"v_mov_b32 v{vTP+1}, 0xffff")
    e(f"s_cmp_ge_u32 s{sW}, 4")
    e("s_waitcnt lgkmcnt(0)")
    e("s_barrier")
    e(f"s_cbranch_scc1 L_NODE1_DONE")
    e(f"ds_read_b128 v[{vC}:{vC+3}], v{vNA} offset:{L_CNT+16}")
    ts(6)
    e("s_waitcnt lgkmcnt(0)")
    e(f"v_add_u32 v{vC+1}, v{vC}, v{vC+1}")
    e(f"v_add_u32 v{vC+2}, v{vC+1}, v{vC+2}")
    e(f"v_add3_u32 v{vSC}, v{vC+2}, v{vC+3}, 3")
    e(f"v_lshrrev_b32 v{vSC}, 1, v{vSC}")
    e(f"v_add_u32 v{vDEG}, v{vC+2}, v{vC+3}")
    e(f"v_mov_b32 v{vNP}, v{vSC}")
    scan64(vSC, fill=[f"v_min_u32 v{vBIN}, 63, v{vDEG}", f"v_sub_u32 v{vBIN}, 63, v{vBIN}",
                      f"v_lshlrev_b32 v{vBIN}, 2, v{vBIN}", f"s_mov_b64 exec, s[{sNODE}:{sNODE+1}]"], steps=SCAN[:2])
    e(f"ds_add_rtn_u32 v{vDR}, v{vBIN}, v{vONE} offset:{L_DH}")
    e("s_mov_b64 exec, -1")
    scan64(vSC, steps=SCAN[2:])
    e(f"s_mov_b32 exec_lo, 0")
    e(f"s_mov_b32 exec_hi, 0x80000000")
    e(f"ds_add_rtn_u32 v{vSB}, v{vX+11}, v{vSC}")
    e("s_mov_b64 exec, -1")
    e(f"v_lshlrev_b32 v{vSC}, 1, v{vSC}")
    e(f"v_sub_u32 v{vC+3}, v{vSC}, v{vDEG}")
    e(f"v_lshlrev_b32 v{vX+11}, 1, v{vNP}")
    e(f"v_sub_u32 v{vSC}, v{vSC}, v{vX+11}")
    e("s_waitcnt lgkmcnt(0)")
    e(f"v_readlane_b32 s{sT}, v{vSB}, 63")
    e(f"s_lshl_b32 s{sT}, s{sT}, 3")
    e(f"s_add_u32 s{sT}, s{sT}, {L_RECS}")
    e(f"v_lshl_add_u32 v{vBS}, v{vC+3}, 2, s{sT}")
    e(f"v_lshl_add_u32 v{vBS+1}, v{vC}, 2, v{vBS}")
    e(f"v_lshl_add_u32 v{vBS+2}, v{vC+1}, 2, v{vBS}")
    e(f"v_lshl_add_u32 v{vBS+3}, v{vC+2}, 2, v{vBS}")
    e(f"ds_write_b128 v{vNA}, v[{vBS}:{vBS+3}] offset:{L_CNT+16}")
    e(f"v_lshl_add_u32 v{vSC}, v{vSC}, 2, s{sT}")
    e(f"ds_write_b64 v{vSC}, v[{vTP}:{vTP+1}]")
    e(f"ds_write_b32 v{vSC}, v{vTP} offset:8")
    e(f"L_NODE1_DONE:")
    e(f"v_mov_b32 v{vC}, {L_MISC+4}")
    e(f"v_lshlrev_b32 v{vC+1}, 2, v{vLANE}")
    e("s_waitcnt lgkmcnt(0)")
    e("s_barrier")
    ts(7)
    e(f"ds_read_b32 v{vC+1}, v{vC+1} offset:{L_DH}")
    e(f"ds_read_b32 v{vC+3}, v{vC}")
    for k in range(6):
        if k == 3:
            second("L_RB_DONE")
        e(f"ds_read_b32 v{vKEY+k}, v{vKEY+k} offset:{L_CNT}")
    e("L_RB_DONE:")
    e(f"s_cmp_ge_u32 s{sW}, 4")
    e(f"s_cbranch_scc1 L_NODE2_DONE")
    e(f"s_cmp_lg_u32 s{sBB}, 0")
    e(f"s_cbranch_scc1 L_NODE2_NOSORT")
    e("s_waitcnt lgkmcnt(4)")
    e(f"v_mov_b32 v{vC}, v{vC+1}")
    e("s_nop 1")
    scan64(vC)
    e(f"v_sub_u32 v{vC}, v{vC}, v{vC+1}")
    e(f"ds_bpermute_b32 v{vC}, v{vBIN}, v{vC}")
    e(f"s_movk_i32 s{sT}, {NNORM*16}")
    e("s_waitcnt lgkmcnt(0)")
    if SPL:
        e(f"v_add_u32 v{vP}, v{vC}, v{vDR}")
        e(f"v_and_b32 v{vC}, 0xf8, v{vP}")
        e(f"v_add3_u32 v{vC}, v{vC}, v{vP}, s{sT}")
        e(f"v_cmp_gt_u32 vcc, {8*SPL}, v{vP}")
        e(f"v_subrev_u32 v{vP}, {8*SPL}, v{vP}")
        e("s_nop 0")
        e(f"v_cndmask_b32 v{vP}, v{vP}, v{vC}, vcc")
        e(f"v_lshlrev_b32 v{vP}, 3, v{vP}")
    else:
        e(f"v_add_lshl_u32 v{vP}, v{vC}, v{vDR}, 3")
    e(f"L_NODE2_NOSORT:")
    e(f"v_lshl_or_b32 v{vC}, v{vNP}, 16, v{vSC}")
    e(f"s_mul_i32 s{sT}, s3, {NB*128}")
    e(f"v_lshl_add_u32 v{vC+1}, v0, 7, s{sT}")
    e(f"v_cmp_gt_u32 vcc, {NB}, v0")
    e(f"v_mov_b32 v{vC+2}, 0x80000000")
    e(f"s_mov_b64 exec, s[{sNODE}:{sNODE+1}]")
    e(f"v_cndmask_b32 v{vC+1}, v{vC+2}, v{vC+1}, vcc")
    e(f"ds_write_b64 v{vP}, v[{vC}:{vC+1}] offset:{L_NT}")
    if SPL:
        e(f"v_cmp_le_u32 vcc, {NNORM*128}, v{vP}")
        e(f"v_mov_b32 v{vC+1}, v{vC+2}")
        e("s_and_b64 exec, exec, vcc")
        e(f"ds_write_b64 v{vP}, v[{vC}:{vC+1}] offset:{L_NT+64}")
    e("s_mov_b64 exec, -1")
    e(f"L_NODE2_DONE:")
    e("s_waitcnt lgkmcnt(0)")
    def wr(k):
        e(f"v_lshl_add_u32 v{vRANK+k}, v{vRANK+k}, 2, v{vKEY+k}")
        e(f"ds_write_b32 v{vRANK+k}, v{vGR+4*(k//3)+k%3}")
    slots(wr, "L_RW_DONE")
    e(f"v_readfirstlane_b32 s{sNBMAX}, v{vC+3}")
    e(f"v_lshrrev_b32 v{vX}, 3, v{vLANE}")
    e(f"s_lshl_b32 s{sT}, s{sW}, 7")
    e(f"v_lshl_add_u32 v{vX}, v{vX}, 3, s{sT}")
    e(f"s_cmp_ge_u32 s{sW}, {NNORM}")
    e(f"s_cselect_b32 s{sSTR+1}, 1, 0")
    e(f"s_lshl_b32 s{sSTR}, 8, s{sSTR+1}")
    e(f"s_cmp_ge_u32 s{sW}, {NW}")
    e("s_waitcnt lgkmcnt(0)")
    e("s_barrier")
    e(f"s_cbranch_scc1 L_HELPER")
    e(f"ds_read_b64 v[{vX+2}:{vX+3}], v{vX} offset:{L_NT}")
    e(f"ds_read_b64 v[{vX+4}:{vX+5}], v{vX} offset:{L_NT+64}")
    ts(8)
    e("s_waitcnt lgkmcnt(0)")
    e(f"v_lshrrev_b32 v{vX}, 16, v{vX+2}")
    e(f"v_lshrrev_b32 v{vX+1}, 16, v{vX+4}")
    e(f"v_max_u32 v{vX+6}, v{vX}, v{vX+1}")
    e(f"v_and_b32 v{vEA}, 0xffff, v{vX+2}")
    e(f"v_and_b32 v{vEB}, 0xffff, v{vX+4}")
    e(f"v_max_u32_dpp v{vX+6}, v{vX+6}, v{vX+6} row_ror:8 row_mask:0xf bank_mask:0xf")
    e(f"v_lshl_add_u32 v{vPA}, v{vX}, 3, v{vEA}")
    e(f"v_lshl_add_u32 v{vPB}, v{vX+1}, 3, v{vEB}")
    e(f"v_readlane_b32 s{sN0}, v{vX+6}, 0")
    e(f"v_readlane_b32 s{sT}, v{vX+6}, 16")
    e(f"v_readlane_b32 s{sT+1}, v{vX+6}, 32")
    e(f"v_readlane_b32 s{sCNT}, v{vX+6}, 48")
    e(f"s_max_u32 s{sN0}, s{sN0}, s{sT}")
    e(f"s_max_u32 s{sCNT}, s{sCNT}, s{sT+1}")
    e(f"s_max_u32 s{sN0}, s{sN0}, s{sCNT}")
    e(f"s_sub_u32 s{sN0}, s{sN0}, 1")
    e(f"s_add_u32 s{sN0}, s{sN0}, s{sSTR+1}")
    e(f"s_lshr_b32 s{sN0}, s{sN0}, s{sSTR+1}")
    e(f"s_max_u32 s{sN0}, s{sN0}, {D}")
    e(f"s_mul_i32 s{sT}, s{sN0}, s{sSTR}")
    e(f"s_sub_u32 s{sT+1}, s{sT}, s{sSTR}")
    e(f"s_add_u32 s{sT+1}, s{sT+1}, 8")
    e(f"v_subrev_u32 v{vPA}, s{sT}, v{vPA}")
    e(f"v_subrev_u32 v{vPB}, s{sT+1}, v{vPB}")
    def rdrec(h):
        for pv, ev, d in ((vPA, vEA, vST), (vPB, vEB, vST + 4)):
            e(f"v_max_i32 v{vAD}, v{pv}, v{ev}")
            if h == 0:
                e(f"ds_read_b64 v[{d}:{d+1}], v{vAD}")
            else:
                e(f"ds_read2st64_b64 v[{d}:{d+3}], v{vAD} offset0:0 offset1:{RDELTA//512}")
        e(f"v_add_u32 v{vPA}, s{sSTR}, v{vPA}")
        e(f"v_add_u32 v{vPB}, s{sSTR}, v{vPB}")
    e(f"s_cmp_lg_u32 s{sHOP}, 0")
    e("s_cbranch_scc1 L_MBENC")
    rdrec(0)
    for src, d0 in ((vX+3, vROWA), (vX+5, vROWB)):
        e(f"v_add_u32 v{d0}, v{src}, v{vLOFF}")
    def pace():
        if cfg.PACE > 1:
            lab = newlab("PACE")
            e(f"s_add_i32 s{sI4}, s{sI4}, {cfg.PACE}")
            e(f"{lab}a:")
            e(f"s_cmp_lt_i32 s{sI4}, 0")
            e(f"s_cbranch_scc1 {lab}")
            e(f"s_cmp_eq_u32 s{sPN}, 0")
            e(f"s_cbranch_scc1 {lab}")
            e(f"s_sub_i32 s{sI4}, s{sI4}, s{sN0}")
            e(f"s_sub_u32 s{sPN}, s{sPN}, 1")
            e("s_barrier")
            e(f"s_branch {lab}a")
            e(f"{lab}:")
    recreg = [vST, vST + 4, vST + 1, vST + 5]
    def mm(slot, k):
        d = vDATA + 16 * slot + 4 * k
        a = vAOP + 8 * slot + 2 * k
        acc = vACC + (8 if k & 1 else 0)
        e(f"v_mfma_f32_4x4x4_16b_bf16 v[{acc}:{acc+3}], v[{a}:{a+1}], v[{d}:{d+1}], v[{acc}:{acc+3}]")
        e(f"v_mfma_f32_4x4x4_16b_bf16 v[{acc+4}:{acc+7}], v[{a}:{a+1}], v[{d+2}:{d+3}], v[{acc+4}:{acc+7}]")
    def step(h, slot, consume, skip=False):
        e("s_waitcnt lgkmcnt(0)")
        for k in range(4):
            r = recreg[k]
            d = vDATA + 16 * slot + 4 * k
            a = vAOP + 8 * slot + 2 * k
            if h == 0:
                e(f"v_mad_u32_u16 v{vAD}, v{r}, s{s128}, v{vLOFF}")
            else:
                e(f"v_add_u32 v{vAD}, v{r+2}, v{vLOFF}")
            if consume:
                e(f"s_waitcnt vmcnt({4*D-1})")
                mm(slot, k)
            if skip:
                lab = newlab("SK")
                e(f"v_cmp_ne_u32 vcc, 0xffff, v{r}")
                for i in range(4):
                    e(f"v_mov_b32 v{d+i}, 0")
                e(f"s_cbranch_vccz {lab}")
            e(f"buffer_load_dwordx4 v[{d}:{d+3}], v{vAD}, s[{G}:{G+3}], 0 offen" + (" sc1" if h else ""))
            if skip:
                e(f"{lab}:")
            e(f"v_perm_b32 v{a}, v{r}, v{r}, v{vSEL0}")
            e(f"v_perm_b32 v{a+1}, v{r}, v{r}, v{vSEL1}")
        rdrec(h)
        pace()
    def gloop(h):
        e(f"s_sub_u32 s{sCNT}, s{sN0}, {D}")
        if cfg.PACE > 1:
            e(f"s_sub_i32 s{sI4}, 0, s{sN0}")
            e(f"s_cmp_le_u32 s{sNBMAX}, {GB}")
            e(f"s_cselect_b32 s{sPN}, {cfg.PACE-1}, 0")
        for s_ in range(D):
            step(h, s_, False, cfg.SKP and s_ == 0)
        if cfg.SKP:
            e(f"s_waitcnt vmcnt({4*(D-1)})")
        e(f"L_GLOOP{h}:")
        for p in range(D):
            e(f"s_cmp_le_i32 s{sCNT}, {p}")
            e(f"s_cbranch_scc1 L_DRAIN{p}")
            step(h, p, True)
        e(f"s_sub_i32 s{sCNT}, s{sCNT}, {D}")
        e(f"s_branch L_GLOOP{h}")
    gloop(0)
    for p in range(D):
        e(f"L_DRAIN{p}:")
        e(f"s_load_dword s{sQ}, s[{WS}:{WS+1}], s{sQ-1}")
        for j in range(4 * D):
            e(f"s_waitcnt vmcnt({4*D-1-j})")
            mm((p + j // 4) % D, j % 4)
        if p != D - 1:
            e(f"s_branch L_GDONE")
    e(f"L_GDONE:")
    e("s_waitcnt lgkmcnt(0)")
    e(f"s_add_u32 s{sBB}, s{sBB}, {GB}")
    e(f"s_cmp_lt_u32 s{sBB}, s{sNBMAX}")
    e(f"s_cbranch_scc1 L_NEXTB")
    if SPL:
        e(f"s_cmp_eq_u32 s{sSTR+1}, 0")
        e("s_cbranch_scc1 L_NOCOMB")
        for i in range(8):
            e(f"v_add_f32 v{vACC+i}, v{vACC+i}, v{vACC+8+i}")
        e("L_NOCOMB:")
    e(f"s_cmp_lg_u32 s{sHOP}, 0")
    e("s_nop 0")
    for i in range(8):
        e(f"v_cvt_pk_bf16_f32 v{40+i}, v{vACC+2*i}, v{vACC+2*i+1}")
    e(f"s_cbranch_scc1 L_EPI")
    e(f"s_mov_b32 s{sT}, {25088*128}")
    e(f"s_movk_i32 s{sT+1}, {cfg.RN*128}")
    for o, d, m in ((vROWA, 50, "vcc"), (vROWB, 51, f"s[{sTMP}:{sTMP+1}]")):
        e(f"v_cmp_le_u32 {m}, s{sT}, v{o}")
        e(f"v_and_b32 v48, 0x7fffe000, v{o}")
        e(f"v_lshrrev_b32 v49, 7, v{o}")
        e(f"v_add_u32 v{d}, v48, v{o}")
        e(f"v_cndmask_b32 v48, 0, -1, {m}")
        e(f"v_xor_b32 v{d+2}, v48, v49")
    e(f"s_mov_b32 s{sSPIN}, 0")
    e("s_branch L_QC")
    e("L_QP:")
    e(f"s_load_dword s{sQ}, s[{WS}:{WS+1}], s{sQ-1} glc")
    e("s_waitcnt lgkmcnt(0)")
    e("L_QC:")
    e(f"s_cmp_lg_u32 s{sQ}, 0")
    e("s_cbranch_scc1 L_QX")
    spin_tail("L_QP", "L_QX")
    e("L_QX:")
    e(f"v_bfe_i32 v{vQM}, s{sQ}, 0, 1")
    for d in (50, 51):
        e(f"v_xor_b32 v{d+2}, v{d+2}, v{vQM}")
        e(f"v_and_b32 v{d+2}, 0x2000, v{d+2}")
        e(f"v_or_b32 v{d}, v{d}, v{d+2}")
    e(f"buffer_store_dwordx4 v[40:43], v50, s[{O}:{O+3}], 0 offen sc1")
    e(f"buffer_store_dwordx4 v[44:47], v51, s[{O}:{O+3}], 0 offen sc1")
    if cfg.RN:
        for o, d, q in ((vROWA, 50, 40), (vROWB, 51, 44)):
            lab = newlab("ST")
            e(f"v_and_b32 v48, 0x380, v{o}")
            e(f"v_cmp_gt_u32 vcc, s{sT+1}, v48")
            e(f"v_xor_b32 v{d}, 0x2000, v{d}")
            e(f"s_and_saveexec_b64 s[{sTMP}:{sTMP+1}], vcc")
            e(f"s_cbranch_execz {lab}")
            e(f"buffer_store_dwordx4 v[{q}:{q+3}], v{d}, s[{O}:{O+3}], 0 offen sc1")
            e(f"{lab}:")
            e("s_mov_b64 exec, -1")
    ts(9)
    for i in range(16):
        e(f"v_mov_b32 v{vACC+i}, 0")
    e(f"s_add_u32 s{sT}, s{sN0}, 1")
    e(f"s_mul_i32 s{sT}, s{sT}, s{sSTR}")
    e(f"v_subrev_u32 v{vPA}, s{sT}, v{vPA}")
    e(f"v_subrev_u32 v{vPB}, s{sT}, v{vPB}")
    e(f"v_lshlrev_b32 v48, 4, v{vLANE}")
    NWPRE = 8 if D == 2 else 4
    def wfrag(mb, kh):
        if D == 2: return vW + 8 * mb + 4 * kh
        return vW + 4 * mb if kh == 0 else 64 + 4 * mb
    for mb in range(4):
        for kh in range(2 if D == 2 else 1):
            r = wfrag(mb, kh)
            e(f"ds_read_b128 v[{r}:{r+3}], v48 offset:{L_WT + 1024*(2*mb+kh)}")
    e(f"s_lshl_b32 s{sT}, s{sW}, 11")
    e(f"s_add_u32 s{sT}, s{sT}, {L_TILE}")
    e(f"v_lshrrev_b32 v48, 3, v{vLANE}")
    e(f"v_xor_b32 v49, v48, v{vLANE}")
    e(f"v_and_b32 v49, 7, v49")
    e(f"v_lshlrev_b32 v49, 4, v49")
    e(f"v_lshl_add_u32 v49, v48, 7, v49")
    e(f"v_add_u32 v{vTW}, s{sT}, v49")
    e(f"v_and_b32 v48, 15, v{vLANE}")
    e(f"v_lshrrev_b32 v49, 4, v{vLANE}")
    e(f"v_xor_b32 v49, v49, v48")
    e(f"v_and_b32 v49, 7, v49")
    e(f"v_lshlrev_b32 v49, 4, v49")
    e(f"v_lshl_add_u32 v49, v48, 7, v49")
    e(f"v_add_u32 v{vTR}, s{sT}, v49")
    if cfg.OWN == 1:
        e("s_waitcnt vmcnt(0)")
        e(f"buffer_load_dword v{vPFD}, v{vROWA}, s[{O}:{O+3}], 0 offen sc1")
        e(f"buffer_load_dword v{vPFD}, v{vROWB}, s[{O}:{O+3}], 0 offen sc1")
    def enc(w, d, t):
        e(f"v_and_b32 v{d}, 0xffff, v{w}")
        e(f"v_and_b32 v{t}, 7, v{w}")
        e(f"v_cmp_le_u32 vcc, s{sT}, v{d}")
        e(f"v_cmp_gt_u32 s[{sTMP}:{sTMP+1}], {cfg.RN}, v{t}")
        e(f"v_and_b32 v{t}, 0xffc0, v{w}")
        e(f"v_add_lshl_u32 v{d}, v{d}, v{t}, 7")
        e(f"s_andn2_b64 vcc, vcc, s[{sTMP}:{sTMP+1}]")
        e(f"s_and_b64 s[{sTMP}:{sTMP+1}], s[{sTMP}:{sTMP+1}], s[{sK}:{sK+1}]")
        e(f"s_or_b64 vcc, vcc, s[{sTMP}:{sTMP+1}]")
        e(f"v_cndmask_b32 v{t}, v{vQM}, v{vTP+1}, vcc")
        e(f"v_xor_b32 v{t}, v{t}, v{w}")
        e(f"v_and_or_b32 v{d}, v{t}, s{sT+1}, v{d}")
    def enc_setup():
        e(f"v_mov_b32 v48, {L_MISC}")
        e("ds_read_b32 v48, v48")
        e(f"s_bfe_i32 s{sK}, s2, 0x10002")
        e(f"s_mov_b32 s{sK+1}, s{sK}")
        e(f"s_movk_i32 s{sT}, 25088")
        e(f"s_movk_i32 s{sT+1}, 0x2000")
        e(f"v_lshlrev_b32 v49, 4, v0")
        e("s_waitcnt lgkmcnt(0)")
        e(f"v_readfirstlane_b32 s{sSPIN}, v48")
        e(f"v_not_b32 v{vTP+1}, v{vQM}")
        e(f"s_lshl_b32 s{sSPIN}, s{sSPIN}, 3")
        e(f"s_lshl_b32 s{sI4}, s{sW}, 10")
    def enc_pass(nwaves):
        lab = newlab("ENC")
        e(f"{lab}:")
        e(f"s_cmp_ge_u32 s{sI4}, s{sSPIN}")
        e(f"s_cbranch_scc1 {lab}x")
        e(f"ds_read_b128 v[52:55], v49 offset:{L_RECS}")
        e(f"s_add_u32 s{sI4}, s{sI4}, {nwaves*1024}")
        e("s_waitcnt lgkmcnt(0)")
        for i in range(4):
            enc(52 + i, 56 + i, 60)
        e(f"ds_write_b128 v49, v[56:59] offset:{L_RECS+RDELTA}")
        e(f"v_add_u32 v49, {nwaves*1024}, v49")
        e(f"s_branch {lab}")
        e(f"{lab}x:")
    enc_setup()
    enc_pass(NW)
    if cfg.OWN:
        e(f"v_subrev_u32 v48, 256, v0")
        e(f"s_mul_i32 s{sI4}, s3, {NB}")
        e(f"v_add_u32 v52, s{sI4}, v48")
        enc(52, 53, 60)
    e("L_SYNC2:")
    srd(G, WS, H1B, H1_OFF)
    e(f"s_mov_b32 s{sBB}, 0")
    e(f"s_mov_b32 s{sHOP}, 1")
    e(f"s_lshr_b32 s{sI4}, s2, 2")
    e(f"s_xnor_b32 s{sI4}, s{sI4}, s{sQ}")
    e(f"s_and_b32 s{sI4}, s{sI4}, 1")
    e(f"s_lshl_b32 s{sI4}, s{sI4}, 13")
    e(f"s_add_u32 s{sI4}, s{sI4}, 0x{HS_OFF:x}")
    e(f"s_and_b32 s{sT}, s2, 3")
    e(f"s_lshl_b32 s{sT+1}, s{sT}, 11")
    e(f"v_mov_b32 v54, s{sT+1}")
    e(f"v_mov_b32 v55, 1")
    e(f"s_cmp_lg_u32 s{sW}, {cfg.HW}")
    e(f"s_cselect_b64 exec, -1, 1")
    e("s_waitcnt vmcnt(0) lgkmcnt(0)")
    ts(10)
    e("s_barrier")
    e("s_cbranch_scc0 L_FARR")
    if cfg.OWN:
        e(f"s_sub_u32 s{sT}, s{sW}, 4")
        e(f"s_cmp_ge_u32 s{sT}, 4")
        e(f"s_cbranch_scc1 L_FDONE")
        e(f"v_cmp_gt_u32 vcc, {NB}, v48")
        e("s_mov_b64 exec, vcc")
        e(f"buffer_load_dword v{vPFD}, v53, s[{G}:{G+3}], 0 offen sc1")
        e("s_mov_b64 exec, -1")
    e("s_branch L_FDONE")
    e("L_FARR:")
    if cfg.HN:
        e(f"buffer_atomic_add v55, v54, s[{WS}:{WS+3}], s{sI4} offen offset:64 sc0 sc1")
        e("s_mov_b64 exec, -1")
        e(f"v_lshlrev_b32 v42, 8, v{vLANE}")
        e(f"s_bfe_u32 s{sT+1}, s2, 0x30003")
        e(f"s_lshl_b32 s{sT+1}, s{sT+1}, 2")
        e(f"s_add_u32 s{sT}, s{sT}, s{sT+1}")
        e(f"s_lshl_b32 s{sT}, s{sT}, 8")
        e(f"s_add_u32 s{sI4}, s{sI4}, s{sT}")
        e(f"s_mov_b32 s{sT+1}, 0x{HS_OFF:x}")
        e("s_waitcnt vmcnt(0)")
        e(f"v_readfirstlane_b32 s{sT}, v55")
        e(f"s_cmp_lg_u32 s{sT}, 31")
        e("s_cbranch_scc1 L_HNB")
        e(f"buffer_atomic_add v{vONE}, v42, s[{WS}:{WS+3}], s{sT+1} offen sc1")
        e("L_HNB:")
        e(f"s_mov_b32 s{sSPIN}, 0")
        e("L_HNP:")
        e(f"s_load_dword s{sT+1}, s[{WS}:{WS+1}], s{sI4} glc")
        e("s_waitcnt lgkmcnt(0)")
        e(f"s_cmp_eq_u32 s{sT+1}, 8")
        e("s_cbranch_scc1 L_FDONE")
        spin_tail("L_HNP", "L_FDONE")
    else:
        arrive(2)
        poll(2)
    e("L_FDONE:")
    srd(O, pOUT, ROWB)
    e(f"s_cmp_gt_u32 s{sNBMAX}, {GB}")
    e("s_cbranch_scc1 L_C1MB")
    rdrec(1)
    e("s_barrier")
    ts(11)
    e("L_G2:")
    gloop(1)
    e("L_C1MB:")
    e("s_barrier")
    e("s_branch L_BATCH")
    e("L_MBENC:")
    enc_setup()
    enc_pass(NW)
    e("s_waitcnt lgkmcnt(0)")
    e("s_barrier")
    rdrec(1)
    e("s_branch L_G2")

    e("L_EPI:")
    ts(12)
    e(f"ds_write_b128 v{vTW}, v[40:43]")
    e(f"ds_write_b128 v{vTW}, v[44:47] offset:1024")
    e(f"v_xor_b32 v{vAD}, 64, v{vTR}")
    e(f"ds_read_b128 v[40:43], v{vTR}")
    e(f"ds_read_b128 v[44:47], v{vAD}")
    if D != 2:
        e(f"v_lshlrev_b32 v{vAD}, 4, v{vLANE}")
        for mb in range(4):
            r = wfrag(mb, 1)
            e(f"ds_read_b128 v[{r}:{r+3}], v{vAD} offset:{L_WT + 1024*(2*mb+1)}")
    e(f"v_lshrrev_b32 v{vAD}, 4, v{vLANE}")
    e(f"s_lshl_b32 s{sT}, s{sW}, 7")
    e(f"v_lshl_add_u32 v{vAD}, v{vAD}, 5, s{sT}")
    e(f"ds_read_b128 v[48:51], v{vAD} offset:{L_NT}")
    e(f"ds_read_b128 v[52:55], v{vAD} offset:{L_NT+16}")
    e(f"v_and_b32 v{vAD}, 15, v{vLANE}")
    e(f"v_lshlrev_b32 v{vAD}, 3, v{vAD}")
    e(f"s_waitcnt lgkmcnt({3 if D == 2 else 7})")
    for mb in range(4):
        r = wfrag(mb, 0)
        e(f"v_mfma_f32_16x16x32_bf16 v[{vACC+4*mb}:{vACC+4*mb+3}], v[40:43], v[{r}:{r+3}], 0")
    e("s_waitcnt lgkmcnt(2)")
    for mb in range(4):
        r = wfrag(mb, 1)
        e(f"v_mfma_f32_16x16x32_bf16 v[{vACC+4*mb}:{vACC+4*mb+3}], v[44:47], v[{r}:{r+3}], v[{vACC+4*mb}:{vACC+4*mb+3}]")
    e("s_waitcnt lgkmcnt(0)")
    for r in range(4):
        e(f"v_add_u32 v{48+2*r}, v{49+2*r}, v{vAD}")
    e("s_nop 2")
    for r in range(4):
        e(f"v_cvt_pk_bf16_f32 v{56+2*r}, v{vACC+r}, v{vACC+4+r}")
        e(f"v_cvt_pk_bf16_f32 v{57+2*r}, v{vACC+8+r}, v{vACC+12+r}")
        e(f"buffer_store_dwordx2 v[{56+2*r}:{57+2*r}], v{48+2*r}, s[{O}:{O+3}], 0 offen {cfg.OUTFLAG}")
    e("L_FIN:")
    ts_dump()
    e("s_endpgm")
    e("L_HELPER:")
    assert NW <= 15
    e(f"s_xor_b32 s{sT}, s{sW}, 15")
    e(f"s_xor_b32 s{sT+1}, s2, 255")
    e(f"s_or_b32 s{sT}, s{sT}, s{sT+1}")
    e(f"s_or_b32 s{sT}, s{sT}, s{sBB}")
    e(f"s_or_b32 s{sT}, s{sT}, s{sHOP}")
    e("s_cbranch_scc1 L_HELP1")
    e(f"s_mov_b32 s{sT}, 0x{HS_OFF:x}")
    e(f"s_mov_b32 s{sCNT}, 0")
    e("L_PRB:")
    e(f"s_add_u32 s{sT+1}, s{sT}, 8192")
    e(f"s_memtime s[40:41]")
    e(f"s_load_dword s46, s[{WS}:{WS+1}], s{sT} glc")
    e("s_waitcnt lgkmcnt(0)")
    e(f"s_memtime s[42:43]")
    e(f"s_load_dword s46, s[{WS}:{WS+1}], s{sT+1} glc")
    e("s_waitcnt lgkmcnt(0)")
    e(f"s_memtime s[44:45]")
    e("s_lshl_b32 s42, s42, 1")
    e("s_sub_u32 s40, s42, s40")
    e("s_waitcnt lgkmcnt(0)")
    e("s_sub_u32 s40, s40, s44")
    e("s_lshr_b32 s40, s40, 31")
    e(f"s_add_u32 s{sCNT}, s{sCNT}, s40")
    e(f"s_addk_i32 s{sT}, 1280")
    e(f"s_cmp_lt_u32 s{sT}, 0x{HS_OFF + cfg.NPR*1280:x}")
    e("s_cbranch_scc1 L_PRB")
    e(f"s_cmp_gt_u32 s{sCNT}, {cfg.NPR//2}")
    e(f"s_cselect_b32 s{sT}, 2, 3")
    if cfg.POL >= 0:
        e(f"s_mov_b32 s{sT}, {2+cfg.POL}")
    e(f"v_mov_b32 v40, s{sT}")
    e(f"v_lshlrev_b32 v41, 8, v{vLANE}")
    e(f"s_mov_b32 s{sT}, 0x{SY_OFF + 96:x}")
    e("s_mov_b64 exec, 0xff")
    e(f"buffer_store_dword v40, v41, s[{WS}:{WS+3}], s{sT} offen sc1")
    e("s_mov_b64 exec, -1")
    if cfg.TS:
        ts(9)
        e(f"s_mov_b32 s{sTS+20}, s{sCNT}")
    e("L_HELP1:")
    e(f"s_cmp_le_u32 s{sNBMAX}, {GB}")
    e("s_cbranch_scc1 L_FIN")
    e(f"s_cmp_eq_u32 s{sHOP}, 0")
    e("s_cbranch_scc1 L_HELP2")
    e("s_barrier")
    e("L_HELP2:")
    e(f"s_add_u32 s{sBB}, s{sBB}, {GB}")
    e(f"s_cmp_lt_u32 s{sBB}, s{sNBMAX}")
    e(f"s_cbranch_scc1 L_NEXTB")
    e(f"s_cmp_lg_u32 s{sHOP}, 0")
    e("s_cbranch_scc1 L_FIN")
    e("v_mov_b32 v53, 0")
    e("s_branch L_SYNC2")
    e(f"L_NEXTB:")
    e("s_waitcnt vmcnt(0) lgkmcnt(0)")
    e("s_barrier")
    e(f"s_branch L_BATCH")
    e(f"L_END:")
    e("s_endpgm")

head = open("standalone__spectral_conv_sgc__graph.s.ref").read().split("; Override")[0]
e(head.rstrip())
e(f"; @launch grid=(256,1,1) block=(1024,1,1) lds={L_END}")
e('.amdgcn_target "amdgcn-amd-amdhsa--gfx950"')
e(".text")
body()
e('.section .rodata,"a"')
e(".p2align 6")
acc = (NV + 3) // 4 * 4
e(f""".amdhsa_kernel {NAME}
  .amdhsa_next_free_vgpr {NV}
  .amdhsa_next_free_sgpr {NS}
  .amdhsa_accum_offset {acc}
  .amdhsa_group_segment_fixed_size 0
  .amdhsa_kernarg_size 64
  .amdhsa_user_sgpr_count 2
  .amdhsa_user_sgpr_kernarg_segment_ptr 1
  .amdhsa_system_sgpr_workgroup_id_x 1
  .amdhsa_float_denorm_mode_32 3
.end_amdhsa_kernel
""")
open(sys.argv[1], "w").write("\n".join(out) + "\n")
```

```python
import sys

class Cfg:
    D = 2
    TS = 0
    PF2 = 5
    DW = 1
    RL = 1
    NPR = 3
    SKP = 1
    XD = 0
    SH = 16
    TE = 0
    R1 = 1
    FF = 1
    LV = 1
    FAIL = 0
    EP = 1
    AE = 0
    KV = 0
    HN = 1
    PACE = 7
    EFLAG = ""
    OUTFLAG = "sc1"
    SLEEP = 0
    LATE = 1
    HW = 0
    PFE = 0
    SA = 0
    WST = 32
    DEF = 1
    ENT = 0
    CLI = 1
    RN = 4
    TYP = "RS"
    POL = -1
    SPL = 5
    XMASK = 0
    PFA = 0
    PFS = 4
    PFO = 0
    VW0 = 7
    VW1 = 7
    PFB = 0
    PFD = 0
    PFE2 = 0
    PFX = -1
    SP = 7
    PFC = 0
    PEER = 0
    OWN = 2
    RW = 1
    CPF = 1
cfg = Cfg()
for a in sys.argv[2:]:
    k, v = a.split("=")
    cur = getattr(cfg, k)
    setattr(cfg, k, int(v) if isinstance(cur, int) else v.replace("+", " "))

N = 50000; E = 850000
NB = 196; CH = 3328; MAG = 85599
CG = 1280
TAB_OFF = 0x680000
SY_OFF = 0x700000
RP_OFF = 0x710000
HS_OFF = 0x760000
RS_OFF = 0x740000
QS_OFF = 0x770000
PR_OFF = 0x720000
H1_OFF = 0x800000
H1B = 784 * 16384
TS_OFF = 0x1600000
WS_USED = 0x1800000
ROWB = N * 128
SPIN_FAST = 4096
SPIN_MAX = 1 << 21
GB = 128

SPL = cfg.SPL
NW = SPL + -(-(NB - 8 * SPL) // 16)
NNORM = NW - SPL
NSLOT = 8 * SPL + 16 * NNORM
assert NW <= 16
L_NT = 0
L_D = 2048
L_WT = L_D + 8192
L_CNT = L_WT + 8192
L_DH = L_CNT + 4352
L_MISC = L_DH + 256
L_ZEND2 = L_MISC + 256
L_Q = L_ZEND2
L_HIST = L_ZEND2
L_STAGE = L_HIST + 1024
L_ZEND = L_STAGE + CG * 24
L_RECS = L_STAGE
RDELTA = 27648
L_TILE = L_RECS + 2 * RDELTA
L_END = L_TILE + NW * 2048
assert L_TILE % 128 == 0 and L_RECS + RDELTA < 65536 and RDELTA % 512 == 0 and L_RECS % 16 == 0

out = []
def e(s=""):
    out.append(s)

def srd(d, lo, nrec, off=0):
    if off:
        e(f"s_add_u32 s{d}, s{lo}, 0x{off:x}")
        e(f"s_addc_u32 s{d+1}, s{lo+1}, 0")
    else:
        e(f"s_mov_b32 s{d}, s{lo}")
        e(f"s_mov_b32 s{d+1}, s{lo+1}")
    e(f"s_mov_b32 s{d+2}, 0x{nrec:x}")
    e(f"s_mov_b32 s{d+3}, 0x20000")

def dpp_add(v, ctl):
    e(f"v_add_u32_dpp v{v}, v{v}, v{v} {ctl}")
SCAN = [f"row_shr:{s} row_mask:0xf bank_mask:0xf bound_ctrl:0" for s in (1, 2, 4, 8)] + \
       ["row_bcast:15 row_mask:0xa bank_mask:0xf", "row_bcast:31 row_mask:0xc bank_mask:0xf"]
def scan64(v, fill=(), steps=SCAN):
    fill = list(fill)
    for ctl in steps:
        dpp_add(v, ctl)
        if len(fill) >= 2:
            e(fill.pop(0)); e(fill.pop(0))
        elif len(fill) == 1:
            e(fill.pop(0)); e("s_nop 0")
        else:
            e("s_nop 1")
    for f in fill:
        e(f)

T3, G, WS, O, T1, T2 = 4, 8, 12, 16, 20, 24
sW, sTB, sBB, sNBMAX, s128, sCNT, sT, sNR = 28, 29, 30, 31, 32, 33, 34, 36
sHOP, sN0, sSPIN = 37, 38, 39
sM = 40
sNODE = 52
sTMP = 54
sI4, sPN = 56, 57
sMODE = 66
sSTR = 64
sQ = 59
sK, sSEL = 60, 61
sVAL = 58
pW, pOUT, pDBG = 60, 62, 64
sC1, sC2, sC3 = 40, 41, 42
sTS = 68
NS = 102 if cfg.TS else 68
vLANE, vE, vP, vSEL0, vSEL1, vLOFF, vONE = 1, 2, 3, 4, 5, 6, 7
vACC = 8
vPA, vEA, vPB, vEB, vROWA, vROWB, vAD, vPFD = 24, 25, 26, 27, 28, 29, 30, 31
vST = 120
vTW, vTR = 36, 37
vQM, vQA = 32, 33
vTP = 38
D = cfg.D
vDATA = 40
vAOP = vDATA + 16 * D
vW = max(vAOP + 8 * D, 88)
NV = 128
assert D == 2 and vW + 32 <= vST
assert NV <= 128
vX = 72
vTA, vE2 = 62, 63

def ts(slot, mode=1):
    if cfg.TS == 2 and mode == 1 and slot in (4, 5, 6, 7):
        return
    if cfg.TS == 1 and mode == 2:
        return
    if cfg.TS:
        e(f"s_memrealtime s[{sTS+2*slot}:{sTS+2*slot+1}]")
        e("s_waitcnt lgkmcnt(0)")
def ts_dump():
    if not cfg.TS:
        return
    e("s_waitcnt vmcnt(0)")
    ts(13)
    e(f"s_lshl_b32 s{sT}, s2, 4")
    e(f"s_add_u32 s{sT}, s{sT}, s{sW}")
    e(f"s_lshl_b32 s{sT}, s{sT}, 7")
    e(f"s_add_u32 s{sT}, s{sT}, 0x{TS_OFF:x}")
    e("s_mov_b64 exec, 1")
    e(f"v_mov_b32 v40, s{sT}")
    for i in range(8):
        for j in range(4):
            e(f"v_mov_b32 v{44+4*i+j}, s{sTS+4*i+j}")
        e(f"buffer_store_dwordx4 v[{44+4*i}:{47+4*i}], v40, s[{WS}:{WS+3}], 0 offen offset:{16*i}")

lbl = [0]
def newlab(p):
    lbl[0] += 1
    return f"L_{p}{lbl[0]}"
def spin_tail(loop, done):
    slow = newlab("SLW")
    e(f"s_add_u32 s{sSPIN}, s{sSPIN}, 1")
    e(f"s_cmp_ge_u32 s{sSPIN}, {SPIN_FAST}")
    e(f"s_cbranch_scc1 {slow}")
    if cfg.SLEEP:
        e(f"s_sleep {cfg.SLEEP}")
    e(f"s_branch {loop}")
    e(f"{slow}:")
    e(f"s_cmp_ge_u32 s{sSPIN}, {SPIN_MAX}")
    e(f"s_cbranch_scc1 {done}")
    e("s_sleep 64")
    e(f"s_branch {loop}")
def arrive_a(b, v=40):
    e(f"s_and_b32 s{sT}, s2, 7")
    e(f"s_lshl_b32 s{sT}, s{sT}, 8")
    e(f"s_add_u32 s{sT}, s{sT}, 0x{SY_OFF + b*cfg.WST:x}")
    if cfg.SA:
        sa = 67
        e(f"s_mov_b32 s{sa}, 1")
        e(f"s_atomic_add s{sa}, s[{WS}:{WS+1}], s{sT} glc")
        return
    e(f"v_mov_b32 v{v}, s{sT}")
    e(f"v_mov_b32 v{v+1}, 1")
    e("s_mov_b64 exec, 1")
    e(f"buffer_atomic_add v{v+1}, v{v}, s[{WS}:{WS+3}], 0 offen sc0 sc1")
def arrive_b(b, v=40, cnt=0, after=None):
    lab = newlab("ARR")
    sp = cfg.SP >> b & 1
    e("s_mov_b64 exec, -1" if sp else "s_mov_b64 exec, 0xff")
    e(f"v_lshlrev_b32 v{v+2}, 8, v{vLANE}")
    e(f"v_add_u32 v{v+2}, 0x{SY_OFF + 2048 + b*cfg.WST:x}, v{v+2}")
    if cfg.SA:
        e("s_waitcnt lgkmcnt(0)")
        e(f"s_cmp_lg_u32 s67, 31")
    else:
        e(f"s_waitcnt vmcnt({cnt})")
        e(f"v_readfirstlane_b32 s{sT}, v{v+1}")
        e(f"s_cmp_lg_u32 s{sT}, 31")
    e(f"s_cbranch_scc1 {lab}")
    e(f"buffer_atomic_add v{vONE}, v{v+2}, s[{WS}:{WS+3}], 0 offen sc1")
    if after:
        for x in after:
            e(x)
    e(f"{lab}:")
    e("s_mov_b64 exec, -1")
def arrive(b, mid=None):
    arrive_a(b)
    if mid:
        e(mid)
    arrive_b(b)
def rcount():
    lab = newlab("RC")
    e(f"v_mov_b32 v64, {L_MISC+8}")
    e("s_mov_b64 exec, 1")
    e(f"ds_add_rtn_u32 v65, v64, v{vONE}")
    e("s_waitcnt lgkmcnt(0)")
    e("v_cmp_eq_u32 vcc, 13, v65")
    e("s_mov_b64 exec, -1")
    e(f"s_cbranch_vccz {lab}")
    arrive_a(1, 64)
    if cfg.DEF:
        e("s_mov_b64 exec, -1")
        e(f"s_mov_b32 s{sPN}, 1")
    else:
        arrive_b(1, 64)
    e(f"{lab}:")
def poll_a(b):
    if cfg.SP >> b & 1:
        return
    e(f"s_and_b32 s{sSPIN}, s2, 7")
    e(f"s_lshl_b32 s{sSPIN}, s{sSPIN}, 8")
    e(f"s_add_u32 s{sSPIN}, s{sSPIN}, 0x{SY_OFF + 2048 + b*cfg.WST:x}")
    e(f"v_mov_b32 v{vTP}, s{sSPIN}")
    e("s_mov_b64 exec, 1")
    e(f"buffer_load_dword v{vTP+1}, v{vTP}, s[{WS}:{WS+3}], 0 offen sc1")
def poll_b(b):
    lab = newlab("POLL")
    if cfg.SP >> b & 1:
        e(f"s_and_b32 s{sT}, s2, 63")
        e(f"s_lshl_b32 s{sT}, s{sT}, 8")
        e(f"s_add_u32 s{sT}, s{sT}, 0x{SY_OFF + 2048 + b*cfg.WST:x}")
        e(f"s_mov_b32 s{sSPIN}, 0")
        e(f"{lab}:")
        e(f"s_load_dword s{sT+1}, s[{WS}:{WS+1}], s{sT} glc")
        e("s_waitcnt lgkmcnt(0)")
        e(f"s_cmp_eq_u32 s{sT+1}, 8")
        e(f"s_cbranch_scc1 {lab}x")
        spin_tail(lab, lab + "x")
        e(f"{lab}x:")
        return
    e("s_mov_b64 exec, 1")
    e(f"s_mov_b32 s{sSPIN}, 0")
    e(f"s_branch {lab}c")
    e(f"{lab}:")
    e(f"buffer_load_dword v{vTP+1}, v{vTP}, s[{WS}:{WS+3}], 0 offen sc1")
    e(f"{lab}c:")
    e("s_waitcnt vmcnt(0)")
    e(f"v_cmp_eq_u32 vcc, 8, v{vTP+1}")
    e(f"s_cbranch_vccnz {lab}x")
    spin_tail(lab, lab + "x")
    e(f"{lab}x:")
    e("s_mov_b64 exec, -1")
def poll(b):
    poll_a(b)
    poll_b(b)

def probe_off(d):
    e(f"s_lshr_b32 s{d}, s2, 6")
    e(f"s_lshl_b32 s{d}, s{d}, 6")
    e(f"s_add_u32 s{d}, s{d}, s2")
    e(f"s_lshl_b32 s{d}, s{d}, 7")
    e(f"s_add_u32 s{d}, s{d}, 0x{PR_OFF:x}")
def bar_bump_addr(v):
    if cfg.SH == 16:
        e(f"s_bfe_u32 s{sT}, s2, 0x40003")
        e(f"s_lshl_b32 s{sT}, s{sT}, 6")
    else:
        e(f"s_bfe_u32 s{sT}, s2, 0x30003")
        e(f"s_lshl_b32 s{sT}, s{sT}, 7")
    e(f"v_lshl_add_u32 v{v}, v{vLANE}, 10, s{sT}")
def bar_issue(sa, d):
    e(f"s_load_dword s{d}, s[{WS}:{WS+1}], s{sa} glc")
    if cfg.SH == 16:
        e(f"s_load_dword s{d+1}, s[{WS}:{WS+1}], s{sa+1} glc")
def bar_poll(sa, done, d=None, issued=False):
    lab = newlab("BP")
    d = sT if d is None else d
    e(f"s_mov_b32 s{sSPIN}, 0")
    if issued:
        e(f"s_branch {lab}c")
    else:
        e(f"s_add_u32 s{sa+1}, s{sa}, 64")
    e(f"{lab}:")
    bar_issue(sa, d)
    e("s_waitcnt lgkmcnt(0)")
    e(f"{lab}c:")
    if cfg.SH == 16:
        e(f"s_add_u32 s{d}, s{d}, s{d+1}")
    e(f"s_cmp_eq_u32 s{d}, 32")
    e(f"s_cbranch_scc1 {done}")
    spin_tail(lab, done)
def pf_addr(v, first_wave, base_instr):
    e(f"s_lshr_b32 s{sT}, s2, 3")
    if cfg.PFB:
        e(f"s_and_b32 s{sT+1}, s{sW}, 1")
        e(f"s_xor_b32 s{sT}, s{sT}, s{sT+1}")
    e(f"s_lshl_b32 s{sT}, s{sT}, 6")
    e(f"s_sub_u32 s{sT+1}, s{sW}, {first_wave - base_instr}")
    e(f"s_lshl_b32 s{sT+1}, s{sT+1}, 11")
    e(f"s_add_u32 s{sT}, s{sT}, s{sT+1}")
    if cfg.PFX >= 0:
        e(f"s_lshl_b32 s{sT}, s{sT}, 1")
    e(f"v_add_u32 v{v}, s{sT}, v{vLANE}")
    if cfg.PFS != 4:
        e(f"v_mul_u32_u24 v{v}, {cfg.PFS}, v{v}")
        e(f"v_lshrrev_b32 v{v}, 2, v{v}")
    if cfg.PFO:
        e(f"v_add_u32 v{v}, {cfg.PFO}, v{v}")
    e(f"s_and_b32 s{sT}, s2, 7")
    e(f"s_mul_i32 s{sT}, s{sT}, 6272")
    e(f"v_add_u32 v{v}, s{sT}, v{v}")
    e(f"v_subrev_u32 v{v+1}, 50176, v{v}")
    e(f"v_min_u32 v{v}, v{v}, v{v+1}")
    e(f"v_lshlrev_b32 v{v}, 7, v{v}")
    if cfg.PFX >= 0:
        e(f"s_lshl_b32 s{sT}, s2, 11")
        e(f"s_xor_b32 s{sT}, s{sT}, {cfg.PFX << 13}")
        e(f"v_lshrrev_b32 v{v+1}, 8, v{v}")
        e(f"v_xor_b32 v{v+1}, s{sT}, v{v+1}")
        e(f"v_and_b32 v{v+1}, 0x2000, v{v+1}")
        e(f"v_or_b32 v{v}, v{v}, v{v+1}")

NAME = "standalone__spectral_conv_sgc__graph_kernel"
def body():
    e(f".globl {NAME}")
    e(".p2align 8")
    e(f".type {NAME},@function")
    e(f"{NAME}:")
    def cpf():
        if cfg.CPF:
            e("s_getpc_b64 s[54:55]")
            e("L_PC0:")
            e("v_lshlrev_b32 v43, 7, v0")
            e("v_cmp_gt_u32 vcc, L_END-L_PC0, v43")
            e("s_and_saveexec_b64 s[40:41], vcc")
            e("s_cbranch_execz L_NOCPF")
            e(f"global_load_dword v{vPFD}, v43, s[54:55]")
            e("L_NOCPF:")
            e("s_mov_b64 exec, -1")
    def zero1():
        for i in range(4):
            e(f"v_mov_b32 v{vACC+i}, 0")
        e(f"v_lshlrev_b32 v54, 4, v0")
        e(f"ds_write_b128 v54, v[{vACC}:{vACC+3}] offset:{L_CNT}")
    def ld_dst():
        e(f"buffer_load_dwordx4 v[44:47], v41, s[{T1}:{T1+3}], 0 offen {cfg.EFLAG}")
    def ld_sn():
        e(f"buffer_load_dwordx4 v[48:51], v41, s[{T2}:{T2+3}], 0 offen {cfg.EFLAG}")
        e(f"buffer_load_dwordx2 v[52:53], v42, s[{T3}:{T3+3}], 0 offen {cfg.EFLAG}")
    def sn_consts():
        e("v_lshrrev_b32 v42, 1, v41")
        e(f"s_mov_b64 s[{T2+2}:{T2+3}], s[{T1+2}:{T1+3}]")
        e(f"s_lshr_b32 s{T3+2}, s{T1+2}, 1")
        e(f"s_mov_b32 s{T3+3}, s{T1+3}")
    if cfg.TS:
        e(f"s_memrealtime s[{sTS}:{sTS+1}]")
    e(f"s_load_dwordx2 s[{T1}:{T1+1}], s[0:1], 16")
    if cfg.ENT != 1:
        e(f"s_load_dwordx2 s[{T2}:{T2+1}], s[0:1], 8")
        e(f"s_load_dwordx2 s[{T3}:{T3+1}], s[0:1], 24")
    e("s_cmpk_ge_u32 s2, 256")
    e("s_cbranch_scc1 L_END")
    if cfg.ENT == 0:
        e(f"s_load_dwordx2 s[{WS}:{WS+1}], s[0:1], 56")
        e(f"s_load_dwordx2 s[{O}:{O+1}], s[0:1], 48")
        cpf()
        zero1()
    e(f"s_lshl_b32 s{sT}, s2, 4")
    e(f"v_and_or_b32 v41, v0, 15, s{sT}")
    e(f"v_lshrrev_b32 v40, 4, v0")
    e(f"v_lshl_add_u32 v40, v40, 12, v41")
    e("v_lshlrev_b32 v41, 4, v40")
    e(f"s_mov_b32 s{T1+2}, 0x{E*4:x}")
    e(f"s_mov_b32 s{T1+3}, 0x20000")
    if cfg.ENT == 2:
        sn_consts()
    e("s_waitcnt lgkmcnt(0)")
    ld_dst()
    if cfg.ENT == 2:
        ld_sn()
    if cfg.ENT == 1:
        e(f"s_load_dwordx2 s[{T2}:{T2+1}], s[0:1], 8")
        e(f"s_load_dwordx2 s[{T3}:{T3+1}], s[0:1], 24")
    if cfg.ENT != 0:
        e(f"s_load_dwordx2 s[{WS}:{WS+1}], s[0:1], 56")
        cpf()
        zero1()
    if cfg.ENT != 2:
        sn_consts()
    e(f"v_cmp_gt_u32 vcc, 832, v0")
    e(f"s_mov_b32 s{WS+2}, 0x{WS_USED:x}")
    e(f"s_mov_b32 s{WS+3}, s{T1+3}")
    if cfg.TS:
        for i in range(1, 16):
            e(f"s_mov_b64 s[{sTS+2*i}:{sTS+2*i+1}], 0")
    if cfg.R1:
        e(f"s_and_b32 s{sT}, s2, 0xc7")
    else:
        e(f"s_and_b32 s{sT}, s2, 0xff")
    e("s_waitcnt lgkmcnt(0)")
    e("s_cbranch_vccz L_H0")
    e("s_barrier")
    if cfg.ENT != 2:
        ld_sn()
    e("s_branch L_E0")
    e("L_H0:")
    e(f"s_movk_i32 s{O+2}, 256")
    e(f"s_mov_b32 s{O+3}, s{T1+3}")
    e("s_cbranch_scc1 L_H05")
    e(f"v_cmp_gt_u32 vcc, 960, v0")
    e("s_cbranch_vccnz L_H05")
    if cfg.R1:
        e(f"s_lshl_b32 s{sT}, s2, 10")
        e(f"s_add_u32 s{sT}, s{sT}, 0x{RS_OFF - 960*16:x}")
        e(f"s_add_u32 s{sT+1}, s{sT}, 8192")
        e("L_ZLOOP:")
        e(f"buffer_store_dwordx4 v[{vACC}:{vACC+3}], v54, s[{WS}:{WS+3}], s{sT} offen sc1")
        e(f"s_addk_i32 s{sT}, 1024")
    else:
        e(f"v_and_b32 v40, 7, v0")
        e(f"v_and_b32 v43, 56, v0")
        e(f"v_lshl_add_u32 v43, v43, 1, v40")
        e(f"v_lshlrev_b32 v43, 4, v43")
        e(f"s_mov_b32 s{sT}, 0x{SY_OFF:x}")
        e(f"s_add_u32 s{sT+1}, s{sT}, {9*2048}")
        e("L_ZLOOP:")
        e(f"buffer_store_dwordx4 v[{vACC}:{vACC+3}], v43, s[{WS}:{WS+3}], s{sT} offen sc1")
        e(f"s_addk_i32 s{sT}, 2048")
    e(f"s_cmp_lt_u32 s{sT}, s{sT+1}")
    e("s_cbranch_scc1 L_ZLOOP")
    e("L_H05:")
    if cfg.DW:
        e(f"buffer_load_dword v{vPFD}, v{vACC}, s[{O}:{O+3}], 0 offen offset:128")
    e("L_H1:")
    e("s_barrier")
    e("s_branch L_P1H1")
    e("L_E0:")
    assert L_ZEND - (L_CNT + 16384) <= 2 * 13312
    e(f"ds_write_b128 v54, v[{vACC}:{vACC+3}] offset:{L_CNT+16384}")
    e(f"v_add_u32 v54, {L_ZEND-13312}, v54")
    e(f"ds_write_b128 v54, v[{vACC}:{vACC+3}]")
    e(f"v_cmp_gt_u32 vcc, {E//4}, v40")
    e(f"v_mov_b32 v{vONE}, 1")
    e(f"s_mov_b32 s{sC1}, -196")
    e(f"s_mov_b32 s{sC2}, 0x05040100")
    e(f"s_mov_b32 s{sC3}, 0x07060100")
    e(f"v_mov_b32 v43, {L_MISC+12}")
    e(f"v_mul_u32_u24 v80, 24, v0")
    e(f"v_add_u32 v80, {L_STAGE}, v80")
    e(f"v_add_u32 v81, {832*24}, v80")
    e(f"s_mul_i32 s{sT}, s2, {CG*16}")
    e(f"v_lshl_add_u32 v41, v0, 4, s{sT}")
    e(f"v_add_u32 v42, {832*16}, v41")
    e(f"v_add_u32 v82, 832, v0")
    e(f"s_mov_b64 exec, vcc")
    e(f"s_waitcnt vmcnt(2)")
    for i in range(4):
        e(f"v_mul_u32_u24 v{74+i}, {MAG}, v{44+i}")
    for i in range(4):
        e(f"v_lshrrev_b32 v{70+i}, 24, v{74+i}")
        e(f"v_lshlrev_b32 v{54+i}, 2, v{70+i}")
        e(f"ds_add_rtn_u32 v{58+i}, v{54+i}, v{vONE} offset:{L_HIST}")
    e("s_waitcnt lgkmcnt(0)")
    ts(1)
    e("s_barrier")
    for i in range(4):
        e(f"v_mad_i32_i24 v{44+i}, v{70+i}, s{sC1}, v{44+i}")
        e(f"v_and_b32 v{74+i}, 0xe0000000, v{74+i}")
        e(f"v_add_u32 v{44+i}, 1, v{44+i}")
    def keys():
        e(f"s_waitcnt vmcnt(1)")
        ts(5, 2)
        for i in range(4):
            e(f"v_mul_u32_u24 v78, {MAG}, v{48+i}")
            e(f"v_sub_u32 v78, v78, v{74+i}")
            e(f"v_bfe_u32 v78, v78, 29, 2")
            e(f"v_lshl_or_b32 v{63+2*i}, v{44+i}, 2, v78")
    def perms():
        e(f"s_waitcnt vmcnt(0)")
        for i in range(4):
            e(f"v_perm_b32 v{62+2*i}, v{52+i//2}, v{48+i}, s{sC2 if i%2==0 else sC3}")
    if cfg.KV:
        keys()
    if cfg.KV == 2:
        perms()
    e("s_barrier")
    ts(4, 2)
    for i in range(4):
        e(f"ds_read_b32 v{54+i}, v{54+i} offset:{L_HIST}")
    e("s_mov_b64 exec, -1")
    e(f"ds_read_b32 v43, v43")
    e(f"s_mov_b64 exec, vcc")
    if not cfg.KV:
        keys()
    if cfg.KV != 2:
        perms()
    ts(6, 2)
    for i in range(4):
        e(f"s_waitcnt lgkmcnt(4)")
        e(f"v_lshl_add_u32 v{58+i}, v{58+i}, 3, v{54+i}")
        e(f"ds_write_b64 v{58+i}, v[{62+2*i}:{63+2*i}] offset:{L_STAGE}")
    e("s_mov_b64 exec, -1")
    e("s_waitcnt lgkmcnt(0)")
    e(f"v_cmp_lt_u32 vcc, v82, v43")
    ts(7, 2)
    if cfg.XD == 1:
        e("s_sleep 16")
    e("s_barrier")
    def rd3(d, a):
        e(f"ds_read_b64 v[{d}:{d+1}], v{a}")
        e(f"ds_read_b64 v[{d+4}:{d+5}], v{a} offset:8")
        e(f"ds_read_b64 v[{d+2}:{d+3}], v{a} offset:16")
    def pk3(d):
        e(f"v_lshl_or_b32 v{d+3}, v{d+3}, 10, v{d+5}")
        e(f"v_lshl_or_b32 v{d+3}, v{d+3}, 10, v{d+1}")
        e(f"v_mov_b32 v{d+1}, v{d+4}")
    rd3(44, 80)
    e("s_cbranch_vccz L_ST1")
    e("s_mov_b64 exec, vcc")
    rd3(56, 81)
    e("s_waitcnt lgkmcnt(0)")
    pk3(56)
    e(f"buffer_store_dwordx4 v[56:59], v42, s[{WS}:{WS+3}], 0 offen sc1")
    e("s_mov_b64 exec, -1")
    e("L_ST1:")
    e("s_waitcnt lgkmcnt(0)")
    pk3(44)
    e(f"buffer_store_dwordx4 v[44:47], v41, s[{WS}:{WS+3}], 0 offen sc1")
    ts(2)
    e("s_branch L_P1_JOIN")
    e("L_P1H1:")
    e(f"v_and_b32 v{vLANE}, 63, v0")
    e(f"v_and_b32 v40, 7, v0")
    e(f"v_lshlrev_b32 v{vLOFF}, 4, v40")
    e(f"v_mov_b32 v{vONE}, 1")
    e(f"v_cmp_gt_u32 vcc, 960, v0")
    e("s_cbranch_vccnz L_P1H2")
    e(f"s_and_b32 s{sT}, s2, {'0xc7' if cfg.R1 else '0xff'}")
    e("s_cbranch_scc1 L_W15_B")
    for i in range(4):
        e(f"v_mov_b32 v{56+i}, 1")
    e(f"s_lshl_b32 s{sT}, s2, 1")
    e(f"s_mov_b64 exec, {'1' if cfg.R1 else '0xff'}")
    e(f"s_waitcnt vmcnt({1 if cfg.DW else 0})")
    e(f"buffer_store_dwordx4 v[56:59], v{vLOFF}, s[{O}:{O+3}], s{sT} offen sc1")
    e("L_W15_B:")
    e(f"s_lshl_b32 s{sT}, s2, 8")
    e(f"s_add_u32 s{sT}, s{sT}, 0x{HS_OFF - 960*16:x}")
    e(f"s_add_u32 s{sT+1}, s{sT}, 0x{QS_OFF - HS_OFF:x}")
    e("s_mov_b64 exec, 0xffff")
    e(f"buffer_store_dwordx4 v[{vACC}:{vACC+3}], v54, s[{WS}:{WS+3}], s{sT} offen sc1")
    e("s_cmp_ge_u32 s2, 8")
    e("s_cbranch_scc1 L_W15_C")
    e(f"buffer_store_dwordx4 v[{vACC}:{vACC+3}], v54, s[{WS}:{WS+3}], s{sT+1} offen sc1")
    e("L_W15_C:")
    e("s_mov_b64 exec, -1")
    e("s_barrier")
    e("s_barrier")
    e("s_barrier")
    e("s_waitcnt lgkmcnt(0)")
    e("s_branch L_P1_JOIN")
    e("L_P1H2:")
    e(f"s_load_dwordx2 s[{pW}:{pW+1}], s[0:1], 32")
    e(f"v_cmp_gt_u32 vcc, 896, v0")
    e("s_waitcnt lgkmcnt(0)")
    e("s_cbranch_vccnz L_P1_W13")
    srd(T1, pW, 8192)
    e(f"v_lshlrev_b32 v40, 4, v{vLANE}")
    e(f"v_add_u32 v41, 4096, v40")
    for i in range(8):
        e(f"buffer_load_dwordx4 v[{44+4*i}:{47+4*i}], v{40+i//4}, s[{T1}:{T1+3}], 0 offen offset:{1024*(i%4)}")
    e(f"v_lshrrev_b32 v43, 3, v{vLANE}")
    e(f"v_lshlrev_b32 v43, 1, v43")
    e(f"v_lshl_add_u32 v43, v{vLOFF}, 1, v43")
    e("s_barrier")
    e("s_barrier")
    e("s_barrier")
    e(f"s_waitcnt vmcnt(0)")
    for i in range(8):
        for el in range(8):
            off = L_WT + (el & 3) * 2048 + (el >> 2) * 16 + (i & 3) * 256 + (i >> 2) * 1024
            op = "ds_write_b16" if el % 2 == 0 else "ds_write_b16_d16_hi"
            e(f"{op} v43, v{44+4*i+el//2} offset:{off}")
    e("s_branch L_P1_JOIN")
    e("L_P1_W13:")
    e("s_setprio 3")
    e(f"v_lshlrev_b32 v79, 4, v{vLANE}")
    e(f"s_lshl_b32 s{sT}, s2, 10")
    e(f"s_add_u32 s{sT}, s{sT}, 0x{TAB_OFF:x}")
    e(f"v_add_u32 v78, s{sT}, v79")
    e(f"v_mov_b32 v75, {L_MISC+12}")
    e(f"s_mov_b32 s{sT}, 43691")
    e(f"v_mov_b32 v74, {2*43691}")
    e("s_barrier")
    e(f"ds_read_b128 v[80:83], v79 offset:{L_HIST}")
    e("s_waitcnt lgkmcnt(0)")
    for i in range(4):
        e(f"v_mad_u32_u24 v{80+i}, v{80+i}, s{sT}, v74")
    for i in range(4):
        e(f"v_lshrrev_b32 v{80+i}, 17, v{80+i}")
    e("v_add_u32 v85, v80, v81")
    e("v_add_u32 v86, v85, v82")
    e("v_add_u32 v87, v86, v83")
    e("v_mov_b32 v84, v87")
    e("s_nop 1")
    scan64(84)
    e("v_mov_b32 v76, v84")
    e("v_sub_u32 v84, v84, v87")
    e("v_add_u32 v87, v84, v86")
    e("v_add_u32 v86, v84, v85")
    e("v_add_u32 v85, v84, v80")
    for i in range(4):
        e(f"v_mul_u32_u24 v{68+i}, 24, v{84+i}")
    e(f"ds_write_b128 v79, v[68:71] offset:{L_HIST}")
    e(f"s_mov_b32 exec_lo, 0")
    e(f"s_mov_b32 exec_hi, 0x80000000")
    e("ds_write_b32 v75, v76")
    e("s_mov_b64 exec, -1")
    for i in range(4):
        e(f"v_lshl_or_b32 v{80+i}, v{80+i}, 16, v{84+i}")
    e(f"buffer_store_dwordx4 v[80:83], v78, s[{WS}:{WS+3}], 0 offen sc1")
    e("s_waitcnt lgkmcnt(0)")
    e("s_barrier")
    e("s_mov_b64 exec, 0xff")
    if not cfg.RL:
        e(f"buffer_load_dword v76, v{vLOFF}, s[{O}:{O+3}], 0 offen sc1")
    e("s_barrier")
    e(f"s_mov_b32 s{sSPIN}, 0")
    if not cfg.RL:
        e("s_branch L_RDY1")
    e("L_RDY:")
    e(f"buffer_load_dword v76, v{vLOFF}, s[{O}:{O+3}], 0 offen sc1")
    e("L_RDY1:")
    e("s_waitcnt vmcnt(0)")
    e("v_cmp_ne_u32 vcc, 1, v76")
    e("s_cbranch_vccz L_RDYX")
    spin_tail("L_RDY", "L_RDYX")
    e("L_RDYX:")
    e("s_setprio 0")
    e("s_mov_b64 exec, -1")
    ts(1)
    e("L_P1_JOIN:")
    e(f"s_load_dwordx2 s[{G}:{G+1}], s[0:1], 0")
    e(f"s_load_dwordx2 s[{pOUT}:{pOUT+1}], s[0:1], 40")
    e(f"v_lshrrev_b32 v{vX+5}, 6, v0")
    e("s_and_b32 s3, s2, 7")
    e(f"v_readfirstlane_b32 s{sW}, v{vX+5}")
    e("s_lshl_b32 s3, s3, 5")
    e(f"s_lshr_b32 s{sT}, s2, 3")
    e(f"s_or_b32 s3, s3, s{sT}")
    e(f"v_and_b32 v{vLANE}, 63, v0")
    e(f"s_mov_b32 s{s128}, 128")
    e(f"s_mov_b32 s{sBB}, 0")
    e(f"s_mov_b32 s{sHOP}, 0")
    e(f"s_mov_b32 s{sMODE}, 0")
    for i in range(4, 16):
        e(f"v_mov_b32 v{vACC+i}, 0")
    e(f"v_and_b32 v{vX+4}, 7, v0")
    e(f"v_lshlrev_b32 v{vLOFF}, 4, v{vX+4}")
    e(f"v_and_b32 v{vX+4}, 1, v0")
    e(f"v_mov_b32 v{vX+5}, 0x0c0c0302")
    e(f"v_mov_b32 v{vX+6}, 0x03020c0c")
    e(f"v_cmp_eq_u32 vcc, 1, v{vX+4}")
    e(f"v_mov_b32 v{vX+7}, 0x0c0c0c0c")
    e(f"v_and_b32 v{vX+4}, 2, v0")
    e(f"v_cndmask_b32 v{vX+5}, v{vX+5}, v{vX+6}, vcc")
    e(f"v_cmp_eq_u32 vcc, 2, v{vX+4}")
    e(f"v_mov_b32 v{vP}, 0")
    e(f"s_and_b32 s{sT}, s2, 7")
    e(f"s_lshl_b32 s{sT}, s{sT}, 8")
    e(f"s_add_u32 s{sQ-1}, s{sT}, 0x{QS_OFF:x}")
    e(f"s_mov_b32 s{G+2}, 0x{ROWB:x}")
    e(f"v_cndmask_b32 v{vSEL0}, v{vX+5}, v{vX+7}, vcc")
    e(f"v_cndmask_b32 v{vSEL1}, v{vX+7}, v{vX+5}, vcc")
    e(f"v_cmp_gt_u32 vcc, {NSLOT}, v0")
    e(f"s_mov_b64 s[{sNODE}:{sNODE+1}], vcc")
    e(f"s_mov_b32 s{G+3}, 0x20000")
    srd(O, WS, H1B, H1_OFF)
    e(f"v_and_b32 v{vX}, 60, v0")
    e(f"v_lshl_add_u32 v{vX}, v{vX}, 2, s{sW}")
    e(f"s_lshl_b32 s{sT}, s3, 2")
    e(f"s_add_u32 s{sT}, s{sT}, 0x{TAB_OFF:x}")
    e(f"v_lshl_add_u32 v{vTA}, v{vX}, 10, s{sT}")
    if cfg.R1:
        e(f"s_sub_u32 s{sI4}, s{sW}, 1")
        e(f"s_and_b32 s{sI4}, s{sI4}, 7")
        e(f"s_and_b32 s{sT}, s2, 63")
        e(f"s_lshl_b32 s{sT}, s{sT}, 3")
        e(f"s_add_u32 s{sI4}, s{sI4}, s{sT}")
        e(f"s_lshl_b32 s{sI4}, s{sI4}, 7")
        e(f"s_add_u32 s{sI4}, s{sI4}, 0x{RS_OFF:x}")
        e(f"s_add_u32 s{sI4+1}, s{sI4}, 64")
        if cfg.AE:
            bar_issue(sI4, 44)
        bar_bump_addr(64)
        e(f"s_mov_b32 s{sT}, 0x{RS_OFF:x}")
        if cfg.AE:
            e("s_waitcnt lgkmcnt(0)")
            e(f"s_add_u32 s44, s44, s45")
            e(f"s_cmp_lt_u32 s44, {cfg.AE}")
            e("s_cbranch_scc1 L_LATE")
            e(f"buffer_load_dword v{vE}, v{vTA}, s[{WS}:{WS+3}], 0 offen sc1")
            e(f"s_cmp_lg_u32 s{sW}, 0")
            e("s_waitcnt vmcnt(1)")
            e("s_barrier")
            e("s_branch L_A5X")
            e("L_LATE:")
        e(f"s_cmp_lg_u32 s{sW}, 0")
        e("s_waitcnt vmcnt(0) lgkmcnt(0)")
        ts(14)
        if cfg.TE:
            e(f"buffer_load_dword v{vE}, v{vTA}, s[{WS}:{WS+3}], 0 offen sc1")
        e("s_barrier")
        if not cfg.TE:
            e(f"buffer_load_dword v{vE}, v{vTA}, s[{WS}:{WS+3}], 0 offen sc1")
        e("L_A5X:")
        e("s_cbranch_scc1 L_NOARR")
        e(f"buffer_atomic_add v{vONE}, v64, s[{WS}:{WS+3}], s{sT} offen sc1")
        e("s_waitcnt vmcnt(1)")
        e("s_branch L_DECODE")
        e("L_NOARR:")
        e(f"s_cmp_gt_u32 s{sW}, 8")
        e("s_waitcnt vmcnt(0)")
        if cfg.EP:
            e("s_cbranch_scc1 L_DECODE")
            bar_issue(sI4, 44)
        e("s_branch L_DECODE")
    else:
        e(f"v_mov_b32 v64, {SY_OFF + cfg.WST - QS_OFF}")
        e(f"v_add_u32 v64, s{sQ-1}, v64")
        e(f"v_mov_b32 v65, 1")
        e(f"s_cmp_lg_u32 s{sW}, 0")
        e(f"s_cselect_b64 exec, -1, 1")
        e("s_waitcnt vmcnt(0) lgkmcnt(0)")
        ts(14)
        e("s_barrier")
        e("s_cbranch_scc1 L_NOARR")
        e(f"buffer_atomic_add v65, v64, s[{WS}:{WS+3}], 0 offen sc0 sc1")
        e("s_mov_b64 exec, -1")
        e(f"buffer_load_dword v{vE}, v{vTA}, s[{WS}:{WS+3}], 0 offen sc1")
        arrive_b(1, 64, 1, ["s_waitcnt vmcnt(1)", "s_branch L_DECODE"])
        e("s_waitcnt vmcnt(0)")
        e("s_branch L_DECODE")
        e("L_NOARR:")
        e(f"buffer_load_dword v{vE}, v{vTA}, s[{WS}:{WS+3}], 0 offen sc1")
        e("s_waitcnt vmcnt(0)")
        e("s_branch L_DECODE")

    e("L_BATCH:")
    e(f"s_mov_b32 s{sMODE}, 2")
    e(f"v_mov_b32 v{vX}, 0")
    e(f"v_mov_b32 v{vX+1}, 0")
    e(f"v_lshlrev_b32 v{vX+4}, 3, v0")
    e(f"v_cmp_gt_u32 vcc, {(L_ZEND2-L_CNT)//8}, v0")
    e(f"s_mov_b64 exec, vcc")
    e(f"ds_write_b64 v{vX+4}, v[{vX}:{vX+1}] offset:{L_CNT}")
    e("s_mov_b64 exec, -1")
    e("L_DECODE:")
    if cfg.FAIL:
        e(f"s_cmp_lg_u32 s{sMODE}, 0")
        e("s_cbranch_scc1 L_NOFAIL")
        e(f"s_and_b32 s{sT}, s2, 3")
        e(f"s_cmp_lg_u32 s{sT}, 1")
        e("s_cbranch_scc1 L_NOFAIL")
        e(f"s_cmp_lt_u32 s{sW}, {16 - cfg.FAIL}")
        e("s_cbranch_scc1 L_NOFAIL")
        e(f"v_mul_u32_u24 v{vE}, 0x9e3b, v{vE}")
        e(f"v_xor_b32 v{vE}, v{vE}, v0")
        e("L_NOFAIL:")
    vNG, vG0, vQ, vT, vB, vA = vX, vX+1, vX+2, vX+3, vX+4, vX+5
    vGR = 40
    vKEY = 48
    vRANK = 54
    vDS = 60
    e(f"v_and_b32 v{vG0}, 60, v0")
    e(f"v_lshl_add_u32 v{vG0}, v{vG0}, 2, s{sW}")
    e(f"v_mul_u32_u24 v{vG0}, {CG}, v{vG0}")
    e(f"v_and_b32 v{vT}, 3, v0")
    e(f"v_add_u32 v{vG0}, v{vG0}, v{vT}")
    e(f"s_lshl_b32 s{sT}, s{sW}, 9")
    e(f"s_add_u32 s{sT}, s{sT}, {L_D}")
    e(f"v_mov_b32 v{vGR+3}, 0")
    e(f"v_mov_b32 v{vGR+7}, 0")
    ts(4)
    e(f"v_lshrrev_b32 v{vNG}, 16, v{vE}")
    e(f"v_lshrrev_b32 v{vQ}, 16, v{vE}")
    e(f"v_and_b32 v{vB}, 0xffff, v{vE}")
    e(f"v_add_u32 v{vG0}, v{vG0}, v{vB}")
    scan64(vQ, fill=[f"v_sub_u32 v{vB}, v{vT}, v{vNG}", f"v_subrev_u32 v{vB}, s{sBB}, v{vB}",
                     f"v_cmp_lt_u32 s[{sTMP}:{sTMP+1}], v{vT}, v{vNG}", f"v_lshl_add_u32 v{vDS}, v{vLANE}, 2, s{sT}"], steps=SCAN[2:])
    e(f"v_readlane_b32 s{sTB}, v{vQ}, 63")
    e(f"v_add_u32 v{vB}, v{vB}, v{vQ}")
    e(f"L_DLOOP:")
    e(f"v_cmp_gt_u32 vcc, s{s128}, v{vB}")
    e(f"v_lshl_add_u32 v{vA}, v{vB}, 2, s{sT}")
    e(f"v_add_u32 v{vT}, 4, v{vT}")
    e(f"v_add_u32 v{vB}, 4, v{vB}")
    e(f"s_and_b64 exec, vcc, s[{sTMP}:{sTMP+1}]")
    e(f"ds_write_b32 v{vA}, v{vG0}")
    e("s_mov_b64 exec, -1")
    e(f"v_cmp_lt_u32 s[{sTMP}:{sTMP+1}], v{vT}, v{vNG}")
    e(f"v_cmp_gt_i32 vcc, s{s128}, v{vB}")
    e(f"v_add_u32 v{vG0}, 4, v{vG0}")
    e(f"s_and_b64 s[{sTMP}:{sTMP+1}], s[{sTMP}:{sTMP+1}], vcc")
    e(f"s_cbranch_scc1 L_DLOOP")
    e(f"ds_read2st64_b32 v[{vDS}:{vDS+1}], v{vDS} offset0:0 offset1:1")
    e(f"s_sub_i32 s{sNR}, s{sTB}, s{sBB}")
    e(f"v_add_u32 v{vA}, 64, v{vLANE}")
    e(f"v_cmp_gt_i32 s[{sM}:{sM+1}], s{sNR}, v{vLANE}")
    e(f"v_cmp_gt_i32 s[{sM+6}:{sM+7}], s{sNR}, v{vA}")
    ts(3)
    e("s_waitcnt lgkmcnt(0)")
    e(f"v_lshlrev_b32 v{vDS}, 4, v{vDS}")
    e(f"v_lshlrev_b32 v{vDS+1}, 4, v{vDS+1}")
    e(f"s_cmp_eq_u32 s{sMODE}, 1")
    e("s_cbranch_scc1 L_NOA6")
    if cfg.PFA:
        e(f"s_cmp_lt_u32 s{sW}, {16-cfg.PFA}")
        e("s_cbranch_scc1 L_NOPFA")
        pf_addr(vX+8, 16-cfg.PFA, 0)
        e(f"buffer_load_dword v{vPFD}, v{vX+8}, s[{G}:{G+3}], 0 offen")
        e("L_NOPFA:")
    if cfg.R1:
        e(f"s_sub_u32 s{sT}, s{sW}, 1")
        e(f"s_cmp_ge_u32 s{sT}, 8")
        e("s_cbranch_scc1 L_NORPOLL")
        e(f"s_cmp_lg_u32 s{sMODE}, 0")
        e("s_cbranch_scc1 L_NORPOLL")
        bar_poll(sI4, "L_NORPOLL", 44, cfg.EP)
    else:
        e(f"s_cmp_lg_u32 s{sW}, {cfg.RW}")
        e("s_cbranch_scc1 L_NORPOLL")
        poll(1)
    e("L_NORPOLL:")
    e("s_barrier")
    e("L_NOA6:")
    e(f"s_cmp_le_i32 s{sNR}, 0")
    e("s_cbranch_scc1 L_LD_DONE")
    e(f"s_mov_b64 exec, s[{sM}:{sM+1}]")
    e(f"buffer_load_dwordx4 v[{vGR}:{vGR+3}], v{vDS}, s[{WS}:{WS+3}], 0 offen sc1")
    e(f"s_cmp_le_i32 s{sNR}, 64")
    e("s_cbranch_scc1 L_LD_DONE")
    e(f"s_mov_b64 exec, s[{sM+6}:{sM+7}]")
    e(f"buffer_load_dwordx4 v[{vGR+4}:{vGR+7}], v{vDS+1}, s[{WS}:{WS+3}], 0 offen sc1")
    e(f"L_LD_DONE:")
    e("s_mov_b64 exec, -1")
    e(f"s_cmp_lg_u32 s{sMODE}, 0")
    e("s_cbranch_scc1 L_NOVER")
    if cfg.LV == 1:
        e("s_barrier")
    e(f"buffer_load_dword v{vE2}, v{vTA}, s[{WS}:{WS+3}], 0 offen sc1")
    ts(15)
    if cfg.PF2:
        pf_addr(vX+8, 16-cfg.PF2, cfg.PFA)
    if cfg.LV:
        e(f"s_waitcnt vmcnt(1)")
    else:
        e(f"s_mov_b32 s{sMODE}, 1")
        e(f"s_waitcnt vmcnt(0)")
        e(f"v_cmp_ne_u32 vcc, v{vE}, v{vE2}")
        e(f"v_mov_b32 v{vE}, v{vE2}")
        e("s_cbranch_vccnz L_DECODE")
    if cfg.PF2:
        e(f"s_cmp_lt_u32 s{sW}, {16-cfg.PF2}")
        e("s_cbranch_scc1 L_NOPF2")
        e(f"buffer_load_dword v{vPFD}, v{vX+8}, s[{G}:{G+3}], 0 offen")
    e("s_branch L_NOPF2")
    e("L_NOVER:")
    e(f"v_mov_b32 v{vE2}, v{vE}")
    e(f"s_waitcnt vmcnt(0)")
    e("L_NOPF2:")
    ts(5)
    def second(lab):
        e(f"s_cmp_le_i32 s{sNR}, 64")
        e(f"s_cbranch_scc1 {lab}")
    for r in range(2):
        if r == 1:
            second("L_RK_DONE")
            e("s_mov_b64 exec, -1")
        for s_ in range(3):
            k = 3 * r + s_
            e(f"v_bfe_u32 v{vKEY+k}, v{vGR+4*r+3}, {10*s_}, 10")
        for s_ in range(3):
            k = 3 * r + s_
            e(f"v_cmp_lt_u32 s[{sM+2*k}:{sM+2*k+1}], 3, v{vKEY+k}")
            e(f"v_lshlrev_b32 v{vKEY+k}, 2, v{vKEY+k}")
        for s_ in range(3):
            k = 3 * r + s_
            e(f"s_mov_b64 exec, s[{sM+2*k}:{sM+2*k+1}]")
            e(f"ds_add_rtn_u32 v{vRANK+k}, v{vKEY+k}, v{vONE} offset:{L_CNT}")
    e("L_RK_DONE:")
    if cfg.LV:
        e("s_mov_b64 exec, -1")
        e(f"s_cmp_ge_u32 s{sW}, {16-cfg.PF2}")
        e("s_waitcnt vmcnt(1)")
        e("s_cbranch_scc1 L_VER2")
        e("s_waitcnt vmcnt(0)")
        e("L_VER2:")
        e(f"v_cmp_ne_u32 vcc, v{vE}, v{vE2}")
        e(f"v_mov_b32 v{vE}, v{vE2}")
        e("s_cmp_lg_u64 vcc, 0")
        e(f"s_cselect_b32 s{sTB}, -1, s{sTB}")
    e("s_mov_b64 exec, 1")
    e(f"v_mov_b32 v{vA}, s{sTB}")
    e(f"v_mov_b32 v{vB}, {L_MISC+4}")
    e(f"ds_max_u32 v{vB}, v{vA}")
    e("s_mov_b64 exec, -1")
    def slots(bodyf, lab):
        for k in range(6):
            if k == 3:
                second(lab)
            e(f"s_mov_b64 exec, s[{sM+2*k}:{sM+2*k+1}]")
            bodyf(k)
        e(f"{lab}:")
        e("s_mov_b64 exec, -1")
    vC = vX
    vDEG, vNP, vSC, vBIN, vDR, vSB, vNA = vX+4, vX+5, vX+6, vX+7, vX+8, vX+9, vX+10
    vBS = vX + 12
    e(f"v_lshlrev_b32 v{vNA}, 4, v0")
    e(f"v_mov_b32 v{vX+11}, {L_MISC}")
    e(f"v_mov_b32 v{vTP}, 0xffff")
    e(f"v_mov_b32 v{vTP+1}, 0xffff")
    e(f"s_cmp_ge_u32 s{sW}, 4")
    e("s_waitcnt lgkmcnt(0)")
    e("s_barrier")
    e(f"s_cbranch_scc1 L_NODE1_DONE")
    e(f"ds_read_b128 v[{vC}:{vC+3}], v{vNA} offset:{L_CNT+16}")
    ts(6)
    e("s_waitcnt lgkmcnt(0)")
    e(f"v_add_u32 v{vC+1}, v{vC}, v{vC+1}")
    e(f"v_add_u32 v{vC+2}, v{vC+1}, v{vC+2}")
    e(f"v_add3_u32 v{vSC}, v{vC+2}, v{vC+3}, 3")
    e(f"v_lshrrev_b32 v{vSC}, 1, v{vSC}")
    e(f"v_add_u32 v{vDEG}, v{vC+2}, v{vC+3}")
    e(f"v_mov_b32 v{vNP}, v{vSC}")
    scan64(vSC, fill=[f"v_min_u32 v{vBIN}, 63, v{vDEG}", f"v_sub_u32 v{vBIN}, 63, v{vBIN}",
                      f"v_lshlrev_b32 v{vBIN}, 2, v{vBIN}", f"s_mov_b64 exec, s[{sNODE}:{sNODE+1}]"], steps=SCAN[:2])
    e(f"ds_add_rtn_u32 v{vDR}, v{vBIN}, v{vONE} offset:{L_DH}")
    e("s_mov_b64 exec, -1")
    scan64(vSC, steps=SCAN[2:])
    e(f"s_mov_b32 exec_lo, 0")
    e(f"s_mov_b32 exec_hi, 0x80000000")
    e(f"ds_add_rtn_u32 v{vSB}, v{vX+11}, v{vSC}")
    e("s_mov_b64 exec, -1")
    e(f"v_lshlrev_b32 v{vSC}, 1, v{vSC}")
    e(f"v_sub_u32 v{vC+3}, v{vSC}, v{vDEG}")
    e(f"v_lshlrev_b32 v{vX+11}, 1, v{vNP}")
    e(f"v_sub_u32 v{vSC}, v{vSC}, v{vX+11}")
    e("s_waitcnt lgkmcnt(0)")
    e(f"v_readlane_b32 s{sT}, v{vSB}, 63")
    e(f"s_lshl_b32 s{sT}, s{sT}, 3")
    e(f"s_add_u32 s{sT}, s{sT}, {L_RECS}")
    e(f"v_lshl_add_u32 v{vBS}, v{vC+3}, 2, s{sT}")
    e(f"v_lshl_add_u32 v{vBS+1}, v{vC}, 2, v{vBS}")
    e(f"v_lshl_add_u32 v{vBS+2}, v{vC+1}, 2, v{vBS}")
    e(f"v_lshl_add_u32 v{vBS+3}, v{vC+2}, 2, v{vBS}")
    e(f"ds_write_b128 v{vNA}, v[{vBS}:{vBS+3}] offset:{L_CNT+16}")
    e(f"v_lshl_add_u32 v{vSC}, v{vSC}, 2, s{sT}")
    e(f"ds_write_b64 v{vSC}, v[{vTP}:{vTP+1}]")
    e(f"ds_write_b32 v{vSC}, v{vTP} offset:8")
    e(f"L_NODE1_DONE:")
    e(f"v_mov_b32 v{vC}, {L_MISC+4}")
    e(f"v_lshlrev_b32 v{vC+1}, 2, v{vLANE}")
    e("s_waitcnt lgkmcnt(0)")
    e("s_barrier")
    if cfg.XD == 2:
        e("s_sleep 16")
    ts(7)
    e(f"ds_read_b32 v{vC+1}, v{vC+1} offset:{L_DH}")
    e(f"ds_read_b32 v{vC+3}, v{vC}")
    for k in range(6):
        if k == 3:
            second("L_RB_DONE")
        e(f"ds_read_b32 v{vKEY+k}, v{vKEY+k} offset:{L_CNT}")
    e("L_RB_DONE:")
    e(f"s_cmp_ge_u32 s{sW}, 4")
    e(f"s_cbranch_scc1 L_NODE2_DONE")
    e(f"s_cmp_lg_u32 s{sBB}, 0")
    e(f"s_cbranch_scc1 L_NODE2_NOSORT")
    e("s_waitcnt lgkmcnt(4)")
    e(f"v_mov_b32 v{vC}, v{vC+1}")
    e("s_nop 1")
    scan64(vC)
    e(f"v_sub_u32 v{vC}, v{vC}, v{vC+1}")
    e(f"ds_bpermute_b32 v{vC}, v{vBIN}, v{vC}")
    e(f"s_movk_i32 s{sT}, {NNORM*16}")
    e("s_waitcnt lgkmcnt(0)")
    if SPL:
        e(f"v_add_u32 v{vP}, v{vC}, v{vDR}")
        e(f"v_and_b32 v{vC}, 0xf8, v{vP}")
        e(f"v_add3_u32 v{vC}, v{vC}, v{vP}, s{sT}")
        e(f"v_cmp_gt_u32 vcc, {8*SPL}, v{vP}")
        e(f"v_subrev_u32 v{vP}, {8*SPL}, v{vP}")
        e("s_nop 0")
        e(f"v_cndmask_b32 v{vP}, v{vP}, v{vC}, vcc")
        e(f"v_lshlrev_b32 v{vP}, 3, v{vP}")
    else:
        e(f"v_add_lshl_u32 v{vP}, v{vC}, v{vDR}, 3")
    e(f"L_NODE2_NOSORT:")
    e(f"v_lshl_or_b32 v{vC}, v{vNP}, 16, v{vSC}")
    e(f"s_mul_i32 s{sT}, s3, {NB*128}")
    e(f"v_lshl_add_u32 v{vC+1}, v0, 7, s{sT}")
    e(f"v_cmp_gt_u32 vcc, {NB}, v0")
    e(f"v_mov_b32 v{vC+2}, 0x80000000")
    e(f"s_mov_b64 exec, s[{sNODE}:{sNODE+1}]")
    e(f"v_cndmask_b32 v{vC+1}, v{vC+2}, v{vC+1}, vcc")
    e(f"ds_write_b64 v{vP}, v[{vC}:{vC+1}] offset:{L_NT}")
    if SPL:
        e(f"v_cmp_le_u32 vcc, {NNORM*128}, v{vP}")
        e(f"v_mov_b32 v{vC+1}, v{vC+2}")
        e("s_and_b64 exec, exec, vcc")
        e(f"ds_write_b64 v{vP}, v[{vC}:{vC+1}] offset:{L_NT+64}")
    e("s_mov_b64 exec, -1")
    e(f"L_NODE2_DONE:")
    e("s_waitcnt lgkmcnt(0)")
    def wr(k):
        e(f"v_lshl_add_u32 v{vRANK+k}, v{vRANK+k}, 2, v{vKEY+k}")
        e(f"ds_write_b32 v{vRANK+k}, v{vGR+4*(k//3)+k%3}")
    slots(wr, "L_RW_DONE")
    e(f"v_readfirstlane_b32 s{sNBMAX}, v{vC+3}")
    e(f"v_lshrrev_b32 v{vX}, 3, v{vLANE}")
    e(f"s_lshl_b32 s{sT}, s{sW}, 7")
    e(f"v_lshl_add_u32 v{vX}, v{vX}, 3, s{sT}")
    if cfg.LV:
        e(f"s_cmp_eq_u32 s{sNBMAX}, -1")
        e("s_cbranch_scc1 L_NEXTB")
    e(f"s_cmp_ge_u32 s{sW}, {NNORM}")
    e(f"s_cselect_b32 s{sSTR+1}, 1, 0")
    e(f"s_lshl_b32 s{sSTR}, 8, s{sSTR+1}")
    e(f"s_cmp_ge_u32 s{sW}, {NW}")
    e("s_waitcnt lgkmcnt(0)")
    e("s_barrier")
    e(f"s_cbranch_scc1 L_HELPER")
    e(f"ds_read_b64 v[{vX+2}:{vX+3}], v{vX} offset:{L_NT}")
    e(f"ds_read_b64 v[{vX+4}:{vX+5}], v{vX} offset:{L_NT+64}")
    ts(8)
    e("s_waitcnt lgkmcnt(0)")
    e(f"v_lshrrev_b32 v{vX}, 16, v{vX+2}")
    e(f"v_lshrrev_b32 v{vX+1}, 16, v{vX+4}")
    e(f"v_max_u32 v{vX+6}, v{vX}, v{vX+1}")
    e(f"v_and_b32 v{vEA}, 0xffff, v{vX+2}")
    e(f"v_and_b32 v{vEB}, 0xffff, v{vX+4}")
    e(f"v_max_u32_dpp v{vX+6}, v{vX+6}, v{vX+6} row_ror:8 row_mask:0xf bank_mask:0xf")
    e(f"v_lshl_add_u32 v{vPA}, v{vX}, 3, v{vEA}")
    e(f"v_lshl_add_u32 v{vPB}, v{vX+1}, 3, v{vEB}")
    e(f"v_readlane_b32 s{sN0}, v{vX+6}, 0")
    e(f"v_readlane_b32 s{sT}, v{vX+6}, 16")
    e(f"v_readlane_b32 s{sT+1}, v{vX+6}, 32")
    e(f"v_readlane_b32 s{sCNT}, v{vX+6}, 48")
    e(f"s_max_u32 s{sN0}, s{sN0}, s{sT}")
    e(f"s_max_u32 s{sCNT}, s{sCNT}, s{sT+1}")
    e(f"s_max_u32 s{sN0}, s{sN0}, s{sCNT}")
    e(f"s_sub_u32 s{sN0}, s{sN0}, 1")
    e(f"s_add_u32 s{sN0}, s{sN0}, s{sSTR+1}")
    e(f"s_lshr_b32 s{sN0}, s{sN0}, s{sSTR+1}")
    e(f"s_max_u32 s{sN0}, s{sN0}, {D}")
    e(f"s_mul_i32 s{sT}, s{sN0}, s{sSTR}")
    e(f"s_sub_u32 s{sT+1}, s{sT}, s{sSTR}")
    e(f"s_add_u32 s{sT+1}, s{sT+1}, 8")
    e(f"v_subrev_u32 v{vPA}, s{sT}, v{vPA}")
    e(f"v_subrev_u32 v{vPB}, s{sT+1}, v{vPB}")
    def rdrec(h):
        for pv, ev, d in ((vPA, vEA, vST), (vPB, vEB, vST + 4)):
            e(f"v_max_i32 v{vAD}, v{pv}, v{ev}")
            if h == 0:
                e(f"ds_read_b64 v[{d}:{d+1}], v{vAD}")
            else:
                e(f"ds_read2st64_b64 v[{d}:{d+3}], v{vAD} offset0:0 offset1:{RDELTA//512}")
        e(f"v_add_u32 v{vPA}, s{sSTR}, v{vPA}")
        e(f"v_add_u32 v{vPB}, s{sSTR}, v{vPB}")
    e(f"s_cmp_lg_u32 s{sHOP}, 0")
    e("s_cbranch_scc1 L_MBENC")
    rdrec(0)
    for src, d0 in ((vX+3, vROWA), (vX+5, vROWB)):
        e(f"v_add_u32 v{d0}, v{src}, v{vLOFF}")
    def pace():
        if cfg.PACE > 1:
            lab = newlab("PACE")
            e(f"s_add_i32 s{sI4}, s{sI4}, {cfg.PACE}")
            e(f"{lab}a:")
            e(f"s_cmp_lt_i32 s{sI4}, 0")
            e(f"s_cbranch_scc1 {lab}")
            e(f"s_cmp_eq_u32 s{sPN}, 0")
            e(f"s_cbranch_scc1 {lab}")
            e(f"s_sub_i32 s{sI4}, s{sI4}, s{sN0}")
            e(f"s_sub_u32 s{sPN}, s{sPN}, 1")
            e("s_barrier")
            e(f"s_branch {lab}a")
            e(f"{lab}:")
    recreg = [vST, vST + 4, vST + 1, vST + 5]
    def mm(slot, k):
        d = vDATA + 16 * slot + 4 * k
        a = vAOP + 8 * slot + 2 * k
        acc = vACC + (8 if k & 1 else 0)
        e(f"v_mfma_f32_4x4x4_16b_bf16 v[{acc}:{acc+3}], v[{a}:{a+1}], v[{d}:{d+1}], v[{acc}:{acc+3}]")
        e(f"v_mfma_f32_4x4x4_16b_bf16 v[{acc+4}:{acc+7}], v[{a}:{a+1}], v[{d+2}:{d+3}], v[{acc+4}:{acc+7}]")
    def step(h, slot, consume, skip=False):
        e("s_waitcnt lgkmcnt(0)")
        for k in range(4):
            r = recreg[k]
            d = vDATA + 16 * slot + 4 * k
            a = vAOP + 8 * slot + 2 * k
            if h == 0:
                e(f"v_mad_u32_u16 v{vAD}, v{r}, s{s128}, v{vLOFF}")
            else:
                e(f"v_add_u32 v{vAD}, v{r+2}, v{vLOFF}")
            if consume:
                e(f"s_waitcnt vmcnt({cfg.VW1 if h else cfg.VW0})")
                mm(slot, k)
            if skip:
                lab = newlab("SK")
                e(f"v_cmp_ne_u32 vcc, 0xffff, v{r}")
                for i in range(4):
                    e(f"v_mov_b32 v{d+i}, 0")
                e(f"s_cbranch_vccz {lab}")
            e(f"buffer_load_dwordx4 v[{d}:{d+3}], v{vAD}, s[{G}:{G+3}], 0 offen" + (" sc1" if h else ""))
            if skip:
                e(f"{lab}:")
            e(f"v_perm_b32 v{a}, v{r}, v{r}, v{vSEL0}")
            e(f"v_perm_b32 v{a+1}, v{r}, v{r}, v{vSEL1}")
        rdrec(h)
        pace()
    def gloop(h):
        e(f"s_sub_u32 s{sCNT}, s{sN0}, {D}")
        if cfg.PACE > 1:
            e(f"s_sub_i32 s{sI4}, 0, s{sN0}")
            e(f"s_cmp_le_u32 s{sNBMAX}, {GB}")
            e(f"s_cselect_b32 s{sPN}, {cfg.PACE-1}, 0")
        for s_ in range(D):
            step(h, s_, False, cfg.SKP and s_ == 0)
        if cfg.SKP:
            e(f"s_waitcnt vmcnt({4*(D-1)})")
        e(f"L_GLOOP{h}:")
        for p in range(D):
            e(f"s_cmp_le_i32 s{sCNT}, {p}")
            e(f"s_cbranch_scc1 L_DRAIN{p}")
            step(h, p, True)
        e(f"s_sub_i32 s{sCNT}, s{sCNT}, {D}")
        e(f"s_branch L_GLOOP{h}")
    gloop(0)
    for p in range(D):
        e(f"L_DRAIN{p}:")
        e(f"s_load_dword s{sQ}, s[{WS}:{WS+1}], s{sQ-1}")
        for j in range(4 * D):
            e(f"s_waitcnt vmcnt({4*D-1-j})")
            mm((p + j // 4) % D, j % 4)
        if p != D - 1:
            e(f"s_branch L_GDONE")
    e(f"L_GDONE:")
    e("s_waitcnt lgkmcnt(0)")
    e(f"s_add_u32 s{sBB}, s{sBB}, {GB}")
    e(f"s_cmp_lt_u32 s{sBB}, s{sNBMAX}")
    e(f"s_cbranch_scc1 L_NEXTB")
    if SPL:
        e(f"s_cmp_eq_u32 s{sSTR+1}, 0")
        e("s_cbranch_scc1 L_NOCOMB")
        for i in range(8):
            e(f"v_add_f32 v{vACC+i}, v{vACC+i}, v{vACC+8+i}")
        e("L_NOCOMB:")
    e(f"s_cmp_lg_u32 s{sHOP}, 0")
    e("s_nop 0")
    for i in range(8):
        e(f"v_cvt_pk_bf16_f32 v{40+i}, v{vACC+2*i}, v{vACC+2*i+1}")
    e(f"s_cbranch_scc1 L_EPI")
    e(f"s_mov_b32 s{sT}, {25088*128}")
    e(f"s_movk_i32 s{sT+1}, {cfg.RN*128}")
    for o, d, m in ((vROWA, 50, "vcc"), (vROWB, 51, f"s[{sTMP}:{sTMP+1}]")):
        e(f"v_cmp_le_u32 {m}, s{sT}, v{o}")
        e(f"v_and_b32 v48, 0x7fffe000, v{o}")
        e(f"v_lshrrev_b32 v49, 7, v{o}")
        e(f"v_add_u32 v{d}, v48, v{o}")
        e(f"v_cndmask_b32 v48, 0, -1, {m}")
        e(f"v_xor_b32 v{d+2}, v48, v49")
    e(f"s_mov_b32 s{sSPIN}, 0")
    e("s_branch L_QC")
    e("L_QP:")
    e(f"s_load_dword s{sQ}, s[{WS}:{WS+1}], s{sQ-1} glc")
    e("s_waitcnt lgkmcnt(0)")
    e("L_QC:")
    e(f"s_cmp_lg_u32 s{sQ}, 0")
    e("s_cbranch_scc1 L_QX")
    spin_tail("L_QP", "L_QX")
    e("L_QX:")
    e(f"v_bfe_i32 v{vQM}, s{sQ}, 0, 1")
    for d in (50, 51):
        e(f"v_xor_b32 v{d+2}, v{d+2}, v{vQM}")
        e(f"v_and_b32 v{d+2}, 0x2000, v{d+2}")
        e(f"v_or_b32 v{d}, v{d}, v{d+2}")
    def home():
        e(f"buffer_store_dwordx4 v[40:43], v50, s[{O}:{O+3}], 0 offen sc1")
        e(f"buffer_store_dwordx4 v[44:47], v51, s[{O}:{O+3}], 0 offen sc1")
    if not cfg.FF:
        home()
    if cfg.RN:
        for o, d, q in ((vROWA, 50, 40), (vROWB, 51, 44)):
            lab = newlab("ST")
            e(f"v_and_b32 v48, 0x80000380, v{o}")
            e(f"v_cmp_gt_u32 vcc, s{sT+1}, v48")
            e(f"v_xor_b32 v{d+2}, 0x2000, v{d}")
            e(f"s_and_saveexec_b64 s[{sTMP}:{sTMP+1}], vcc")
            e(f"s_cbranch_execz {lab}")
            e(f"buffer_store_dwordx4 v[{q}:{q+3}], v{d+2}, s[{O}:{O+3}], 0 offen sc1")
            e(f"{lab}:")
            e("s_mov_b64 exec, -1")
    if cfg.FF:
        home()
    ts(9)
    for i in range(16):
        e(f"v_mov_b32 v{vACC+i}, 0")
    e(f"s_add_u32 s{sT}, s{sN0}, 1")
    e(f"s_mul_i32 s{sT}, s{sT}, s{sSTR}")
    e(f"v_subrev_u32 v{vPA}, s{sT}, v{vPA}")
    e(f"v_subrev_u32 v{vPB}, s{sT}, v{vPB}")
    e(f"v_lshlrev_b32 v48, 4, v{vLANE}")
    NWPRE = 8 if D == 2 else 4
    def wfrag(mb, kh):
        if D == 2: return vW + 8 * mb + 4 * kh
        return vW + 4 * mb if kh == 0 else 64 + 4 * mb
    for mb in range(4):
        for kh in range(2 if D == 2 else 1):
            r = wfrag(mb, kh)
            e(f"ds_read_b128 v[{r}:{r+3}], v48 offset:{L_WT + 1024*(2*mb+kh)}")
    e(f"s_lshl_b32 s{sT}, s{sW}, 11")
    e(f"s_add_u32 s{sT}, s{sT}, {L_TILE}")
    e(f"v_lshrrev_b32 v48, 3, v{vLANE}")
    e(f"v_xor_b32 v49, v48, v{vLANE}")
    e(f"v_and_b32 v49, 7, v49")
    e(f"v_lshlrev_b32 v49, 4, v49")
    e(f"v_lshl_add_u32 v49, v48, 7, v49")
    e(f"v_add_u32 v{vTW}, s{sT}, v49")
    e(f"v_and_b32 v48, 15, v{vLANE}")
    e(f"v_lshrrev_b32 v49, 4, v{vLANE}")
    e(f"v_xor_b32 v49, v49, v48")
    e(f"v_and_b32 v49, 7, v49")
    e(f"v_lshlrev_b32 v49, 4, v49")
    e(f"v_lshl_add_u32 v49, v48, 7, v49")
    e(f"v_add_u32 v{vTR}, s{sT}, v49")
    if cfg.OWN == 1:
        e("s_waitcnt vmcnt(0)")
        e(f"buffer_load_dword v{vPFD}, v{vROWA}, s[{O}:{O+3}], 0 offen sc1")
        e(f"buffer_load_dword v{vPFD}, v{vROWB}, s[{O}:{O+3}], 0 offen sc1")
    def enc(w, d, t):
        e(f"v_and_b32 v{d}, 0xffff, v{w}")
        e(f"v_and_b32 v{t}, 7, v{w}")
        e(f"v_cmp_le_u32 vcc, s{sT}, v{d}")
        e(f"v_cmp_gt_u32 s[{sTMP}:{sTMP+1}], {cfg.RN}, v{t}")
        e(f"v_and_b32 v{t}, 0xffc0, v{w}")
        e(f"v_add_lshl_u32 v{d}, v{d}, v{t}, 7")
        e(f"s_andn2_b64 vcc, vcc, s[{sTMP}:{sTMP+1}]")
        e(f"s_and_b64 s[{sTMP}:{sTMP+1}], s[{sTMP}:{sTMP+1}], s[{sK}:{sK+1}]")
        e(f"s_or_b64 vcc, vcc, s[{sTMP}:{sTMP+1}]")
        e(f"v_cndmask_b32 v{t}, v{vQM}, v{vTP+1}, vcc")
        e(f"v_xor_b32 v{t}, v{t}, v{w}")
        e(f"v_and_or_b32 v{d}, v{t}, s{sT+1}, v{d}")
    def enc_setup():
        e(f"v_mov_b32 v48, {L_MISC}")
        e("ds_read_b32 v48, v48")
        e(f"s_bfe_i32 s{sK}, s2, 0x10002")
        e(f"s_mov_b32 s{sK+1}, s{sK}")
        e(f"s_movk_i32 s{sT}, 25088")
        e(f"s_movk_i32 s{sT+1}, 0x2000")
        e(f"v_lshlrev_b32 v49, 4, v0")
        e("s_waitcnt lgkmcnt(0)")
        e(f"v_readfirstlane_b32 s{sSPIN}, v48")
        e(f"v_not_b32 v{vTP+1}, v{vQM}")
        e(f"s_lshl_b32 s{sSPIN}, s{sSPIN}, 3")
        e(f"s_lshl_b32 s{sI4}, s{sW}, 10")
    def enc_pass(nwaves):
        lab = newlab("ENC")
        e(f"{lab}:")
        e(f"s_cmp_ge_u32 s{sI4}, s{sSPIN}")
        e(f"s_cbranch_scc1 {lab}x")
        e(f"ds_read_b128 v[52:55], v49 offset:{L_RECS}")
        e(f"s_add_u32 s{sI4}, s{sI4}, {nwaves*1024}")
        e("s_waitcnt lgkmcnt(0)")
        for i in range(4):
            enc(52 + i, 56 + i, 60)
        e(f"ds_write_b128 v49, v[56:59] offset:{L_RECS+RDELTA}")
        e(f"v_add_u32 v49, {nwaves*1024}, v49")
        e(f"s_branch {lab}")
        e(f"{lab}x:")
    enc_setup()
    enc_pass(NW)
    if cfg.OWN:
        e(f"v_subrev_u32 v48, 512, v0")
        e(f"s_mul_i32 s{sI4}, s3, {NB}")
        e(f"v_add_u32 v52, s{sI4}, v48")
        enc(52, 53, 60)
    e("L_SYNC2:")
    srd(G, WS, H1B, H1_OFF)
    e(f"s_mov_b32 s{sBB}, 0")
    e(f"s_mov_b32 s{sHOP}, 1")
    e(f"s_lshr_b32 s{sI4}, s2, 2")
    e(f"s_xnor_b32 s{sI4}, s{sI4}, s{sQ}")
    e(f"s_and_b32 s{sI4}, s{sI4}, 1")
    e(f"s_lshl_b32 s{sI4}, s{sI4}, 3")
    e(f"s_and_b32 s{sT}, s2, 0x33")
    e(f"s_or_b32 s{sI4}, s{sI4}, s{sT}")
    e(f"s_bfe_u32 s{sT}, s2, 0x10003")
    e(f"s_lshl_b32 s{sT}, s{sT}, 2")
    e(f"s_or_b32 s{sI4}, s{sI4}, s{sT}")
    e(f"s_lshl_b32 s{sI4}, s{sI4}, 3")
    e(f"s_add_u32 s{sI4}, s{sI4}, s{sW}")
    e(f"s_lshl_b32 s{sI4}, s{sI4}, 7")
    e(f"s_add_u32 s{sI4}, s{sI4}, 0x{HS_OFF:x}")
    bar_bump_addr(54)
    e(f"s_mov_b32 s{sT}, 0x{HS_OFF:x}")
    e(f"s_cmp_lg_u32 s{sW}, 0")
    e("s_waitcnt vmcnt(0) lgkmcnt(0)")
    ts(10)
    e("s_barrier")
    e("s_cbranch_scc1 L_FNB")
    e(f"buffer_atomic_add v{vONE}, v54, s[{WS}:{WS+3}], s{sT} offen sc1")
    e("L_FNB:")
    e(f"s_cmp_lt_u32 s{sW}, 8")
    e("s_cbranch_scc1 L_FPOLL")
    if cfg.OWN:
        e(f"s_cmp_ge_u32 s{sW}, 12")
        e(f"s_cbranch_scc1 L_FDONE")
        e(f"v_cmp_gt_u32 vcc, {NB}, v48")
        e("s_mov_b64 exec, vcc")
        e(f"buffer_load_dword v{vPFD}, v53, s[{G}:{G+3}], 0 offen sc1")
        e("s_mov_b64 exec, -1")
    e("s_branch L_FDONE")
    e("L_FPOLL:")
    bar_poll(sI4, "L_FDONE")
    e("L_FDONE:")
    srd(O, pOUT, ROWB)
    e(f"s_cmp_gt_u32 s{sNBMAX}, {GB}")
    e("s_cbranch_scc1 L_C1MB")
    rdrec(1)
    e("s_barrier")
    ts(11)
    e("L_G2:")
    gloop(1)
    e("L_C1MB:")
    e("s_barrier")
    e("s_branch L_BATCH")
    e("L_MBENC:")
    enc_setup()
    enc_pass(NW)
    e("s_waitcnt lgkmcnt(0)")
    e("s_barrier")
    rdrec(1)
    e("s_branch L_G2")

    e("L_EPI:")
    ts(12)
    e(f"ds_write_b128 v{vTW}, v[40:43]")
    e(f"ds_write_b128 v{vTW}, v[44:47] offset:1024")
    e(f"v_xor_b32 v{vAD}, 64, v{vTR}")
    e(f"ds_read_b128 v[40:43], v{vTR}")
    e(f"ds_read_b128 v[44:47], v{vAD}")
    if D != 2:
        e(f"v_lshlrev_b32 v{vAD}, 4, v{vLANE}")
        for mb in range(4):
            r = wfrag(mb, 1)
            e(f"ds_read_b128 v[{r}:{r+3}], v{vAD} offset:{L_WT + 1024*(2*mb+1)}")
    e(f"v_lshrrev_b32 v{vAD}, 4, v{vLANE}")
    e(f"s_lshl_b32 s{sT}, s{sW}, 7")
    e(f"v_lshl_add_u32 v{vAD}, v{vAD}, 5, s{sT}")
    e(f"ds_read_b128 v[48:51], v{vAD} offset:{L_NT}")
    e(f"ds_read_b128 v[52:55], v{vAD} offset:{L_NT+16}")
    e(f"v_and_b32 v{vAD}, 15, v{vLANE}")
    e(f"v_lshlrev_b32 v{vAD}, 3, v{vAD}")
    e(f"s_waitcnt lgkmcnt({3 if D == 2 else 7})")
    for mb in range(4):
        r = wfrag(mb, 0)
        e(f"v_mfma_f32_16x16x32_bf16 v[{vACC+4*mb}:{vACC+4*mb+3}], v[40:43], v[{r}:{r+3}], 0")
    e("s_waitcnt lgkmcnt(2)")
    for mb in range(4):
        r = wfrag(mb, 1)
        e(f"v_mfma_f32_16x16x32_bf16 v[{vACC+4*mb}:{vACC+4*mb+3}], v[44:47], v[{r}:{r+3}], v[{vACC+4*mb}:{vACC+4*mb+3}]")
    e("s_waitcnt lgkmcnt(0)")
    for r in range(4):
        e(f"v_add_u32 v{48+2*r}, v{49+2*r}, v{vAD}")
    e("s_nop 2")
    for r in range(4):
        e(f"v_cvt_pk_bf16_f32 v{56+2*r}, v{vACC+r}, v{vACC+4+r}")
        e(f"v_cvt_pk_bf16_f32 v{57+2*r}, v{vACC+8+r}, v{vACC+12+r}")
        e(f"buffer_store_dwordx2 v[{56+2*r}:{57+2*r}], v{48+2*r}, s[{O}:{O+3}], 0 offen {cfg.OUTFLAG}")
    e("L_FIN:")
    ts_dump()
    e("s_endpgm")
    e("L_HELPER:")
    assert NW <= 15
    e(f"s_xor_b32 s{sT}, s{sW}, 15")
    e(f"s_xor_b32 s{sT+1}, s2, 255")
    e(f"s_or_b32 s{sT}, s{sT}, s{sT+1}")
    e(f"s_or_b32 s{sT}, s{sT}, s{sBB}")
    e(f"s_or_b32 s{sT}, s{sT}, s{sHOP}")
    e("s_cbranch_scc1 L_HELP1")
    e(f"s_mov_b32 s{sT}, 0x{HS_OFF:x}")
    e(f"s_mov_b32 s{sCNT}, 0")
    e("L_PRB:")
    e(f"s_add_u32 s{sT+1}, s{sT}, 8192")
    e(f"s_memtime s[40:41]")
    e(f"s_load_dword s46, s[{WS}:{WS+1}], s{sT} glc")
    e("s_waitcnt lgkmcnt(0)")
    e(f"s_memtime s[42:43]")
    e(f"s_load_dword s46, s[{WS}:{WS+1}], s{sT+1} glc")
    e("s_waitcnt lgkmcnt(0)")
    e(f"s_memtime s[44:45]")
    e("s_lshl_b32 s42, s42, 1")
    e("s_sub_u32 s40, s42, s40")
    e("s_waitcnt lgkmcnt(0)")
    e("s_sub_u32 s40, s40, s44")
    e("s_lshr_b32 s40, s40, 31")
    e(f"s_add_u32 s{sCNT}, s{sCNT}, s40")
    e(f"s_addk_i32 s{sT}, 1280")
    e(f"s_cmp_lt_u32 s{sT}, 0x{HS_OFF + cfg.NPR*1280:x}")
    e("s_cbranch_scc1 L_PRB")
    e(f"s_cmp_gt_u32 s{sCNT}, {cfg.NPR//2}")
    e(f"s_cselect_b32 s{sT}, 2, 3")
    if cfg.POL >= 0:
        e(f"s_mov_b32 s{sT}, {2+cfg.POL}")
    e(f"v_mov_b32 v40, s{sT}")
    e(f"v_lshlrev_b32 v41, 8, v{vLANE}")
    e(f"s_mov_b32 s{sT}, 0x{QS_OFF:x}")
    e("s_mov_b64 exec, 0xff")
    e(f"buffer_store_dword v40, v41, s[{WS}:{WS+3}], s{sT} offen sc1")
    e("s_mov_b64 exec, -1")
    if cfg.TS:
        ts(9)
        pass
    e("L_HELP1:")
    e(f"s_cmp_le_u32 s{sNBMAX}, {GB}")
    e("s_cbranch_scc1 L_FIN")
    e(f"s_cmp_eq_u32 s{sHOP}, 0")
    e("s_cbranch_scc1 L_HELP2")
    e("s_barrier")
    e("L_HELP2:")
    e(f"s_add_u32 s{sBB}, s{sBB}, {GB}")
    e(f"s_cmp_lt_u32 s{sBB}, s{sNBMAX}")
    e(f"s_cbranch_scc1 L_NEXTB")
    e(f"s_cmp_lg_u32 s{sHOP}, 0")
    e("s_cbranch_scc1 L_FIN")
    e("v_mov_b32 v53, 0")
    e("s_branch L_SYNC2")
    e(f"L_NEXTB:")
    ts(2)
    if cfg.XD == 7:
        for i in range(16):
            e("s_sleep 127")
    e("s_waitcnt vmcnt(0) lgkmcnt(0)")
    e("s_barrier")
    e(f"s_branch L_BATCH")
    e(f"L_END:")
    e("s_endpgm")

head = open("standalone__spectral_conv_sgc__graph.s.ref").read().split("; Override")[0]
e(head.rstrip())
e(f"; @launch grid=(256,1,1) block=(1024,1,1) lds={L_END}")
e('.amdgcn_target "amdgcn-amd-amdhsa--gfx950"')
e(".text")
body()
e('.section .rodata,"a"')
e(".p2align 6")
acc = (NV + 3) // 4 * 4
e(f""".amdhsa_kernel {NAME}
  .amdhsa_next_free_vgpr {NV}
  .amdhsa_next_free_sgpr {NS}
  .amdhsa_accum_offset {acc}
  .amdhsa_group_segment_fixed_size 0
  .amdhsa_kernarg_size 64
  .amdhsa_user_sgpr_count 2
  .amdhsa_user_sgpr_kernarg_segment_ptr 1
  .amdhsa_system_sgpr_workgroup_id_x 1
  .amdhsa_float_denorm_mode_32 3
.end_amdhsa_kernel
""")
open(sys.argv[1], "w").write("\n".join(out) + "\n")
```

```python
import sys

class Cfg:
    D = 2
    TS = 0
    PF2 = 5
    DW = 1
    RL = 1
    NPR = 3
    SKP = 1
    XD = 0
    SH = 16
    TE = 0
    R1 = 1
    FF = 1
    LV = 1
    FAIL = 0
    EP = 1
    AE = 0
    KV = 0
    BAL = 0
    O4 = 1
    DB0 = 0
    DB1 = 0
    HN = 1
    PACE = 7
    EFLAG = ""
    OUTFLAG = "sc1"
    SLEEP = 0
    LATE = 1
    HW = 0
    PFE = 0
    SA = 0
    WST = 32
    DEF = 1
    ENT = 0
    CLI = 1
    RN = 4
    TYP = "RS"
    POL = -1
    SPL = 5
    XMASK = 0
    PFA = 0
    PFS = 4
    PFO = 0
    VW0 = 7
    VW1 = 7
    PFB = 0
    PFD = 0
    PFE2 = 0
    PFX = -1
    SP = 7
    PFC = 0
    PEER = 0
    OWN = 2
    RW = 1
    CPF = 1
cfg = Cfg()
for a in sys.argv[2:]:
    k, v = a.split("=")
    cur = getattr(cfg, k)
    setattr(cfg, k, int(v) if isinstance(cur, int) else v.replace("+", " "))

N = 50000; E = 850000
NB = 196; CH = 3328; MAG = 85599
CG = 1280
TAB_OFF = 0x680000
SY_OFF = 0x700000
RP_OFF = 0x710000
HS_OFF = 0x760000
RS_OFF = 0x740000
QS_OFF = 0x770000
PR_OFF = 0x720000
H1_OFF = 0x800000
H1B = 784 * 16384
TS_OFF = 0x1600000
WS_USED = 0x1800000
ROWB = N * 128
SPIN_FAST = 4096
SPIN_MAX = 1 << 21
GB = 128

SPL = cfg.SPL
NW = SPL + -(-(NB - 8 * SPL) // 16)
NNORM = NW - SPL
NSLOT = 8 * SPL + 16 * NNORM
assert NW <= 16
L_NT = 0
L_D = 2048
L_WT = L_D + 8192
L_CNT = L_WT + 8192
L_DH = L_CNT + 4352
L_MISC = L_DH + 256
L_ZEND2 = L_MISC + 256
L_Q = L_ZEND2
L_HIST = L_ZEND2
L_STAGE = L_HIST + 1024
L_ZEND = L_STAGE + CG * 24
L_RECS = L_STAGE
RDELTA = 27648
L_TILE = L_RECS + 2 * RDELTA
L_END = L_TILE + NW * 2048
assert L_TILE % 128 == 0 and L_RECS + RDELTA < 65536 and RDELTA % 512 == 0 and L_RECS % 16 == 0

out = []
def e(s=""):
    out.append(s)

def srd(d, lo, nrec, off=0):
    if off:
        e(f"s_add_u32 s{d}, s{lo}, 0x{off:x}")
        e(f"s_addc_u32 s{d+1}, s{lo+1}, 0")
    else:
        e(f"s_mov_b32 s{d}, s{lo}")
        e(f"s_mov_b32 s{d+1}, s{lo+1}")
    e(f"s_mov_b32 s{d+2}, 0x{nrec:x}")
    e(f"s_mov_b32 s{d+3}, 0x20000")

def dpp_add(v, ctl):
    e(f"v_add_u32_dpp v{v}, v{v}, v{v} {ctl}")
SCAN = [f"row_shr:{s} row_mask:0xf bank_mask:0xf bound_ctrl:0" for s in (1, 2, 4, 8)] + \
       ["row_bcast:15 row_mask:0xa bank_mask:0xf", "row_bcast:31 row_mask:0xc bank_mask:0xf"]
def scan64(v, fill=(), steps=SCAN):
    fill = list(fill)
    for ctl in steps:
        dpp_add(v, ctl)
        if len(fill) >= 2:
            e(fill.pop(0)); e(fill.pop(0))
        elif len(fill) == 1:
            e(fill.pop(0)); e("s_nop 0")
        else:
            e("s_nop 1")
    for f in fill:
        e(f)

T3, G, WS, O, T1, T2 = 4, 8, 12, 16, 20, 24
sW, sTB, sBB, sNBMAX, s128, sCNT, sT, sNR = 28, 29, 30, 31, 32, 33, 34, 36
sHOP, sN0, sSPIN = 37, 38, 39
sM = 40
sNODE = 52
sTMP = 54
sI4, sPN = 56, 57
sMODE = 66
sSTR = 64
sQ = 59
sK, sSEL = 60, 61
sVAL = 58
pW, pOUT, pDBG = 60, 62, 64
sC1, sC2, sC3 = 40, 41, 42
sTS = 68
NS = 102 if cfg.TS else 68
vLANE, vE, vP, vSEL0, vSEL1, vLOFF, vONE = 1, 2, 3, 4, 5, 6, 7
vACC = 8
vPA, vEA, vPB, vEB, vROWA, vROWB, vAD, vPFD = 24, 25, 26, 27, 28, 29, 30, 31
vST = 120
vTW, vTR = 36, 37
vQM, vQA = 32, 33
vTP = 38
D = cfg.D
vDATA = 40
vAOP = vDATA + 16 * D
vW = max(vAOP + 8 * D, 88)
NV = 128
assert D == 2 and vW + 32 <= vST
assert NV <= 128
vX = 72
vTA, vE2 = 62, 63

def ts(slot, mode=1):
    if cfg.TS == 2 and mode == 1 and slot in (4, 5, 6, 7):
        return
    if cfg.TS == 1 and mode == 2:
        return
    if cfg.TS:
        e(f"s_memrealtime s[{sTS+2*slot}:{sTS+2*slot+1}]")
        e("s_waitcnt lgkmcnt(0)")
def ts_dump():
    if not cfg.TS:
        return
    e("s_waitcnt vmcnt(0)")
    ts(13)
    e(f"s_lshl_b32 s{sT}, s2, 4")
    e(f"s_add_u32 s{sT}, s{sT}, s{sW}")
    e(f"s_lshl_b32 s{sT}, s{sT}, 7")
    e(f"s_add_u32 s{sT}, s{sT}, 0x{TS_OFF:x}")
    e("s_mov_b64 exec, 1")
    e(f"v_mov_b32 v40, s{sT}")
    for i in range(8):
        for j in range(4):
            e(f"v_mov_b32 v{44+4*i+j}, s{sTS+4*i+j}")
        e(f"buffer_store_dwordx4 v[{44+4*i}:{47+4*i}], v40, s[{WS}:{WS+3}], 0 offen offset:{16*i}")

lbl = [0]
def newlab(p):
    lbl[0] += 1
    return f"L_{p}{lbl[0]}"
def spin_tail(loop, done):
    slow = newlab("SLW")
    e(f"s_add_u32 s{sSPIN}, s{sSPIN}, 1")
    e(f"s_cmp_ge_u32 s{sSPIN}, {SPIN_FAST}")
    e(f"s_cbranch_scc1 {slow}")
    if cfg.SLEEP:
        e(f"s_sleep {cfg.SLEEP}")
    e(f"s_branch {loop}")
    e(f"{slow}:")
    e(f"s_cmp_ge_u32 s{sSPIN}, {SPIN_MAX}")
    e(f"s_cbranch_scc1 {done}")
    e("s_sleep 64")
    e(f"s_branch {loop}")
def arrive_a(b, v=40):
    e(f"s_and_b32 s{sT}, s2, 7")
    e(f"s_lshl_b32 s{sT}, s{sT}, 8")
    e(f"s_add_u32 s{sT}, s{sT}, 0x{SY_OFF + b*cfg.WST:x}")
    if cfg.SA:
        sa = 67
        e(f"s_mov_b32 s{sa}, 1")
        e(f"s_atomic_add s{sa}, s[{WS}:{WS+1}], s{sT} glc")
        return
    e(f"v_mov_b32 v{v}, s{sT}")
    e(f"v_mov_b32 v{v+1}, 1")
    e("s_mov_b64 exec, 1")
    e(f"buffer_atomic_add v{v+1}, v{v}, s[{WS}:{WS+3}], 0 offen sc0 sc1")
def arrive_b(b, v=40, cnt=0, after=None):
    lab = newlab("ARR")
    sp = cfg.SP >> b & 1
    e("s_mov_b64 exec, -1" if sp else "s_mov_b64 exec, 0xff")
    e(f"v_lshlrev_b32 v{v+2}, 8, v{vLANE}")
    e(f"v_add_u32 v{v+2}, 0x{SY_OFF + 2048 + b*cfg.WST:x}, v{v+2}")
    if cfg.SA:
        e("s_waitcnt lgkmcnt(0)")
        e(f"s_cmp_lg_u32 s67, 31")
    else:
        e(f"s_waitcnt vmcnt({cnt})")
        e(f"v_readfirstlane_b32 s{sT}, v{v+1}")
        e(f"s_cmp_lg_u32 s{sT}, 31")
    e(f"s_cbranch_scc1 {lab}")
    e(f"buffer_atomic_add v{vONE}, v{v+2}, s[{WS}:{WS+3}], 0 offen sc1")
    if after:
        for x in after:
            e(x)
    e(f"{lab}:")
    e("s_mov_b64 exec, -1")
def arrive(b, mid=None):
    arrive_a(b)
    if mid:
        e(mid)
    arrive_b(b)
def rcount():
    lab = newlab("RC")
    e(f"v_mov_b32 v64, {L_MISC+8}")
    e("s_mov_b64 exec, 1")
    e(f"ds_add_rtn_u32 v65, v64, v{vONE}")
    e("s_waitcnt lgkmcnt(0)")
    e("v_cmp_eq_u32 vcc, 13, v65")
    e("s_mov_b64 exec, -1")
    e(f"s_cbranch_vccz {lab}")
    arrive_a(1, 64)
    if cfg.DEF:
        e("s_mov_b64 exec, -1")
        e(f"s_mov_b32 s{sPN}, 1")
    else:
        arrive_b(1, 64)
    e(f"{lab}:")
def poll_a(b):
    if cfg.SP >> b & 1:
        return
    e(f"s_and_b32 s{sSPIN}, s2, 7")
    e(f"s_lshl_b32 s{sSPIN}, s{sSPIN}, 8")
    e(f"s_add_u32 s{sSPIN}, s{sSPIN}, 0x{SY_OFF + 2048 + b*cfg.WST:x}")
    e(f"v_mov_b32 v{vTP}, s{sSPIN}")
    e("s_mov_b64 exec, 1")
    e(f"buffer_load_dword v{vTP+1}, v{vTP}, s[{WS}:{WS+3}], 0 offen sc1")
def poll_b(b):
    lab = newlab("POLL")
    if cfg.SP >> b & 1:
        e(f"s_and_b32 s{sT}, s2, 63")
        e(f"s_lshl_b32 s{sT}, s{sT}, 8")
        e(f"s_add_u32 s{sT}, s{sT}, 0x{SY_OFF + 2048 + b*cfg.WST:x}")
        e(f"s_mov_b32 s{sSPIN}, 0")
        e(f"{lab}:")
        e(f"s_load_dword s{sT+1}, s[{WS}:{WS+1}], s{sT} glc")
        e("s_waitcnt lgkmcnt(0)")
        e(f"s_cmp_eq_u32 s{sT+1}, 8")
        e(f"s_cbranch_scc1 {lab}x")
        spin_tail(lab, lab + "x")
        e(f"{lab}x:")
        return
    e("s_mov_b64 exec, 1")
    e(f"s_mov_b32 s{sSPIN}, 0")
    e(f"s_branch {lab}c")
    e(f"{lab}:")
    e(f"buffer_load_dword v{vTP+1}, v{vTP}, s[{WS}:{WS+3}], 0 offen sc1")
    e(f"{lab}c:")
    e("s_waitcnt vmcnt(0)")
    e(f"v_cmp_eq_u32 vcc, 8, v{vTP+1}")
    e(f"s_cbranch_vccnz {lab}x")
    spin_tail(lab, lab + "x")
    e(f"{lab}x:")
    e("s_mov_b64 exec, -1")
def poll(b):
    poll_a(b)
    poll_b(b)

def probe_off(d):
    e(f"s_lshr_b32 s{d}, s2, 6")
    e(f"s_lshl_b32 s{d}, s{d}, 6")
    e(f"s_add_u32 s{d}, s{d}, s2")
    e(f"s_lshl_b32 s{d}, s{d}, 7")
    e(f"s_add_u32 s{d}, s{d}, 0x{PR_OFF:x}")
def bar_bump_addr(v):
    if cfg.SH == 16:
        e(f"s_bfe_u32 s{sT}, s2, 0x40003")
        e(f"s_lshl_b32 s{sT}, s{sT}, 6")
    else:
        e(f"s_bfe_u32 s{sT}, s2, 0x30003")
        e(f"s_lshl_b32 s{sT}, s{sT}, 7")
    e(f"v_lshl_add_u32 v{v}, v{vLANE}, 10, s{sT}")
def bar_issue(sa, d):
    e(f"s_load_dword s{d}, s[{WS}:{WS+1}], s{sa} glc")
    if cfg.SH == 16:
        e(f"s_load_dword s{d+1}, s[{WS}:{WS+1}], s{sa+1} glc")
def bar_poll(sa, done, d=None, issued=False):
    lab = newlab("BP")
    d = sT if d is None else d
    e(f"s_mov_b32 s{sSPIN}, 0")
    if issued:
        e(f"s_branch {lab}c")
    else:
        e(f"s_add_u32 s{sa+1}, s{sa}, 64")
    e(f"{lab}:")
    bar_issue(sa, d)
    e("s_waitcnt lgkmcnt(0)")
    e(f"{lab}c:")
    if cfg.SH == 16:
        e(f"s_add_u32 s{d}, s{d}, s{d+1}")
    e(f"s_cmp_eq_u32 s{d}, 32")
    e(f"s_cbranch_scc1 {done}")
    spin_tail(lab, done)
def pf_addr(v, first_wave, base_instr):
    e(f"s_lshr_b32 s{sT}, s2, 3")
    if cfg.PFB:
        e(f"s_and_b32 s{sT+1}, s{sW}, 1")
        e(f"s_xor_b32 s{sT}, s{sT}, s{sT+1}")
    e(f"s_lshl_b32 s{sT}, s{sT}, 6")
    e(f"s_sub_u32 s{sT+1}, s{sW}, {first_wave - base_instr}")
    e(f"s_lshl_b32 s{sT+1}, s{sT+1}, 11")
    e(f"s_add_u32 s{sT}, s{sT}, s{sT+1}")
    if cfg.PFX >= 0:
        e(f"s_lshl_b32 s{sT}, s{sT}, 1")
    e(f"v_add_u32 v{v}, s{sT}, v{vLANE}")
    if cfg.PFS != 4:
        e(f"v_mul_u32_u24 v{v}, {cfg.PFS}, v{v}")
        e(f"v_lshrrev_b32 v{v}, 2, v{v}")
    if cfg.PFO:
        e(f"v_add_u32 v{v}, {cfg.PFO}, v{v}")
    e(f"s_and_b32 s{sT}, s2, 7")
    e(f"s_mul_i32 s{sT}, s{sT}, 6272")
    e(f"v_add_u32 v{v}, s{sT}, v{v}")
    e(f"v_subrev_u32 v{v+1}, 50176, v{v}")
    e(f"v_min_u32 v{v}, v{v}, v{v+1}")
    e(f"v_lshlrev_b32 v{v}, 7, v{v}")
    if cfg.PFX >= 0:
        e(f"s_lshl_b32 s{sT}, s2, 11")
        e(f"s_xor_b32 s{sT}, s{sT}, {cfg.PFX << 13}")
        e(f"v_lshrrev_b32 v{v+1}, 8, v{v}")
        e(f"v_xor_b32 v{v+1}, s{sT}, v{v+1}")
        e(f"v_and_b32 v{v+1}, 0x2000, v{v+1}")
        e(f"v_or_b32 v{v}, v{v}, v{v+1}")

NAME = "standalone__spectral_conv_sgc__graph_kernel"
def body():
    e(f".globl {NAME}")
    e(".p2align 8")
    e(f".type {NAME},@function")
    e(f"{NAME}:")
    def cpf():
        if cfg.CPF:
            e("s_getpc_b64 s[54:55]")
            e("L_PC0:")
            e("v_lshlrev_b32 v43, 7, v0")
            e("v_cmp_gt_u32 vcc, L_END-L_PC0, v43")
            e("s_and_saveexec_b64 s[40:41], vcc")
            e("s_cbranch_execz L_NOCPF")
            e(f"global_load_dword v{vPFD}, v43, s[54:55]")
            e("L_NOCPF:")
            e("s_mov_b64 exec, -1")
    def zero1():
        for i in range(4):
            e(f"v_mov_b32 v{vACC+i}, 0")
        e(f"v_lshlrev_b32 v54, 4, v0")
        e(f"ds_write_b128 v54, v[{vACC}:{vACC+3}] offset:{L_CNT}")
    def ld_dst():
        e(f"buffer_load_dwordx4 v[44:47], v41, s[{T1}:{T1+3}], 0 offen {cfg.EFLAG}")
    def ld_sn():
        e(f"buffer_load_dwordx4 v[48:51], v41, s[{T2}:{T2+3}], 0 offen {cfg.EFLAG}")
        e(f"buffer_load_dwordx2 v[52:53], v42, s[{T3}:{T3+3}], 0 offen {cfg.EFLAG}")
    def sn_consts():
        e("v_lshrrev_b32 v42, 1, v41")
        e(f"s_mov_b64 s[{T2+2}:{T2+3}], s[{T1+2}:{T1+3}]")
        e(f"s_lshr_b32 s{T3+2}, s{T1+2}, 1")
        e(f"s_mov_b32 s{T3+3}, s{T1+3}")
    if cfg.TS:
        e(f"s_memrealtime s[{sTS}:{sTS+1}]")
    e(f"s_load_dwordx2 s[{T1}:{T1+1}], s[0:1], 16")
    if cfg.ENT != 1:
        e(f"s_load_dwordx2 s[{T2}:{T2+1}], s[0:1], 8")
        e(f"s_load_dwordx2 s[{T3}:{T3+1}], s[0:1], 24")
    e("s_cmpk_ge_u32 s2, 256")
    e("s_cbranch_scc1 L_END")
    if cfg.ENT == 0:
        e(f"s_load_dwordx2 s[{WS}:{WS+1}], s[0:1], 56")
        e(f"s_load_dwordx2 s[{O}:{O+1}], s[0:1], 48")
        cpf()
        zero1()
    e(f"s_lshl_b32 s{sT}, s2, 4")
    e(f"v_and_or_b32 v41, v0, 15, s{sT}")
    e(f"v_lshrrev_b32 v40, 4, v0")
    e(f"v_lshl_add_u32 v40, v40, 12, v41")
    if cfg.BAL:
        e(f"v_and_b32 v41, {16 if cfg.BAL == 1 else 64}, v0")
        e(f"v_mul_u32_u24 v41, {0x60 if cfg.BAL == 1 else 0x18}, v41")
        e(f"v_xor_b32 v40, v40, v41")
    e("v_lshlrev_b32 v41, 4, v40")
    e(f"s_mov_b32 s{T1+2}, 0x{E*4:x}")
    e(f"s_mov_b32 s{T1+3}, 0x20000")
    if cfg.ENT == 2:
        sn_consts()
    e("s_waitcnt lgkmcnt(0)")
    ld_dst()
    if cfg.ENT == 2:
        ld_sn()
    if cfg.ENT == 1:
        e(f"s_load_dwordx2 s[{T2}:{T2+1}], s[0:1], 8")
        e(f"s_load_dwordx2 s[{T3}:{T3+1}], s[0:1], 24")
    if cfg.ENT != 0:
        e(f"s_load_dwordx2 s[{WS}:{WS+1}], s[0:1], 56")
        cpf()
        zero1()
    if cfg.ENT != 2:
        sn_consts()
    e(f"v_cmp_gt_u32 vcc, 832, v0")
    e(f"s_mov_b32 s{WS+2}, 0x{WS_USED:x}")
    e(f"s_mov_b32 s{WS+3}, s{T1+3}")
    if cfg.TS:
        for i in range(1, 16):
            e(f"s_mov_b64 s[{sTS+2*i}:{sTS+2*i+1}], 0")
    if cfg.R1:
        e(f"s_and_b32 s{sT}, s2, 0xc7")
    else:
        e(f"s_and_b32 s{sT}, s2, 0xff")
    e("s_waitcnt lgkmcnt(0)")
    e("s_cbranch_vccz L_H0")
    e("s_barrier")
    if cfg.ENT != 2:
        ld_sn()
    e("s_branch L_E0")
    e("L_H0:")
    e(f"s_movk_i32 s{O+2}, 256")
    e(f"s_mov_b32 s{O+3}, s{T1+3}")
    e("s_cbranch_scc1 L_H05")
    e(f"v_cmp_gt_u32 vcc, 960, v0")
    e("s_cbranch_vccnz L_H05")
    if cfg.R1:
        e(f"s_lshl_b32 s{sT}, s2, 10")
        e(f"s_add_u32 s{sT}, s{sT}, 0x{RS_OFF - 960*16:x}")
        e(f"s_add_u32 s{sT+1}, s{sT}, 8192")
        e("L_ZLOOP:")
        e(f"buffer_store_dwordx4 v[{vACC}:{vACC+3}], v54, s[{WS}:{WS+3}], s{sT} offen sc1")
        e(f"s_addk_i32 s{sT}, 1024")
    else:
        e(f"v_and_b32 v40, 7, v0")
        e(f"v_and_b32 v43, 56, v0")
        e(f"v_lshl_add_u32 v43, v43, 1, v40")
        e(f"v_lshlrev_b32 v43, 4, v43")
        e(f"s_mov_b32 s{sT}, 0x{SY_OFF:x}")
        e(f"s_add_u32 s{sT+1}, s{sT}, {9*2048}")
        e("L_ZLOOP:")
        e(f"buffer_store_dwordx4 v[{vACC}:{vACC+3}], v43, s[{WS}:{WS+3}], s{sT} offen sc1")
        e(f"s_addk_i32 s{sT}, 2048")
    e(f"s_cmp_lt_u32 s{sT}, s{sT+1}")
    e("s_cbranch_scc1 L_ZLOOP")
    e("L_H05:")
    if cfg.DW:
        e(f"buffer_load_dword v{vPFD}, v{vACC}, s[{O}:{O+3}], 0 offen offset:128")
    e("L_H1:")
    e("s_barrier")
    e("s_branch L_P1H1")
    e("L_E0:")
    assert L_ZEND - (L_CNT + 16384) <= 2 * 13312
    e(f"ds_write_b128 v54, v[{vACC}:{vACC+3}] offset:{L_CNT+16384}")
    e(f"v_add_u32 v54, {L_ZEND-13312}, v54")
    e(f"ds_write_b128 v54, v[{vACC}:{vACC+3}]")
    e(f"v_cmp_gt_u32 vcc, {E//4}, v40")
    e(f"v_mov_b32 v{vONE}, 1")
    e(f"s_mov_b32 s{sC1}, -196")
    e(f"s_mov_b32 s{sC2}, 0x05040100")
    e(f"s_mov_b32 s{sC3}, 0x07060100")
    e(f"v_mov_b32 v43, {L_MISC+12}")
    e(f"v_mul_u32_u24 v80, 24, v0")
    e(f"v_add_u32 v80, {L_STAGE}, v80")
    e(f"v_add_u32 v81, {832*24}, v80")
    e(f"s_mul_i32 s{sT}, s2, {CG*16}")
    e(f"v_lshl_add_u32 v41, v0, 4, s{sT}")
    e(f"v_add_u32 v42, {832*16}, v41")
    e(f"v_add_u32 v82, 832, v0")
    e(f"s_mov_b64 exec, vcc")
    e(f"s_waitcnt vmcnt(2)")
    for i in range(4):
        e(f"v_mul_u32_u24 v{74+i}, {MAG}, v{44+i}")
    for i in range(4):
        e(f"v_lshrrev_b32 v{70+i}, 24, v{74+i}")
        e(f"v_lshlrev_b32 v{54+i}, 2, v{70+i}")
        e(f"ds_add_rtn_u32 v{58+i}, v{54+i}, v{vONE} offset:{L_HIST}")
    e("s_waitcnt lgkmcnt(0)")
    ts(1)
    e("s_barrier")
    for i in range(4):
        e(f"v_mad_i32_i24 v{44+i}, v{70+i}, s{sC1}, v{44+i}")
        e(f"v_and_b32 v{74+i}, 0xe0000000, v{74+i}")
        e(f"v_add_u32 v{44+i}, 1, v{44+i}")
    def keys():
        e(f"s_waitcnt vmcnt(1)")
        ts(5, 2)
        for i in range(4):
            e(f"v_mul_u32_u24 v78, {MAG}, v{48+i}")
            e(f"v_sub_u32 v78, v78, v{74+i}")
            e(f"v_bfe_u32 v78, v78, 29, 2")
            e(f"v_lshl_or_b32 v{63+2*i}, v{44+i}, 2, v78")
    def perms():
        e(f"s_waitcnt vmcnt(0)")
        for i in range(4):
            e(f"v_perm_b32 v{62+2*i}, v{52+i//2}, v{48+i}, s{sC2 if i%2==0 else sC3}")
    if cfg.KV:
        keys()
    if cfg.KV == 2:
        perms()
    e("s_barrier")
    ts(4, 2)
    for i in range(4):
        e(f"ds_read_b32 v{54+i}, v{54+i} offset:{L_HIST}")
    e("s_mov_b64 exec, -1")
    e(f"ds_read_b32 v43, v43")
    e(f"s_mov_b64 exec, vcc")
    if not cfg.KV:
        keys()
    if cfg.KV != 2:
        perms()
    ts(6, 2)
    for i in range(4):
        e(f"s_waitcnt lgkmcnt(4)")
        e(f"v_lshl_add_u32 v{58+i}, v{58+i}, 3, v{54+i}")
        e(f"ds_write_b64 v{58+i}, v[{62+2*i}:{63+2*i}] offset:{L_STAGE}")
    e("s_mov_b64 exec, -1")
    e("s_waitcnt lgkmcnt(0)")
    e(f"v_cmp_lt_u32 vcc, v82, v43")
    ts(7, 2)
    if cfg.XD == 1:
        e("s_sleep 16")
    e("s_barrier")
    def rd3(d, a):
        e(f"ds_read_b64 v[{d}:{d+1}], v{a}")
        e(f"ds_read_b64 v[{d+4}:{d+5}], v{a} offset:8")
        e(f"ds_read_b64 v[{d+2}:{d+3}], v{a} offset:16")
    def pk3(d):
        e(f"v_lshl_or_b32 v{d+3}, v{d+3}, 10, v{d+5}")
        e(f"v_lshl_or_b32 v{d+3}, v{d+3}, 10, v{d+1}")
        e(f"v_mov_b32 v{d+1}, v{d+4}")
    rd3(44, 80)
    e("s_cbranch_vccz L_ST1")
    e("s_mov_b64 exec, vcc")
    rd3(56, 81)
    e("s_waitcnt lgkmcnt(0)")
    pk3(56)
    e(f"buffer_store_dwordx4 v[56:59], v42, s[{WS}:{WS+3}], 0 offen sc1")
    e("s_mov_b64 exec, -1")
    e("L_ST1:")
    e("s_waitcnt lgkmcnt(0)")
    pk3(44)
    e(f"buffer_store_dwordx4 v[44:47], v41, s[{WS}:{WS+3}], 0 offen sc1")
    ts(2)
    e("s_branch L_P1_JOIN")
    e("L_P1H1:")
    e(f"v_and_b32 v{vLANE}, 63, v0")
    e(f"v_and_b32 v40, 7, v0")
    e(f"v_lshlrev_b32 v{vLOFF}, 4, v40")
    e(f"v_mov_b32 v{vONE}, 1")
    e(f"v_cmp_gt_u32 vcc, 960, v0")
    e("s_cbranch_vccnz L_P1H2")
    e(f"s_and_b32 s{sT}, s2, {'0xc7' if cfg.R1 else '0xff'}")
    e("s_cbranch_scc1 L_W15_B")
    for i in range(4):
        e(f"v_mov_b32 v{56+i}, 1")
    e(f"s_lshl_b32 s{sT}, s2, 1")
    e(f"s_mov_b64 exec, {'1' if cfg.R1 else '0xff'}")
    e(f"s_waitcnt vmcnt({1 if cfg.DW else 0})")
    e(f"buffer_store_dwordx4 v[56:59], v{vLOFF}, s[{O}:{O+3}], s{sT} offen sc1")
    e("L_W15_B:")
    e(f"s_lshl_b32 s{sT}, s2, 8")
    e(f"s_add_u32 s{sT}, s{sT}, 0x{HS_OFF - 960*16:x}")
    e(f"s_add_u32 s{sT+1}, s{sT}, 0x{QS_OFF - HS_OFF:x}")
    e("s_mov_b64 exec, 0xffff")
    e(f"buffer_store_dwordx4 v[{vACC}:{vACC+3}], v54, s[{WS}:{WS+3}], s{sT} offen sc1")
    e("s_cmp_ge_u32 s2, 8")
    e("s_cbranch_scc1 L_W15_C")
    e(f"buffer_store_dwordx4 v[{vACC}:{vACC+3}], v54, s[{WS}:{WS+3}], s{sT+1} offen sc1")
    e("L_W15_C:")
    e("s_mov_b64 exec, -1")
    e("s_barrier")
    e("s_barrier")
    e("s_barrier")
    e("s_waitcnt lgkmcnt(0)")
    e("s_branch L_P1_JOIN")
    e("L_P1H2:")
    e(f"s_load_dwordx2 s[{pW}:{pW+1}], s[0:1], 32")
    e(f"v_cmp_gt_u32 vcc, 896, v0")
    e("s_waitcnt lgkmcnt(0)")
    e("s_cbranch_vccnz L_P1_W13")
    srd(T1, pW, 8192)
    e(f"v_lshlrev_b32 v40, 4, v{vLANE}")
    e(f"v_add_u32 v41, 4096, v40")
    for i in range(8):
        e(f"buffer_load_dwordx4 v[{44+4*i}:{47+4*i}], v{40+i//4}, s[{T1}:{T1+3}], 0 offen offset:{1024*(i%4)}")
    e(f"v_lshrrev_b32 v43, 3, v{vLANE}")
    e(f"v_lshlrev_b32 v43, 1, v43")
    if cfg.O4:
        e(f"v_add_u32 v43, v{vLOFF}, v43")
    else:
        e(f"v_lshl_add_u32 v43, v{vLOFF}, 1, v43")
    e("s_barrier")
    e("s_barrier")
    e("s_barrier")
    e(f"s_waitcnt vmcnt(0)")
    for i in range(8):
        for el in range(8):
            off = L_WT + (el & 3) * 2048 + (el >> 2) * (128 if cfg.O4 else 16) + (i & 3) * 256 + (i >> 2) * 1024
            op = "ds_write_b16" if el % 2 == 0 else "ds_write_b16_d16_hi"
            e(f"{op} v43, v{44+4*i+el//2} offset:{off}")
    e("s_branch L_P1_JOIN")
    e("L_P1_W13:")
    e("s_setprio 3")
    e(f"v_lshlrev_b32 v79, 4, v{vLANE}")
    e(f"s_lshl_b32 s{sT}, s2, 10")
    e(f"s_add_u32 s{sT}, s{sT}, 0x{TAB_OFF:x}")
    e(f"v_add_u32 v78, s{sT}, v79")
    e(f"v_mov_b32 v75, {L_MISC+12}")
    e(f"s_mov_b32 s{sT}, 43691")
    e(f"v_mov_b32 v74, {2*43691}")
    e("s_barrier")
    e(f"ds_read_b128 v[80:83], v79 offset:{L_HIST}")
    e("s_waitcnt lgkmcnt(0)")
    for i in range(4):
        e(f"v_mad_u32_u24 v{80+i}, v{80+i}, s{sT}, v74")
    for i in range(4):
        e(f"v_lshrrev_b32 v{80+i}, 17, v{80+i}")
    e("v_add_u32 v85, v80, v81")
    e("v_add_u32 v86, v85, v82")
    e("v_add_u32 v87, v86, v83")
    e("v_mov_b32 v84, v87")
    e("s_nop 1")
    scan64(84)
    e("v_mov_b32 v76, v84")
    e("v_sub_u32 v84, v84, v87")
    e("v_add_u32 v87, v84, v86")
    e("v_add_u32 v86, v84, v85")
    e("v_add_u32 v85, v84, v80")
    for i in range(4):
        e(f"v_mul_u32_u24 v{68+i}, 24, v{84+i}")
    e(f"ds_write_b128 v79, v[68:71] offset:{L_HIST}")
    e(f"s_mov_b32 exec_lo, 0")
    e(f"s_mov_b32 exec_hi, 0x80000000")
    e("ds_write_b32 v75, v76")
    e("s_mov_b64 exec, -1")
    for i in range(4):
        e(f"v_lshl_or_b32 v{80+i}, v{80+i}, 16, v{84+i}")
    e(f"buffer_store_dwordx4 v[80:83], v78, s[{WS}:{WS+3}], 0 offen sc1")
    e("s_waitcnt lgkmcnt(0)")
    e("s_barrier")
    e("s_mov_b64 exec, 0xff")
    if not cfg.RL:
        e(f"buffer_load_dword v76, v{vLOFF}, s[{O}:{O+3}], 0 offen sc1")
    e("s_barrier")
    e(f"s_mov_b32 s{sSPIN}, 0")
    if not cfg.RL:
        e("s_branch L_RDY1")
    e("L_RDY:")
    e(f"buffer_load_dword v76, v{vLOFF}, s[{O}:{O+3}], 0 offen sc1")
    e("L_RDY1:")
    e("s_waitcnt vmcnt(0)")
    e("v_cmp_ne_u32 vcc, 1, v76")
    e("s_cbranch_vccz L_RDYX")
    spin_tail("L_RDY", "L_RDYX")
    e("L_RDYX:")
    e("s_setprio 0")
    e("s_mov_b64 exec, -1")
    ts(1)
    e("L_P1_JOIN:")
    e(f"s_load_dwordx2 s[{G}:{G+1}], s[0:1], 0")
    e(f"s_load_dwordx2 s[{pOUT}:{pOUT+1}], s[0:1], 40")
    e(f"v_lshrrev_b32 v{vX+5}, 6, v0")
    e("s_and_b32 s3, s2, 7")
    e(f"v_readfirstlane_b32 s{sW}, v{vX+5}")
    e("s_lshl_b32 s3, s3, 5")
    e(f"s_lshr_b32 s{sT}, s2, 3")
    e(f"s_or_b32 s3, s3, s{sT}")
    e(f"v_and_b32 v{vLANE}, 63, v0")
    e(f"s_mov_b32 s{s128}, 128")
    e(f"s_mov_b32 s{sBB}, 0")
    e(f"s_mov_b32 s{sHOP}, 0")
    e(f"s_mov_b32 s{sMODE}, 0")
    for i in range(4, 16):
        e(f"v_mov_b32 v{vACC+i}, 0")
    e(f"v_and_b32 v{vX+4}, 7, v0")
    e(f"v_lshlrev_b32 v{vLOFF}, 4, v{vX+4}")
    e(f"v_and_b32 v{vX+4}, 1, v0")
    e(f"v_mov_b32 v{vX+5}, 0x0c0c0302")
    e(f"v_mov_b32 v{vX+6}, 0x03020c0c")
    e(f"v_cmp_eq_u32 vcc, 1, v{vX+4}")
    e(f"v_mov_b32 v{vX+7}, 0x0c0c0c0c")
    e(f"v_and_b32 v{vX+4}, 2, v0")
    e(f"v_cndmask_b32 v{vX+5}, v{vX+5}, v{vX+6}, vcc")
    e(f"v_cmp_eq_u32 vcc, 2, v{vX+4}")
    e(f"v_mov_b32 v{vP}, 0")
    e(f"s_and_b32 s{sT}, s2, 7")
    e(f"s_lshl_b32 s{sT}, s{sT}, 8")
    e(f"s_add_u32 s{sQ-1}, s{sT}, 0x{QS_OFF:x}")
    e(f"s_mov_b32 s{G+2}, 0x{ROWB:x}")
    e(f"v_cndmask_b32 v{vSEL0}, v{vX+5}, v{vX+7}, vcc")
    e(f"v_cndmask_b32 v{vSEL1}, v{vX+7}, v{vX+5}, vcc")
    e(f"v_cmp_gt_u32 vcc, {NSLOT}, v0")
    e(f"s_mov_b64 s[{sNODE}:{sNODE+1}], vcc")
    e(f"s_mov_b32 s{G+3}, 0x20000")
    srd(O, WS, H1B, H1_OFF)
    e(f"v_and_b32 v{vX}, 60, v0")
    e(f"v_lshl_add_u32 v{vX}, v{vX}, 2, s{sW}")
    e(f"s_lshl_b32 s{sT}, s3, 2")
    e(f"s_add_u32 s{sT}, s{sT}, 0x{TAB_OFF:x}")
    e(f"v_lshl_add_u32 v{vTA}, v{vX}, 10, s{sT}")
    if cfg.R1:
        e(f"s_sub_u32 s{sI4}, s{sW}, 1")
        e(f"s_and_b32 s{sI4}, s{sI4}, 7")
        e(f"s_and_b32 s{sT}, s2, 63")
        e(f"s_lshl_b32 s{sT}, s{sT}, 3")
        e(f"s_add_u32 s{sI4}, s{sI4}, s{sT}")
        e(f"s_lshl_b32 s{sI4}, s{sI4}, 7")
        e(f"s_add_u32 s{sI4}, s{sI4}, 0x{RS_OFF:x}")
        e(f"s_add_u32 s{sI4+1}, s{sI4}, 64")
        if cfg.AE:
            bar_issue(sI4, 44)
        bar_bump_addr(64)
        e(f"s_mov_b32 s{sT}, 0x{RS_OFF:x}")
        if cfg.AE:
            e("s_waitcnt lgkmcnt(0)")
            e(f"s_add_u32 s44, s44, s45")
            e(f"s_cmp_lt_u32 s44, {cfg.AE}")
            e("s_cbranch_scc1 L_LATE")
            e(f"buffer_load_dword v{vE}, v{vTA}, s[{WS}:{WS+3}], 0 offen sc1")
            e(f"s_cmp_lg_u32 s{sW}, 0")
            e("s_waitcnt vmcnt(1)")
            e("s_barrier")
            e("s_branch L_A5X")
            e("L_LATE:")
        e(f"s_cmp_lg_u32 s{sW}, 0")
        e("s_waitcnt vmcnt(0) lgkmcnt(0)")
        ts(14)
        if cfg.TE:
            e(f"buffer_load_dword v{vE}, v{vTA}, s[{WS}:{WS+3}], 0 offen sc1")
        e("s_barrier")
        if not cfg.TE:
            e(f"buffer_load_dword v{vE}, v{vTA}, s[{WS}:{WS+3}], 0 offen sc1")
        e("L_A5X:")
        e("s_cbranch_scc1 L_NOARR")
        e(f"buffer_atomic_add v{vONE}, v64, s[{WS}:{WS+3}], s{sT} offen sc1")
        e("s_waitcnt vmcnt(1)")
        e("s_branch L_DECODE")
        e("L_NOARR:")
        e(f"s_cmp_gt_u32 s{sW}, 8")
        e("s_waitcnt vmcnt(0)")
        if cfg.EP:
            e("s_cbranch_scc1 L_DECODE")
            bar_issue(sI4, 44)
        e("s_branch L_DECODE")
    else:
        e(f"v_mov_b32 v64, {SY_OFF + cfg.WST - QS_OFF}")
        e(f"v_add_u32 v64, s{sQ-1}, v64")
        e(f"v_mov_b32 v65, 1")
        e(f"s_cmp_lg_u32 s{sW}, 0")
        e(f"s_cselect_b64 exec, -1, 1")
        e("s_waitcnt vmcnt(0) lgkmcnt(0)")
        ts(14)
        e("s_barrier")
        e("s_cbranch_scc1 L_NOARR")
        e(f"buffer_atomic_add v65, v64, s[{WS}:{WS+3}], 0 offen sc0 sc1")
        e("s_mov_b64 exec, -1")
        e(f"buffer_load_dword v{vE}, v{vTA}, s[{WS}:{WS+3}], 0 offen sc1")
        arrive_b(1, 64, 1, ["s_waitcnt vmcnt(1)", "s_branch L_DECODE"])
        e("s_waitcnt vmcnt(0)")
        e("s_branch L_DECODE")
        e("L_NOARR:")
        e(f"buffer_load_dword v{vE}, v{vTA}, s[{WS}:{WS+3}], 0 offen sc1")
        e("s_waitcnt vmcnt(0)")
        e("s_branch L_DECODE")

    e("L_BATCH:")
    e(f"s_mov_b32 s{sMODE}, 2")
    e(f"v_mov_b32 v{vX}, 0")
    e(f"v_mov_b32 v{vX+1}, 0")
    e(f"v_lshlrev_b32 v{vX+4}, 3, v0")
    e(f"v_cmp_gt_u32 vcc, {(L_ZEND2-L_CNT)//8}, v0")
    e(f"s_mov_b64 exec, vcc")
    e(f"ds_write_b64 v{vX+4}, v[{vX}:{vX+1}] offset:{L_CNT}")
    e("s_mov_b64 exec, -1")
    e("L_DECODE:")
    if cfg.FAIL:
        e(f"s_cmp_lg_u32 s{sMODE}, 0")
        e("s_cbranch_scc1 L_NOFAIL")
        e(f"s_and_b32 s{sT}, s2, 3")
        e(f"s_cmp_lg_u32 s{sT}, 1")
        e("s_cbranch_scc1 L_NOFAIL")
        e(f"s_cmp_lt_u32 s{sW}, {16 - cfg.FAIL}")
        e("s_cbranch_scc1 L_NOFAIL")
        e(f"v_mul_u32_u24 v{vE}, 0x9e3b, v{vE}")
        e(f"v_xor_b32 v{vE}, v{vE}, v0")
        e("L_NOFAIL:")
    vNG, vG0, vQ, vT, vB, vA = vX, vX+1, vX+2, vX+3, vX+4, vX+5
    vGR = 40
    vKEY = 48
    vRANK = 54
    vDS = 60
    e(f"v_and_b32 v{vG0}, 60, v0")
    e(f"v_lshl_add_u32 v{vG0}, v{vG0}, 2, s{sW}")
    e(f"v_mul_u32_u24 v{vG0}, {CG}, v{vG0}")
    e(f"v_and_b32 v{vT}, 3, v0")
    e(f"v_add_u32 v{vG0}, v{vG0}, v{vT}")
    e(f"s_lshl_b32 s{sT}, s{sW}, 9")
    e(f"s_add_u32 s{sT}, s{sT}, {L_D}")
    e(f"v_mov_b32 v{vGR+3}, 0")
    e(f"v_mov_b32 v{vGR+7}, 0")
    ts(4)
    e(f"v_lshrrev_b32 v{vNG}, 16, v{vE}")
    e(f"v_lshrrev_b32 v{vQ}, 16, v{vE}")
    e(f"v_and_b32 v{vB}, 0xffff, v{vE}")
    e(f"v_add_u32 v{vG0}, v{vG0}, v{vB}")
    scan64(vQ, fill=[f"v_sub_u32 v{vB}, v{vT}, v{vNG}", f"v_subrev_u32 v{vB}, s{sBB}, v{vB}",
                     f"v_cmp_lt_u32 s[{sTMP}:{sTMP+1}], v{vT}, v{vNG}", f"v_lshl_add_u32 v{vDS}, v{vLANE}, 2, s{sT}"], steps=SCAN[2:])
    e(f"v_readlane_b32 s{sTB}, v{vQ}, 63")
    e(f"v_add_u32 v{vB}, v{vB}, v{vQ}")
    e(f"L_DLOOP:")
    e(f"v_cmp_gt_u32 vcc, s{s128}, v{vB}")
    e(f"v_lshl_add_u32 v{vA}, v{vB}, 2, s{sT}")
    e(f"v_add_u32 v{vT}, 4, v{vT}")
    e(f"v_add_u32 v{vB}, 4, v{vB}")
    e(f"s_and_b64 exec, vcc, s[{sTMP}:{sTMP+1}]")
    e(f"ds_write_b32 v{vA}, v{vG0}")
    e("s_mov_b64 exec, -1")
    e(f"v_cmp_lt_u32 s[{sTMP}:{sTMP+1}], v{vT}, v{vNG}")
    e(f"v_cmp_gt_i32 vcc, s{s128}, v{vB}")
    e(f"v_add_u32 v{vG0}, 4, v{vG0}")
    e(f"s_and_b64 s[{sTMP}:{sTMP+1}], s[{sTMP}:{sTMP+1}], vcc")
    e(f"s_cbranch_scc1 L_DLOOP")
    e(f"ds_read2st64_b32 v[{vDS}:{vDS+1}], v{vDS} offset0:0 offset1:1")
    e(f"s_sub_i32 s{sNR}, s{sTB}, s{sBB}")
    e(f"v_add_u32 v{vA}, 64, v{vLANE}")
    e(f"v_cmp_gt_i32 s[{sM}:{sM+1}], s{sNR}, v{vLANE}")
    e(f"v_cmp_gt_i32 s[{sM+6}:{sM+7}], s{sNR}, v{vA}")
    ts(3)
    e("s_waitcnt lgkmcnt(0)")
    e(f"v_lshlrev_b32 v{vDS}, 4, v{vDS}")
    e(f"v_lshlrev_b32 v{vDS+1}, 4, v{vDS+1}")
    e(f"s_cmp_eq_u32 s{sMODE}, 1")
    e("s_cbranch_scc1 L_NOA6")
    if cfg.PFA:
        e(f"s_cmp_lt_u32 s{sW}, {16-cfg.PFA}")
        e("s_cbranch_scc1 L_NOPFA")
        pf_addr(vX+8, 16-cfg.PFA, 0)
        e(f"buffer_load_dword v{vPFD}, v{vX+8}, s[{G}:{G+3}], 0 offen")
        e("L_NOPFA:")
    if cfg.R1:
        e(f"s_sub_u32 s{sT}, s{sW}, 1")
        e(f"s_cmp_ge_u32 s{sT}, 8")
        e("s_cbranch_scc1 L_NORPOLL")
        e(f"s_cmp_lg_u32 s{sMODE}, 0")
        e("s_cbranch_scc1 L_NORPOLL")
        bar_poll(sI4, "L_NORPOLL", 44, cfg.EP)
    else:
        e(f"s_cmp_lg_u32 s{sW}, {cfg.RW}")
        e("s_cbranch_scc1 L_NORPOLL")
        poll(1)
    e("L_NORPOLL:")
    e("s_barrier")
    e("L_NOA6:")
    e(f"s_cmp_le_i32 s{sNR}, 0")
    e("s_cbranch_scc1 L_LD_DONE")
    e(f"s_mov_b64 exec, s[{sM}:{sM+1}]")
    e(f"buffer_load_dwordx4 v[{vGR}:{vGR+3}], v{vDS}, s[{WS}:{WS+3}], 0 offen sc1")
    e(f"s_cmp_le_i32 s{sNR}, 64")
    e("s_cbranch_scc1 L_LD_DONE")
    e(f"s_mov_b64 exec, s[{sM+6}:{sM+7}]")
    e(f"buffer_load_dwordx4 v[{vGR+4}:{vGR+7}], v{vDS+1}, s[{WS}:{WS+3}], 0 offen sc1")
    e(f"L_LD_DONE:")
    e("s_mov_b64 exec, -1")
    e(f"s_cmp_lg_u32 s{sMODE}, 0")
    e("s_cbranch_scc1 L_NOVER")
    if cfg.LV == 1:
        e("s_barrier")
    e(f"buffer_load_dword v{vE2}, v{vTA}, s[{WS}:{WS+3}], 0 offen sc1")
    ts(15)
    if cfg.PF2:
        pf_addr(vX+8, 16-cfg.PF2, cfg.PFA)
    if cfg.LV:
        e(f"s_waitcnt vmcnt(1)")
    else:
        e(f"s_mov_b32 s{sMODE}, 1")
        e(f"s_waitcnt vmcnt(0)")
        e(f"v_cmp_ne_u32 vcc, v{vE}, v{vE2}")
        e(f"v_mov_b32 v{vE}, v{vE2}")
        e("s_cbranch_vccnz L_DECODE")
    if cfg.PF2:
        e(f"s_cmp_lt_u32 s{sW}, {16-cfg.PF2}")
        e("s_cbranch_scc1 L_NOPF2")
        e(f"buffer_load_dword v{vPFD}, v{vX+8}, s[{G}:{G+3}], 0 offen")
    e("s_branch L_NOPF2")
    e("L_NOVER:")
    e(f"v_mov_b32 v{vE2}, v{vE}")
    e(f"s_waitcnt vmcnt(0)")
    e("L_NOPF2:")
    ts(5)
    def second(lab):
        e(f"s_cmp_le_i32 s{sNR}, 64")
        e(f"s_cbranch_scc1 {lab}")
    for r in range(2):
        if r == 1:
            second("L_RK_DONE")
            e("s_mov_b64 exec, -1")
        for s_ in range(3):
            k = 3 * r + s_
            e(f"v_bfe_u32 v{vKEY+k}, v{vGR+4*r+3}, {10*s_}, 10")
        for s_ in range(3):
            k = 3 * r + s_
            e(f"v_cmp_lt_u32 s[{sM+2*k}:{sM+2*k+1}], 3, v{vKEY+k}")
            e(f"v_lshlrev_b32 v{vKEY+k}, 2, v{vKEY+k}")
        for s_ in range(3):
            k = 3 * r + s_
            e(f"s_mov_b64 exec, s[{sM+2*k}:{sM+2*k+1}]")
            e(f"ds_add_rtn_u32 v{vRANK+k}, v{vKEY+k}, v{vONE} offset:{L_CNT}")
    e("L_RK_DONE:")
    if cfg.LV:
        e("s_mov_b64 exec, -1")
        e(f"s_cmp_ge_u32 s{sW}, {16-cfg.PF2}")
        e("s_waitcnt vmcnt(1)")
        e("s_cbranch_scc1 L_VER2")
        e("s_waitcnt vmcnt(0)")
        e("L_VER2:")
        e(f"v_cmp_ne_u32 vcc, v{vE}, v{vE2}")
        e(f"v_mov_b32 v{vE}, v{vE2}")
        e("s_cmp_lg_u64 vcc, 0")
        e(f"s_cselect_b32 s{sTB}, -1, s{sTB}")
    e("s_mov_b64 exec, 1")
    e(f"v_mov_b32 v{vA}, s{sTB}")
    e(f"v_mov_b32 v{vB}, {L_MISC+4}")
    e(f"ds_max_u32 v{vB}, v{vA}")
    e("s_mov_b64 exec, -1")
    def slots(bodyf, lab):
        for k in range(6):
            if k == 3:
                second(lab)
            e(f"s_mov_b64 exec, s[{sM+2*k}:{sM+2*k+1}]")
            bodyf(k)
        e(f"{lab}:")
        e("s_mov_b64 exec, -1")
    vC = vX
    vDEG, vNP, vSC, vBIN, vDR, vSB, vNA = vX+4, vX+5, vX+6, vX+7, vX+8, vX+9, vX+10
    vBS = vX + 12
    e(f"v_lshlrev_b32 v{vNA}, 4, v0")
    e(f"v_mov_b32 v{vX+11}, {L_MISC}")
    e(f"v_mov_b32 v{vTP}, 0xffff")
    e(f"v_mov_b32 v{vTP+1}, 0xffff")
    e(f"s_cmp_ge_u32 s{sW}, 4")
    e("s_waitcnt lgkmcnt(0)")
    e("s_barrier")
    e(f"s_cbranch_scc1 L_NODE1_DONE")
    e(f"ds_read_b128 v[{vC}:{vC+3}], v{vNA} offset:{L_CNT+16}")
    ts(6)
    e("s_waitcnt lgkmcnt(0)")
    e(f"v_add_u32 v{vC+1}, v{vC}, v{vC+1}")
    e(f"v_add_u32 v{vC+2}, v{vC+1}, v{vC+2}")
    e(f"v_add3_u32 v{vSC}, v{vC+2}, v{vC+3}, 3")
    e(f"v_lshrrev_b32 v{vSC}, 1, v{vSC}")
    e(f"v_add_u32 v{vDEG}, v{vC+2}, v{vC+3}")
    e(f"v_mov_b32 v{vNP}, v{vSC}")
    scan64(vSC, fill=[f"v_min_u32 v{vBIN}, 63, v{vDEG}", f"v_sub_u32 v{vBIN}, 63, v{vBIN}",
                      f"v_lshlrev_b32 v{vBIN}, 2, v{vBIN}", f"s_mov_b64 exec, s[{sNODE}:{sNODE+1}]"], steps=SCAN[:2])
    e(f"ds_add_rtn_u32 v{vDR}, v{vBIN}, v{vONE} offset:{L_DH}")
    e("s_mov_b64 exec, -1")
    scan64(vSC, steps=SCAN[2:])
    e(f"s_mov_b32 exec_lo, 0")
    e(f"s_mov_b32 exec_hi, 0x80000000")
    e(f"ds_add_rtn_u32 v{vSB}, v{vX+11}, v{vSC}")
    e("s_mov_b64 exec, -1")
    e(f"v_lshlrev_b32 v{vSC}, 1, v{vSC}")
    e(f"v_sub_u32 v{vC+3}, v{vSC}, v{vDEG}")
    e(f"v_lshlrev_b32 v{vX+11}, 1, v{vNP}")
    e(f"v_sub_u32 v{vSC}, v{vSC}, v{vX+11}")
    e("s_waitcnt lgkmcnt(0)")
    e(f"v_readlane_b32 s{sT}, v{vSB}, 63")
    e(f"s_lshl_b32 s{sT}, s{sT}, 3")
    e(f"s_add_u32 s{sT}, s{sT}, {L_RECS}")
    e(f"v_lshl_add_u32 v{vBS}, v{vC+3}, 2, s{sT}")
    e(f"v_lshl_add_u32 v{vBS+1}, v{vC}, 2, v{vBS}")
    e(f"v_lshl_add_u32 v{vBS+2}, v{vC+1}, 2, v{vBS}")
    e(f"v_lshl_add_u32 v{vBS+3}, v{vC+2}, 2, v{vBS}")
    e(f"ds_write_b128 v{vNA}, v[{vBS}:{vBS+3}] offset:{L_CNT+16}")
    e(f"v_lshl_add_u32 v{vSC}, v{vSC}, 2, s{sT}")
    e(f"ds_write_b64 v{vSC}, v[{vTP}:{vTP+1}]")
    e(f"ds_write_b32 v{vSC}, v{vTP} offset:8")
    e(f"L_NODE1_DONE:")
    e(f"v_mov_b32 v{vC}, {L_MISC+4}")
    e(f"v_lshlrev_b32 v{vC+1}, 2, v{vLANE}")
    e("s_waitcnt lgkmcnt(0)")
    e("s_barrier")
    if cfg.XD == 2:
        e("s_sleep 16")
    ts(7)
    e(f"ds_read_b32 v{vC+1}, v{vC+1} offset:{L_DH}")
    e(f"ds_read_b32 v{vC+3}, v{vC}")
    for k in range(6):
        if k == 3:
            second("L_RB_DONE")
        e(f"ds_read_b32 v{vKEY+k}, v{vKEY+k} offset:{L_CNT}")
    e("L_RB_DONE:")
    e(f"s_cmp_ge_u32 s{sW}, 4")
    e(f"s_cbranch_scc1 L_NODE2_DONE")
    e(f"s_cmp_lg_u32 s{sBB}, 0")
    e(f"s_cbranch_scc1 L_NODE2_NOSORT")
    e("s_waitcnt lgkmcnt(4)")
    e(f"v_mov_b32 v{vC}, v{vC+1}")
    e("s_nop 1")
    scan64(vC)
    e(f"v_sub_u32 v{vC}, v{vC}, v{vC+1}")
    e(f"ds_bpermute_b32 v{vC}, v{vBIN}, v{vC}")
    e(f"s_movk_i32 s{sT}, {NNORM*16}")
    e("s_waitcnt lgkmcnt(0)")
    if SPL:
        e(f"v_add_u32 v{vP}, v{vC}, v{vDR}")
        e(f"v_and_b32 v{vC}, 0xf8, v{vP}")
        e(f"v_add3_u32 v{vC}, v{vC}, v{vP}, s{sT}")
        e(f"v_cmp_gt_u32 vcc, {8*SPL}, v{vP}")
        e(f"v_subrev_u32 v{vP}, {8*SPL}, v{vP}")
        e("s_nop 0")
        e(f"v_cndmask_b32 v{vP}, v{vP}, v{vC}, vcc")
        e(f"v_lshlrev_b32 v{vP}, 3, v{vP}")
    else:
        e(f"v_add_lshl_u32 v{vP}, v{vC}, v{vDR}, 3")
    e(f"L_NODE2_NOSORT:")
    e(f"v_lshl_or_b32 v{vC}, v{vNP}, 16, v{vSC}")
    e(f"s_mul_i32 s{sT}, s3, {NB*128}")
    e(f"v_lshl_add_u32 v{vC+1}, v0, 7, s{sT}")
    e(f"v_cmp_gt_u32 vcc, {NB}, v0")
    e(f"v_mov_b32 v{vC+2}, 0x80000000")
    e(f"s_mov_b64 exec, s[{sNODE}:{sNODE+1}]")
    e(f"v_cndmask_b32 v{vC+1}, v{vC+2}, v{vC+1}, vcc")
    e(f"ds_write_b64 v{vP}, v[{vC}:{vC+1}] offset:{L_NT}")
    if SPL:
        e(f"v_cmp_le_u32 vcc, {NNORM*128}, v{vP}")
        e(f"v_mov_b32 v{vC+1}, v{vC+2}")
        e("s_and_b64 exec, exec, vcc")
        e(f"ds_write_b64 v{vP}, v[{vC}:{vC+1}] offset:{L_NT+64}")
    e("s_mov_b64 exec, -1")
    e(f"L_NODE2_DONE:")
    e("s_waitcnt lgkmcnt(0)")
    def wr(k):
        e(f"v_lshl_add_u32 v{vRANK+k}, v{vRANK+k}, 2, v{vKEY+k}")
        e(f"ds_write_b32 v{vRANK+k}, v{vGR+4*(k//3)+k%3}")
    slots(wr, "L_RW_DONE")
    e(f"v_readfirstlane_b32 s{sNBMAX}, v{vC+3}")
    e(f"v_lshrrev_b32 v{vX}, 3, v{vLANE}")
    e(f"s_lshl_b32 s{sT}, s{sW}, 7")
    e(f"v_lshl_add_u32 v{vX}, v{vX}, 3, s{sT}")
    if cfg.LV:
        e(f"s_cmp_eq_u32 s{sNBMAX}, -1")
        e("s_cbranch_scc1 L_NEXTB")
    e(f"s_cmp_ge_u32 s{sW}, {NNORM}")
    e(f"s_cselect_b32 s{sSTR+1}, 1, 0")
    e(f"s_lshl_b32 s{sSTR}, 8, s{sSTR+1}")
    e(f"s_cmp_ge_u32 s{sW}, {NW}")
    e("s_waitcnt lgkmcnt(0)")
    e("s_barrier")
    e(f"s_cbranch_scc1 L_HELPER")
    e(f"ds_read_b64 v[{vX+2}:{vX+3}], v{vX} offset:{L_NT}")
    e(f"ds_read_b64 v[{vX+4}:{vX+5}], v{vX} offset:{L_NT+64}")
    ts(8)
    e("s_waitcnt lgkmcnt(0)")
    e(f"v_lshrrev_b32 v{vX}, 16, v{vX+2}")
    e(f"v_lshrrev_b32 v{vX+1}, 16, v{vX+4}")
    e(f"v_max_u32 v{vX+6}, v{vX}, v{vX+1}")
    e(f"v_and_b32 v{vEA}, 0xffff, v{vX+2}")
    e(f"v_and_b32 v{vEB}, 0xffff, v{vX+4}")
    e(f"v_max_u32_dpp v{vX+6}, v{vX+6}, v{vX+6} row_ror:8 row_mask:0xf bank_mask:0xf")
    e(f"v_lshl_add_u32 v{vPA}, v{vX}, 3, v{vEA}")
    e(f"v_lshl_add_u32 v{vPB}, v{vX+1}, 3, v{vEB}")
    e(f"v_readlane_b32 s{sN0}, v{vX+6}, 0")
    e(f"v_readlane_b32 s{sT}, v{vX+6}, 16")
    e(f"v_readlane_b32 s{sT+1}, v{vX+6}, 32")
    e(f"v_readlane_b32 s{sCNT}, v{vX+6}, 48")
    e(f"s_max_u32 s{sN0}, s{sN0}, s{sT}")
    e(f"s_max_u32 s{sCNT}, s{sCNT}, s{sT+1}")
    e(f"s_max_u32 s{sN0}, s{sN0}, s{sCNT}")
    e(f"s_sub_u32 s{sN0}, s{sN0}, 1")
    e(f"s_add_u32 s{sN0}, s{sN0}, s{sSTR+1}")
    e(f"s_lshr_b32 s{sN0}, s{sN0}, s{sSTR+1}")
    e(f"s_max_u32 s{sN0}, s{sN0}, {D}")
    e(f"s_mul_i32 s{sT}, s{sN0}, s{sSTR}")
    e(f"s_sub_u32 s{sT+1}, s{sT}, s{sSTR}")
    e(f"s_add_u32 s{sT+1}, s{sT+1}, 8")
    e(f"v_subrev_u32 v{vPA}, s{sT}, v{vPA}")
    e(f"v_subrev_u32 v{vPB}, s{sT+1}, v{vPB}")
    def rdrec(h):
        for pv, ev, d in ((vPA, vEA, vST), (vPB, vEB, vST + 4)):
            e(f"v_max_i32 v{vAD}, v{pv}, v{ev}")
            if h == 0:
                e(f"ds_read_b64 v[{d}:{d+1}], v{vAD}")
            else:
                e(f"ds_read2st64_b64 v[{d}:{d+3}], v{vAD} offset0:0 offset1:{RDELTA//512}")
        e(f"v_add_u32 v{vPA}, s{sSTR}, v{vPA}")
        e(f"v_add_u32 v{vPB}, s{sSTR}, v{vPB}")
    e(f"s_cmp_lg_u32 s{sHOP}, 0")
    e("s_cbranch_scc1 L_MBENC")
    rdrec(0)
    for src, d0 in ((vX+3, vROWA), (vX+5, vROWB)):
        e(f"v_add_u32 v{d0}, v{src}, v{vLOFF}")
    def pace():
        if cfg.PACE > 1:
            lab = newlab("PACE")
            e(f"s_add_i32 s{sI4}, s{sI4}, {cfg.PACE}")
            e(f"{lab}a:")
            e(f"s_cmp_lt_i32 s{sI4}, 0")
            e(f"s_cbranch_scc1 {lab}")
            e(f"s_cmp_eq_u32 s{sPN}, 0")
            e(f"s_cbranch_scc1 {lab}")
            e(f"s_sub_i32 s{sI4}, s{sI4}, s{sN0}")
            e(f"s_sub_u32 s{sPN}, s{sPN}, 1")
            e("s_barrier")
            e(f"s_branch {lab}a")
            e(f"{lab}:")
    recreg = [vST, vST + 4, vST + 1, vST + 5]
    def mm(slot, k):
        d = vDATA + 16 * slot + 4 * k
        a = vAOP + 8 * slot + 2 * k
        acc = vACC + (8 if k & 1 else 0)
        e(f"v_mfma_f32_4x4x4_16b_bf16 v[{acc}:{acc+3}], v[{a}:{a+1}], v[{d}:{d+1}], v[{acc}:{acc+3}]")
        e(f"v_mfma_f32_4x4x4_16b_bf16 v[{acc+4}:{acc+7}], v[{a}:{a+1}], v[{d+2}:{d+3}], v[{acc+4}:{acc+7}]")
    def step(h, slot, consume, skip=False):
        e("s_waitcnt lgkmcnt(0)")
        for k in range(4):
            r = recreg[k]
            d = vDATA + 16 * slot + 4 * k
            a = vAOP + 8 * slot + 2 * k
            if h == 0:
                e(f"v_mad_u32_u16 v{vAD}, v{r}, s{s128}, v{vLOFF}")
            else:
                e(f"v_add_u32 v{vAD}, v{r+2}, v{vLOFF}")
            if consume:
                e(f"s_waitcnt vmcnt({cfg.VW1 if h else cfg.VW0})")
                mm(slot, k)
            if skip:
                lab = newlab("SK")
                e(f"v_cmp_ne_u32 vcc, 0xffff, v{r}")
                for i in range(4):
                    e(f"v_mov_b32 v{d+i}, 0")
                e(f"s_cbranch_vccz {lab}")
            e(f"buffer_load_dwordx4 v[{d}:{d+3}], v{vAD}, s[{G}:{G+3}], 0 offen" + (" sc1" if h else ""))
            if skip:
                e(f"{lab}:")
            e(f"v_perm_b32 v{a}, v{r}, v{r}, v{vSEL0}")
            e(f"v_perm_b32 v{a+1}, v{r}, v{r}, v{vSEL1}")
        rdrec(h)
        pace()
    def gloop(h):
        e(f"s_sub_u32 s{sCNT}, s{sN0}, {D}")
        if cfg.PACE > 1:
            e(f"s_sub_i32 s{sI4}, 0, s{sN0}")
            e(f"s_cmp_le_u32 s{sNBMAX}, {GB}")
            e(f"s_cselect_b32 s{sPN}, {cfg.PACE-1-(cfg.DB1 if h else cfg.DB0)}, 0")
        for s_ in range(D):
            step(h, s_, False, cfg.SKP and s_ == 0)
        if cfg.SKP:
            e(f"s_waitcnt vmcnt({4*(D-1)})")
        e(f"L_GLOOP{h}:")
        for p in range(D):
            e(f"s_cmp_le_i32 s{sCNT}, {p}")
            e(f"s_cbranch_scc1 L_DRAIN{p}")
            step(h, p, True)
        e(f"s_sub_i32 s{sCNT}, s{sCNT}, {D}")
        e(f"s_branch L_GLOOP{h}")
    gloop(0)
    for p in range(D):
        e(f"L_DRAIN{p}:")
        e(f"s_load_dword s{sQ}, s[{WS}:{WS+1}], s{sQ-1}")
        for j in range(4 * D):
            e(f"s_waitcnt vmcnt({4*D-1-j})")
            mm((p + j // 4) % D, j % 4)
        if p != D - 1:
            e(f"s_branch L_GDONE")
    e(f"L_GDONE:")
    e("s_waitcnt lgkmcnt(0)")
    e(f"s_add_u32 s{sBB}, s{sBB}, {GB}")
    e(f"s_cmp_lt_u32 s{sBB}, s{sNBMAX}")
    e(f"s_cbranch_scc1 L_NEXTB")
    if SPL:
        e(f"s_cmp_eq_u32 s{sSTR+1}, 0")
        e("s_cbranch_scc1 L_NOCOMB")
        for i in range(8):
            e(f"v_add_f32 v{vACC+i}, v{vACC+i}, v{vACC+8+i}")
        e("L_NOCOMB:")
    e(f"s_cmp_lg_u32 s{sHOP}, 0")
    e("s_nop 0")
    for i in range(8):
        e(f"v_cvt_pk_bf16_f32 v{40+i}, v{vACC+2*i}, v{vACC+2*i+1}")
    e(f"s_cbranch_scc1 L_EPI")
    e(f"s_mov_b32 s{sT}, {25088*128}")
    e(f"s_movk_i32 s{sT+1}, {cfg.RN*128}")
    for o, d, m in ((vROWA, 50, "vcc"), (vROWB, 51, f"s[{sTMP}:{sTMP+1}]")):
        e(f"v_cmp_le_u32 {m}, s{sT}, v{o}")
        e(f"v_and_b32 v48, 0x7fffe000, v{o}")
        e(f"v_lshrrev_b32 v49, 7, v{o}")
        e(f"v_add_u32 v{d}, v48, v{o}")
        e(f"v_cndmask_b32 v48, 0, -1, {m}")
        e(f"v_xor_b32 v{d+2}, v48, v49")
    e(f"s_mov_b32 s{sSPIN}, 0")
    e("s_branch L_QC")
    e("L_QP:")
    e(f"s_load_dword s{sQ}, s[{WS}:{WS+1}], s{sQ-1} glc")
    e("s_waitcnt lgkmcnt(0)")
    e("L_QC:")
    e(f"s_cmp_lg_u32 s{sQ}, 0")
    e("s_cbranch_scc1 L_QX")
    spin_tail("L_QP", "L_QX")
    e("L_QX:")
    e(f"v_bfe_i32 v{vQM}, s{sQ}, 0, 1")
    for d in (50, 51):
        e(f"v_xor_b32 v{d+2}, v{d+2}, v{vQM}")
        e(f"v_and_b32 v{d+2}, 0x2000, v{d+2}")
        e(f"v_or_b32 v{d}, v{d}, v{d+2}")
    def home():
        e(f"buffer_store_dwordx4 v[40:43], v50, s[{O}:{O+3}], 0 offen sc1")
        e(f"s_cmp_lg_u32 s{sSTR+1}, 0")
        e("s_cbranch_scc1 L_NOHB")
        e(f"buffer_store_dwordx4 v[44:47], v51, s[{O}:{O+3}], 0 offen sc1")
        e("L_NOHB:")
    if not cfg.FF:
        home()
    if cfg.RN:
        for o, d, q in ((vROWA, 50, 40), (vROWB, 51, 44)):
            lab = newlab("ST")
            e(f"v_and_b32 v48, 0x80000380, v{o}")
            e(f"v_cmp_gt_u32 vcc, s{sT+1}, v48")
            e(f"v_xor_b32 v{d+2}, 0x2000, v{d}")
            e(f"s_and_saveexec_b64 s[{sTMP}:{sTMP+1}], vcc")
            e(f"s_cbranch_execz {lab}")
            e(f"buffer_store_dwordx4 v[{q}:{q+3}], v{d+2}, s[{O}:{O+3}], 0 offen sc1")
            e(f"{lab}:")
            e("s_mov_b64 exec, -1")
    if cfg.FF:
        home()
    ts(9)
    for i in range(16):
        e(f"v_mov_b32 v{vACC+i}, 0")
    e(f"s_add_u32 s{sT}, s{sN0}, 1")
    e(f"s_mul_i32 s{sT}, s{sT}, s{sSTR}")
    e(f"v_subrev_u32 v{vPA}, s{sT}, v{vPA}")
    e(f"v_subrev_u32 v{vPB}, s{sT}, v{vPB}")
    e(f"v_lshlrev_b32 v48, 4, v{vLANE}")
    NWPRE = 8 if D == 2 else 4
    def wfrag(mb, kh):
        if D == 2: return vW + 8 * mb + 4 * kh
        return vW + 4 * mb if kh == 0 else 64 + 4 * mb
    for mb in range(4):
        for kh in range(2 if D == 2 else 1):
            r = wfrag(mb, kh)
            e(f"ds_read_b128 v[{r}:{r+3}], v48 offset:{L_WT + 1024*(2*mb+kh)}")
    e(f"s_lshl_b32 s{sT}, s{sW}, 11")
    e(f"s_add_u32 s{sT}, s{sT}, {L_TILE}")
    e(f"v_lshrrev_b32 v48, 3, v{vLANE}")
    e(f"v_xor_b32 v49, v48, v{vLANE}")
    e(f"v_and_b32 v49, 7, v49")
    e(f"v_lshlrev_b32 v49, 4, v49")
    e(f"v_lshl_add_u32 v49, v48, 7, v49")
    e(f"v_add_u32 v{vTW}, s{sT}, v49")
    e(f"v_and_b32 v48, 15, v{vLANE}")
    e(f"v_lshrrev_b32 v49, 4, v{vLANE}")
    e(f"v_xor_b32 v49, v49, v48")
    e(f"v_and_b32 v49, 7, v49")
    e(f"v_lshlrev_b32 v49, 4, v49")
    e(f"v_lshl_add_u32 v49, v48, 7, v49")
    e(f"v_add_u32 v{vTR}, s{sT}, v49")
    if cfg.OWN == 1:
        e("s_waitcnt vmcnt(0)")
        e(f"buffer_load_dword v{vPFD}, v{vROWA}, s[{O}:{O+3}], 0 offen sc1")
        e(f"buffer_load_dword v{vPFD}, v{vROWB}, s[{O}:{O+3}], 0 offen sc1")
    def enc(w, d, t):
        e(f"v_and_b32 v{d}, 0xffff, v{w}")
        e(f"v_and_b32 v{t}, 7, v{w}")
        e(f"v_cmp_le_u32 vcc, s{sT}, v{d}")
        e(f"v_cmp_gt_u32 s[{sTMP}:{sTMP+1}], {cfg.RN}, v{t}")
        e(f"v_and_b32 v{t}, 0xffc0, v{w}")
        e(f"v_add_lshl_u32 v{d}, v{d}, v{t}, 7")
        e(f"s_andn2_b64 vcc, vcc, s[{sTMP}:{sTMP+1}]")
        e(f"s_and_b64 s[{sTMP}:{sTMP+1}], s[{sTMP}:{sTMP+1}], s[{sK}:{sK+1}]")
        e(f"s_or_b64 vcc, vcc, s[{sTMP}:{sTMP+1}]")
        e(f"v_cndmask_b32 v{t}, v{vQM}, v{vTP+1}, vcc")
        e(f"v_xor_b32 v{t}, v{t}, v{w}")
        e(f"v_and_or_b32 v{d}, v{t}, s{sT+1}, v{d}")
    def enc_setup():
        e(f"v_mov_b32 v48, {L_MISC}")
        e("ds_read_b32 v48, v48")
        e(f"s_bfe_i32 s{sK}, s2, 0x10002")
        e(f"s_mov_b32 s{sK+1}, s{sK}")
        e(f"s_movk_i32 s{sT}, 25088")
        e(f"s_movk_i32 s{sT+1}, 0x2000")
        e(f"v_lshlrev_b32 v49, 4, v0")
        e("s_waitcnt lgkmcnt(0)")
        e(f"v_readfirstlane_b32 s{sSPIN}, v48")
        e(f"v_not_b32 v{vTP+1}, v{vQM}")
        e(f"s_lshl_b32 s{sSPIN}, s{sSPIN}, 3")
        e(f"s_lshl_b32 s{sI4}, s{sW}, 10")
    def enc_pass(nwaves):
        lab = newlab("ENC")
        e(f"{lab}:")
        e(f"s_cmp_ge_u32 s{sI4}, s{sSPIN}")
        e(f"s_cbranch_scc1 {lab}x")
        e(f"ds_read_b128 v[52:55], v49 offset:{L_RECS}")
        e(f"s_add_u32 s{sI4}, s{sI4}, {nwaves*1024}")
        e("s_waitcnt lgkmcnt(0)")
        for i in range(4):
            enc(52 + i, 56 + i, 60)
        e(f"ds_write_b128 v49, v[56:59] offset:{L_RECS+RDELTA}")
        e(f"v_add_u32 v49, {nwaves*1024}, v49")
        e(f"s_branch {lab}")
        e(f"{lab}x:")
    enc_setup()
    enc_pass(NW)
    if cfg.OWN:
        e(f"v_subrev_u32 v48, 512, v0")
        e(f"s_mul_i32 s{sI4}, s3, {NB}")
        e(f"v_add_u32 v52, s{sI4}, v48")
        enc(52, 53, 60)
    e("L_SYNC2:")
    srd(G, WS, H1B, H1_OFF)
    e(f"s_mov_b32 s{sBB}, 0")
    e(f"s_mov_b32 s{sHOP}, 1")
    e(f"s_lshr_b32 s{sI4}, s2, 2")
    e(f"s_xnor_b32 s{sI4}, s{sI4}, s{sQ}")
    e(f"s_and_b32 s{sI4}, s{sI4}, 1")
    e(f"s_lshl_b32 s{sI4}, s{sI4}, 3")
    e(f"s_and_b32 s{sT}, s2, 0x33")
    e(f"s_or_b32 s{sI4}, s{sI4}, s{sT}")
    e(f"s_bfe_u32 s{sT}, s2, 0x10003")
    e(f"s_lshl_b32 s{sT}, s{sT}, 2")
    e(f"s_or_b32 s{sI4}, s{sI4}, s{sT}")
    e(f"s_lshl_b32 s{sI4}, s{sI4}, 3")
    e(f"s_add_u32 s{sI4}, s{sI4}, s{sW}")
    e(f"s_lshl_b32 s{sI4}, s{sI4}, 7")
    e(f"s_add_u32 s{sI4}, s{sI4}, 0x{HS_OFF:x}")
    bar_bump_addr(54)
    e(f"s_mov_b32 s{sT}, 0x{HS_OFF:x}")
    e(f"s_cmp_lg_u32 s{sW}, 0")
    e("s_waitcnt vmcnt(0) lgkmcnt(0)")
    ts(10)
    e("s_barrier")
    e("s_cbranch_scc1 L_FNB")
    e(f"buffer_atomic_add v{vONE}, v54, s[{WS}:{WS+3}], s{sT} offen sc1")
    e("L_FNB:")
    e(f"s_cmp_lt_u32 s{sW}, 8")
    e("s_cbranch_scc1 L_FPOLL")
    if cfg.OWN:
        e(f"s_cmp_ge_u32 s{sW}, 12")
        e(f"s_cbranch_scc1 L_FDONE")
        e(f"v_cmp_gt_u32 vcc, {NB}, v48")
        e("s_mov_b64 exec, vcc")
        e(f"buffer_load_dword v{vPFD}, v53, s[{G}:{G+3}], 0 offen sc1")
        e("s_mov_b64 exec, -1")
    e("s_branch L_FDONE")
    e("L_FPOLL:")
    bar_poll(sI4, "L_FDONE")
    e("L_FDONE:")
    srd(O, pOUT, ROWB)
    e(f"s_cmp_gt_u32 s{sNBMAX}, {GB}")
    e("s_cbranch_scc1 L_C1MB")
    rdrec(1)
    e("s_barrier")
    ts(11)
    e("L_G2:")
    gloop(1)
    e("L_C1MB:")
    e("s_barrier")
    e("s_branch L_BATCH")
    e("L_MBENC:")
    enc_setup()
    enc_pass(NW)
    e("s_waitcnt lgkmcnt(0)")
    e("s_barrier")
    rdrec(1)
    e("s_branch L_G2")

    e("L_EPI:")
    ts(12)
    e(f"ds_write_b128 v{vTW}, v[40:43]")
    e(f"ds_write_b128 v{vTW}, v[44:47] offset:1024")
    e(f"v_xor_b32 v{vAD}, 64, v{vTR}")
    e(f"ds_read_b128 v[40:43], v{vTR}")
    e(f"ds_read_b128 v[44:47], v{vAD}")
    if D != 2:
        e(f"v_lshlrev_b32 v{vAD}, 4, v{vLANE}")
        for mb in range(4):
            r = wfrag(mb, 1)
            e(f"ds_read_b128 v[{r}:{r+3}], v{vAD} offset:{L_WT + 1024*(2*mb+1)}")
    if cfg.O4:
        e(f"v_lshrrev_b32 v{vAD}, 3, v{vLANE}")
        e(f"s_lshl_b32 s{sT}, s{sW}, 7")
        e(f"v_lshl_add_u32 v{vAD}, v{vAD}, 4, s{sT}")
        e(f"ds_read_b128 v[48:51], v{vAD} offset:{L_NT}")
        e("s_mov_b32 vcc_lo, 0x00ff00ff")
        e("s_mov_b32 vcc_hi, 0x00ff00ff")
        e(f"s_waitcnt lgkmcnt(2)")
        for mb in range(4):
            r = wfrag(mb, 0)
            e(f"v_mfma_f32_16x16x32_bf16 v[{vACC+4*mb}:{vACC+4*mb+3}], v[40:43], v[{r}:{r+3}], 0")
        e("s_waitcnt lgkmcnt(1)")
        for mb in range(4):
            r = wfrag(mb, 1)
            e(f"v_mfma_f32_16x16x32_bf16 v[{vACC+4*mb}:{vACC+4*mb+3}], v[44:47], v[{r}:{r+3}], v[{vACC+4*mb}:{vACC+4*mb+3}]")
        e("s_waitcnt lgkmcnt(0)")
        e(f"v_add_u32 v48, v49, v{vLOFF}")
        e(f"v_add_u32 v50, v51, v{vLOFF}")
        e("s_nop 2")
        for r in range(4):
            e(f"v_cvt_pk_bf16_f32 v{56+2*r}, v{vACC+r}, v{vACC+4+r}")
        for r in range(4):
            e(f"v_cvt_pk_bf16_f32 v{57+2*r}, v{vACC+8+r}, v{vACC+12+r}")
        DP = "row_ror:8 row_mask:0xf bank_mask:0xf"
        for i in range(2):
            for k in range(2):
                e(f"v_cndmask_b32_dpp v{64+4*k+i}, v{60+2*k+i}, v{56+2*k+i}, vcc {DP}")
        e("s_not_b64 vcc, vcc")
        for k in range(2):
            for i in range(2):
                e(f"v_cndmask_b32_dpp v{66+4*k+i}, v{56+2*k+i}, v{60+2*k+i}, vcc {DP}")
            e(f"buffer_store_dwordx4 v[{64+4*k}:{67+4*k}], v{48+2*k}, s[{O}:{O+3}], 0 offen {cfg.OUTFLAG}")
    else:
        e(f"v_lshrrev_b32 v{vAD}, 4, v{vLANE}")
        e(f"s_lshl_b32 s{sT}, s{sW}, 7")
        e(f"v_lshl_add_u32 v{vAD}, v{vAD}, 5, s{sT}")
        e(f"ds_read_b128 v[48:51], v{vAD} offset:{L_NT}")
        e(f"ds_read_b128 v[52:55], v{vAD} offset:{L_NT+16}")
        e(f"v_and_b32 v{vAD}, 15, v{vLANE}")
        e(f"v_lshlrev_b32 v{vAD}, 3, v{vAD}")
        e(f"s_waitcnt lgkmcnt({3 if D == 2 else 7})")
        for mb in range(4):
            r = wfrag(mb, 0)
            e(f"v_mfma_f32_16x16x32_bf16 v[{vACC+4*mb}:{vACC+4*mb+3}], v[40:43], v[{r}:{r+3}], 0")
        e("s_waitcnt lgkmcnt(2)")
        for mb in range(4):
            r = wfrag(mb, 1)
            e(f"v_mfma_f32_16x16x32_bf16 v[{vACC+4*mb}:{vACC+4*mb+3}], v[44:47], v[{r}:{r+3}], v[{vACC+4*mb}:{vACC+4*mb+3}]")
        e("s_waitcnt lgkmcnt(0)")
        for r in range(4):
            e(f"v_add_u32 v{48+2*r}, v{49+2*r}, v{vAD}")
        e("s_nop 2")
        for r in range(4):
            e(f"v_cvt_pk_bf16_f32 v{56+2*r}, v{vACC+r}, v{vACC+4+r}")
            e(f"v_cvt_pk_bf16_f32 v{57+2*r}, v{vACC+8+r}, v{vACC+12+r}")
            e(f"buffer_store_dwordx2 v[{56+2*r}:{57+2*r}], v{48+2*r}, s[{O}:{O+3}], 0 offen {cfg.OUTFLAG}")
    e("L_FIN:")
    ts_dump()
    e("s_endpgm")
    e("L_HELPER:")
    assert NW <= 15
    e(f"s_xor_b32 s{sT}, s{sW}, 15")
    e(f"s_xor_b32 s{sT+1}, s2, 255")
    e(f"s_or_b32 s{sT}, s{sT}, s{sT+1}")
    e(f"s_or_b32 s{sT}, s{sT}, s{sBB}")
    e(f"s_or_b32 s{sT}, s{sT}, s{sHOP}")
    e("s_cbranch_scc1 L_HELP1")
    e(f"s_mov_b32 s{sT}, 0x{HS_OFF:x}")
    e(f"s_mov_b32 s{sCNT}, 0")
    e("L_PRB:")
    e(f"s_add_u32 s{sT+1}, s{sT}, 8192")
    e(f"s_memtime s[40:41]")
    e(f"s_load_dword s46, s[{WS}:{WS+1}], s{sT} glc")
    e("s_waitcnt lgkmcnt(0)")
    e(f"s_memtime s[42:43]")
    e(f"s_load_dword s46, s[{WS}:{WS+1}], s{sT+1} glc")
    e("s_waitcnt lgkmcnt(0)")
    e(f"s_memtime s[44:45]")
    e("s_lshl_b32 s42, s42, 1")
    e("s_sub_u32 s40, s42, s40")
    e("s_waitcnt lgkmcnt(0)")
    e("s_sub_u32 s40, s40, s44")
    e("s_lshr_b32 s40, s40, 31")
    e(f"s_add_u32 s{sCNT}, s{sCNT}, s40")
    e(f"s_addk_i32 s{sT}, 1280")
    e(f"s_cmp_lt_u32 s{sT}, 0x{HS_OFF + cfg.NPR*1280:x}")
    e("s_cbranch_scc1 L_PRB")
    e(f"s_cmp_gt_u32 s{sCNT}, {cfg.NPR//2}")
    e(f"s_cselect_b32 s{sT}, 2, 3")
    if cfg.POL >= 0:
        e(f"s_mov_b32 s{sT}, {2+cfg.POL}")
    e(f"v_mov_b32 v40, s{sT}")
    e(f"v_lshlrev_b32 v41, 8, v{vLANE}")
    e(f"s_mov_b32 s{sT}, 0x{QS_OFF:x}")
    e("s_mov_b64 exec, 0xff")
    e(f"buffer_store_dword v40, v41, s[{WS}:{WS+3}], s{sT} offen sc1")
    e("s_mov_b64 exec, -1")
    if cfg.TS:
        ts(9)
        pass
    e("L_HELP1:")
    e(f"s_cmp_le_u32 s{sNBMAX}, {GB}")
    e("s_cbranch_scc1 L_FIN")
    e(f"s_cmp_eq_u32 s{sHOP}, 0")
    e("s_cbranch_scc1 L_HELP2")
    e("s_barrier")
    e("L_HELP2:")
    e(f"s_add_u32 s{sBB}, s{sBB}, {GB}")
    e(f"s_cmp_lt_u32 s{sBB}, s{sNBMAX}")
    e(f"s_cbranch_scc1 L_NEXTB")
    e(f"s_cmp_lg_u32 s{sHOP}, 0")
    e("s_cbranch_scc1 L_FIN")
    e("v_mov_b32 v53, 0")
    e("s_branch L_SYNC2")
    e(f"L_NEXTB:")
    ts(2)
    if cfg.XD == 7:
        for i in range(16):
            e("s_sleep 127")
    e("s_waitcnt vmcnt(0) lgkmcnt(0)")
    e("s_barrier")
    e(f"s_branch L_BATCH")
    e(f"L_END:")
    e("s_endpgm")

DOC = """; ---------------------------------------------------------------------------------------------
;      16-byte granules {3 x (src|norm<<16), 3 x 10-bit key} plus a table row (start,count per bucket).
; ---------------------------------------------------------------------------------------------"""
head = open("standalone__spectral_conv_sgc__graph.s.ref").read().split("; Override")[0]
e(head.rstrip())
e(f"; @launch grid=(256,1,1) block=(1024,1,1) lds={L_END}")
e(DOC)
e('.amdgcn_target "amdgcn-amd-amdhsa--gfx950"')
e(".text")
body()
e('.section .rodata,"a"')
e(".p2align 6")
acc = (NV + 3) // 4 * 4
e(f""".amdhsa_kernel {NAME}
  .amdhsa_next_free_vgpr {NV}
  .amdhsa_next_free_sgpr {NS}
  .amdhsa_accum_offset {acc}
  .amdhsa_group_segment_fixed_size 0
  .amdhsa_kernarg_size 64
  .amdhsa_user_sgpr_count 2
  .amdhsa_user_sgpr_kernarg_segment_ptr 1
  .amdhsa_system_sgpr_workgroup_id_x 1
  .amdhsa_float_denorm_mode_32 3
.end_amdhsa_kernel
""")
LABS = {'L_H0': 'helper waves 13-15: barrier-line zeroing', 'L_E0': 'edge waves: histogram, scatter into granule staging', 'L_P1H1': 'helper waves', 'L_P1_W13': 'wave 13: bucket scan, table row, ready check', 'L_P1_JOIN': 'all waves: constants, arrive at R, early table read', 'L_BATCH': 'next batch / restart: re-zero counters', 'L_DECODE': 'table entries -> granule descriptors', 'L_LD_DONE': 'table re-read, x prefetch, rank atomics', 'L_NODE1_DONE': 'scatter records, degree order', 'L_GDONE': 'end of a gather', 'L_SYNC2': 'barrier H', 'L_G2': 'hop 2 gather', 'L_EPI': 'GEMM epilogue', 'L_HELPER': 'wave without nodes', 'L_MBENC': 'multi-batch hop 2'}
out = [(l + "    ; " + LABS[l[:-1]]) if l.endswith(":") and l[:-1] in LABS else l for l in out]
open(sys.argv[1], "w").write("\n".join(out) + "\n")
```

```python
import sys

class Cfg:
    D = 2
    TS = 0
    PF2 = 5
    DW = 1
    RL = 1
    NPR = 3
    SKP = 1
    XD = 0
    SH = 16
    TE = 0
    R1 = 1
    FF = 1
    LV = 1
    FAIL = 0
    EP = 1
    AE = 0
    KV = 0
    BAL = 0
    O4 = 1
    DB0 = 0
    DB1 = 0
    FB = 0
    WL = 0
    HN = 1
    PACE = 7
    EFLAG = ""
    OUTFLAG = "sc1"
    SLEEP = 0
    LATE = 1
    HW = 0
    PFE = 0
    SA = 0
    WST = 32
    DEF = 1
    ENT = 0
    CLI = 1
    RN = 4
    TYP = "RS"
    POL = -1
    SPL = 5
    XMASK = 0
    PFA = 0
    PFS = 4
    PFO = 0
    VW0 = 7
    VW1 = 7
    PFB = 0
    PFD = 0
    PFE2 = 0
    PFX = -1
    SP = 7
    PFC = 0
    PEER = 0
    OWN = 2
    RW = 1
    CPF = 1
cfg = Cfg()
for a in sys.argv[2:]:
    k, v = a.split("=")
    cur = getattr(cfg, k)
    setattr(cfg, k, int(v) if isinstance(cur, int) else v.replace("+", " "))

N = 50000; E = 850000
NB = 196; CH = 3328; MAG = 85599
CG = 1280
TAB_OFF = 0x680000
SY_OFF = 0x700000
RP_OFF = 0x710000
HS_OFF = 0x760000
RS_OFF = 0x740000
QS_OFF = 0x770000
PR_OFF = 0x720000
H1_OFF = 0x800000
H1B = 784 * 16384
TS_OFF = 0x1600000
WS_USED = 0x1800000
ROWB = N * 128
SPIN_FAST = 4096
SPIN_MAX = 1 << 21
GB = 128

SPL = cfg.SPL
NW = SPL + -(-(NB - 8 * SPL) // 16)
NNORM = NW - SPL
NSLOT = 8 * SPL + 16 * NNORM
assert NW <= 16
L_NT = 0
L_D = 2048
L_WT = L_D + 8192
L_CNT = L_WT + 8192
L_DH = L_CNT + 4352
L_MISC = L_DH + 256
L_ZEND2 = L_MISC + 256
L_Q = L_ZEND2
L_HIST = L_ZEND2
L_STAGE = L_HIST + 1024
L_ZEND = L_STAGE + CG * 24
L_RECS = L_STAGE
RDELTA = 27648
L_TILE = L_RECS + 2 * RDELTA
L_END = L_TILE + NW * 2048
assert L_TILE % 128 == 0 and L_RECS + RDELTA < 65536 and RDELTA % 512 == 0 and L_RECS % 16 == 0

out = []
def e(s=""):
    out.append(s)

def srd(d, lo, nrec, off=0):
    if off:
        e(f"s_add_u32 s{d}, s{lo}, 0x{off:x}")
        e(f"s_addc_u32 s{d+1}, s{lo+1}, 0")
    else:
        e(f"s_mov_b32 s{d}, s{lo}")
        e(f"s_mov_b32 s{d+1}, s{lo+1}")
    e(f"s_mov_b32 s{d+2}, 0x{nrec:x}")
    e(f"s_mov_b32 s{d+3}, 0x20000")

def dpp_add(v, ctl):
    e(f"v_add_u32_dpp v{v}, v{v}, v{v} {ctl}")
SCAN = [f"row_shr:{s} row_mask:0xf bank_mask:0xf bound_ctrl:0" for s in (1, 2, 4, 8)] + \
       ["row_bcast:15 row_mask:0xa bank_mask:0xf", "row_bcast:31 row_mask:0xc bank_mask:0xf"]
def scan64(v, fill=(), steps=SCAN):
    fill = list(fill)
    for ctl in steps:
        dpp_add(v, ctl)
        if len(fill) >= 2:
            e(fill.pop(0)); e(fill.pop(0))
        elif len(fill) == 1:
            e(fill.pop(0)); e("s_nop 0")
        else:
            e("s_nop 1")
    for f in fill:
        e(f)

T3, G, WS, O, T1, T2 = 4, 8, 12, 16, 20, 24
sW, sTB, sBB, sNBMAX, s128, sCNT, sT, sNR = 28, 29, 30, 31, 32, 33, 34, 36
sHOP, sN0, sSPIN = 37, 38, 39
sM = 40
sNODE = 52
sTMP = 54
sI4, sPN = 56, 57
sMODE = 66
sSTR = 64
sQ = 59
sK, sSEL = 60, 61
sVAL = 58
pW, pOUT, pDBG = 60, 62, 64
sC1, sC2, sC3 = 40, 41, 42
sTS = 68
NS = 102 if cfg.TS else 68
vLANE, vE, vP, vSEL0, vSEL1, vLOFF, vONE = 1, 2, 3, 4, 5, 6, 7
vACC = 8
vPA, vEA, vPB, vEB, vROWA, vROWB, vAD, vPFD = 24, 25, 26, 27, 28, 29, 30, 31
vST = 120
vTW, vTR = 36, 37
vQM, vQA = 32, 33
vTP = 38
D = cfg.D
vDATA = 40
vAOP = vDATA + 16 * D
vW = max(vAOP + 8 * D, 88)
NV = 128
assert D == 2 and vW + 32 <= vST
assert NV <= 128
vX = 72
vTA, vE2 = 62, 63

def ts(slot, mode=1):
    if cfg.TS == 2 and mode == 1 and slot in (4, 5, 6, 7):
        return
    if cfg.TS == 1 and mode == 2:
        return
    if cfg.TS:
        e(f"s_memrealtime s[{sTS+2*slot}:{sTS+2*slot+1}]")
        e("s_waitcnt lgkmcnt(0)")
def ts_dump():
    if not cfg.TS:
        return
    e("s_waitcnt vmcnt(0)")
    ts(13)
    e(f"s_lshl_b32 s{sT}, s2, 4")
    e(f"s_add_u32 s{sT}, s{sT}, s{sW}")
    e(f"s_lshl_b32 s{sT}, s{sT}, 7")
    e(f"s_add_u32 s{sT}, s{sT}, 0x{TS_OFF:x}")
    e("s_mov_b64 exec, 1")
    e(f"v_mov_b32 v40, s{sT}")
    for i in range(8):
        for j in range(4):
            e(f"v_mov_b32 v{44+4*i+j}, s{sTS+4*i+j}")
        e(f"buffer_store_dwordx4 v[{44+4*i}:{47+4*i}], v40, s[{WS}:{WS+3}], 0 offen offset:{16*i}")

lbl = [0]
def newlab(p):
    lbl[0] += 1
    return f"L_{p}{lbl[0]}"
def spin_tail(loop, done):
    slow = newlab("SLW")
    e(f"s_add_u32 s{sSPIN}, s{sSPIN}, 1")
    e(f"s_cmp_ge_u32 s{sSPIN}, {SPIN_FAST}")
    e(f"s_cbranch_scc1 {slow}")
    if cfg.SLEEP:
        e(f"s_sleep {cfg.SLEEP}")
    e(f"s_branch {loop}")
    e(f"{slow}:")
    e(f"s_cmp_ge_u32 s{sSPIN}, {SPIN_MAX}")
    e(f"s_cbranch_scc1 {done}")
    e("s_sleep 64")
    e(f"s_branch {loop}")
def arrive_a(b, v=40):
    e(f"s_and_b32 s{sT}, s2, 7")
    e(f"s_lshl_b32 s{sT}, s{sT}, 8")
    e(f"s_add_u32 s{sT}, s{sT}, 0x{SY_OFF + b*cfg.WST:x}")
    if cfg.SA:
        sa = 67
        e(f"s_mov_b32 s{sa}, 1")
        e(f"s_atomic_add s{sa}, s[{WS}:{WS+1}], s{sT} glc")
        return
    e(f"v_mov_b32 v{v}, s{sT}")
    e(f"v_mov_b32 v{v+1}, 1")
    e("s_mov_b64 exec, 1")
    e(f"buffer_atomic_add v{v+1}, v{v}, s[{WS}:{WS+3}], 0 offen sc0 sc1")
def arrive_b(b, v=40, cnt=0, after=None):
    lab = newlab("ARR")
    sp = cfg.SP >> b & 1
    e("s_mov_b64 exec, -1" if sp else "s_mov_b64 exec, 0xff")
    e(f"v_lshlrev_b32 v{v+2}, 8, v{vLANE}")
    e(f"v_add_u32 v{v+2}, 0x{SY_OFF + 2048 + b*cfg.WST:x}, v{v+2}")
    if cfg.SA:
        e("s_waitcnt lgkmcnt(0)")
        e(f"s_cmp_lg_u32 s67, 31")
    else:
        e(f"s_waitcnt vmcnt({cnt})")
        e(f"v_readfirstlane_b32 s{sT}, v{v+1}")
        e(f"s_cmp_lg_u32 s{sT}, 31")
    e(f"s_cbranch_scc1 {lab}")
    e(f"buffer_atomic_add v{vONE}, v{v+2}, s[{WS}:{WS+3}], 0 offen sc1")
    if after:
        for x in after:
            e(x)
    e(f"{lab}:")
    e("s_mov_b64 exec, -1")
def arrive(b, mid=None):
    arrive_a(b)
    if mid:
        e(mid)
    arrive_b(b)
def rcount():
    lab = newlab("RC")
    e(f"v_mov_b32 v64, {L_MISC+8}")
    e("s_mov_b64 exec, 1")
    e(f"ds_add_rtn_u32 v65, v64, v{vONE}")
    e("s_waitcnt lgkmcnt(0)")
    e("v_cmp_eq_u32 vcc, 13, v65")
    e("s_mov_b64 exec, -1")
    e(f"s_cbranch_vccz {lab}")
    arrive_a(1, 64)
    if cfg.DEF:
        e("s_mov_b64 exec, -1")
        e(f"s_mov_b32 s{sPN}, 1")
    else:
        arrive_b(1, 64)
    e(f"{lab}:")
def poll_a(b):
    if cfg.SP >> b & 1:
        return
    e(f"s_and_b32 s{sSPIN}, s2, 7")
    e(f"s_lshl_b32 s{sSPIN}, s{sSPIN}, 8")
    e(f"s_add_u32 s{sSPIN}, s{sSPIN}, 0x{SY_OFF + 2048 + b*cfg.WST:x}")
    e(f"v_mov_b32 v{vTP}, s{sSPIN}")
    e("s_mov_b64 exec, 1")
    e(f"buffer_load_dword v{vTP+1}, v{vTP}, s[{WS}:{WS+3}], 0 offen sc1")
def poll_b(b):
    lab = newlab("POLL")
    if cfg.SP >> b & 1:
        e(f"s_and_b32 s{sT}, s2, 63")
        e(f"s_lshl_b32 s{sT}, s{sT}, 8")
        e(f"s_add_u32 s{sT}, s{sT}, 0x{SY_OFF + 2048 + b*cfg.WST:x}")
        e(f"s_mov_b32 s{sSPIN}, 0")
        e(f"{lab}:")
        e(f"s_load_dword s{sT+1}, s[{WS}:{WS+1}], s{sT} glc")
        e("s_waitcnt lgkmcnt(0)")
        e(f"s_cmp_eq_u32 s{sT+1}, 8")
        e(f"s_cbranch_scc1 {lab}x")
        spin_tail(lab, lab + "x")
        e(f"{lab}x:")
        return
    e("s_mov_b64 exec, 1")
    e(f"s_mov_b32 s{sSPIN}, 0")
    e(f"s_branch {lab}c")
    e(f"{lab}:")
    e(f"buffer_load_dword v{vTP+1}, v{vTP}, s[{WS}:{WS+3}], 0 offen sc1")
    e(f"{lab}c:")
    e("s_waitcnt vmcnt(0)")
    e(f"v_cmp_eq_u32 vcc, 8, v{vTP+1}")
    e(f"s_cbranch_vccnz {lab}x")
    spin_tail(lab, lab + "x")
    e(f"{lab}x:")
    e("s_mov_b64 exec, -1")
def poll(b):
    poll_a(b)
    poll_b(b)

def probe_off(d):
    e(f"s_lshr_b32 s{d}, s2, 6")
    e(f"s_lshl_b32 s{d}, s{d}, 6")
    e(f"s_add_u32 s{d}, s{d}, s2")
    e(f"s_lshl_b32 s{d}, s{d}, 7")
    e(f"s_add_u32 s{d}, s{d}, 0x{PR_OFF:x}")
S32 = cfg.SH == 32
def bar_bump_addr(v):
    if S32:
        e(f"s_lshr_b32 s{sT}, s2, 3")
        e(f"s_lshl_b32 s{sT}, s{sT}, 6")
        e(f"v_lshl_add_u32 v{v}, v{vLANE}, 11, s{sT}")
        return
    if cfg.SH == 16:
        e(f"s_bfe_u32 s{sT}, s2, 0x40003")
        e(f"s_lshl_b32 s{sT}, s{sT}, 6")
    else:
        e(f"s_bfe_u32 s{sT}, s2, 0x30003")
        e(f"s_lshl_b32 s{sT}, s{sT}, 7")
    e(f"v_lshl_add_u32 v{v}, v{vLANE}, 10, s{sT}")
def bar_bump(v):
    if S32:
        e("s_mov_b32 exec_hi, 0")
    e(f"buffer_atomic_add v{vONE}, v{v}, s[{WS}:{WS+3}], s{sT} offen sc1")
    if S32:
        e("s_mov_b32 exec_hi, -1")
def bar_base(sa):
    if S32:
        e(f"s_add_u32 s{sa}, s{WS}, s{sa}")
        e(f"s_addc_u32 s{sa+1}, s{WS+1}, 0")
    else:
        e(f"s_add_u32 s{sa+1}, s{sa}, 64")
def bar_issue(sa, d):
    if S32:
        for k in range(4):
            e(f"s_load_dword s{d+k}, s[{sa}:{sa+1}], {64*k} glc")
        return
    e(f"s_load_dword s{d}, s[{WS}:{WS+1}], s{sa} glc")
    if cfg.SH == 16:
        e(f"s_load_dword s{d+1}, s[{WS}:{WS+1}], s{sa+1} glc")
def bar_poll(sa, done, issued=False):
    lab = newlab("BP")
    d = 48
    e(f"s_mov_b32 s{sSPIN}, 0")
    if issued:
        e(f"s_branch {lab}c")
    e(f"{lab}:")
    bar_issue(sa, d)
    e("s_waitcnt lgkmcnt(0)")
    e(f"{lab}c:")
    if cfg.SH >= 16:
        e(f"s_add_u32 s{d}, s{d}, s{d+1}")
    if S32:
        e(f"s_add_u32 s{d+2}, s{d+2}, s{d+3}")
        e(f"s_add_u32 s{d}, s{d}, s{d+2}")
    e(f"s_cmp_eq_u32 s{d}, 32")
    e(f"s_cbranch_scc1 {done}")
    spin_tail(lab, done)
def pf_addr(v, first_wave, base_instr):
    e(f"s_lshr_b32 s{sT}, s2, 3")
    if cfg.PFB:
        e(f"s_and_b32 s{sT+1}, s{sW}, 1")
        e(f"s_xor_b32 s{sT}, s{sT}, s{sT+1}")
    e(f"s_lshl_b32 s{sT}, s{sT}, 6")
    e(f"s_sub_u32 s{sT+1}, s{sW}, {first_wave - base_instr}")
    e(f"s_lshl_b32 s{sT+1}, s{sT+1}, 11")
    e(f"s_add_u32 s{sT}, s{sT}, s{sT+1}")
    if cfg.PFX >= 0:
        e(f"s_lshl_b32 s{sT}, s{sT}, 1")
    e(f"v_add_u32 v{v}, s{sT}, v{vLANE}")
    if cfg.PFS != 4:
        e(f"v_mul_u32_u24 v{v}, {cfg.PFS}, v{v}")
        e(f"v_lshrrev_b32 v{v}, 2, v{v}")
    if cfg.PFO:
        e(f"v_add_u32 v{v}, {cfg.PFO}, v{v}")
    e(f"s_and_b32 s{sT}, s2, 7")
    e(f"s_mul_i32 s{sT}, s{sT}, 6272")
    e(f"v_add_u32 v{v}, s{sT}, v{v}")
    e(f"v_subrev_u32 v{v+1}, 50176, v{v}")
    e(f"v_min_u32 v{v}, v{v}, v{v+1}")
    e(f"v_lshlrev_b32 v{v}, 7, v{v}")
    if cfg.PFX >= 0:
        e(f"s_lshl_b32 s{sT}, s2, 11")
        e(f"s_xor_b32 s{sT}, s{sT}, {cfg.PFX << 13}")
        e(f"v_lshrrev_b32 v{v+1}, 8, v{v}")
        e(f"v_xor_b32 v{v+1}, s{sT}, v{v+1}")
        e(f"v_and_b32 v{v+1}, 0x2000, v{v+1}")
        e(f"v_or_b32 v{v}, v{v}, v{v+1}")

NAME = "standalone__spectral_conv_sgc__graph_kernel"
def body():
    e(f".globl {NAME}")
    e(".p2align 8")
    e(f".type {NAME},@function")
    e(f"{NAME}:")
    def cpf():
        if cfg.CPF:
            e("s_getpc_b64 s[54:55]")
            e("L_PC0:")
            e("v_lshlrev_b32 v43, 7, v0")
            e("v_cmp_gt_u32 vcc, L_END-L_PC0, v43")
            e("s_and_saveexec_b64 s[40:41], vcc")
            e("s_cbranch_execz L_NOCPF")
            e(f"global_load_dword v{vPFD}, v43, s[54:55]")
            e("L_NOCPF:")
            e("s_mov_b64 exec, -1")
    def zero1():
        for i in range(4):
            e(f"v_mov_b32 v{vACC+i}, 0")
        e(f"v_lshlrev_b32 v54, 4, v0")
        e(f"ds_write_b128 v54, v[{vACC}:{vACC+3}] offset:{L_CNT}")
    def ld_dst():
        e(f"buffer_load_dwordx4 v[44:47], v41, s[{T1}:{T1+3}], 0 offen {cfg.EFLAG}")
    def ld_sn():
        e(f"buffer_load_dwordx4 v[48:51], v41, s[{T2}:{T2+3}], 0 offen {cfg.EFLAG}")
        e(f"buffer_load_dwordx2 v[52:53], v42, s[{T3}:{T3+3}], 0 offen {cfg.EFLAG}")
    def sn_consts():
        e("v_lshrrev_b32 v42, 1, v41")
        e(f"s_mov_b64 s[{T2+2}:{T2+3}], s[{T1+2}:{T1+3}]")
        e(f"s_lshr_b32 s{T3+2}, s{T1+2}, 1")
        e(f"s_mov_b32 s{T3+3}, s{T1+3}")
    if cfg.TS:
        e(f"s_memrealtime s[{sTS}:{sTS+1}]")
    e(f"s_load_dwordx2 s[{T1}:{T1+1}], s[0:1], 16")
    if cfg.ENT != 1:
        e(f"s_load_dwordx2 s[{T2}:{T2+1}], s[0:1], 8")
        e(f"s_load_dwordx2 s[{T3}:{T3+1}], s[0:1], 24")
    e("s_cmpk_ge_u32 s2, 256")
    e("s_cbranch_scc1 L_END")
    if cfg.ENT == 0:
        e(f"s_load_dwordx2 s[{WS}:{WS+1}], s[0:1], 56")
        e(f"s_load_dwordx2 s[{O}:{O+1}], s[0:1], 48")
        cpf()
        zero1()
    e(f"s_lshl_b32 s{sT}, s2, 4")
    e(f"v_and_or_b32 v41, v0, 15, s{sT}")
    e(f"v_lshrrev_b32 v40, 4, v0")
    e(f"v_lshl_add_u32 v40, v40, 12, v41")
    if cfg.BAL:
        e(f"v_and_b32 v41, {16 if cfg.BAL == 1 else 64}, v0")
        e(f"v_mul_u32_u24 v41, {0x60 if cfg.BAL == 1 else 0x18}, v41")
        e(f"v_xor_b32 v40, v40, v41")
    e("v_lshlrev_b32 v41, 4, v40")
    e(f"s_mov_b32 s{T1+2}, 0x{E*4:x}")
    e(f"s_mov_b32 s{T1+3}, 0x20000")
    if cfg.ENT == 2:
        sn_consts()
    e("s_waitcnt lgkmcnt(0)")
    ld_dst()
    if cfg.ENT == 2:
        ld_sn()
    if cfg.ENT == 1:
        e(f"s_load_dwordx2 s[{T2}:{T2+1}], s[0:1], 8")
        e(f"s_load_dwordx2 s[{T3}:{T3+1}], s[0:1], 24")
    if cfg.ENT != 0:
        e(f"s_load_dwordx2 s[{WS}:{WS+1}], s[0:1], 56")
        cpf()
        zero1()
    if cfg.ENT != 2:
        sn_consts()
    e(f"v_cmp_gt_u32 vcc, 832, v0")
    e(f"s_mov_b32 s{WS+2}, 0x{WS_USED:x}")
    e(f"s_mov_b32 s{WS+3}, s{T1+3}")
    if cfg.TS:
        for i in range(1, 16):
            e(f"s_mov_b64 s[{sTS+2*i}:{sTS+2*i+1}], 0")
    if cfg.R1:
        e(f"s_and_b32 s{sT}, s2, 0xc7")
    else:
        e(f"s_and_b32 s{sT}, s2, 0xff")
    e("s_waitcnt lgkmcnt(0)")
    e("s_cbranch_vccz L_H0")
    e("s_barrier")
    if cfg.ENT != 2:
        ld_sn()
    e("s_branch L_E0")
    e("L_H0:")
    e(f"s_movk_i32 s{O+2}, 256")
    e(f"s_mov_b32 s{O+3}, s{T1+3}")
    e("s_cbranch_scc1 L_H05")
    e(f"v_cmp_gt_u32 vcc, 960, v0")
    e("s_cbranch_vccnz L_H05")
    if cfg.R1:
        e(f"s_lshl_b32 s{sT}, s2, 10")
        e(f"s_add_u32 s{sT}, s{sT}, 0x{RS_OFF - 960*16:x}")
        e(f"s_add_u32 s{sT+1}, s{sT}, 8192")
        e("L_ZLOOP:")
        e(f"buffer_store_dwordx4 v[{vACC}:{vACC+3}], v54, s[{WS}:{WS+3}], s{sT} offen sc1")
        e(f"s_addk_i32 s{sT}, 1024")
    else:
        e(f"v_and_b32 v40, 7, v0")
        e(f"v_and_b32 v43, 56, v0")
        e(f"v_lshl_add_u32 v43, v43, 1, v40")
        e(f"v_lshlrev_b32 v43, 4, v43")
        e(f"s_mov_b32 s{sT}, 0x{SY_OFF:x}")
        e(f"s_add_u32 s{sT+1}, s{sT}, {9*2048}")
        e("L_ZLOOP:")
        e(f"buffer_store_dwordx4 v[{vACC}:{vACC+3}], v43, s[{WS}:{WS+3}], s{sT} offen sc1")
        e(f"s_addk_i32 s{sT}, 2048")
    e(f"s_cmp_lt_u32 s{sT}, s{sT+1}")
    e("s_cbranch_scc1 L_ZLOOP")
    e("L_H05:")
    if cfg.DW:
        e(f"buffer_load_dword v{vPFD}, v{vACC}, s[{O}:{O+3}], 0 offen offset:128")
    e("L_H1:")
    e("s_barrier")
    e("s_branch L_P1H1")
    e("L_E0:")
    assert L_ZEND - (L_CNT + 16384) <= 2 * 13312
    e(f"ds_write_b128 v54, v[{vACC}:{vACC+3}] offset:{L_CNT+16384}")
    e(f"v_add_u32 v54, {L_ZEND-13312}, v54")
    e(f"ds_write_b128 v54, v[{vACC}:{vACC+3}]")
    e(f"v_cmp_gt_u32 vcc, {E//4}, v40")
    e(f"v_mov_b32 v{vONE}, 1")
    e(f"s_mov_b32 s{sC1}, -196")
    e(f"s_mov_b32 s{sC2}, 0x05040100")
    e(f"s_mov_b32 s{sC3}, 0x07060100")
    e(f"v_mov_b32 v43, {L_MISC+12}")
    e(f"v_mul_u32_u24 v80, 24, v0")
    e(f"v_add_u32 v80, {L_STAGE}, v80")
    e(f"v_add_u32 v81, {832*24}, v80")
    e(f"s_mul_i32 s{sT}, s2, {CG*16}")
    e(f"v_lshl_add_u32 v41, v0, 4, s{sT}")
    e(f"v_add_u32 v42, {832*16}, v41")
    e(f"v_add_u32 v82, 832, v0")
    e(f"s_mov_b64 exec, vcc")
    e(f"s_waitcnt vmcnt(2)")
    for i in range(4):
        e(f"v_mul_u32_u24 v{74+i}, {MAG}, v{44+i}")
    for i in range(4):
        e(f"v_lshrrev_b32 v{70+i}, 24, v{74+i}")
        e(f"v_lshlrev_b32 v{54+i}, 2, v{70+i}")
        e(f"ds_add_rtn_u32 v{58+i}, v{54+i}, v{vONE} offset:{L_HIST}")
    e("s_waitcnt lgkmcnt(0)")
    ts(1)
    e("s_barrier")
    for i in range(4):
        e(f"v_mad_i32_i24 v{44+i}, v{70+i}, s{sC1}, v{44+i}")
        e(f"v_and_b32 v{74+i}, 0xe0000000, v{74+i}")
        e(f"v_add_u32 v{44+i}, 1, v{44+i}")
    def keys():
        e(f"s_waitcnt vmcnt(1)")
        ts(5, 2)
        for i in range(4):
            e(f"v_mul_u32_u24 v78, {MAG}, v{48+i}")
            e(f"v_sub_u32 v78, v78, v{74+i}")
            e(f"v_bfe_u32 v78, v78, 29, 2")
            e(f"v_lshl_or_b32 v{63+2*i}, v{44+i}, 2, v78")
    def perms():
        e(f"s_waitcnt vmcnt(0)")
        for i in range(4):
            e(f"v_perm_b32 v{62+2*i}, v{52+i//2}, v{48+i}, s{sC2 if i%2==0 else sC3}")
    if cfg.KV:
        keys()
    if cfg.KV == 2:
        perms()
    e("s_barrier")
    ts(4, 2)
    for i in range(4):
        e(f"ds_read_b32 v{54+i}, v{54+i} offset:{L_HIST}")
    e("s_mov_b64 exec, -1")
    e(f"ds_read_b32 v43, v43")
    e(f"s_mov_b64 exec, vcc")
    if not cfg.KV:
        keys()
    if cfg.KV != 2:
        perms()
    ts(6, 2)
    for i in range(4):
        e(f"s_waitcnt lgkmcnt(4)")
        e(f"v_lshl_add_u32 v{58+i}, v{58+i}, 3, v{54+i}")
        e(f"ds_write_b64 v{58+i}, v[{62+2*i}:{63+2*i}] offset:{L_STAGE}")
    e("s_mov_b64 exec, -1")
    e("s_waitcnt lgkmcnt(0)")
    e(f"v_cmp_lt_u32 vcc, v82, v43")
    ts(7, 2)
    if cfg.XD == 1:
        e("s_sleep 16")
    e("s_barrier")
    def rd3(d, a):
        e(f"ds_read_b64 v[{d}:{d+1}], v{a}")
        e(f"ds_read_b64 v[{d+4}:{d+5}], v{a} offset:8")
        e(f"ds_read_b64 v[{d+2}:{d+3}], v{a} offset:16")
    def pk3(d):
        e(f"v_lshl_or_b32 v{d+3}, v{d+3}, 10, v{d+5}")
        e(f"v_lshl_or_b32 v{d+3}, v{d+3}, 10, v{d+1}")
        e(f"v_mov_b32 v{d+1}, v{d+4}")
    rd3(44, 80)
    e("s_cbranch_vccz L_ST1")
    e("s_mov_b64 exec, vcc")
    rd3(56, 81)
    e("s_waitcnt lgkmcnt(0)")
    pk3(56)
    e(f"buffer_store_dwordx4 v[56:59], v42, s[{WS}:{WS+3}], 0 offen sc1")
    e("s_mov_b64 exec, -1")
    e("L_ST1:")
    e("s_waitcnt lgkmcnt(0)")
    pk3(44)
    e(f"buffer_store_dwordx4 v[44:47], v41, s[{WS}:{WS+3}], 0 offen sc1")
    ts(2)
    e("s_branch L_P1_JOIN")
    e("L_P1H1:")
    e(f"v_and_b32 v{vLANE}, 63, v0")
    e(f"v_and_b32 v40, 7, v0")
    e(f"v_lshlrev_b32 v{vLOFF}, 4, v40")
    e(f"v_mov_b32 v{vONE}, 1")
    e(f"v_cmp_gt_u32 vcc, 960, v0")
    e("s_cbranch_vccnz L_P1H2")
    e(f"s_and_b32 s{sT}, s2, {'0xc7' if cfg.R1 else '0xff'}")
    e("s_cbranch_scc1 L_W15_B")
    for i in range(4):
        e(f"v_mov_b32 v{56+i}, 1")
    e(f"s_lshl_b32 s{sT}, s2, 1")
    e(f"s_mov_b64 exec, {'1' if cfg.R1 else '0xff'}")
    e(f"s_waitcnt vmcnt({1 if cfg.DW else 0})")
    e(f"buffer_store_dwordx4 v[56:59], v{vLOFF}, s[{O}:{O+3}], s{sT} offen sc1")
    e("L_W15_B:")
    e(f"s_lshl_b32 s{sT}, s2, 8")
    e(f"s_add_u32 s{sT}, s{sT}, 0x{HS_OFF - 960*16:x}")
    e(f"s_add_u32 s{sT+1}, s{sT}, 0x{QS_OFF - HS_OFF:x}")
    e("s_mov_b64 exec, 0xffff")
    e(f"buffer_store_dwordx4 v[{vACC}:{vACC+3}], v54, s[{WS}:{WS+3}], s{sT} offen sc1")
    e("s_cmp_ge_u32 s2, 8")
    e("s_cbranch_scc1 L_W15_C")
    e(f"buffer_store_dwordx4 v[{vACC}:{vACC+3}], v54, s[{WS}:{WS+3}], s{sT+1} offen sc1")
    e("L_W15_C:")
    e("s_mov_b64 exec, -1")
    e("s_barrier")
    e("s_barrier")
    e("s_barrier")
    e("s_waitcnt lgkmcnt(0)")
    e("s_branch L_P1_JOIN")
    e("L_P1H2:")
    e(f"s_load_dwordx2 s[{pW}:{pW+1}], s[0:1], 32")
    e(f"v_cmp_gt_u32 vcc, 896, v0")
    e("s_waitcnt lgkmcnt(0)")
    e("s_cbranch_vccnz L_P1_W13")
    srd(T1, pW, 8192)
    WB = 88 if cfg.WL else 44
    e(f"v_lshlrev_b32 v40, 4, v{vLANE}")
    e(f"v_add_u32 v41, 4096, v40")
    def wload():
        for i in range(8):
            e(f"buffer_load_dwordx4 v[{WB+4*i}:{WB+3+4*i}], v{40+i//4}, s[{T1}:{T1+3}], 0 offen offset:{1024*(i%4)}")
    def wstore():
        e(f"v_lshrrev_b32 v{vTP}, 3, v{vLANE}")
        e(f"v_lshl_add_u32 v{vTP}, v{vTP}, 1, v{vLOFF}")
        for i in range(8):
            for el in range(8):
                off = L_WT + (el & 3) * 2048 + (el >> 2) * 128 + (i & 3) * 256 + (i >> 2) * 1024
                op = "ds_write_b16" if el % 2 == 0 else "ds_write_b16_d16_hi"
                e(f"{op} v{vTP}, v{WB+4*i+el//2} offset:{off}")
    assert cfg.O4
    if not cfg.WL:
        wload()
    e("s_barrier")
    e("s_barrier")
    if cfg.WL == 2:
        wload()
    e("s_barrier")
    if cfg.WL == 1:
        wload()
    if not cfg.WL:
        e(f"s_waitcnt vmcnt(0)")
        wstore()
    e("s_branch L_P1_JOIN")
    if cfg.WL:
        e("L_WST:")
        wstore()
        e("s_branch L_NORPOLL")
    e("L_P1_W13:")
    e("s_setprio 3")
    e("s_memtime s[40:41]")
    e(f"v_lshlrev_b32 v79, 4, v{vLANE}")
    e(f"s_lshl_b32 s{sT}, s2, 10")
    e(f"s_add_u32 s{sT}, s{sT}, 0x{TAB_OFF:x}")
    e(f"v_add_u32 v78, s{sT}, v79")
    e(f"v_mov_b32 v75, {L_MISC+12}")
    e(f"s_mov_b32 s{sT}, 43691")
    e(f"v_mov_b32 v74, {2*43691}")
    e("s_waitcnt lgkmcnt(0)")
    e("s_lshr_b32 s40, s40, 2")
    e("s_mul_i32 s40, s40, 0x400800")
    e("s_and_b32 s40, s40, 0xf800f800")
    e("s_barrier")
    e(f"ds_read_b128 v[80:83], v79 offset:{L_HIST}")
    e("s_waitcnt lgkmcnt(0)")
    for i in range(4):
        e(f"v_mad_u32_u24 v{80+i}, v{80+i}, s{sT}, v74")
    for i in range(4):
        e(f"v_lshrrev_b32 v{80+i}, 17, v{80+i}")
    e("v_add_u32 v85, v80, v81")
    e("v_add3_u32 v84, v85, v82, v83")
    e("v_add_u32 v86, v85, v82")
    e("v_mov_b32 v87, v84")
    scan64(84, fill=["v_mul_u32_u24 v69, 24, v80", "v_mul_u32_u24 v70, 24, v85", "v_mul_u32_u24 v71, 24, v86",
                     "v_lshl_or_b32 v83, v83, 16, s40", "v_lshl_or_b32 v82, v82, 16, s40", "v_lshl_or_b32 v81, v81, 16, s40",
                     "v_add_u32 v83, v83, v86", "v_add_u32 v82, v82, v85", "v_add_u32 v81, v81, v80",
                     "v_lshl_or_b32 v80, v80, 16, s40"], steps=SCAN[:5])
    dpp_add(84, SCAN[5])
    e("v_sub_u32 v85, v84, v87")
    e("v_mul_u32_u24 v68, 24, v85")
    for i in range(1, 4):
        e(f"v_add_u32 v{68+i}, v{68+i}, v68")
    e(f"ds_write_b128 v79, v[68:71] offset:{L_HIST}")
    e(f"s_mov_b32 exec_lo, 0")
    e(f"s_mov_b32 exec_hi, 0x80000000")
    e("ds_write_b32 v75, v84")
    e("s_mov_b64 exec, -1")
    for i in range(4):
        e(f"v_add_u32 v{80+i}, v{80+i}, v85")
    e(f"buffer_store_dwordx4 v[80:83], v78, s[{WS}:{WS+3}], 0 offen sc1")
    e("s_waitcnt lgkmcnt(0)")
    e("s_barrier")
    e("s_mov_b64 exec, 0xff")
    if not cfg.RL:
        e(f"buffer_load_dword v76, v{vLOFF}, s[{O}:{O+3}], 0 offen sc1")
    e("s_barrier")
    e(f"s_mov_b32 s{sSPIN}, 0")
    if not cfg.RL:
        e("s_branch L_RDY1")
    e("L_RDY:")
    e(f"buffer_load_dword v76, v{vLOFF}, s[{O}:{O+3}], 0 offen sc1")
    e("L_RDY1:")
    e("s_waitcnt vmcnt(0)")
    e("v_cmp_ne_u32 vcc, 1, v76")
    e("s_cbranch_vccz L_RDYX")
    spin_tail("L_RDY", "L_RDYX")
    e("L_RDYX:")
    e("s_setprio 0")
    e("s_mov_b64 exec, -1")
    ts(1)
    e("L_P1_JOIN:")
    e(f"s_load_dwordx2 s[{G}:{G+1}], s[0:1], 0")
    e(f"s_load_dwordx2 s[{pOUT}:{pOUT+1}], s[0:1], 40")
    e(f"v_lshrrev_b32 v{vX+5}, 6, v0")
    e("s_and_b32 s3, s2, 7")
    e(f"v_readfirstlane_b32 s{sW}, v{vX+5}")
    e("s_lshl_b32 s3, s3, 5")
    e(f"s_lshr_b32 s{sT}, s2, 3")
    e(f"s_or_b32 s3, s3, s{sT}")
    e(f"v_and_b32 v{vLANE}, 63, v0")
    e(f"s_mov_b32 s{s128}, 128")
    e(f"s_mov_b32 s{sBB}, 0")
    e(f"s_mov_b32 s{sHOP}, 0")
    e(f"s_mov_b32 s{sMODE}, 0")
    for i in range(4, 16):
        e(f"v_mov_b32 v{vACC+i}, 0")
    e(f"v_and_b32 v{vX+4}, 7, v0")
    e(f"v_lshlrev_b32 v{vLOFF}, 4, v{vX+4}")
    e(f"v_and_b32 v{vX+4}, 1, v0")
    e(f"v_mov_b32 v{vX+5}, 0x0c0c0302")
    e(f"v_mov_b32 v{vX+6}, 0x03020c0c")
    e(f"v_cmp_eq_u32 vcc, 1, v{vX+4}")
    e(f"v_mov_b32 v{vX+7}, 0x0c0c0c0c")
    e(f"v_and_b32 v{vX+4}, 2, v0")
    e(f"v_cndmask_b32 v{vX+5}, v{vX+5}, v{vX+6}, vcc")
    e(f"v_cmp_eq_u32 vcc, 2, v{vX+4}")
    e(f"v_mov_b32 v{vP}, 0")
    e(f"s_and_b32 s{sT}, s2, 7")
    e(f"s_lshl_b32 s{sT}, s{sT}, 8")
    e(f"s_add_u32 s{sQ-1}, s{sT}, 0x{QS_OFF:x}")
    e(f"s_mov_b32 s{G+2}, 0x{ROWB:x}")
    e(f"v_cndmask_b32 v{vSEL0}, v{vX+5}, v{vX+7}, vcc")
    e(f"v_cndmask_b32 v{vSEL1}, v{vX+7}, v{vX+5}, vcc")
    e(f"v_cmp_gt_u32 vcc, {NSLOT}, v0")
    e(f"s_mov_b64 s[{sNODE}:{sNODE+1}], vcc")
    e(f"s_mov_b32 s{G+3}, 0x20000")
    srd(O, WS, H1B, H1_OFF)
    e(f"v_and_b32 v{vX}, 60, v0")
    e(f"v_lshl_add_u32 v{vX}, v{vX}, 2, s{sW}")
    e(f"s_lshl_b32 s{sT}, s3, 2")
    e(f"s_add_u32 s{sT}, s{sT}, 0x{TAB_OFF:x}")
    e(f"v_lshl_add_u32 v{vTA}, v{vX}, 10, s{sT}")
    if cfg.R1:
        e(f"s_sub_u32 s{sI4}, s{sW}, 1")
        e(f"s_and_b32 s{sI4}, s{sI4}, 7")
        e(f"s_and_b32 s{sT}, s2, {31 if S32 else 63}")
        e(f"s_lshl_b32 s{sT}, s{sT}, 3")
        e(f"s_add_u32 s{sI4}, s{sI4}, s{sT}")
        e(f"s_lshl_b32 s{sI4}, s{sI4}, {8 if S32 else 7}")
        e(f"s_add_u32 s{sI4}, s{sI4}, 0x{RS_OFF:x}")
        bar_base(sI4)
        if cfg.AE:
            bar_issue(sI4, 48)
        bar_bump_addr(64)
        e(f"s_mov_b32 s{sT}, 0x{RS_OFF:x}")
        if cfg.AE:
            e("s_waitcnt lgkmcnt(0)")
            e(f"s_add_u32 s44, s44, s45")
            e(f"s_cmp_lt_u32 s44, {cfg.AE}")
            e("s_cbranch_scc1 L_LATE")
            e(f"buffer_load_dword v{vE}, v{vTA}, s[{WS}:{WS+3}], 0 offen sc1")
            e(f"s_cmp_lg_u32 s{sW}, 0")
            e("s_waitcnt vmcnt(1)")
            e("s_barrier")
            e("s_branch L_A5X")
            e("L_LATE:")
        e(f"s_cmp_lg_u32 s{sW}, 0")
        e("s_waitcnt vmcnt(0) lgkmcnt(0)")
        ts(14)
        if cfg.TE:
            e(f"buffer_load_dword v{vE}, v{vTA}, s[{WS}:{WS+3}], 0 offen sc1")
        e("s_barrier")
        if not cfg.TE:
            e(f"buffer_load_dword v{vE}, v{vTA}, s[{WS}:{WS+3}], 0 offen sc1")
        e("L_A5X:")
        e("s_cbranch_scc1 L_NOARR")
        bar_bump(64)
        e("s_waitcnt vmcnt(1)")
        e("s_branch L_DECODE")
        e("L_NOARR:")
        e(f"s_cmp_gt_u32 s{sW}, 8")
        e("s_waitcnt vmcnt(0)")
        if cfg.EP:
            e("s_cbranch_scc1 L_DECODE")
            bar_issue(sI4, 48)
        e("s_branch L_DECODE")
    else:
        e(f"v_mov_b32 v64, {SY_OFF + cfg.WST - QS_OFF}")
        e(f"v_add_u32 v64, s{sQ-1}, v64")
        e(f"v_mov_b32 v65, 1")
        e(f"s_cmp_lg_u32 s{sW}, 0")
        e(f"s_cselect_b64 exec, -1, 1")
        e("s_waitcnt vmcnt(0) lgkmcnt(0)")
        ts(14)
        e("s_barrier")
        e("s_cbranch_scc1 L_NOARR")
        e(f"buffer_atomic_add v65, v64, s[{WS}:{WS+3}], 0 offen sc0 sc1")
        e("s_mov_b64 exec, -1")
        e(f"buffer_load_dword v{vE}, v{vTA}, s[{WS}:{WS+3}], 0 offen sc1")
        arrive_b(1, 64, 1, ["s_waitcnt vmcnt(1)", "s_branch L_DECODE"])
        e("s_waitcnt vmcnt(0)")
        e("s_branch L_DECODE")
        e("L_NOARR:")
        e(f"buffer_load_dword v{vE}, v{vTA}, s[{WS}:{WS+3}], 0 offen sc1")
        e("s_waitcnt vmcnt(0)")
        e("s_branch L_DECODE")

    e("L_BATCH:")
    e(f"s_mov_b32 s{sMODE}, 2")
    e(f"v_mov_b32 v{vX}, 0")
    e(f"v_mov_b32 v{vX+1}, 0")
    e(f"v_lshlrev_b32 v{vX+4}, 3, v0")
    e(f"v_cmp_gt_u32 vcc, {(L_ZEND2-L_CNT)//8}, v0")
    e(f"s_mov_b64 exec, vcc")
    e(f"ds_write_b64 v{vX+4}, v[{vX}:{vX+1}] offset:{L_CNT}")
    e("s_mov_b64 exec, -1")
    e("L_DECODE:")
    if cfg.FAIL:
        e(f"s_cmp_lg_u32 s{sMODE}, 0")
        e("s_cbranch_scc1 L_NOFAIL")
        e(f"s_and_b32 s{sT}, s2, 3")
        e(f"s_cmp_lg_u32 s{sT}, 1")
        e("s_cbranch_scc1 L_NOFAIL")
        e(f"s_cmp_lt_u32 s{sW}, {16 - cfg.FAIL}")
        e("s_cbranch_scc1 L_NOFAIL")
        e(f"v_mul_u32_u24 v{vE}, 0x9e3b, v{vE}")
        e(f"v_xor_b32 v{vE}, v{vE}, v0")
        e("L_NOFAIL:")
    vNG, vG0, vQ, vT, vB, vA = vX, vX+1, vX+2, vX+3, vX+4, vX+5
    vGR = 40
    vKEY = 48
    vRANK = 54
    vDS = 60
    e(f"v_and_b32 v{vG0}, 60, v0")
    e(f"v_lshl_add_u32 v{vG0}, v{vG0}, 2, s{sW}")
    e(f"v_mul_u32_u24 v{vG0}, {CG}, v{vG0}")
    e(f"v_and_b32 v{vT}, 3, v0")
    e(f"v_add_u32 v{vG0}, v{vG0}, v{vT}")
    e(f"s_lshl_b32 s{sT}, s{sW}, 9")
    e(f"s_add_u32 s{sT}, s{sT}, {L_D}")
    e(f"v_mov_b32 v{vGR+3}, 0")
    e(f"v_mov_b32 v{vGR+7}, 0")
    ts(4)
    e(f"v_bfe_u32 v{vNG}, v{vE}, 16, 11")
    e(f"v_bfe_u32 v{vQ}, v{vE}, 16, 11")
    e(f"v_and_b32 v{vB}, 0x7ff, v{vE}")
    e(f"v_add_u32 v{vG0}, v{vG0}, v{vB}")
    scan64(vQ, fill=[f"v_sub_u32 v{vB}, v{vT}, v{vNG}", f"v_subrev_u32 v{vB}, s{sBB}, v{vB}",
                     f"v_cmp_lt_u32 s[{sTMP}:{sTMP+1}], v{vT}, v{vNG}", f"v_lshl_add_u32 v{vDS}, v{vLANE}, 2, s{sT}"], steps=SCAN[2:])
    e(f"v_readlane_b32 s{sTB}, v{vQ}, 63")
    e(f"v_add_u32 v{vB}, v{vB}, v{vQ}")
    e(f"L_DLOOP:")
    e(f"v_cmp_gt_u32 vcc, s{s128}, v{vB}")
    e(f"v_lshl_add_u32 v{vA}, v{vB}, 2, s{sT}")
    e(f"v_add_u32 v{vT}, 4, v{vT}")
    e(f"v_add_u32 v{vB}, 4, v{vB}")
    e(f"s_and_b64 exec, vcc, s[{sTMP}:{sTMP+1}]")
    e(f"ds_write_b32 v{vA}, v{vG0}")
    e("s_mov_b64 exec, -1")
    e(f"v_cmp_lt_u32 s[{sTMP}:{sTMP+1}], v{vT}, v{vNG}")
    e(f"v_cmp_gt_i32 vcc, s{s128}, v{vB}")
    e(f"v_add_u32 v{vG0}, 4, v{vG0}")
    e(f"s_and_b64 s[{sTMP}:{sTMP+1}], s[{sTMP}:{sTMP+1}], vcc")
    e(f"s_cbranch_scc1 L_DLOOP")
    e(f"ds_read2st64_b32 v[{vDS}:{vDS+1}], v{vDS} offset0:0 offset1:1")
    e(f"s_sub_i32 s{sNR}, s{sTB}, s{sBB}")
    e(f"v_add_u32 v{vA}, 64, v{vLANE}")
    e(f"v_cmp_gt_i32 s[{sM}:{sM+1}], s{sNR}, v{vLANE}")
    e(f"v_cmp_gt_i32 s[{sM+6}:{sM+7}], s{sNR}, v{vA}")
    ts(3)
    e("s_waitcnt lgkmcnt(0)")
    e(f"v_lshlrev_b32 v{vDS}, 4, v{vDS}")
    e(f"v_lshlrev_b32 v{vDS+1}, 4, v{vDS+1}")
    e(f"s_cmp_eq_u32 s{sMODE}, 1")
    e("s_cbranch_scc1 L_NOA6")
    if cfg.PFA:
        e(f"s_cmp_lt_u32 s{sW}, {16-cfg.PFA}")
        e("s_cbranch_scc1 L_NOPFA")
        pf_addr(vX+8, 16-cfg.PFA, 0)
        e(f"buffer_load_dword v{vPFD}, v{vX+8}, s[{G}:{G+3}], 0 offen")
        e("L_NOPFA:")
    if cfg.R1:
        e(f"s_cmp_lg_u32 s{sMODE}, 0")
        e("s_cbranch_scc1 L_NORPOLL")
        if cfg.WL:
            e(f"s_cmp_eq_u32 s{sW}, 14")
            e("s_cbranch_scc1 L_WST")
        e(f"s_sub_u32 s{sT}, s{sW}, 1")
        e(f"s_cmp_ge_u32 s{sT}, 8")
        e("s_cbranch_scc1 L_NORPOLL")
        bar_poll(sI4, "L_NORPOLL", cfg.EP)
    else:
        e(f"s_cmp_lg_u32 s{sW}, {cfg.RW}")
        e("s_cbranch_scc1 L_NORPOLL")
        poll(1)
    e("L_NORPOLL:")
    e("s_barrier")
    e("L_NOA6:")
    e(f"s_cmp_le_i32 s{sNR}, 0")
    e("s_cbranch_scc1 L_LD_DONE")
    e(f"s_mov_b64 exec, s[{sM}:{sM+1}]")
    e(f"buffer_load_dwordx4 v[{vGR}:{vGR+3}], v{vDS}, s[{WS}:{WS+3}], 0 offen sc1")
    e(f"s_cmp_le_i32 s{sNR}, 64")
    e("s_cbranch_scc1 L_LD_DONE")
    e(f"s_mov_b64 exec, s[{sM+6}:{sM+7}]")
    e(f"buffer_load_dwordx4 v[{vGR+4}:{vGR+7}], v{vDS+1}, s[{WS}:{WS+3}], 0 offen sc1")
    e(f"L_LD_DONE:")
    e("s_mov_b64 exec, -1")
    e(f"s_cmp_lg_u32 s{sMODE}, 0")
    e("s_cbranch_scc1 L_NOVER")
    if cfg.LV == 1:
        e("s_barrier")
    e(f"buffer_load_dword v{vE2}, v{vTA}, s[{WS}:{WS+3}], 0 offen sc1")
    ts(15)
    if cfg.PF2:
        pf_addr(vX+8, 16-cfg.PF2, cfg.PFA)
    if cfg.LV:
        e(f"s_waitcnt vmcnt(1)")
    else:
        e(f"s_mov_b32 s{sMODE}, 1")
        e(f"s_waitcnt vmcnt(0)")
        e(f"v_cmp_ne_u32 vcc, v{vE}, v{vE2}")
        e(f"v_mov_b32 v{vE}, v{vE2}")
        e("s_cbranch_vccnz L_DECODE")
    if cfg.PF2:
        e(f"s_cmp_lt_u32 s{sW}, {16-cfg.PF2}")
        e("s_cbranch_scc1 L_NOPF2")
        e(f"buffer_load_dword v{vPFD}, v{vX+8}, s[{G}:{G+3}], 0 offen")
    e("s_branch L_NOPF2")
    e("L_NOVER:")
    e(f"v_mov_b32 v{vE2}, v{vE}")
    e(f"s_waitcnt vmcnt(0)")
    e("L_NOPF2:")
    ts(5)
    def second(lab):
        e(f"s_cmp_le_i32 s{sNR}, 64")
        e(f"s_cbranch_scc1 {lab}")
    for r in range(2):
        if r == 1:
            second("L_RK_DONE")
            e("s_mov_b64 exec, -1")
        for s_ in range(3):
            k = 3 * r + s_
            e(f"v_bfe_u32 v{vKEY+k}, v{vGR+4*r+3}, {10*s_}, 10")
        for s_ in range(3):
            k = 3 * r + s_
            e(f"v_cmp_lt_u32 s[{sM+2*k}:{sM+2*k+1}], 3, v{vKEY+k}")
            e(f"v_lshlrev_b32 v{vKEY+k}, 2, v{vKEY+k}")
        for s_ in range(3):
            k = 3 * r + s_
            e(f"s_mov_b64 exec, s[{sM+2*k}:{sM+2*k+1}]")
            e(f"ds_add_rtn_u32 v{vRANK+k}, v{vKEY+k}, v{vONE} offset:{L_CNT}")
    e("L_RK_DONE:")
    if cfg.LV:
        e("s_mov_b64 exec, -1")
        e(f"s_cmp_ge_u32 s{sW}, {16-cfg.PF2}")
        e("s_waitcnt vmcnt(1)")
        e("s_cbranch_scc1 L_VER2")
        e("s_waitcnt vmcnt(0)")
        e("L_VER2:")
        e(f"v_cmp_ne_u32 vcc, v{vE}, v{vE2}")
        e(f"v_mov_b32 v{vE}, v{vE2}")
        e("s_cmp_lg_u64 vcc, 0")
        e(f"s_cselect_b32 s{sTB}, -1, s{sTB}")
    e("s_mov_b64 exec, 1")
    e(f"v_mov_b32 v{vA}, s{sTB}")
    e(f"v_mov_b32 v{vB}, {L_MISC+4}")
    e(f"ds_max_u32 v{vB}, v{vA}")
    e("s_mov_b64 exec, -1")
    def slots(bodyf, lab):
        for k in range(6):
            if k == 3:
                second(lab)
            e(f"s_mov_b64 exec, s[{sM+2*k}:{sM+2*k+1}]")
            bodyf(k)
        e(f"{lab}:")
        e("s_mov_b64 exec, -1")
    vC = vX
    vDEG, vNP, vSC, vBIN, vDR, vSB, vNA = vX+4, vX+5, vX+6, vX+7, vX+8, vX+9, vX+10
    vBS = vX + 12
    e(f"v_lshlrev_b32 v{vNA}, 4, v0")
    e(f"v_mov_b32 v{vX+11}, {L_MISC}")
    e(f"v_mov_b32 v{vTP}, 0xffff")
    e(f"v_mov_b32 v{vTP+1}, 0xffff")
    e(f"s_cmp_ge_u32 s{sW}, 4")
    e("s_waitcnt lgkmcnt(0)")
    e("s_barrier")
    e(f"s_cbranch_scc1 L_NODE1_DONE")
    e(f"ds_read_b128 v[{vC}:{vC+3}], v{vNA} offset:{L_CNT+16}")
    ts(6)
    e("s_waitcnt lgkmcnt(0)")
    e(f"v_add_u32 v{vC+1}, v{vC}, v{vC+1}")
    e(f"v_add_u32 v{vC+2}, v{vC+1}, v{vC+2}")
    e(f"v_add3_u32 v{vSC}, v{vC+2}, v{vC+3}, 3")
    e(f"v_lshrrev_b32 v{vSC}, 1, v{vSC}")
    e(f"v_add_u32 v{vDEG}, v{vC+2}, v{vC+3}")
    e(f"v_mov_b32 v{vNP}, v{vSC}")
    scan64(vSC, fill=[f"v_min_u32 v{vBIN}, 63, v{vDEG}", f"v_sub_u32 v{vBIN}, 63, v{vBIN}",
                      f"v_lshlrev_b32 v{vBIN}, 2, v{vBIN}", f"s_mov_b64 exec, s[{sNODE}:{sNODE+1}]"], steps=SCAN[:2])
    e(f"ds_add_rtn_u32 v{vDR}, v{vBIN}, v{vONE} offset:{L_DH}")
    e("s_mov_b64 exec, -1")
    scan64(vSC, steps=SCAN[2:])
    e(f"s_mov_b32 exec_lo, 0")
    e(f"s_mov_b32 exec_hi, 0x80000000")
    e(f"ds_add_rtn_u32 v{vSB}, v{vX+11}, v{vSC}")
    e("s_mov_b64 exec, -1")
    e(f"v_lshlrev_b32 v{vSC}, 1, v{vSC}")
    e(f"v_sub_u32 v{vC+3}, v{vSC}, v{vDEG}")
    e(f"v_lshlrev_b32 v{vX+11}, 1, v{vNP}")
    e(f"v_sub_u32 v{vSC}, v{vSC}, v{vX+11}")
    e("s_waitcnt lgkmcnt(0)")
    e(f"v_readlane_b32 s{sT}, v{vSB}, 63")
    e(f"s_lshl_b32 s{sT}, s{sT}, 3")
    e(f"s_add_u32 s{sT}, s{sT}, {L_RECS}")
    e(f"v_lshl_add_u32 v{vBS}, v{vC+3}, 2, s{sT}")
    e(f"v_lshl_add_u32 v{vBS+1}, v{vC}, 2, v{vBS}")
    e(f"v_lshl_add_u32 v{vBS+2}, v{vC+1}, 2, v{vBS}")
    e(f"v_lshl_add_u32 v{vBS+3}, v{vC+2}, 2, v{vBS}")
    e(f"ds_write_b128 v{vNA}, v[{vBS}:{vBS+3}] offset:{L_CNT+16}")
    e(f"v_lshl_add_u32 v{vSC}, v{vSC}, 2, s{sT}")
    e(f"ds_write_b64 v{vSC}, v[{vTP}:{vTP+1}]")
    e(f"ds_write_b32 v{vSC}, v{vTP} offset:8")
    e(f"L_NODE1_DONE:")
    e(f"v_mov_b32 v{vC}, {L_MISC+4}")
    e(f"v_lshlrev_b32 v{vC+1}, 2, v{vLANE}")
    e("s_waitcnt lgkmcnt(0)")
    e("s_barrier")
    if cfg.XD == 2:
        e("s_sleep 16")
    ts(7)
    e(f"ds_read_b32 v{vC+1}, v{vC+1} offset:{L_DH}")
    e(f"ds_read_b32 v{vC+3}, v{vC}")
    for k in range(6):
        if k == 3:
            second("L_RB_DONE")
        e(f"ds_read_b32 v{vKEY+k}, v{vKEY+k} offset:{L_CNT}")
    e("L_RB_DONE:")
    e(f"s_cmp_ge_u32 s{sW}, 4")
    e(f"s_cbranch_scc1 L_NODE2_DONE")
    e(f"s_cmp_lg_u32 s{sBB}, 0")
    e(f"s_cbranch_scc1 L_NODE2_NOSORT")
    e("s_waitcnt lgkmcnt(4)")
    e(f"v_mov_b32 v{vC}, v{vC+1}")
    e("s_nop 1")
    scan64(vC)
    e(f"v_sub_u32 v{vC}, v{vC}, v{vC+1}")
    e(f"ds_bpermute_b32 v{vC}, v{vBIN}, v{vC}")
    e(f"s_movk_i32 s{sT}, {NNORM*16}")
    e("s_waitcnt lgkmcnt(0)")
    if SPL:
        e(f"v_add_u32 v{vP}, v{vC}, v{vDR}")
        e(f"v_and_b32 v{vC}, 0xf8, v{vP}")
        e(f"v_add3_u32 v{vC}, v{vC}, v{vP}, s{sT}")
        e(f"v_cmp_gt_u32 vcc, {8*SPL}, v{vP}")
        e(f"v_subrev_u32 v{vP}, {8*SPL}, v{vP}")
        e("s_nop 0")
        e(f"v_cndmask_b32 v{vP}, v{vP}, v{vC}, vcc")
        e(f"v_lshlrev_b32 v{vP}, 3, v{vP}")
    else:
        e(f"v_add_lshl_u32 v{vP}, v{vC}, v{vDR}, 3")
    e(f"L_NODE2_NOSORT:")
    e(f"v_lshl_or_b32 v{vC}, v{vNP}, 16, v{vSC}")
    e(f"s_mul_i32 s{sT}, s3, {NB*128}")
    e(f"v_lshl_add_u32 v{vC+1}, v0, 7, s{sT}")
    e(f"v_cmp_gt_u32 vcc, {NB}, v0")
    e(f"v_mov_b32 v{vC+2}, 0x80000000")
    e(f"s_mov_b64 exec, s[{sNODE}:{sNODE+1}]")
    e(f"v_cndmask_b32 v{vC+1}, v{vC+2}, v{vC+1}, vcc")
    e(f"ds_write_b64 v{vP}, v[{vC}:{vC+1}] offset:{L_NT}")
    if SPL:
        e(f"v_cmp_le_u32 vcc, {NNORM*128}, v{vP}")
        e(f"v_mov_b32 v{vC+1}, v{vC+2}")
        e("s_and_b64 exec, exec, vcc")
        e(f"ds_write_b64 v{vP}, v[{vC}:{vC+1}] offset:{L_NT+64}")
    e("s_mov_b64 exec, -1")
    e(f"L_NODE2_DONE:")
    e("s_waitcnt lgkmcnt(0)")
    def wr(k):
        e(f"v_lshl_add_u32 v{vRANK+k}, v{vRANK+k}, 2, v{vKEY+k}")
        e(f"ds_write_b32 v{vRANK+k}, v{vGR+4*(k//3)+k%3}")
    slots(wr, "L_RW_DONE")
    e(f"v_readfirstlane_b32 s{sNBMAX}, v{vC+3}")
    e(f"v_lshrrev_b32 v{vX}, 3, v{vLANE}")
    e(f"s_lshl_b32 s{sT}, s{sW}, 7")
    e(f"v_lshl_add_u32 v{vX}, v{vX}, 3, s{sT}")
    if cfg.LV:
        e(f"s_cmp_eq_u32 s{sNBMAX}, -1")
        e("s_cbranch_scc1 L_NEXTB")
    e(f"s_cmp_ge_u32 s{sW}, {NNORM}")
    e(f"s_cselect_b32 s{sSTR+1}, 1, 0")
    e(f"s_lshl_b32 s{sSTR}, 8, s{sSTR+1}")
    e(f"s_cmp_ge_u32 s{sW}, {NW}")
    e("s_waitcnt lgkmcnt(0)")
    e("s_barrier")
    e(f"s_cbranch_scc1 L_HELPER")
    e(f"ds_read_b64 v[{vX+2}:{vX+3}], v{vX} offset:{L_NT}")
    e(f"ds_read_b64 v[{vX+4}:{vX+5}], v{vX} offset:{L_NT+64}")
    ts(8)
    e("s_waitcnt lgkmcnt(0)")
    e(f"v_lshrrev_b32 v{vX}, 16, v{vX+2}")
    e(f"v_lshrrev_b32 v{vX+1}, 16, v{vX+4}")
    e(f"v_max_u32 v{vX+6}, v{vX}, v{vX+1}")
    e(f"v_and_b32 v{vEA}, 0xffff, v{vX+2}")
    e(f"v_and_b32 v{vEB}, 0xffff, v{vX+4}")
    e(f"v_max_u32_dpp v{vX+6}, v{vX+6}, v{vX+6} row_ror:8 row_mask:0xf bank_mask:0xf")
    e(f"v_lshl_add_u32 v{vPA}, v{vX}, 3, v{vEA}")
    e(f"v_lshl_add_u32 v{vPB}, v{vX+1}, 3, v{vEB}")
    e(f"v_readlane_b32 s{sN0}, v{vX+6}, 0")
    e(f"v_readlane_b32 s{sT}, v{vX+6}, 16")
    e(f"v_readlane_b32 s{sT+1}, v{vX+6}, 32")
    e(f"v_readlane_b32 s{sCNT}, v{vX+6}, 48")
    e(f"s_max_u32 s{sN0}, s{sN0}, s{sT}")
    e(f"s_max_u32 s{sCNT}, s{sCNT}, s{sT+1}")
    e(f"s_max_u32 s{sN0}, s{sN0}, s{sCNT}")
    e(f"s_sub_u32 s{sN0}, s{sN0}, 1")
    e(f"s_add_u32 s{sN0}, s{sN0}, s{sSTR+1}")
    e(f"s_lshr_b32 s{sN0}, s{sN0}, s{sSTR+1}")
    e(f"s_max_u32 s{sN0}, s{sN0}, {D}")
    e(f"s_mul_i32 s{sT}, s{sN0}, s{sSTR}")
    e(f"s_sub_u32 s{sT+1}, s{sT}, s{sSTR}")
    e(f"s_add_u32 s{sT+1}, s{sT+1}, 8")
    e(f"v_subrev_u32 v{vPA}, s{sT}, v{vPA}")
    e(f"v_subrev_u32 v{vPB}, s{sT+1}, v{vPB}")
    def rdrec(h):
        for pv, ev, d in ((vPA, vEA, vST), (vPB, vEB, vST + 4)):
            e(f"v_max_i32 v{vAD}, v{pv}, v{ev}")
            if h == 0:
                e(f"ds_read_b64 v[{d}:{d+1}], v{vAD}")
            else:
                e(f"ds_read2st64_b64 v[{d}:{d+3}], v{vAD} offset0:0 offset1:{RDELTA//512}")
        e(f"v_add_u32 v{vPA}, s{sSTR}, v{vPA}")
        e(f"v_add_u32 v{vPB}, s{sSTR}, v{vPB}")
    e(f"s_cmp_lg_u32 s{sHOP}, 0")
    e("s_cbranch_scc1 L_MBENC")
    rdrec(0)
    for src, d0 in ((vX+3, vROWA), (vX+5, vROWB)):
        e(f"v_add_u32 v{d0}, v{src}, v{vLOFF}")
    def pace():
        if cfg.PACE > 1:
            lab = newlab("PACE")
            e(f"s_add_i32 s{sI4}, s{sI4}, {cfg.PACE}")
            e(f"{lab}a:")
            e(f"s_cmp_lt_i32 s{sI4}, 0")
            e(f"s_cbranch_scc1 {lab}")
            e(f"s_cmp_eq_u32 s{sPN}, 0")
            e(f"s_cbranch_scc1 {lab}")
            e(f"s_sub_i32 s{sI4}, s{sI4}, s{sN0}")
            e(f"s_sub_u32 s{sPN}, s{sPN}, 1")
            e("s_barrier")
            e(f"s_branch {lab}a")
            e(f"{lab}:")
    recreg = [vST, vST + 4, vST + 1, vST + 5]
    def mm(slot, k):
        d = vDATA + 16 * slot + 4 * k
        a = vAOP + 8 * slot + 2 * k
        acc = vACC + (8 if k & 1 else 0)
        e(f"v_mfma_f32_4x4x4_16b_bf16 v[{acc}:{acc+3}], v[{a}:{a+1}], v[{d}:{d+1}], v[{acc}:{acc+3}]")
        e(f"v_mfma_f32_4x4x4_16b_bf16 v[{acc+4}:{acc+7}], v[{a}:{a+1}], v[{d+2}:{d+3}], v[{acc+4}:{acc+7}]")
    def step(h, slot, consume, skip=False):
        e("s_waitcnt lgkmcnt(0)")
        for k in range(4):
            r = recreg[k]
            d = vDATA + 16 * slot + 4 * k
            a = vAOP + 8 * slot + 2 * k
            if h == 0:
                e(f"v_mad_u32_u16 v{vAD}, v{r}, s{s128}, v{vLOFF}")
            else:
                e(f"v_add_u32 v{vAD}, v{r+2}, v{vLOFF}")
            if consume:
                e(f"s_waitcnt vmcnt({cfg.VW1 if h else cfg.VW0})")
                mm(slot, k)
            if skip:
                lab = newlab("SK")
                e(f"v_cmp_ne_u32 vcc, 0xffff, v{r}")
                for i in range(4):
                    e(f"v_mov_b32 v{d+i}, 0")
                e(f"s_cbranch_vccz {lab}")
            e(f"buffer_load_dwordx4 v[{d}:{d+3}], v{vAD}, s[{G}:{G+3}], 0 offen" + (" sc1" if h else ""))
            if skip:
                e(f"{lab}:")
            e(f"v_perm_b32 v{a}, v{r}, v{r}, v{vSEL0}")
            e(f"v_perm_b32 v{a+1}, v{r}, v{r}, v{vSEL1}")
        rdrec(h)
        pace()
    def gloop(h):
        e(f"s_sub_u32 s{sCNT}, s{sN0}, {D}")
        if cfg.PACE > 1:
            e(f"s_mul_i32 s{sI4}, s{sN0}, {-1-cfg.FB}")
            e(f"s_cmp_le_u32 s{sNBMAX}, {GB}")
            e(f"s_cselect_b32 s{sPN}, {cfg.PACE-1-cfg.FB-(cfg.DB1 if h else cfg.DB0)}, 0")
        for s_ in range(D):
            step(h, s_, False, cfg.SKP and s_ == 0)
        if cfg.SKP:
            e(f"s_waitcnt vmcnt({4*(D-1)})")
        e(f"L_GLOOP{h}:")
        for p in range(D):
            e(f"s_cmp_le_i32 s{sCNT}, {p}")
            e(f"s_cbranch_scc1 L_DRAIN{p}")
            step(h, p, True)
        e(f"s_sub_i32 s{sCNT}, s{sCNT}, {D}")
        e(f"s_branch L_GLOOP{h}")
    gloop(0)
    for p in range(D):
        e(f"L_DRAIN{p}:")
        e(f"s_load_dword s{sQ}, s[{WS}:{WS+1}], s{sQ-1}")
        for j in range(4 * D):
            e(f"s_waitcnt vmcnt({4*D-1-j})")
            mm((p + j // 4) % D, j % 4)
        if p != D - 1:
            e(f"s_branch L_GDONE")
    e(f"L_GDONE:")
    e("s_waitcnt lgkmcnt(0)")
    e(f"s_add_u32 s{sBB}, s{sBB}, {GB}")
    e(f"s_cmp_lt_u32 s{sBB}, s{sNBMAX}")
    e(f"s_cbranch_scc1 L_NEXTB")
    if SPL:
        e(f"s_cmp_eq_u32 s{sSTR+1}, 0")
        e("s_cbranch_scc1 L_NOCOMB")
        for i in range(8):
            e(f"v_add_f32 v{vACC+i}, v{vACC+i}, v{vACC+8+i}")
        e("L_NOCOMB:")
    e(f"s_cmp_lg_u32 s{sHOP}, 0")
    e("s_nop 0")
    for i in range(8):
        e(f"v_cvt_pk_bf16_f32 v{40+i}, v{vACC+2*i}, v{vACC+2*i+1}")
    e(f"s_cbranch_scc1 L_EPI")
    e(f"s_mov_b32 s{sT}, {25088*128}")
    e(f"s_movk_i32 s{sT+1}, {cfg.RN*128}")
    for o, d, m in ((vROWA, 50, "vcc"), (vROWB, 51, f"s[{sTMP}:{sTMP+1}]")):
        e(f"v_cmp_le_u32 {m}, s{sT}, v{o}")
        e(f"v_and_b32 v48, 0x7fffe000, v{o}")
        e(f"v_lshrrev_b32 v49, 7, v{o}")
        e(f"v_add_u32 v{d}, v48, v{o}")
        e(f"v_cndmask_b32 v48, 0, -1, {m}")
        e(f"v_xor_b32 v{d+2}, v48, v49")
    e(f"s_mov_b32 s{sSPIN}, 0")
    e("s_branch L_QC")
    e("L_QP:")
    e(f"s_load_dword s{sQ}, s[{WS}:{WS+1}], s{sQ-1} glc")
    e("s_waitcnt lgkmcnt(0)")
    e("L_QC:")
    e(f"s_cmp_lg_u32 s{sQ}, 0")
    e("s_cbranch_scc1 L_QX")
    spin_tail("L_QP", "L_QX")
    e("L_QX:")
    e(f"v_bfe_i32 v{vQM}, s{sQ}, 0, 1")
    for d in (50, 51):
        e(f"v_xor_b32 v{d+2}, v{d+2}, v{vQM}")
        e(f"v_and_b32 v{d+2}, 0x2000, v{d+2}")
        e(f"v_or_b32 v{d}, v{d}, v{d+2}")
    def home():
        e(f"buffer_store_dwordx4 v[40:43], v50, s[{O}:{O+3}], 0 offen sc1")
        e(f"s_cmp_lg_u32 s{sSTR+1}, 0")
        e("s_cbranch_scc1 L_NOHB")
        e(f"buffer_store_dwordx4 v[44:47], v51, s[{O}:{O+3}], 0 offen sc1")
        e("L_NOHB:")
    if not cfg.FF:
        home()
    if cfg.RN:
        for o, d, q in ((vROWA, 50, 40), (vROWB, 51, 44)):
            lab = newlab("ST")
            e(f"v_and_b32 v48, 0x80000380, v{o}")
            e(f"v_cmp_gt_u32 vcc, s{sT+1}, v48")
            e(f"v_xor_b32 v{d+2}, 0x2000, v{d}")
            e(f"s_and_saveexec_b64 s[{sTMP}:{sTMP+1}], vcc")
            e(f"s_cbranch_execz {lab}")
            e(f"buffer_store_dwordx4 v[{q}:{q+3}], v{d+2}, s[{O}:{O+3}], 0 offen sc1")
            e(f"{lab}:")
            e("s_mov_b64 exec, -1")
    if cfg.FF:
        home()
    ts(9)
    for i in range(16):
        e(f"v_mov_b32 v{vACC+i}, 0")
    e(f"s_add_u32 s{sT}, s{sN0}, 1")
    e(f"s_mul_i32 s{sT}, s{sT}, s{sSTR}")
    e(f"v_subrev_u32 v{vPA}, s{sT}, v{vPA}")
    e(f"v_subrev_u32 v{vPB}, s{sT}, v{vPB}")
    e(f"v_lshlrev_b32 v48, 4, v{vLANE}")
    NWPRE = 8 if D == 2 else 4
    def wfrag(mb, kh):
        if D == 2: return vW + 8 * mb + 4 * kh
        return vW + 4 * mb if kh == 0 else 64 + 4 * mb
    for mb in range(4):
        for kh in range(2 if D == 2 else 1):
            r = wfrag(mb, kh)
            e(f"ds_read_b128 v[{r}:{r+3}], v48 offset:{L_WT + 1024*(2*mb+kh)}")
    e(f"s_lshl_b32 s{sT}, s{sW}, 11")
    e(f"s_add_u32 s{sT}, s{sT}, {L_TILE}")
    e(f"v_lshrrev_b32 v48, 3, v{vLANE}")
    e(f"v_xor_b32 v49, v48, v{vLANE}")
    e(f"v_and_b32 v49, 7, v49")
    e(f"v_lshlrev_b32 v49, 4, v49")
    e(f"v_lshl_add_u32 v49, v48, 7, v49")
    e(f"v_add_u32 v{vTW}, s{sT}, v49")
    e(f"v_and_b32 v48, 15, v{vLANE}")
    e(f"v_lshrrev_b32 v49, 4, v{vLANE}")
    e(f"v_xor_b32 v49, v49, v48")
    e(f"v_and_b32 v49, 7, v49")
    e(f"v_lshlrev_b32 v49, 4, v49")
    e(f"v_lshl_add_u32 v49, v48, 7, v49")
    e(f"v_add_u32 v{vTR}, s{sT}, v49")
    if cfg.OWN == 1:
        e("s_waitcnt vmcnt(0)")
        e(f"buffer_load_dword v{vPFD}, v{vROWA}, s[{O}:{O+3}], 0 offen sc1")
        e(f"buffer_load_dword v{vPFD}, v{vROWB}, s[{O}:{O+3}], 0 offen sc1")
    def enc(w, d, t):
        e(f"v_and_b32 v{d}, 0xffff, v{w}")
        e(f"v_and_b32 v{t}, 7, v{w}")
        e(f"v_cmp_le_u32 vcc, s{sT}, v{d}")
        e(f"v_cmp_gt_u32 s[{sTMP}:{sTMP+1}], {cfg.RN}, v{t}")
        e(f"v_and_b32 v{t}, 0xffc0, v{w}")
        e(f"v_add_lshl_u32 v{d}, v{d}, v{t}, 7")
        e(f"s_andn2_b64 vcc, vcc, s[{sTMP}:{sTMP+1}]")
        e(f"s_and_b64 s[{sTMP}:{sTMP+1}], s[{sTMP}:{sTMP+1}], s[{sK}:{sK+1}]")
        e(f"s_or_b64 vcc, vcc, s[{sTMP}:{sTMP+1}]")
        e(f"v_cndmask_b32 v{t}, v{vQM}, v{vTP+1}, vcc")
        e(f"v_xor_b32 v{t}, v{t}, v{w}")
        e(f"v_and_or_b32 v{d}, v{t}, s{sT+1}, v{d}")
    def enc_setup():
        e(f"v_mov_b32 v48, {L_MISC}")
        e("ds_read_b32 v48, v48")
        e(f"s_bfe_i32 s{sK}, s2, 0x10002")
        e(f"s_mov_b32 s{sK+1}, s{sK}")
        e(f"s_movk_i32 s{sT}, 25088")
        e(f"s_movk_i32 s{sT+1}, 0x2000")
        e(f"v_lshlrev_b32 v49, 4, v0")
        e("s_waitcnt lgkmcnt(0)")
        e(f"v_readfirstlane_b32 s{sSPIN}, v48")
        e(f"v_not_b32 v{vTP+1}, v{vQM}")
        e(f"s_lshl_b32 s{sSPIN}, s{sSPIN}, 3")
        e(f"s_lshl_b32 s{sI4}, s{sW}, 10")
    def enc_pass(nwaves):
        lab = newlab("ENC")
        e(f"{lab}:")
        e(f"s_cmp_ge_u32 s{sI4}, s{sSPIN}")
        e(f"s_cbranch_scc1 {lab}x")
        e(f"ds_read_b128 v[52:55], v49 offset:{L_RECS}")
        e(f"s_add_u32 s{sI4}, s{sI4}, {nwaves*1024}")
        e("s_waitcnt lgkmcnt(0)")
        for i in range(4):
            enc(52 + i, 56 + i, 60)
        e(f"ds_write_b128 v49, v[56:59] offset:{L_RECS+RDELTA}")
        e(f"v_add_u32 v49, {nwaves*1024}, v49")
        e(f"s_branch {lab}")
        e(f"{lab}x:")
    enc_setup()
    enc_pass(NW)
    if cfg.OWN:
        e(f"v_subrev_u32 v48, 512, v0")
        e(f"s_mul_i32 s{sI4}, s3, {NB}")
        e(f"v_add_u32 v52, s{sI4}, v48")
        enc(52, 53, 60)
    e("L_SYNC2:")
    srd(G, WS, H1B, H1_OFF)
    e(f"s_mov_b32 s{sBB}, 0")
    e(f"s_mov_b32 s{sHOP}, 1")
    e(f"s_lshr_b32 s{sI4}, s2, 2")
    e(f"s_xnor_b32 s{sI4}, s{sI4}, s{sQ}")
    e(f"s_and_b32 s{sI4}, s{sI4}, 1")
    if S32:
        e(f"s_lshl_b32 s{sI4}, s{sI4}, 2")
        e(f"s_and_b32 s{sT}, s2, 0x1b")
        e(f"s_or_b32 s{sI4}, s{sI4}, s{sT}")
    else:
        e(f"s_lshl_b32 s{sI4}, s{sI4}, 3")
        e(f"s_and_b32 s{sT}, s2, 0x33")
        e(f"s_or_b32 s{sI4}, s{sI4}, s{sT}")
        e(f"s_bfe_u32 s{sT}, s2, 0x10003")
        e(f"s_lshl_b32 s{sT}, s{sT}, 2")
        e(f"s_or_b32 s{sI4}, s{sI4}, s{sT}")
    e(f"s_lshl_b32 s{sI4}, s{sI4}, 3")
    e(f"s_add_u32 s{sI4}, s{sI4}, s{sW}")
    e(f"s_lshl_b32 s{sI4}, s{sI4}, {8 if S32 else 7}")
    e(f"s_add_u32 s{sI4}, s{sI4}, 0x{HS_OFF:x}")
    bar_base(sI4)
    bar_bump_addr(54)
    e(f"s_mov_b32 s{sT}, 0x{HS_OFF:x}")
    e(f"s_cmp_lg_u32 s{sW}, 0")
    e("s_waitcnt vmcnt(0) lgkmcnt(0)")
    ts(10)
    e("s_barrier")
    e("s_cbranch_scc1 L_FNB")
    bar_bump(54)
    e("L_FNB:")
    e(f"s_cmp_lt_u32 s{sW}, 8")
    e("s_cbranch_scc1 L_FPOLL")
    if cfg.OWN:
        e(f"s_cmp_ge_u32 s{sW}, 12")
        e(f"s_cbranch_scc1 L_FDONE")
        e(f"v_cmp_gt_u32 vcc, {NB}, v48")
        e("s_mov_b64 exec, vcc")
        e(f"buffer_load_dword v{vPFD}, v53, s[{G}:{G+3}], 0 offen sc1")
        e("s_mov_b64 exec, -1")
    e("s_branch L_FDONE")
    e("L_FPOLL:")
    bar_poll(sI4, "L_FDONE")
    e("L_FDONE:")
    srd(O, pOUT, ROWB)
    e(f"s_cmp_gt_u32 s{sNBMAX}, {GB}")
    e("s_cbranch_scc1 L_C1MB")
    rdrec(1)
    e("s_barrier")
    ts(11)
    e("L_G2:")
    gloop(1)
    e("L_C1MB:")
    e("s_barrier")
    e("s_branch L_BATCH")
    e("L_MBENC:")
    enc_setup()
    enc_pass(NW)
    e("s_waitcnt lgkmcnt(0)")
    e("s_barrier")
    rdrec(1)
    e("s_branch L_G2")

    e("L_EPI:")
    ts(12)
    e(f"ds_write_b128 v{vTW}, v[40:43]")
    e(f"ds_write_b128 v{vTW}, v[44:47] offset:1024")
    e(f"v_xor_b32 v{vAD}, 64, v{vTR}")
    e(f"ds_read_b128 v[40:43], v{vTR}")
    e(f"ds_read_b128 v[44:47], v{vAD}")
    if D != 2:
        e(f"v_lshlrev_b32 v{vAD}, 4, v{vLANE}")
        for mb in range(4):
            r = wfrag(mb, 1)
            e(f"ds_read_b128 v[{r}:{r+3}], v{vAD} offset:{L_WT + 1024*(2*mb+1)}")
    if cfg.O4:
        e(f"v_lshrrev_b32 v{vAD}, 3, v{vLANE}")
        e(f"s_lshl_b32 s{sT}, s{sW}, 7")
        e(f"v_lshl_add_u32 v{vAD}, v{vAD}, 4, s{sT}")
        e(f"ds_read_b128 v[48:51], v{vAD} offset:{L_NT}")
        e("s_mov_b32 vcc_lo, 0x00ff00ff")
        e("s_mov_b32 vcc_hi, 0x00ff00ff")
        e(f"s_waitcnt lgkmcnt(2)")
        for mb in range(4):
            r = wfrag(mb, 0)
            e(f"v_mfma_f32_16x16x32_bf16 v[{vACC+4*mb}:{vACC+4*mb+3}], v[40:43], v[{r}:{r+3}], 0")
        e("s_waitcnt lgkmcnt(1)")
        for mb in range(4):
            r = wfrag(mb, 1)
            e(f"v_mfma_f32_16x16x32_bf16 v[{vACC+4*mb}:{vACC+4*mb+3}], v[44:47], v[{r}:{r+3}], v[{vACC+4*mb}:{vACC+4*mb+3}]")
        e("s_waitcnt lgkmcnt(0)")
        e(f"v_add_u32 v48, v49, v{vLOFF}")
        e(f"v_add_u32 v50, v51, v{vLOFF}")
        e("s_nop 2")
        for r in range(4):
            e(f"v_cvt_pk_bf16_f32 v{56+2*r}, v{vACC+r}, v{vACC+4+r}")
        for r in range(4):
            e(f"v_cvt_pk_bf16_f32 v{57+2*r}, v{vACC+8+r}, v{vACC+12+r}")
        DP = "row_ror:8 row_mask:0xf bank_mask:0xf"
        for i in range(2):
            for k in range(2):
                e(f"v_cndmask_b32_dpp v{64+4*k+i}, v{60+2*k+i}, v{56+2*k+i}, vcc {DP}")
        e("s_not_b64 vcc, vcc")
        for k in range(2):
            for i in range(2):
                e(f"v_cndmask_b32_dpp v{66+4*k+i}, v{56+2*k+i}, v{60+2*k+i}, vcc {DP}")
            e(f"buffer_store_dwordx4 v[{64+4*k}:{67+4*k}], v{48+2*k}, s[{O}:{O+3}], 0 offen {cfg.OUTFLAG}")
    else:
        e(f"v_lshrrev_b32 v{vAD}, 4, v{vLANE}")
        e(f"s_lshl_b32 s{sT}, s{sW}, 7")
        e(f"v_lshl_add_u32 v{vAD}, v{vAD}, 5, s{sT}")
        e(f"ds_read_b128 v[48:51], v{vAD} offset:{L_NT}")
        e(f"ds_read_b128 v[52:55], v{vAD} offset:{L_NT+16}")
        e(f"v_and_b32 v{vAD}, 15, v{vLANE}")
        e(f"v_lshlrev_b32 v{vAD}, 3, v{vAD}")
        e(f"s_waitcnt lgkmcnt({3 if D == 2 else 7})")
        for mb in range(4):
            r = wfrag(mb, 0)
            e(f"v_mfma_f32_16x16x32_bf16 v[{vACC+4*mb}:{vACC+4*mb+3}], v[40:43], v[{r}:{r+3}], 0")
        e("s_waitcnt lgkmcnt(2)")
        for mb in range(4):
            r = wfrag(mb, 1)
            e(f"v_mfma_f32_16x16x32_bf16 v[{vACC+4*mb}:{vACC+4*mb+3}], v[44:47], v[{r}:{r+3}], v[{vACC+4*mb}:{vACC+4*mb+3}]")
        e("s_waitcnt lgkmcnt(0)")
        for r in range(4):
            e(f"v_add_u32 v{48+2*r}, v{49+2*r}, v{vAD}")
        e("s_nop 2")
        for r in range(4):
            e(f"v_cvt_pk_bf16_f32 v{56+2*r}, v{vACC+r}, v{vACC+4+r}")
            e(f"v_cvt_pk_bf16_f32 v{57+2*r}, v{vACC+8+r}, v{vACC+12+r}")
            e(f"buffer_store_dwordx2 v[{56+2*r}:{57+2*r}], v{48+2*r}, s[{O}:{O+3}], 0 offen {cfg.OUTFLAG}")
    e("L_FIN:")
    ts_dump()
    e("s_endpgm")
    e("L_HELPER:")
    assert NW <= 15
    e(f"s_xor_b32 s{sT}, s{sW}, 15")
    e(f"s_xor_b32 s{sT+1}, s2, 255")
    e(f"s_or_b32 s{sT}, s{sT}, s{sT+1}")
    e(f"s_or_b32 s{sT}, s{sT}, s{sBB}")
    e(f"s_or_b32 s{sT}, s{sT}, s{sHOP}")
    e("s_cbranch_scc1 L_HELP1")
    e(f"s_mov_b32 s{sT}, 0x{HS_OFF:x}")
    e(f"s_mov_b32 s{sCNT}, 0")
    e("L_PRB:")
    e(f"s_add_u32 s{sT+1}, s{sT}, 8192")
    e(f"s_memtime s[40:41]")
    e(f"s_load_dword s46, s[{WS}:{WS+1}], s{sT} glc")
    e("s_waitcnt lgkmcnt(0)")
    e(f"s_memtime s[42:43]")
    e(f"s_load_dword s46, s[{WS}:{WS+1}], s{sT+1} glc")
    e("s_waitcnt lgkmcnt(0)")
    e(f"s_memtime s[44:45]")
    e("s_lshl_b32 s42, s42, 1")
    e("s_sub_u32 s40, s42, s40")
    e("s_waitcnt lgkmcnt(0)")
    e("s_sub_u32 s40, s40, s44")
    e("s_lshr_b32 s40, s40, 31")
    e(f"s_add_u32 s{sCNT}, s{sCNT}, s40")
    e(f"s_addk_i32 s{sT}, 1280")
    e(f"s_cmp_lt_u32 s{sT}, 0x{HS_OFF + cfg.NPR*1280:x}")
    e("s_cbranch_scc1 L_PRB")
    e(f"s_cmp_gt_u32 s{sCNT}, {cfg.NPR//2}")
    e(f"s_cselect_b32 s{sT}, 2, 3")
    if cfg.POL >= 0:
        e(f"s_mov_b32 s{sT}, {2+cfg.POL}")
    e(f"v_mov_b32 v40, s{sT}")
    e(f"v_lshlrev_b32 v41, 8, v{vLANE}")
    e(f"s_mov_b32 s{sT}, 0x{QS_OFF:x}")
    e("s_mov_b64 exec, 0xff")
    e(f"buffer_store_dword v40, v41, s[{WS}:{WS+3}], s{sT} offen sc1")
    e("s_mov_b64 exec, -1")
    if cfg.TS:
        ts(9)
        pass
    e("L_HELP1:")
    e(f"s_cmp_le_u32 s{sNBMAX}, {GB}")
    e("s_cbranch_scc1 L_FIN")
    e(f"s_cmp_eq_u32 s{sHOP}, 0")
    e("s_cbranch_scc1 L_HELP2")
    e("s_barrier")
    e("L_HELP2:")
    e(f"s_add_u32 s{sBB}, s{sBB}, {GB}")
    e(f"s_cmp_lt_u32 s{sBB}, s{sNBMAX}")
    e(f"s_cbranch_scc1 L_NEXTB")
    e(f"s_cmp_lg_u32 s{sHOP}, 0")
    e("s_cbranch_scc1 L_FIN")
    e("v_mov_b32 v53, 0")
    e("s_branch L_SYNC2")
    e(f"L_NEXTB:")
    ts(2)
    if cfg.XD == 7:
        for i in range(16):
            e("s_sleep 127")
    e("s_waitcnt vmcnt(0) lgkmcnt(0)")
    e("s_barrier")
    e(f"s_branch L_BATCH")
    e(f"L_END:")
    e("s_endpgm")

DOC = """; ---------------------------------------------------------------------------------------------
;      16-byte granules {3 x (src|norm<<16), 3 x 10-bit key} plus a table row (start,count per bucket).
; ---------------------------------------------------------------------------------------------"""
head = open("standalone__spectral_conv_sgc__graph.s.ref").read().split("; Override")[0]
e(head.rstrip())
e(f"; @launch grid=(256,1,1) block=(1024,1,1) lds={L_END}")
e(DOC)
e('.amdgcn_target "amdgcn-amd-amdhsa--gfx950"')
e(".text")
body()
e('.section .rodata,"a"')
e(".p2align 6")
acc = (NV + 3) // 4 * 4
e(f""".amdhsa_kernel {NAME}
  .amdhsa_next_free_vgpr {NV}
  .amdhsa_next_free_sgpr {NS}
  .amdhsa_accum_offset {acc}
  .amdhsa_group_segment_fixed_size 0
  .amdhsa_kernarg_size 64
  .amdhsa_user_sgpr_count 2
  .amdhsa_user_sgpr_kernarg_segment_ptr 1
  .amdhsa_system_sgpr_workgroup_id_x 1
  .amdhsa_float_denorm_mode_32 3
.end_amdhsa_kernel
""")
LABS = {'L_H0': 'helper waves 13-15: barrier-line zeroing', 'L_E0': 'edge waves: histogram, scatter into granule staging', 'L_P1H1': 'helper waves', 'L_P1_W13': 'wave 13: bucket scan, table row, ready check', 'L_P1_JOIN': 'all waves: constants, arrive at R, early table read', 'L_BATCH': 'next batch / restart: re-zero counters', 'L_DECODE': 'table entries -> granule descriptors', 'L_LD_DONE': 'table re-read, x prefetch, rank atomics', 'L_NODE1_DONE': 'scatter records, degree order', 'L_GDONE': 'end of a gather', 'L_SYNC2': 'barrier H', 'L_G2': 'hop 2 gather', 'L_EPI': 'GEMM epilogue', 'L_HELPER': 'wave without nodes', 'L_MBENC': 'multi-batch hop 2'}
out = [(l + "    ; " + LABS[l[:-1]]) if l.endswith(":") and l[:-1] in LABS else l for l in out]
open(sys.argv[1], "w").write("\n".join(out) + "\n")
```

```python
import sys

class Cfg:
    D = 2
    TS = 0
    PF2 = 5
    DW = 1
    RL = 1
    NPR = 3
    SKP = 1
    XD = 0
    SH = 16
    TE = 0
    R1 = 1
    FF = 1
    LV = 1
    FAIL = 0
    EP = 1
    AE = 0
    KV = 0
    BAL = 0
    O4 = 1
    DB0 = 0
    DB1 = 0
    FB = 0
    WL = 0
    EO = 0
    ER = 1
    HN = 1
    PACE = 7
    EFLAG = ""
    OUTFLAG = "sc1"
    SLEEP = 0
    LATE = 1
    HW = 0
    PFE = 0
    SA = 0
    WST = 32
    DEF = 1
    ENT = 0
    CLI = 1
    RN = 4
    TYP = "RS"
    POL = -1
    SPL = 5
    XMASK = 0
    PFA = 0
    PFS = 4
    PFO = 0
    VW0 = 7
    VW1 = 7
    PFB = 0
    PFD = 0
    PFE2 = 0
    PFX = -1
    SP = 7
    PFC = 0
    PEER = 0
    OWN = 2
    RW = 1
    CPF = 1
cfg = Cfg()
for a in sys.argv[2:]:
    k, v = a.split("=")
    cur = getattr(cfg, k)
    setattr(cfg, k, int(v) if isinstance(cur, int) else v.replace("+", " "))

N = 50000; E = 850000
NB = 196; CH = 3328; MAG = 85599
CG = 1280
TAB_OFF = 0x680000
SY_OFF = 0x700000
RP_OFF = 0x710000
HS_OFF = 0x760000
RS_OFF = 0x740000
QS_OFF = 0x770000
PR_OFF = 0x720000
H1_OFF = 0x800000
H1B = 784 * 16384
TS_OFF = 0x1600000
WS_USED = 0x1800000
ROWB = N * 128
SPIN_FAST = 4096
SPIN_MAX = 1 << 21
GB = 128

SPL = cfg.SPL
NW = SPL + -(-(NB - 8 * SPL) // 16)
NNORM = NW - SPL
NSLOT = 8 * SPL + 16 * NNORM
assert NW <= 16
L_NT = 0
L_D = 2048
L_WT = L_D + 8192
L_CNT = L_WT + 8192
L_DH = L_CNT + 4352
L_MISC = L_DH + 256
L_ZEND2 = L_MISC + 256
L_Q = L_ZEND2
L_HIST = L_ZEND2
L_STAGE = L_HIST + 1024
L_ZEND = L_STAGE + CG * 24
L_RECS = L_STAGE
RDELTA = 27648
L_TILE = L_RECS + 2 * RDELTA
L_END = L_TILE + NW * 2048
assert L_TILE % 128 == 0 and L_RECS + RDELTA < 65536 and RDELTA % 512 == 0 and L_RECS % 16 == 0

out = []
def e(s=""):
    out.append(s)

def srd(d, lo, nrec, off=0):
    if off:
        e(f"s_add_u32 s{d}, s{lo}, 0x{off:x}")
        e(f"s_addc_u32 s{d+1}, s{lo+1}, 0")
    else:
        e(f"s_mov_b32 s{d}, s{lo}")
        e(f"s_mov_b32 s{d+1}, s{lo+1}")
    e(f"s_mov_b32 s{d+2}, 0x{nrec:x}")
    e(f"s_mov_b32 s{d+3}, 0x20000")

def dpp_add(v, ctl):
    e(f"v_add_u32_dpp v{v}, v{v}, v{v} {ctl}")
SCAN = [f"row_shr:{s} row_mask:0xf bank_mask:0xf bound_ctrl:0" for s in (1, 2, 4, 8)] + \
       ["row_bcast:15 row_mask:0xa bank_mask:0xf", "row_bcast:31 row_mask:0xc bank_mask:0xf"]
def scan64(v, fill=(), steps=SCAN):
    fill = list(fill)
    for ctl in steps:
        dpp_add(v, ctl)
        if len(fill) >= 2:
            e(fill.pop(0)); e(fill.pop(0))
        elif len(fill) == 1:
            e(fill.pop(0)); e("s_nop 0")
        else:
            e("s_nop 1")
    for f in fill:
        e(f)

T3, G, WS, O, T1, T2 = 4, 8, 12, 16, 20, 24
sW, sTB, sBB, sNBMAX, s128, sCNT, sT, sNR = 28, 29, 30, 31, 32, 33, 34, 36
sHOP, sN0, sSPIN = 37, 38, 39
sM = 40
sNODE = 52
sTMP = 54
sI4, sPN = 56, 57
sMODE = 66
sSTR = 64
sQ = 59
sK, sSEL = 60, 61
sVAL = 58
pW, pOUT, pDBG = 60, 62, 64
sC1, sC2, sC3 = 40, 41, 42
sTS = 68
NS = 102 if cfg.TS else 68
vLANE, vE, vP, vSEL0, vSEL1, vLOFF, vONE = 1, 2, 3, 4, 5, 6, 7
vACC = 8
vPA, vEA, vPB, vEB, vROWA, vROWB, vAD, vPFD = 24, 25, 26, 27, 28, 29, 30, 31
vST = 120
vTW, vTR = 36, 37
vQM, vQA = 32, 33
vTP = 38
D = cfg.D
vDATA = 40
vAOP = vDATA + 16 * D
vW = max(vAOP + 8 * D, 88)
NV = 128
assert D == 2 and vW + 32 <= vST
assert NV <= 128
vX = 72
vTA, vE2 = 62, 63

def ts(slot, mode=1):
    if cfg.TS == 2 and mode == 1 and slot in (4, 5, 6, 7):
        return
    if cfg.TS != 2 and mode == 2:
        return
    if cfg.TS:
        e(f"s_memrealtime s[{sTS+2*slot}:{sTS+2*slot+1}]")
        e("s_waitcnt lgkmcnt(0)")
def ts_dump():
    if not cfg.TS:
        return
    e("s_waitcnt vmcnt(0)")
    ts(13)
    e(f"s_lshl_b32 s{sT}, s2, 4")
    e(f"s_add_u32 s{sT}, s{sT}, s{sW}")
    e(f"s_lshl_b32 s{sT}, s{sT}, 7")
    e(f"s_add_u32 s{sT}, s{sT}, 0x{TS_OFF:x}")
    if cfg.TS == 3:
        e(f"v_lshl_add_u32 v41, v{vLANE}, 2, s{sT}")
        e("v_add_u32 v41, 0x80000, v41")
        e("s_mov_b64 exec, 0xffff")
        e(f"buffer_store_dword v35, v41, s[{WS}:{WS+3}], 0 offen")
    e("s_mov_b64 exec, 1")
    e(f"v_mov_b32 v40, s{sT}")
    for i in range(8):
        for j in range(4):
            e(f"v_mov_b32 v{44+4*i+j}, s{sTS+4*i+j}")
        e(f"buffer_store_dwordx4 v[{44+4*i}:{47+4*i}], v40, s[{WS}:{WS+3}], 0 offen offset:{16*i}")

lbl = [0]
def newlab(p):
    lbl[0] += 1
    return f"L_{p}{lbl[0]}"
def spin_tail(loop, done):
    slow = newlab("SLW")
    e(f"s_add_u32 s{sSPIN}, s{sSPIN}, 1")
    e(f"s_cmp_ge_u32 s{sSPIN}, {SPIN_FAST}")
    e(f"s_cbranch_scc1 {slow}")
    if cfg.SLEEP:
        e(f"s_sleep {cfg.SLEEP}")
    e(f"s_branch {loop}")
    e(f"{slow}:")
    e(f"s_cmp_ge_u32 s{sSPIN}, {SPIN_MAX}")
    e(f"s_cbranch_scc1 {done}")
    e("s_sleep 64")
    e(f"s_branch {loop}")
def arrive_a(b, v=40):
    e(f"s_and_b32 s{sT}, s2, 7")
    e(f"s_lshl_b32 s{sT}, s{sT}, 8")
    e(f"s_add_u32 s{sT}, s{sT}, 0x{SY_OFF + b*cfg.WST:x}")
    if cfg.SA:
        sa = 67
        e(f"s_mov_b32 s{sa}, 1")
        e(f"s_atomic_add s{sa}, s[{WS}:{WS+1}], s{sT} glc")
        return
    e(f"v_mov_b32 v{v}, s{sT}")
    e(f"v_mov_b32 v{v+1}, 1")
    e("s_mov_b64 exec, 1")
    e(f"buffer_atomic_add v{v+1}, v{v}, s[{WS}:{WS+3}], 0 offen sc0 sc1")
def arrive_b(b, v=40, cnt=0, after=None):
    lab = newlab("ARR")
    sp = cfg.SP >> b & 1
    e("s_mov_b64 exec, -1" if sp else "s_mov_b64 exec, 0xff")
    e(f"v_lshlrev_b32 v{v+2}, 8, v{vLANE}")
    e(f"v_add_u32 v{v+2}, 0x{SY_OFF + 2048 + b*cfg.WST:x}, v{v+2}")
    if cfg.SA:
        e("s_waitcnt lgkmcnt(0)")
        e(f"s_cmp_lg_u32 s67, 31")
    else:
        e(f"s_waitcnt vmcnt({cnt})")
        e(f"v_readfirstlane_b32 s{sT}, v{v+1}")
        e(f"s_cmp_lg_u32 s{sT}, 31")
    e(f"s_cbranch_scc1 {lab}")
    e(f"buffer_atomic_add v{vONE}, v{v+2}, s[{WS}:{WS+3}], 0 offen sc1")
    if after:
        for x in after:
            e(x)
    e(f"{lab}:")
    e("s_mov_b64 exec, -1")
def arrive(b, mid=None):
    arrive_a(b)
    if mid:
        e(mid)
    arrive_b(b)
def rcount():
    lab = newlab("RC")
    e(f"v_mov_b32 v64, {L_MISC+8}")
    e("s_mov_b64 exec, 1")
    e(f"ds_add_rtn_u32 v65, v64, v{vONE}")
    e("s_waitcnt lgkmcnt(0)")
    e("v_cmp_eq_u32 vcc, 13, v65")
    e("s_mov_b64 exec, -1")
    e(f"s_cbranch_vccz {lab}")
    arrive_a(1, 64)
    if cfg.DEF:
        e("s_mov_b64 exec, -1")
        e(f"s_mov_b32 s{sPN}, 1")
    else:
        arrive_b(1, 64)
    e(f"{lab}:")
def poll_a(b):
    if cfg.SP >> b & 1:
        return
    e(f"s_and_b32 s{sSPIN}, s2, 7")
    e(f"s_lshl_b32 s{sSPIN}, s{sSPIN}, 8")
    e(f"s_add_u32 s{sSPIN}, s{sSPIN}, 0x{SY_OFF + 2048 + b*cfg.WST:x}")
    e(f"v_mov_b32 v{vTP}, s{sSPIN}")
    e("s_mov_b64 exec, 1")
    e(f"buffer_load_dword v{vTP+1}, v{vTP}, s[{WS}:{WS+3}], 0 offen sc1")
def poll_b(b):
    lab = newlab("POLL")
    if cfg.SP >> b & 1:
        e(f"s_and_b32 s{sT}, s2, 63")
        e(f"s_lshl_b32 s{sT}, s{sT}, 8")
        e(f"s_add_u32 s{sT}, s{sT}, 0x{SY_OFF + 2048 + b*cfg.WST:x}")
        e(f"s_mov_b32 s{sSPIN}, 0")
        e(f"{lab}:")
        e(f"s_load_dword s{sT+1}, s[{WS}:{WS+1}], s{sT} glc")
        e("s_waitcnt lgkmcnt(0)")
        e(f"s_cmp_eq_u32 s{sT+1}, 8")
        e(f"s_cbranch_scc1 {lab}x")
        spin_tail(lab, lab + "x")
        e(f"{lab}x:")
        return
    e("s_mov_b64 exec, 1")
    e(f"s_mov_b32 s{sSPIN}, 0")
    e(f"s_branch {lab}c")
    e(f"{lab}:")
    e(f"buffer_load_dword v{vTP+1}, v{vTP}, s[{WS}:{WS+3}], 0 offen sc1")
    e(f"{lab}c:")
    e("s_waitcnt vmcnt(0)")
    e(f"v_cmp_eq_u32 vcc, 8, v{vTP+1}")
    e(f"s_cbranch_vccnz {lab}x")
    spin_tail(lab, lab + "x")
    e(f"{lab}x:")
    e("s_mov_b64 exec, -1")
def poll(b):
    poll_a(b)
    poll_b(b)

def probe_off(d):
    e(f"s_lshr_b32 s{d}, s2, 6")
    e(f"s_lshl_b32 s{d}, s{d}, 6")
    e(f"s_add_u32 s{d}, s{d}, s2")
    e(f"s_lshl_b32 s{d}, s{d}, 7")
    e(f"s_add_u32 s{d}, s{d}, 0x{PR_OFF:x}")
S32 = cfg.SH == 32
def bar_bump_addr(v):
    if S32:
        e(f"s_lshr_b32 s{sT}, s2, 3")
        e(f"s_lshl_b32 s{sT}, s{sT}, 6")
        e(f"v_lshl_add_u32 v{v}, v{vLANE}, 11, s{sT}")
        return
    if cfg.SH == 16:
        e(f"s_bfe_u32 s{sT}, s2, 0x40003")
        e(f"s_lshl_b32 s{sT}, s{sT}, 6")
    else:
        e(f"s_bfe_u32 s{sT}, s2, 0x30003")
        e(f"s_lshl_b32 s{sT}, s{sT}, 7")
    e(f"v_lshl_add_u32 v{v}, v{vLANE}, 10, s{sT}")
def bar_bump(v):
    if S32:
        e("s_mov_b32 exec_hi, 0")
    e(f"buffer_atomic_add v{vONE}, v{v}, s[{WS}:{WS+3}], s{sT} offen sc1")
    if S32:
        e("s_mov_b32 exec_hi, -1")
def bar_base(sa):
    if S32:
        e(f"s_add_u32 s{sa}, s{WS}, s{sa}")
        e(f"s_addc_u32 s{sa+1}, s{WS+1}, 0")
    else:
        e(f"s_add_u32 s{sa+1}, s{sa}, 64")
def bar_issue(sa, d):
    if S32:
        for k in range(4):
            e(f"s_load_dword s{d+k}, s[{sa}:{sa+1}], {64*k} glc")
        return
    e(f"s_load_dword s{d}, s[{WS}:{WS+1}], s{sa} glc")
    if cfg.SH == 16:
        e(f"s_load_dword s{d+1}, s[{WS}:{WS+1}], s{sa+1} glc")
def bar_poll(sa, done, issued=False):
    lab = newlab("BP")
    d = 48
    e(f"s_mov_b32 s{sSPIN}, 0")
    if issued:
        e(f"s_branch {lab}c")
    e(f"{lab}:")
    bar_issue(sa, d)
    e("s_waitcnt lgkmcnt(0)")
    e(f"{lab}c:")
    if cfg.SH >= 16:
        e(f"s_add_u32 s{d}, s{d}, s{d+1}")
    if S32:
        e(f"s_add_u32 s{d+2}, s{d+2}, s{d+3}")
        e(f"s_add_u32 s{d}, s{d}, s{d+2}")
    e(f"s_cmp_eq_u32 s{d}, 32")
    e(f"s_cbranch_scc1 {done}")
    spin_tail(lab, done)
def pf_addr(v, first_wave, base_instr):
    e(f"s_lshr_b32 s{sT}, s2, 3")
    if cfg.PFB:
        e(f"s_and_b32 s{sT+1}, s{sW}, 1")
        e(f"s_xor_b32 s{sT}, s{sT}, s{sT+1}")
    e(f"s_lshl_b32 s{sT}, s{sT}, 6")
    e(f"s_sub_u32 s{sT+1}, s{sW}, {first_wave - base_instr}")
    e(f"s_lshl_b32 s{sT+1}, s{sT+1}, 11")
    e(f"s_add_u32 s{sT}, s{sT}, s{sT+1}")
    if cfg.PFX >= 0:
        e(f"s_lshl_b32 s{sT}, s{sT}, 1")
    e(f"v_add_u32 v{v}, s{sT}, v{vLANE}")
    if cfg.PFS != 4:
        e(f"v_mul_u32_u24 v{v}, {cfg.PFS}, v{v}")
        e(f"v_lshrrev_b32 v{v}, 2, v{v}")
    if cfg.PFO:
        e(f"v_add_u32 v{v}, {cfg.PFO}, v{v}")
    e(f"s_and_b32 s{sT}, s2, 7")
    e(f"s_mul_i32 s{sT}, s{sT}, 6272")
    e(f"v_add_u32 v{v}, s{sT}, v{v}")
    e(f"v_subrev_u32 v{v+1}, 50176, v{v}")
    e(f"v_min_u32 v{v}, v{v}, v{v+1}")
    e(f"v_lshlrev_b32 v{v}, 7, v{v}")
    if cfg.PFX >= 0:
        e(f"s_lshl_b32 s{sT}, s2, 11")
        e(f"s_xor_b32 s{sT}, s{sT}, {cfg.PFX << 13}")
        e(f"v_lshrrev_b32 v{v+1}, 8, v{v}")
        e(f"v_xor_b32 v{v+1}, s{sT}, v{v+1}")
        e(f"v_and_b32 v{v+1}, 0x2000, v{v+1}")
        e(f"v_or_b32 v{v}, v{v}, v{v+1}")

NAME = "standalone__spectral_conv_sgc__graph_kernel"
def body():
    e(f".globl {NAME}")
    e(".p2align 8")
    e(f".type {NAME},@function")
    e(f"{NAME}:")
    def cpf():
        if cfg.CPF:
            e("s_getpc_b64 s[54:55]")
            e("L_PC0:")
            e("v_lshlrev_b32 v43, 7, v0")
            e("v_cmp_gt_u32 vcc, L_END-L_PC0, v43")
            e("s_and_saveexec_b64 s[40:41], vcc")
            e("s_cbranch_execz L_NOCPF")
            e(f"global_load_dword v{vPFD}, v43, s[54:55]")
            e("L_NOCPF:")
            e("s_mov_b64 exec, -1")
    def zero1():
        for i in range(4):
            e(f"v_mov_b32 v{vACC+i}, 0")
        e(f"v_lshlrev_b32 v54, 4, v0")
        e(f"ds_write_b128 v54, v[{vACC}:{vACC+3}] offset:{L_CNT}")
    def ld_dst():
        e(f"buffer_load_dwordx4 v[44:47], v41, s[{T1}:{T1+3}], 0 offen {cfg.EFLAG}")
    def ld_sn():
        e(f"buffer_load_dwordx4 v[48:51], v41, s[{T2}:{T2+3}], 0 offen {cfg.EFLAG}")
        e(f"buffer_load_dwordx2 v[52:53], v42, s[{T3}:{T3+3}], 0 offen {cfg.EFLAG}")
    def sn_consts():
        e("v_lshrrev_b32 v42, 1, v41")
        e(f"s_mov_b64 s[{T2+2}:{T2+3}], s[{T1+2}:{T1+3}]")
        e(f"s_lshr_b32 s{T3+2}, s{T1+2}, 1")
        e(f"s_mov_b32 s{T3+3}, s{T1+3}")
    if cfg.TS:
        e(f"s_memrealtime s[{sTS}:{sTS+1}]")
    e(f"s_load_dwordx2 s[{T1}:{T1+1}], s[0:1], 16")
    if cfg.ENT != 1:
        e(f"s_load_dwordx2 s[{T2}:{T2+1}], s[0:1], 8")
        e(f"s_load_dwordx2 s[{T3}:{T3+1}], s[0:1], 24")
    e("s_cmpk_ge_u32 s2, 256")
    e("s_cbranch_scc1 L_END")
    if cfg.ENT == 0:
        e(f"s_load_dwordx2 s[{WS}:{WS+1}], s[0:1], 56")
        e(f"s_load_dwordx2 s[{O}:{O+1}], s[0:1], 48")
        cpf()
        zero1()
    e(f"s_lshl_b32 s{sT}, s2, 4")
    e(f"v_and_or_b32 v41, v0, 15, s{sT}")
    e(f"v_lshrrev_b32 v40, 4, v0")
    e(f"v_lshl_add_u32 v40, v40, 12, v41")
    if cfg.BAL:
        e(f"v_and_b32 v41, {16 if cfg.BAL == 1 else 64}, v0")
        e(f"v_mul_u32_u24 v41, {0x60 if cfg.BAL == 1 else 0x18}, v41")
        e(f"v_xor_b32 v40, v40, v41")
    e("v_lshlrev_b32 v41, 4, v40")
    e(f"s_mov_b32 s{T1+2}, 0x{E*4:x}")
    e(f"s_mov_b32 s{T1+3}, 0x20000")
    if cfg.ENT == 2:
        sn_consts()
    e("s_waitcnt lgkmcnt(0)")
    ld_dst()
    if cfg.ENT == 2:
        ld_sn()
    if cfg.ENT == 1:
        e(f"s_load_dwordx2 s[{T2}:{T2+1}], s[0:1], 8")
        e(f"s_load_dwordx2 s[{T3}:{T3+1}], s[0:1], 24")
    if cfg.ENT != 0:
        e(f"s_load_dwordx2 s[{WS}:{WS+1}], s[0:1], 56")
        cpf()
        zero1()
    if cfg.ENT != 2:
        sn_consts()
    e(f"v_cmp_gt_u32 vcc, 832, v0")
    e(f"s_mov_b32 s{WS+2}, 0x{WS_USED:x}")
    e(f"s_mov_b32 s{WS+3}, s{T1+3}")
    if cfg.TS:
        for i in range(1, 16):
            e(f"s_mov_b64 s[{sTS+2*i}:{sTS+2*i+1}], 0")
    if cfg.R1:
        e(f"s_and_b32 s{sT}, s2, 0xc7")
    else:
        e(f"s_and_b32 s{sT}, s2, 0xff")
    e("s_waitcnt lgkmcnt(0)")
    e("s_cbranch_vccz L_H0")
    LS = f"buffer_load_dwordx4 v[48:51], v41, s[{T2}:{T2+3}], 0 offen {cfg.EFLAG}"
    LN = f"buffer_load_dwordx2 v[52:53], v42, s[{T3}:{T3+3}], 0 offen {cfg.EFLAG}"
    if cfg.EO == 1: e(LN)
    if cfg.EO == 2: e(LS)
    e("s_barrier")
    if cfg.EO == 0: ld_sn()
    if cfg.EO == 1: e(LS)
    if cfg.EO == 2: e(LN)
    if cfg.EO == 3: e(LN); e(LS)
    e("s_branch L_E0")
    e("L_H0:")
    e(f"s_movk_i32 s{O+2}, 256")
    e(f"s_mov_b32 s{O+3}, s{T1+3}")
    e("s_cbranch_scc1 L_H05")
    e(f"v_cmp_gt_u32 vcc, 960, v0")
    e("s_cbranch_vccnz L_H05")
    if cfg.R1:
        e(f"s_lshl_b32 s{sT}, s2, 10")
        e(f"s_add_u32 s{sT}, s{sT}, 0x{RS_OFF - 960*16:x}")
        e(f"s_add_u32 s{sT+1}, s{sT}, 8192")
        e("L_ZLOOP:")
        e(f"buffer_store_dwordx4 v[{vACC}:{vACC+3}], v54, s[{WS}:{WS+3}], s{sT} offen sc1")
        e(f"s_addk_i32 s{sT}, 1024")
    else:
        e(f"v_and_b32 v40, 7, v0")
        e(f"v_and_b32 v43, 56, v0")
        e(f"v_lshl_add_u32 v43, v43, 1, v40")
        e(f"v_lshlrev_b32 v43, 4, v43")
        e(f"s_mov_b32 s{sT}, 0x{SY_OFF:x}")
        e(f"s_add_u32 s{sT+1}, s{sT}, {9*2048}")
        e("L_ZLOOP:")
        e(f"buffer_store_dwordx4 v[{vACC}:{vACC+3}], v43, s[{WS}:{WS+3}], s{sT} offen sc1")
        e(f"s_addk_i32 s{sT}, 2048")
    e(f"s_cmp_lt_u32 s{sT}, s{sT+1}")
    e("s_cbranch_scc1 L_ZLOOP")
    e("L_H05:")
    if cfg.DW:
        e(f"buffer_load_dword v{vPFD}, v{vACC}, s[{O}:{O+3}], 0 offen offset:128")
    e("L_H1:")
    e("s_barrier")
    e("s_branch L_P1H1")
    e("L_E0:")
    assert L_ZEND - (L_CNT + 16384) <= 2 * 13312
    e(f"ds_write_b128 v54, v[{vACC}:{vACC+3}] offset:{L_CNT+16384}")
    e(f"v_add_u32 v54, {L_ZEND-13312}, v54")
    e(f"ds_write_b128 v54, v[{vACC}:{vACC+3}]")
    e(f"v_cmp_gt_u32 vcc, {E//4}, v40")
    e(f"v_mov_b32 v{vONE}, 1")
    e(f"s_mov_b32 s{sC1}, -196")
    e(f"s_mov_b32 s{sC2}, 0x05040100")
    e(f"s_mov_b32 s{sC3}, 0x07060100")
    e(f"v_mov_b32 v43, {L_MISC+12}")
    e(f"v_mul_u32_u24 v80, 24, v0")
    e(f"v_add_u32 v80, {L_STAGE}, v80")
    e(f"v_add_u32 v81, {832*24}, v80")
    e(f"s_mul_i32 s{sT}, s2, {CG*16}")
    e(f"v_lshl_add_u32 v41, v0, 4, s{sT}")
    e(f"v_add_u32 v42, {832*16}, v41")
    e(f"v_add_u32 v82, 832, v0")
    e(f"s_mov_b64 exec, vcc")
    e(f"s_waitcnt vmcnt(2)")
    for i in range(4):
        e(f"v_mul_u32_u24 v{74+i}, {MAG}, v{44+i}")
    for i in range(4):
        e(f"v_lshrrev_b32 v{70+i}, 24, v{74+i}")
        e(f"v_lshlrev_b32 v{54+i}, 2, v{70+i}")
        e(f"ds_add_rtn_u32 v{58+i}, v{54+i}, v{vONE} offset:{L_HIST}")
    e("s_waitcnt lgkmcnt(0)")
    ts(1)
    e("s_barrier")
    for i in range(4):
        e(f"v_mad_i32_i24 v{44+i}, v{70+i}, s{sC1}, v{44+i}")
        e(f"v_and_b32 v{74+i}, 0xe0000000, v{74+i}")
        e(f"v_add_u32 v{44+i}, 1, v{44+i}")
    def keys():
        e(f"s_waitcnt vmcnt({0 if cfg.EO in (1, 3) else 1})")
        ts(5, 2)
        for i in range(4):
            e(f"v_mul_u32_u24 v78, {MAG}, v{48+i}")
            e(f"v_sub_u32 v78, v78, v{74+i}")
            e(f"v_bfe_u32 v78, v78, 29, 2")
            e(f"v_lshl_or_b32 v{63+2*i}, v{44+i}, 2, v78")
    def perms():
        e(f"s_waitcnt vmcnt(0)")
        for i in range(4):
            e(f"v_perm_b32 v{62+2*i}, v{52+i//2}, v{48+i}, s{sC2 if i%2==0 else sC3}")
    if cfg.KV:
        keys()
    if cfg.KV == 2:
        perms()
    e("s_barrier")
    ts(4, 2)
    for i in range(4):
        e(f"ds_read_b32 v{54+i}, v{54+i} offset:{L_HIST}")
    e("s_mov_b64 exec, -1")
    e(f"ds_read_b32 v43, v43")
    e(f"s_mov_b64 exec, vcc")
    if not cfg.KV:
        keys()
    if cfg.KV != 2:
        perms()
    ts(6, 2)
    for i in range(4):
        e(f"s_waitcnt lgkmcnt(4)")
        e(f"v_lshl_add_u32 v{58+i}, v{58+i}, 3, v{54+i}")
        e(f"ds_write_b64 v{58+i}, v[{62+2*i}:{63+2*i}] offset:{L_STAGE}")
    e("s_mov_b64 exec, -1")
    e("s_waitcnt lgkmcnt(0)")
    e(f"v_cmp_lt_u32 vcc, v82, v43")
    ts(7, 2)
    if cfg.XD == 1:
        e("s_sleep 16")
    e("s_barrier")
    def rd3(d, a):
        e(f"ds_read_b64 v[{d}:{d+1}], v{a}")
        e(f"ds_read_b64 v[{d+4}:{d+5}], v{a} offset:8")
        e(f"ds_read_b64 v[{d+2}:{d+3}], v{a} offset:16")
    def pk3(d):
        e(f"v_lshl_or_b32 v{d+3}, v{d+3}, 10, v{d+5}")
        e(f"v_lshl_or_b32 v{d+3}, v{d+3}, 10, v{d+1}")
        e(f"v_mov_b32 v{d+1}, v{d+4}")
    rd3(44, 80)
    e("s_cbranch_vccz L_ST1")
    e("s_mov_b64 exec, vcc")
    rd3(56, 81)
    e("s_waitcnt lgkmcnt(0)")
    pk3(56)
    e(f"buffer_store_dwordx4 v[56:59], v42, s[{WS}:{WS+3}], 0 offen sc1")
    e("s_mov_b64 exec, -1")
    e("L_ST1:")
    e("s_waitcnt lgkmcnt(0)")
    pk3(44)
    e(f"buffer_store_dwordx4 v[44:47], v41, s[{WS}:{WS+3}], 0 offen sc1")
    ts(2)
    e("s_branch L_P1_JOIN")
    e("L_P1H1:")
    e(f"v_and_b32 v{vLANE}, 63, v0")
    e(f"v_and_b32 v40, 7, v0")
    e(f"v_lshlrev_b32 v{vLOFF}, 4, v40")
    e(f"v_mov_b32 v{vONE}, 1")
    e(f"v_cmp_gt_u32 vcc, 960, v0")
    e("s_cbranch_vccnz L_P1H2")
    e(f"s_and_b32 s{sT}, s2, {'0xc7' if cfg.R1 else '0xff'}")
    e("s_cbranch_scc1 L_W15_B")
    for i in range(4):
        e(f"v_mov_b32 v{56+i}, 1")
    e(f"s_lshl_b32 s{sT}, s2, 1")
    e(f"s_mov_b64 exec, {'1' if cfg.R1 else '0xff'}")
    e(f"s_waitcnt vmcnt({1 if cfg.DW else 0})")
    e(f"buffer_store_dwordx4 v[56:59], v{vLOFF}, s[{O}:{O+3}], s{sT} offen sc1")
    e("L_W15_B:")
    e(f"s_lshl_b32 s{sT}, s2, 8")
    e(f"s_add_u32 s{sT}, s{sT}, 0x{HS_OFF - 960*16:x}")
    e(f"s_add_u32 s{sT+1}, s{sT}, 0x{QS_OFF - HS_OFF:x}")
    e("s_mov_b64 exec, 0xffff")
    e(f"buffer_store_dwordx4 v[{vACC}:{vACC+3}], v54, s[{WS}:{WS+3}], s{sT} offen sc1")
    e("s_cmp_ge_u32 s2, 8")
    e("s_cbranch_scc1 L_W15_C")
    e(f"buffer_store_dwordx4 v[{vACC}:{vACC+3}], v54, s[{WS}:{WS+3}], s{sT+1} offen sc1")
    e("L_W15_C:")
    e("s_mov_b64 exec, -1")
    e("s_barrier")
    e("s_barrier")
    e("s_barrier")
    e("s_waitcnt lgkmcnt(0)")
    e("s_branch L_P1_JOIN")
    e("L_P1H2:")
    e(f"s_load_dwordx2 s[{pW}:{pW+1}], s[0:1], 32")
    e(f"v_cmp_gt_u32 vcc, 896, v0")
    e("s_waitcnt lgkmcnt(0)")
    e("s_cbranch_vccnz L_P1_W13")
    srd(T1, pW, 8192)
    WB = 88 if cfg.WL else 44
    e(f"v_lshlrev_b32 v40, 4, v{vLANE}")
    e(f"v_add_u32 v41, 4096, v40")
    def wload():
        for i in range(8):
            e(f"buffer_load_dwordx4 v[{WB+4*i}:{WB+3+4*i}], v{40+i//4}, s[{T1}:{T1+3}], 0 offen offset:{1024*(i%4)}")
    def wstore():
        e(f"v_lshrrev_b32 v{vTP}, 3, v{vLANE}")
        e(f"v_lshl_add_u32 v{vTP}, v{vTP}, 1, v{vLOFF}")
        for i in range(8):
            for el in range(8):
                off = L_WT + (el & 3) * 2048 + (el >> 2) * 128 + (i & 3) * 256 + (i >> 2) * 1024
                op = "ds_write_b16" if el % 2 == 0 else "ds_write_b16_d16_hi"
                e(f"{op} v{vTP}, v{WB+4*i+el//2} offset:{off}")
    assert cfg.O4
    if not cfg.WL:
        wload()
    e("s_barrier")
    e("s_barrier")
    if cfg.WL == 2:
        wload()
    e("s_barrier")
    if cfg.WL == 1:
        wload()
    if not cfg.WL:
        e(f"s_waitcnt vmcnt(0)")
        wstore()
    e("s_branch L_P1_JOIN")
    if cfg.WL:
        e("L_WST:")
        wstore()
        e("s_branch L_NORPOLL")
    e("L_P1_W13:")
    e("s_setprio 3")
    e("s_memtime s[40:41]")
    e(f"v_lshlrev_b32 v79, 4, v{vLANE}")
    e(f"s_lshl_b32 s{sT}, s2, 10")
    e(f"s_add_u32 s{sT}, s{sT}, 0x{TAB_OFF:x}")
    e(f"v_add_u32 v78, s{sT}, v79")
    e(f"v_mov_b32 v75, {L_MISC+12}")
    e(f"s_mov_b32 s{sT}, 43691")
    e(f"v_mov_b32 v74, {2*43691}")
    e("s_waitcnt lgkmcnt(0)")
    e("s_lshr_b32 s40, s40, 2")
    e("s_mul_i32 s40, s40, 0x400800")
    e("s_and_b32 s40, s40, 0xf800f800")
    e("s_barrier")
    e(f"ds_read_b128 v[80:83], v79 offset:{L_HIST}")
    e("s_waitcnt lgkmcnt(0)")
    for i in range(4):
        e(f"v_mad_u32_u24 v{80+i}, v{80+i}, s{sT}, v74")
    for i in range(4):
        e(f"v_lshrrev_b32 v{80+i}, 17, v{80+i}")
    e("v_add_u32 v85, v80, v81")
    e("v_add3_u32 v84, v85, v82, v83")
    e("v_add_u32 v86, v85, v82")
    e("v_mov_b32 v87, v84")
    scan64(84, fill=["v_mul_u32_u24 v69, 24, v80", "v_mul_u32_u24 v70, 24, v85", "v_mul_u32_u24 v71, 24, v86",
                     "v_lshl_or_b32 v83, v83, 16, s40", "v_lshl_or_b32 v82, v82, 16, s40", "v_lshl_or_b32 v81, v81, 16, s40",
                     "v_add_u32 v83, v83, v86", "v_add_u32 v82, v82, v85", "v_add_u32 v81, v81, v80",
                     "v_lshl_or_b32 v80, v80, 16, s40"], steps=SCAN[:5])
    dpp_add(84, SCAN[5])
    e("v_sub_u32 v85, v84, v87")
    e("v_mul_u32_u24 v68, 24, v85")
    for i in range(1, 4):
        e(f"v_add_u32 v{68+i}, v{68+i}, v68")
    e(f"ds_write_b128 v79, v[68:71] offset:{L_HIST}")
    e(f"s_mov_b32 exec_lo, 0")
    e(f"s_mov_b32 exec_hi, 0x80000000")
    e("ds_write_b32 v75, v84")
    e("s_mov_b64 exec, -1")
    for i in range(4):
        e(f"v_add_u32 v{80+i}, v{80+i}, v85")
    e(f"buffer_store_dwordx4 v[80:83], v78, s[{WS}:{WS+3}], 0 offen sc1")
    e("s_waitcnt lgkmcnt(0)")
    e("s_barrier")
    e("s_mov_b64 exec, 0xff")
    if not cfg.RL:
        e(f"buffer_load_dword v76, v{vLOFF}, s[{O}:{O+3}], 0 offen sc1")
    e("s_barrier")
    e(f"s_mov_b32 s{sSPIN}, 0")
    if not cfg.RL:
        e("s_branch L_RDY1")
    if cfg.ER:
        e(f"s_and_b32 s{sI4}, s2, 63")
        e(f"s_lshl_b32 s{sI4}, s{sI4}, 10")
        e(f"s_add_u32 s{sI4}, s{sI4}, 0x{RS_OFF:x}")
        bar_base(sI4)
    e("L_RDY:")
    e(f"buffer_load_dword v76, v{vLOFF}, s[{O}:{O+3}], 0 offen sc1")
    if cfg.ER:
        bar_issue(sI4, 48)
    e("L_RDY1:")
    e("s_waitcnt vmcnt(0) lgkmcnt(0)")
    e("v_cmp_ne_u32 vcc, 1, v76")
    e("s_cbranch_vccz L_RDYX")
    spin_tail("L_RDY", "L_RDYX")
    e("L_RDYX:")
    e("s_setprio 0")
    if cfg.ER:
        e("s_add_u32 s48, s48, s49")
        e(f"s_cmp_lt_u32 s48, {cfg.ER}")
        e("s_cselect_b32 s48, 1, 0")
        e("v_mov_b32 v76, s48")
        e("ds_write_b32 v75, v76 offset:4")
    e("s_mov_b64 exec, -1")
    ts(1)
    e("L_P1_JOIN:")
    e(f"s_load_dwordx2 s[{G}:{G+1}], s[0:1], 0")
    e(f"s_load_dwordx2 s[{pOUT}:{pOUT+1}], s[0:1], 40")
    e(f"v_lshrrev_b32 v{vX+5}, 6, v0")
    e("s_and_b32 s3, s2, 7")
    e(f"v_readfirstlane_b32 s{sW}, v{vX+5}")
    e("s_lshl_b32 s3, s3, 5")
    e(f"s_lshr_b32 s{sT}, s2, 3")
    e(f"s_or_b32 s3, s3, s{sT}")
    e(f"v_and_b32 v{vLANE}, 63, v0")
    e(f"s_mov_b32 s{s128}, 128")
    e(f"s_mov_b32 s{sBB}, 0")
    e(f"s_mov_b32 s{sHOP}, 0")
    e(f"s_mov_b32 s{sMODE}, 0")
    for i in range(4, 16):
        e(f"v_mov_b32 v{vACC+i}, 0")
    e(f"v_and_b32 v{vX+4}, 7, v0")
    e(f"v_lshlrev_b32 v{vLOFF}, 4, v{vX+4}")
    e(f"v_and_b32 v{vX+4}, 1, v0")
    e(f"v_mov_b32 v{vX+5}, 0x0c0c0302")
    e(f"v_mov_b32 v{vX+6}, 0x03020c0c")
    e(f"v_cmp_eq_u32 vcc, 1, v{vX+4}")
    e(f"v_mov_b32 v{vX+7}, 0x0c0c0c0c")
    e(f"v_and_b32 v{vX+4}, 2, v0")
    e(f"v_cndmask_b32 v{vX+5}, v{vX+5}, v{vX+6}, vcc")
    e(f"v_cmp_eq_u32 vcc, 2, v{vX+4}")
    e(f"v_mov_b32 v{vP}, 0")
    e(f"s_and_b32 s{sT}, s2, 7")
    e(f"s_lshl_b32 s{sT}, s{sT}, 8")
    e(f"s_add_u32 s{sQ-1}, s{sT}, 0x{QS_OFF:x}")
    e(f"s_mov_b32 s{G+2}, 0x{ROWB:x}")
    e(f"v_cndmask_b32 v{vSEL0}, v{vX+5}, v{vX+7}, vcc")
    e(f"v_cndmask_b32 v{vSEL1}, v{vX+7}, v{vX+5}, vcc")
    e(f"v_cmp_gt_u32 vcc, {NSLOT}, v0")
    e(f"s_mov_b64 s[{sNODE}:{sNODE+1}], vcc")
    e(f"s_mov_b32 s{G+3}, 0x20000")
    srd(O, WS, H1B, H1_OFF)
    e(f"v_and_b32 v{vX}, 60, v0")
    e(f"v_lshl_add_u32 v{vX}, v{vX}, 2, s{sW}")
    e(f"s_lshl_b32 s{sT}, s3, 2")
    e(f"s_add_u32 s{sT}, s{sT}, 0x{TAB_OFF:x}")
    e(f"v_lshl_add_u32 v{vTA}, v{vX}, 10, s{sT}")
    if cfg.R1:
        e(f"s_sub_u32 s{sI4}, s{sW}, 1")
        e(f"s_and_b32 s{sI4}, s{sI4}, 7")
        e(f"s_and_b32 s{sT}, s2, {31 if S32 else 63}")
        e(f"s_lshl_b32 s{sT}, s{sT}, 3")
        e(f"s_add_u32 s{sI4}, s{sI4}, s{sT}")
        e(f"s_lshl_b32 s{sI4}, s{sI4}, {8 if S32 else 7}")
        e(f"s_add_u32 s{sI4}, s{sI4}, 0x{RS_OFF:x}")
        bar_base(sI4)
        if cfg.AE:
            bar_issue(sI4, 48)
        bar_bump_addr(64)
        e(f"v_mov_b32 v65, {L_MISC+16}")
        e(f"s_mov_b32 s{sT}, 0x{RS_OFF:x}")
        if cfg.AE:
            e("s_waitcnt lgkmcnt(0)")
            e(f"s_add_u32 s44, s44, s45")
            e(f"s_cmp_lt_u32 s44, {cfg.AE}")
            e("s_cbranch_scc1 L_LATE")
            e(f"buffer_load_dword v{vE}, v{vTA}, s[{WS}:{WS+3}], 0 offen sc1")
            e(f"s_cmp_lg_u32 s{sW}, 0")
            e("s_waitcnt vmcnt(1)")
            e("s_barrier")
            e("s_branch L_A5X")
            e("L_LATE:")
        e(f"s_cmp_lg_u32 s{sW}, 0")
        e("s_waitcnt vmcnt(0) lgkmcnt(0)")
        ts(14)
        if cfg.TE:
            e(f"buffer_load_dword v{vE}, v{vTA}, s[{WS}:{WS+3}], 0 offen sc1")
        e("s_barrier")
        if not cfg.TE:
            e(f"buffer_load_dword v{vE}, v{vTA}, s[{WS}:{WS+3}], 0 offen sc1")
        e("L_A5X:")
        def reread(lab):
            if cfg.ER:
                e("ds_read_b32 v65, v65")
                e("s_waitcnt lgkmcnt(0)")
                e("v_cmp_ne_u32 vcc, 0, v65")
                e(f"s_cbranch_vccz {lab}")
                e("s_waitcnt vmcnt(0)")
                e(f"buffer_load_dword v{vE}, v{vTA}, s[{WS}:{WS+3}], 0 offen sc1")
                e("s_waitcnt vmcnt(0)")
                e(f"{lab}:")
        e("s_cbranch_scc1 L_NOARR")
        bar_bump(64)
        reread("L_RR0")
        e("s_waitcnt vmcnt(1)")
        e("s_branch L_DECODE")
        e("L_NOARR:")
        reread("L_RR1")
        e(f"s_cmp_gt_u32 s{sW}, 8")
        e("s_waitcnt vmcnt(0)")
        if cfg.EP:
            e("s_cbranch_scc1 L_DECODE")
            bar_issue(sI4, 48)
        e("s_branch L_DECODE")
    else:
        e(f"v_mov_b32 v64, {SY_OFF + cfg.WST - QS_OFF}")
        e(f"v_add_u32 v64, s{sQ-1}, v64")
        e(f"v_mov_b32 v65, 1")
        e(f"s_cmp_lg_u32 s{sW}, 0")
        e(f"s_cselect_b64 exec, -1, 1")
        e("s_waitcnt vmcnt(0) lgkmcnt(0)")
        ts(14)
        e("s_barrier")
        e("s_cbranch_scc1 L_NOARR")
        e(f"buffer_atomic_add v65, v64, s[{WS}:{WS+3}], 0 offen sc0 sc1")
        e("s_mov_b64 exec, -1")
        e(f"buffer_load_dword v{vE}, v{vTA}, s[{WS}:{WS+3}], 0 offen sc1")
        arrive_b(1, 64, 1, ["s_waitcnt vmcnt(1)", "s_branch L_DECODE"])
        e("s_waitcnt vmcnt(0)")
        e("s_branch L_DECODE")
        e("L_NOARR:")
        e(f"buffer_load_dword v{vE}, v{vTA}, s[{WS}:{WS+3}], 0 offen sc1")
        e("s_waitcnt vmcnt(0)")
        e("s_branch L_DECODE")

    e("L_BATCH:")
    e(f"s_mov_b32 s{sMODE}, 2")
    e(f"v_mov_b32 v{vX}, 0")
    e(f"v_mov_b32 v{vX+1}, 0")
    e(f"v_lshlrev_b32 v{vX+4}, 3, v0")
    e(f"v_cmp_gt_u32 vcc, {(L_ZEND2-L_CNT)//8}, v0")
    e(f"s_mov_b64 exec, vcc")
    e(f"ds_write_b64 v{vX+4}, v[{vX}:{vX+1}] offset:{L_CNT}")
    e("s_mov_b64 exec, -1")
    e("L_DECODE:")
    if cfg.FAIL:
        e(f"s_cmp_lg_u32 s{sMODE}, 0")
        e("s_cbranch_scc1 L_NOFAIL")
        e(f"s_and_b32 s{sT}, s2, 3")
        e(f"s_cmp_lg_u32 s{sT}, 1")
        e("s_cbranch_scc1 L_NOFAIL")
        e(f"s_cmp_lt_u32 s{sW}, {16 - cfg.FAIL}")
        e("s_cbranch_scc1 L_NOFAIL")
        e(f"v_mul_u32_u24 v{vE}, 0x9e3b, v{vE}")
        e(f"v_xor_b32 v{vE}, v{vE}, v0")
        e("L_NOFAIL:")
    vNG, vG0, vQ, vT, vB, vA = vX, vX+1, vX+2, vX+3, vX+4, vX+5
    vGR = 40
    vKEY = 48
    vRANK = 54
    vDS = 60
    e(f"v_and_b32 v{vG0}, 60, v0")
    e(f"v_lshl_add_u32 v{vG0}, v{vG0}, 2, s{sW}")
    e(f"v_mul_u32_u24 v{vG0}, {CG}, v{vG0}")
    e(f"v_and_b32 v{vT}, 3, v0")
    e(f"v_add_u32 v{vG0}, v{vG0}, v{vT}")
    e(f"s_lshl_b32 s{sT}, s{sW}, 9")
    e(f"s_add_u32 s{sT}, s{sT}, {L_D}")
    e(f"v_mov_b32 v{vGR+3}, 0")
    e(f"v_mov_b32 v{vGR+7}, 0")
    ts(4)
    e(f"v_bfe_u32 v{vNG}, v{vE}, 16, 11")
    e(f"v_bfe_u32 v{vQ}, v{vE}, 16, 11")
    e(f"v_and_b32 v{vB}, 0x7ff, v{vE}")
    e(f"v_add_u32 v{vG0}, v{vG0}, v{vB}")
    scan64(vQ, fill=[f"v_sub_u32 v{vB}, v{vT}, v{vNG}", f"v_subrev_u32 v{vB}, s{sBB}, v{vB}",
                     f"v_cmp_lt_u32 s[{sTMP}:{sTMP+1}], v{vT}, v{vNG}", f"v_lshl_add_u32 v{vDS}, v{vLANE}, 2, s{sT}"], steps=SCAN[2:])
    e(f"v_readlane_b32 s{sTB}, v{vQ}, 63")
    e(f"v_add_u32 v{vB}, v{vB}, v{vQ}")
    e(f"L_DLOOP:")
    e(f"v_cmp_gt_u32 vcc, s{s128}, v{vB}")
    e(f"v_lshl_add_u32 v{vA}, v{vB}, 2, s{sT}")
    e(f"v_add_u32 v{vT}, 4, v{vT}")
    e(f"v_add_u32 v{vB}, 4, v{vB}")
    e(f"s_and_b64 exec, vcc, s[{sTMP}:{sTMP+1}]")
    e(f"ds_write_b32 v{vA}, v{vG0}")
    e("s_mov_b64 exec, -1")
    e(f"v_cmp_lt_u32 s[{sTMP}:{sTMP+1}], v{vT}, v{vNG}")
    e(f"v_cmp_gt_i32 vcc, s{s128}, v{vB}")
    e(f"v_add_u32 v{vG0}, 4, v{vG0}")
    e(f"s_and_b64 s[{sTMP}:{sTMP+1}], s[{sTMP}:{sTMP+1}], vcc")
    e(f"s_cbranch_scc1 L_DLOOP")
    e(f"ds_read2st64_b32 v[{vDS}:{vDS+1}], v{vDS} offset0:0 offset1:1")
    e(f"s_sub_i32 s{sNR}, s{sTB}, s{sBB}")
    e(f"v_add_u32 v{vA}, 64, v{vLANE}")
    e(f"v_cmp_gt_i32 s[{sM}:{sM+1}], s{sNR}, v{vLANE}")
    e(f"v_cmp_gt_i32 s[{sM+6}:{sM+7}], s{sNR}, v{vA}")
    ts(3)
    e("s_waitcnt lgkmcnt(0)")
    e(f"v_lshlrev_b32 v{vDS}, 4, v{vDS}")
    e(f"v_lshlrev_b32 v{vDS+1}, 4, v{vDS+1}")
    e(f"s_cmp_eq_u32 s{sMODE}, 1")
    e("s_cbranch_scc1 L_NOA6")
    if cfg.PFA:
        e(f"s_cmp_lt_u32 s{sW}, {16-cfg.PFA}")
        e("s_cbranch_scc1 L_NOPFA")
        pf_addr(vX+8, 16-cfg.PFA, 0)
        e(f"buffer_load_dword v{vPFD}, v{vX+8}, s[{G}:{G+3}], 0 offen")
        e("L_NOPFA:")
    if cfg.R1:
        e(f"s_cmp_lg_u32 s{sMODE}, 0")
        e("s_cbranch_scc1 L_NORPOLL")
        if cfg.WL:
            e(f"s_cmp_eq_u32 s{sW}, 14")
            e("s_cbranch_scc1 L_WST")
        e(f"s_sub_u32 s{sT}, s{sW}, 1")
        e(f"s_cmp_ge_u32 s{sT}, 8")
        e("s_cbranch_scc1 L_NORPOLL")
        bar_poll(sI4, "L_NORPOLL", cfg.EP)
    else:
        e(f"s_cmp_lg_u32 s{sW}, {cfg.RW}")
        e("s_cbranch_scc1 L_NORPOLL")
        poll(1)
    e("L_NORPOLL:")
    e("s_barrier")
    e("L_NOA6:")
    e(f"s_cmp_le_i32 s{sNR}, 0")
    e("s_cbranch_scc1 L_LD_DONE")
    e(f"s_mov_b64 exec, s[{sM}:{sM+1}]")
    e(f"buffer_load_dwordx4 v[{vGR}:{vGR+3}], v{vDS}, s[{WS}:{WS+3}], 0 offen sc1")
    e(f"s_cmp_le_i32 s{sNR}, 64")
    e("s_cbranch_scc1 L_LD_DONE")
    e(f"s_mov_b64 exec, s[{sM+6}:{sM+7}]")
    e(f"buffer_load_dwordx4 v[{vGR+4}:{vGR+7}], v{vDS+1}, s[{WS}:{WS+3}], 0 offen sc1")
    e(f"L_LD_DONE:")
    e("s_mov_b64 exec, -1")
    e(f"s_cmp_lg_u32 s{sMODE}, 0")
    e("s_cbranch_scc1 L_NOVER")
    if cfg.LV == 1:
        e("s_barrier")
    e(f"buffer_load_dword v{vE2}, v{vTA}, s[{WS}:{WS+3}], 0 offen sc1")
    ts(15)
    if cfg.PF2:
        pf_addr(vX+8, 16-cfg.PF2, cfg.PFA)
    if cfg.LV:
        e(f"s_waitcnt vmcnt(1)")
    else:
        e(f"s_mov_b32 s{sMODE}, 1")
        e(f"s_waitcnt vmcnt(0)")
        e(f"v_cmp_ne_u32 vcc, v{vE}, v{vE2}")
        e(f"v_mov_b32 v{vE}, v{vE2}")
        e("s_cbranch_vccnz L_DECODE")
    if cfg.PF2:
        e(f"s_cmp_lt_u32 s{sW}, {16-cfg.PF2}")
        e("s_cbranch_scc1 L_NOPF2")
        e(f"buffer_load_dword v{vPFD}, v{vX+8}, s[{G}:{G+3}], 0 offen")
    e("s_branch L_NOPF2")
    e("L_NOVER:")
    e(f"v_mov_b32 v{vE2}, v{vE}")
    e(f"s_waitcnt vmcnt(0)")
    e("L_NOPF2:")
    ts(5)
    def second(lab):
        e(f"s_cmp_le_i32 s{sNR}, 64")
        e(f"s_cbranch_scc1 {lab}")
    for r in range(2):
        if r == 1:
            second("L_RK_DONE")
            e("s_mov_b64 exec, -1")
        for s_ in range(3):
            k = 3 * r + s_
            e(f"v_bfe_u32 v{vKEY+k}, v{vGR+4*r+3}, {10*s_}, 10")
        for s_ in range(3):
            k = 3 * r + s_
            e(f"v_cmp_lt_u32 s[{sM+2*k}:{sM+2*k+1}], 3, v{vKEY+k}")
            e(f"v_lshlrev_b32 v{vKEY+k}, 2, v{vKEY+k}")
        for s_ in range(3):
            k = 3 * r + s_
            e(f"s_mov_b64 exec, s[{sM+2*k}:{sM+2*k+1}]")
            e(f"ds_add_rtn_u32 v{vRANK+k}, v{vKEY+k}, v{vONE} offset:{L_CNT}")
    e("L_RK_DONE:")
    if cfg.LV:
        e("s_mov_b64 exec, -1")
        e(f"s_cmp_ge_u32 s{sW}, {16-cfg.PF2}")
        e("s_waitcnt vmcnt(1)")
        e("s_cbranch_scc1 L_VER2")
        e("s_waitcnt vmcnt(0)")
        e("L_VER2:")
        e(f"v_cmp_ne_u32 vcc, v{vE}, v{vE2}")
        e(f"v_mov_b32 v{vE}, v{vE2}")
        e("s_cmp_lg_u64 vcc, 0")
        e(f"s_cselect_b32 s{sTB}, -1, s{sTB}")
    e("s_mov_b64 exec, 1")
    e(f"v_mov_b32 v{vA}, s{sTB}")
    e(f"v_mov_b32 v{vB}, {L_MISC+4}")
    e(f"ds_max_u32 v{vB}, v{vA}")
    e("s_mov_b64 exec, -1")
    def slots(bodyf, lab):
        for k in range(6):
            if k == 3:
                second(lab)
            e(f"s_mov_b64 exec, s[{sM+2*k}:{sM+2*k+1}]")
            bodyf(k)
        e(f"{lab}:")
        e("s_mov_b64 exec, -1")
    vC = vX
    vDEG, vNP, vSC, vBIN, vDR, vSB, vNA = vX+4, vX+5, vX+6, vX+7, vX+8, vX+9, vX+10
    vBS = vX + 12
    e(f"v_lshlrev_b32 v{vNA}, 4, v0")
    e(f"v_mov_b32 v{vX+11}, {L_MISC}")
    e(f"v_mov_b32 v{vTP}, 0xffff")
    e(f"v_mov_b32 v{vTP+1}, 0xffff")
    e(f"s_cmp_ge_u32 s{sW}, 4")
    e("s_waitcnt lgkmcnt(0)")
    e("s_barrier")
    e(f"s_cbranch_scc1 L_NODE1_DONE")
    e(f"ds_read_b128 v[{vC}:{vC+3}], v{vNA} offset:{L_CNT+16}")
    ts(6)
    e("s_waitcnt lgkmcnt(0)")
    e(f"v_add_u32 v{vC+1}, v{vC}, v{vC+1}")
    e(f"v_add_u32 v{vC+2}, v{vC+1}, v{vC+2}")
    e(f"v_add3_u32 v{vSC}, v{vC+2}, v{vC+3}, 3")
    e(f"v_lshrrev_b32 v{vSC}, 1, v{vSC}")
    e(f"v_add_u32 v{vDEG}, v{vC+2}, v{vC+3}")
    e(f"v_mov_b32 v{vNP}, v{vSC}")
    scan64(vSC, fill=[f"v_min_u32 v{vBIN}, 63, v{vDEG}", f"v_sub_u32 v{vBIN}, 63, v{vBIN}",
                      f"v_lshlrev_b32 v{vBIN}, 2, v{vBIN}", f"s_mov_b64 exec, s[{sNODE}:{sNODE+1}]"], steps=SCAN[:2])
    e(f"ds_add_rtn_u32 v{vDR}, v{vBIN}, v{vONE} offset:{L_DH}")
    e("s_mov_b64 exec, -1")
    scan64(vSC, steps=SCAN[2:])
    e(f"s_mov_b32 exec_lo, 0")
    e(f"s_mov_b32 exec_hi, 0x80000000")
    e(f"ds_add_rtn_u32 v{vSB}, v{vX+11}, v{vSC}")
    e("s_mov_b64 exec, -1")
    e(f"v_lshlrev_b32 v{vSC}, 1, v{vSC}")
    e(f"v_sub_u32 v{vC+3}, v{vSC}, v{vDEG}")
    e(f"v_lshlrev_b32 v{vX+11}, 1, v{vNP}")
    e(f"v_sub_u32 v{vSC}, v{vSC}, v{vX+11}")
    e("s_waitcnt lgkmcnt(0)")
    e(f"v_readlane_b32 s{sT}, v{vSB}, 63")
    e(f"s_lshl_b32 s{sT}, s{sT}, 3")
    e(f"s_add_u32 s{sT}, s{sT}, {L_RECS}")
    e(f"v_lshl_add_u32 v{vBS}, v{vC+3}, 2, s{sT}")
    e(f"v_lshl_add_u32 v{vBS+1}, v{vC}, 2, v{vBS}")
    e(f"v_lshl_add_u32 v{vBS+2}, v{vC+1}, 2, v{vBS}")
    e(f"v_lshl_add_u32 v{vBS+3}, v{vC+2}, 2, v{vBS}")
    e(f"ds_write_b128 v{vNA}, v[{vBS}:{vBS+3}] offset:{L_CNT+16}")
    e(f"v_lshl_add_u32 v{vSC}, v{vSC}, 2, s{sT}")
    e(f"ds_write_b64 v{vSC}, v[{vTP}:{vTP+1}]")
    e(f"ds_write_b32 v{vSC}, v{vTP} offset:8")
    e(f"L_NODE1_DONE:")
    e(f"v_mov_b32 v{vC}, {L_MISC+4}")
    e(f"v_lshlrev_b32 v{vC+1}, 2, v{vLANE}")
    e("s_waitcnt lgkmcnt(0)")
    e("s_barrier")
    if cfg.XD == 2:
        e("s_sleep 16")
    ts(7)
    e(f"ds_read_b32 v{vC+1}, v{vC+1} offset:{L_DH}")
    e(f"ds_read_b32 v{vC+3}, v{vC}")
    for k in range(6):
        if k == 3:
            second("L_RB_DONE")
        e(f"ds_read_b32 v{vKEY+k}, v{vKEY+k} offset:{L_CNT}")
    e("L_RB_DONE:")
    e(f"s_cmp_ge_u32 s{sW}, 4")
    e(f"s_cbranch_scc1 L_NODE2_DONE")
    e(f"s_cmp_lg_u32 s{sBB}, 0")
    e(f"s_cbranch_scc1 L_NODE2_NOSORT")
    e("s_waitcnt lgkmcnt(4)")
    e(f"v_mov_b32 v{vC}, v{vC+1}")
    e("s_nop 1")
    scan64(vC)
    e(f"v_sub_u32 v{vC}, v{vC}, v{vC+1}")
    e(f"ds_bpermute_b32 v{vC}, v{vBIN}, v{vC}")
    e(f"s_movk_i32 s{sT}, {NNORM*16}")
    e("s_waitcnt lgkmcnt(0)")
    if SPL:
        e(f"v_add_u32 v{vP}, v{vC}, v{vDR}")
        e(f"v_and_b32 v{vC}, 0xf8, v{vP}")
        e(f"v_add3_u32 v{vC}, v{vC}, v{vP}, s{sT}")
        e(f"v_cmp_gt_u32 vcc, {8*SPL}, v{vP}")
        e(f"v_subrev_u32 v{vP}, {8*SPL}, v{vP}")
        e("s_nop 0")
        e(f"v_cndmask_b32 v{vP}, v{vP}, v{vC}, vcc")
        e(f"v_lshlrev_b32 v{vP}, 3, v{vP}")
    else:
        e(f"v_add_lshl_u32 v{vP}, v{vC}, v{vDR}, 3")
    e(f"L_NODE2_NOSORT:")
    e(f"v_lshl_or_b32 v{vC}, v{vNP}, 16, v{vSC}")
    e(f"s_mul_i32 s{sT}, s3, {NB*128}")
    e(f"v_lshl_add_u32 v{vC+1}, v0, 7, s{sT}")
    e(f"v_cmp_gt_u32 vcc, {NB}, v0")
    e(f"v_mov_b32 v{vC+2}, 0x80000000")
    e(f"s_mov_b64 exec, s[{sNODE}:{sNODE+1}]")
    e(f"v_cndmask_b32 v{vC+1}, v{vC+2}, v{vC+1}, vcc")
    e(f"ds_write_b64 v{vP}, v[{vC}:{vC+1}] offset:{L_NT}")
    if SPL:
        e(f"v_cmp_le_u32 vcc, {NNORM*128}, v{vP}")
        e(f"v_mov_b32 v{vC+1}, v{vC+2}")
        e("s_and_b64 exec, exec, vcc")
        e(f"ds_write_b64 v{vP}, v[{vC}:{vC+1}] offset:{L_NT+64}")
    e("s_mov_b64 exec, -1")
    e(f"L_NODE2_DONE:")
    e("s_waitcnt lgkmcnt(0)")
    def wr(k):
        e(f"v_lshl_add_u32 v{vRANK+k}, v{vRANK+k}, 2, v{vKEY+k}")
        e(f"ds_write_b32 v{vRANK+k}, v{vGR+4*(k//3)+k%3}")
    slots(wr, "L_RW_DONE")
    e(f"v_readfirstlane_b32 s{sNBMAX}, v{vC+3}")
    e(f"v_lshrrev_b32 v{vX}, 3, v{vLANE}")
    e(f"s_lshl_b32 s{sT}, s{sW}, 7")
    e(f"v_lshl_add_u32 v{vX}, v{vX}, 3, s{sT}")
    if cfg.LV:
        e(f"s_cmp_eq_u32 s{sNBMAX}, -1")
        e("s_cbranch_scc1 L_NEXTB")
    e(f"s_cmp_ge_u32 s{sW}, {NNORM}")
    e(f"s_cselect_b32 s{sSTR+1}, 1, 0")
    e(f"s_lshl_b32 s{sSTR}, 8, s{sSTR+1}")
    e(f"s_cmp_ge_u32 s{sW}, {NW}")
    e("s_waitcnt lgkmcnt(0)")
    e("s_barrier")
    e(f"s_cbranch_scc1 L_HELPER")
    e(f"ds_read_b64 v[{vX+2}:{vX+3}], v{vX} offset:{L_NT}")
    e(f"ds_read_b64 v[{vX+4}:{vX+5}], v{vX} offset:{L_NT+64}")
    ts(8)
    e("s_waitcnt lgkmcnt(0)")
    e(f"v_lshrrev_b32 v{vX}, 16, v{vX+2}")
    e(f"v_lshrrev_b32 v{vX+1}, 16, v{vX+4}")
    e(f"v_max_u32 v{vX+6}, v{vX}, v{vX+1}")
    e(f"v_and_b32 v{vEA}, 0xffff, v{vX+2}")
    e(f"v_and_b32 v{vEB}, 0xffff, v{vX+4}")
    e(f"v_max_u32_dpp v{vX+6}, v{vX+6}, v{vX+6} row_ror:8 row_mask:0xf bank_mask:0xf")
    e(f"v_lshl_add_u32 v{vPA}, v{vX}, 3, v{vEA}")
    e(f"v_lshl_add_u32 v{vPB}, v{vX+1}, 3, v{vEB}")
    e(f"v_readlane_b32 s{sN0}, v{vX+6}, 0")
    e(f"v_readlane_b32 s{sT}, v{vX+6}, 16")
    e(f"v_readlane_b32 s{sT+1}, v{vX+6}, 32")
    e(f"v_readlane_b32 s{sCNT}, v{vX+6}, 48")
    e(f"s_max_u32 s{sN0}, s{sN0}, s{sT}")
    e(f"s_max_u32 s{sCNT}, s{sCNT}, s{sT+1}")
    e(f"s_max_u32 s{sN0}, s{sN0}, s{sCNT}")
    e(f"s_sub_u32 s{sN0}, s{sN0}, 1")
    e(f"s_add_u32 s{sN0}, s{sN0}, s{sSTR+1}")
    e(f"s_lshr_b32 s{sN0}, s{sN0}, s{sSTR+1}")
    e(f"s_max_u32 s{sN0}, s{sN0}, {D}")
    e(f"s_mul_i32 s{sT}, s{sN0}, s{sSTR}")
    e(f"s_sub_u32 s{sT+1}, s{sT}, s{sSTR}")
    e(f"s_add_u32 s{sT+1}, s{sT+1}, 8")
    e(f"v_subrev_u32 v{vPA}, s{sT}, v{vPA}")
    e(f"v_subrev_u32 v{vPB}, s{sT+1}, v{vPB}")
    def rdrec(h):
        for pv, ev, d in ((vPA, vEA, vST), (vPB, vEB, vST + 4)):
            e(f"v_max_i32 v{vAD}, v{pv}, v{ev}")
            if h == 0:
                e(f"ds_read_b64 v[{d}:{d+1}], v{vAD}")
            else:
                e(f"ds_read2st64_b64 v[{d}:{d+3}], v{vAD} offset0:0 offset1:{RDELTA//512}")
        e(f"v_add_u32 v{vPA}, s{sSTR}, v{vPA}")
        e(f"v_add_u32 v{vPB}, s{sSTR}, v{vPB}")
    e(f"s_cmp_lg_u32 s{sHOP}, 0")
    e("s_cbranch_scc1 L_MBENC")
    rdrec(0)
    for src, d0 in ((vX+3, vROWA), (vX+5, vROWB)):
        e(f"v_add_u32 v{d0}, v{src}, v{vLOFF}")
    def pace():
        if cfg.PACE > 1:
            lab = newlab("PACE")
            e(f"s_add_i32 s{sI4}, s{sI4}, {cfg.PACE}")
            e(f"{lab}a:")
            e(f"s_cmp_lt_i32 s{sI4}, 0")
            e(f"s_cbranch_scc1 {lab}")
            e(f"s_cmp_eq_u32 s{sPN}, 0")
            e(f"s_cbranch_scc1 {lab}")
            e(f"s_sub_i32 s{sI4}, s{sI4}, s{sN0}")
            e(f"s_sub_u32 s{sPN}, s{sPN}, 1")
            e("s_barrier")
            if cfg.TS == 3:
                e("s_memrealtime s[100:101]")
                e(f"s_lshl_b32 s{sT}, s{sHOP}, 3")
                e(f"s_add_u32 s{sT}, s{sT}, s{sPN}")
                e(f"s_mov_b32 m0, s{sT}")
                e("s_waitcnt lgkmcnt(0)")
                e("v_writelane_b32 v35, s100, m0")
            e(f"s_branch {lab}a")
            e(f"{lab}:")
    recreg = [vST, vST + 4, vST + 1, vST + 5]
    def mm(slot, k):
        d = vDATA + 16 * slot + 4 * k
        a = vAOP + 8 * slot + 2 * k
        acc = vACC + (8 if k & 1 else 0)
        e(f"v_mfma_f32_4x4x4_16b_bf16 v[{acc}:{acc+3}], v[{a}:{a+1}], v[{d}:{d+1}], v[{acc}:{acc+3}]")
        e(f"v_mfma_f32_4x4x4_16b_bf16 v[{acc+4}:{acc+7}], v[{a}:{a+1}], v[{d+2}:{d+3}], v[{acc+4}:{acc+7}]")
    def step(h, slot, consume, skip=False):
        e("s_waitcnt lgkmcnt(0)")
        for k in range(4):
            r = recreg[k]
            d = vDATA + 16 * slot + 4 * k
            a = vAOP + 8 * slot + 2 * k
            if h == 0:
                e(f"v_mad_u32_u16 v{vAD}, v{r}, s{s128}, v{vLOFF}")
            else:
                e(f"v_add_u32 v{vAD}, v{r+2}, v{vLOFF}")
            if consume:
                e(f"s_waitcnt vmcnt({cfg.VW1 if h else cfg.VW0})")
                mm(slot, k)
            if skip:
                lab = newlab("SK")
                e(f"v_cmp_ne_u32 vcc, 0xffff, v{r}")
                for i in range(4):
                    e(f"v_mov_b32 v{d+i}, 0")
                e(f"s_cbranch_vccz {lab}")
            e(f"buffer_load_dwordx4 v[{d}:{d+3}], v{vAD}, s[{G}:{G+3}], 0 offen" + (" sc1" if h else ""))
            if skip:
                e(f"{lab}:")
            e(f"v_perm_b32 v{a}, v{r}, v{r}, v{vSEL0}")
            e(f"v_perm_b32 v{a+1}, v{r}, v{r}, v{vSEL1}")
        rdrec(h)
        pace()
    def gloop(h):
        e(f"s_sub_u32 s{sCNT}, s{sN0}, {D}")
        if cfg.PACE > 1:
            e(f"s_mul_i32 s{sI4}, s{sN0}, {-1-cfg.FB}")
            e(f"s_cmp_le_u32 s{sNBMAX}, {GB}")
            e(f"s_cselect_b32 s{sPN}, {cfg.PACE-1-cfg.FB-(cfg.DB1 if h else cfg.DB0)}, 0")
        for s_ in range(D):
            step(h, s_, False, cfg.SKP and s_ == 0)
        if cfg.SKP:
            e(f"s_waitcnt vmcnt({4*(D-1)})")
        e(f"L_GLOOP{h}:")
        for p in range(D):
            e(f"s_cmp_le_i32 s{sCNT}, {p}")
            e(f"s_cbranch_scc1 L_DRAIN{p}")
            step(h, p, True)
        e(f"s_sub_i32 s{sCNT}, s{sCNT}, {D}")
        e(f"s_branch L_GLOOP{h}")
    gloop(0)
    for p in range(D):
        e(f"L_DRAIN{p}:")
        e(f"s_load_dword s{sQ}, s[{WS}:{WS+1}], s{sQ-1}")
        for j in range(4 * D):
            e(f"s_waitcnt vmcnt({4*D-1-j})")
            mm((p + j // 4) % D, j % 4)
        if p != D - 1:
            e(f"s_branch L_GDONE")
    e(f"L_GDONE:")
    e("s_waitcnt lgkmcnt(0)")
    e(f"s_add_u32 s{sBB}, s{sBB}, {GB}")
    e(f"s_cmp_lt_u32 s{sBB}, s{sNBMAX}")
    e(f"s_cbranch_scc1 L_NEXTB")
    if SPL:
        e(f"s_cmp_eq_u32 s{sSTR+1}, 0")
        e("s_cbranch_scc1 L_NOCOMB")
        for i in range(8):
            e(f"v_add_f32 v{vACC+i}, v{vACC+i}, v{vACC+8+i}")
        e("L_NOCOMB:")
    e(f"s_cmp_lg_u32 s{sHOP}, 0")
    e("s_nop 0")
    for i in range(8):
        e(f"v_cvt_pk_bf16_f32 v{40+i}, v{vACC+2*i}, v{vACC+2*i+1}")
    e(f"s_cbranch_scc1 L_EPI")
    e(f"s_mov_b32 s{sT}, {25088*128}")
    e(f"s_movk_i32 s{sT+1}, {cfg.RN*128}")
    for o, d, m in ((vROWA, 50, "vcc"), (vROWB, 51, f"s[{sTMP}:{sTMP+1}]")):
        e(f"v_cmp_le_u32 {m}, s{sT}, v{o}")
        e(f"v_and_b32 v48, 0x7fffe000, v{o}")
        e(f"v_lshrrev_b32 v49, 7, v{o}")
        e(f"v_add_u32 v{d}, v48, v{o}")
        e(f"v_cndmask_b32 v48, 0, -1, {m}")
        e(f"v_xor_b32 v{d+2}, v48, v49")
    e(f"s_mov_b32 s{sSPIN}, 0")
    e("s_branch L_QC")
    e("L_QP:")
    e(f"s_load_dword s{sQ}, s[{WS}:{WS+1}], s{sQ-1} glc")
    e("s_waitcnt lgkmcnt(0)")
    e("L_QC:")
    e(f"s_cmp_lg_u32 s{sQ}, 0")
    e("s_cbranch_scc1 L_QX")
    spin_tail("L_QP", "L_QX")
    e("L_QX:")
    e(f"v_bfe_i32 v{vQM}, s{sQ}, 0, 1")
    for d in (50, 51):
        e(f"v_xor_b32 v{d+2}, v{d+2}, v{vQM}")
        e(f"v_and_b32 v{d+2}, 0x2000, v{d+2}")
        e(f"v_or_b32 v{d}, v{d}, v{d+2}")
    def home():
        e(f"buffer_store_dwordx4 v[40:43], v50, s[{O}:{O+3}], 0 offen sc1")
        e(f"s_cmp_lg_u32 s{sSTR+1}, 0")
        e("s_cbranch_scc1 L_NOHB")
        e(f"buffer_store_dwordx4 v[44:47], v51, s[{O}:{O+3}], 0 offen sc1")
        e("L_NOHB:")
    if not cfg.FF:
        home()
    if cfg.RN:
        for o, d, q in ((vROWA, 50, 40), (vROWB, 51, 44)):
            lab = newlab("ST")
            e(f"v_and_b32 v48, 0x80000380, v{o}")
            e(f"v_cmp_gt_u32 vcc, s{sT+1}, v48")
            e(f"v_xor_b32 v{d+2}, 0x2000, v{d}")
            e(f"s_and_saveexec_b64 s[{sTMP}:{sTMP+1}], vcc")
            e(f"s_cbranch_execz {lab}")
            e(f"buffer_store_dwordx4 v[{q}:{q+3}], v{d+2}, s[{O}:{O+3}], 0 offen sc1")
            e(f"{lab}:")
            e("s_mov_b64 exec, -1")
    if cfg.FF:
        home()
    ts(9)
    for i in range(16):
        e(f"v_mov_b32 v{vACC+i}, 0")
    e(f"s_add_u32 s{sT}, s{sN0}, 1")
    e(f"s_mul_i32 s{sT}, s{sT}, s{sSTR}")
    e(f"v_subrev_u32 v{vPA}, s{sT}, v{vPA}")
    e(f"v_subrev_u32 v{vPB}, s{sT}, v{vPB}")
    e(f"v_lshlrev_b32 v48, 4, v{vLANE}")
    NWPRE = 8 if D == 2 else 4
    def wfrag(mb, kh):
        if D == 2: return vW + 8 * mb + 4 * kh
        return vW + 4 * mb if kh == 0 else 64 + 4 * mb
    for mb in range(4):
        for kh in range(2 if D == 2 else 1):
            r = wfrag(mb, kh)
            e(f"ds_read_b128 v[{r}:{r+3}], v48 offset:{L_WT + 1024*(2*mb+kh)}")
    e(f"s_lshl_b32 s{sT}, s{sW}, 11")
    e(f"s_add_u32 s{sT}, s{sT}, {L_TILE}")
    e(f"v_lshrrev_b32 v48, 3, v{vLANE}")
    e(f"v_xor_b32 v49, v48, v{vLANE}")
    e(f"v_and_b32 v49, 7, v49")
    e(f"v_lshlrev_b32 v49, 4, v49")
    e(f"v_lshl_add_u32 v49, v48, 7, v49")
    e(f"v_add_u32 v{vTW}, s{sT}, v49")
    e(f"v_and_b32 v48, 15, v{vLANE}")
    e(f"v_lshrrev_b32 v49, 4, v{vLANE}")
    e(f"v_xor_b32 v49, v49, v48")
    e(f"v_and_b32 v49, 7, v49")
    e(f"v_lshlrev_b32 v49, 4, v49")
    e(f"v_lshl_add_u32 v49, v48, 7, v49")
    e(f"v_add_u32 v{vTR}, s{sT}, v49")
    if cfg.OWN == 1:
        e("s_waitcnt vmcnt(0)")
        e(f"buffer_load_dword v{vPFD}, v{vROWA}, s[{O}:{O+3}], 0 offen sc1")
        e(f"buffer_load_dword v{vPFD}, v{vROWB}, s[{O}:{O+3}], 0 offen sc1")
    def enc(w, d, t):
        e(f"v_and_b32 v{d}, 0xffff, v{w}")
        e(f"v_and_b32 v{t}, 7, v{w}")
        e(f"v_cmp_le_u32 vcc, s{sT}, v{d}")
        e(f"v_cmp_gt_u32 s[{sTMP}:{sTMP+1}], {cfg.RN}, v{t}")
        e(f"v_and_b32 v{t}, 0xffc0, v{w}")
        e(f"v_add_lshl_u32 v{d}, v{d}, v{t}, 7")
        e(f"s_andn2_b64 vcc, vcc, s[{sTMP}:{sTMP+1}]")
        e(f"s_and_b64 s[{sTMP}:{sTMP+1}], s[{sTMP}:{sTMP+1}], s[{sK}:{sK+1}]")
        e(f"s_or_b64 vcc, vcc, s[{sTMP}:{sTMP+1}]")
        e(f"v_cndmask_b32 v{t}, v{vQM}, v{vTP+1}, vcc")
        e(f"v_xor_b32 v{t}, v{t}, v{w}")
        e(f"v_and_or_b32 v{d}, v{t}, s{sT+1}, v{d}")
    def enc_setup():
        e(f"v_mov_b32 v48, {L_MISC}")
        e("ds_read_b32 v48, v48")
        e(f"s_bfe_i32 s{sK}, s2, 0x10002")
        e(f"s_mov_b32 s{sK+1}, s{sK}")
        e(f"s_movk_i32 s{sT}, 25088")
        e(f"s_movk_i32 s{sT+1}, 0x2000")
        e(f"v_lshlrev_b32 v49, 4, v0")
        e("s_waitcnt lgkmcnt(0)")
        e(f"v_readfirstlane_b32 s{sSPIN}, v48")
        e(f"v_not_b32 v{vTP+1}, v{vQM}")
        e(f"s_lshl_b32 s{sSPIN}, s{sSPIN}, 3")
        e(f"s_lshl_b32 s{sI4}, s{sW}, 10")
    def enc_pass(nwaves):
        lab = newlab("ENC")
        e(f"{lab}:")
        e(f"s_cmp_ge_u32 s{sI4}, s{sSPIN}")
        e(f"s_cbranch_scc1 {lab}x")
        e(f"ds_read_b128 v[52:55], v49 offset:{L_RECS}")
        e(f"s_add_u32 s{sI4}, s{sI4}, {nwaves*1024}")
        e("s_waitcnt lgkmcnt(0)")
        for i in range(4):
            enc(52 + i, 56 + i, 60)
        e(f"ds_write_b128 v49, v[56:59] offset:{L_RECS+RDELTA}")
        e(f"v_add_u32 v49, {nwaves*1024}, v49")
        e(f"s_branch {lab}")
        e(f"{lab}x:")
    enc_setup()
    enc_pass(NW)
    if cfg.OWN:
        e(f"v_subrev_u32 v48, 512, v0")
        e(f"s_mul_i32 s{sI4}, s3, {NB}")
        e(f"v_add_u32 v52, s{sI4}, v48")
        enc(52, 53, 60)
    e("L_SYNC2:")
    srd(G, WS, H1B, H1_OFF)
    e(f"s_mov_b32 s{sBB}, 0")
    e(f"s_mov_b32 s{sHOP}, 1")
    e(f"s_lshr_b32 s{sI4}, s2, 2")
    e(f"s_xnor_b32 s{sI4}, s{sI4}, s{sQ}")
    e(f"s_and_b32 s{sI4}, s{sI4}, 1")
    if S32:
        e(f"s_lshl_b32 s{sI4}, s{sI4}, 2")
        e(f"s_and_b32 s{sT}, s2, 0x1b")
        e(f"s_or_b32 s{sI4}, s{sI4}, s{sT}")
    else:
        e(f"s_lshl_b32 s{sI4}, s{sI4}, 3")
        e(f"s_and_b32 s{sT}, s2, 0x33")
        e(f"s_or_b32 s{sI4}, s{sI4}, s{sT}")
        e(f"s_bfe_u32 s{sT}, s2, 0x10003")
        e(f"s_lshl_b32 s{sT}, s{sT}, 2")
        e(f"s_or_b32 s{sI4}, s{sI4}, s{sT}")
    e(f"s_lshl_b32 s{sI4}, s{sI4}, 3")
    e(f"s_add_u32 s{sI4}, s{sI4}, s{sW}")
    e(f"s_lshl_b32 s{sI4}, s{sI4}, {8 if S32 else 7}")
    e(f"s_add_u32 s{sI4}, s{sI4}, 0x{HS_OFF:x}")
    bar_base(sI4)
    bar_bump_addr(54)
    e(f"s_mov_b32 s{sT}, 0x{HS_OFF:x}")
    e(f"s_cmp_lg_u32 s{sW}, 0")
    e("s_waitcnt vmcnt(0) lgkmcnt(0)")
    ts(10)
    e("s_barrier")
    e("s_cbranch_scc1 L_FNB")
    bar_bump(54)
    e("L_FNB:")
    e(f"s_cmp_lt_u32 s{sW}, 8")
    e("s_cbranch_scc1 L_FPOLL")
    if cfg.OWN:
        e(f"s_cmp_ge_u32 s{sW}, 12")
        e(f"s_cbranch_scc1 L_FDONE")
        e(f"v_cmp_gt_u32 vcc, {NB}, v48")
        e("s_mov_b64 exec, vcc")
        e(f"buffer_load_dword v{vPFD}, v53, s[{G}:{G+3}], 0 offen sc1")
        e("s_mov_b64 exec, -1")
    e("s_branch L_FDONE")
    e("L_FPOLL:")
    bar_poll(sI4, "L_FDONE")
    e("L_FDONE:")
    srd(O, pOUT, ROWB)
    e(f"s_cmp_gt_u32 s{sNBMAX}, {GB}")
    e("s_cbranch_scc1 L_C1MB")
    rdrec(1)
    e("s_barrier")
    ts(11)
    e("L_G2:")
    gloop(1)
    e("L_C1MB:")
    e("s_barrier")
    e("s_branch L_BATCH")
    e("L_MBENC:")
    enc_setup()
    enc_pass(NW)
    e("s_waitcnt lgkmcnt(0)")
    e("s_barrier")
    rdrec(1)
    e("s_branch L_G2")

    e("L_EPI:")
    ts(12)
    e(f"ds_write_b128 v{vTW}, v[40:43]")
    e(f"ds_write_b128 v{vTW}, v[44:47] offset:1024")
    e(f"v_xor_b32 v{vAD}, 64, v{vTR}")
    e(f"ds_read_b128 v[40:43], v{vTR}")
    e(f"ds_read_b128 v[44:47], v{vAD}")
    if D != 2:
        e(f"v_lshlrev_b32 v{vAD}, 4, v{vLANE}")
        for mb in range(4):
            r = wfrag(mb, 1)
            e(f"ds_read_b128 v[{r}:{r+3}], v{vAD} offset:{L_WT + 1024*(2*mb+1)}")
    if cfg.O4:
        e(f"v_lshrrev_b32 v{vAD}, 3, v{vLANE}")
        e(f"s_lshl_b32 s{sT}, s{sW}, 7")
        e(f"v_lshl_add_u32 v{vAD}, v{vAD}, 4, s{sT}")
        e(f"ds_read_b128 v[48:51], v{vAD} offset:{L_NT}")
        e("s_mov_b32 vcc_lo, 0x00ff00ff")
        e("s_mov_b32 vcc_hi, 0x00ff00ff")
        e(f"s_waitcnt lgkmcnt(2)")
        for mb in range(4):
            r = wfrag(mb, 0)
            e(f"v_mfma_f32_16x16x32_bf16 v[{vACC+4*mb}:{vACC+4*mb+3}], v[40:43], v[{r}:{r+3}], 0")
        e("s_waitcnt lgkmcnt(1)")
        for mb in range(4):
            r = wfrag(mb, 1)
            e(f"v_mfma_f32_16x16x32_bf16 v[{vACC+4*mb}:{vACC+4*mb+3}], v[44:47], v[{r}:{r+3}], v[{vACC+4*mb}:{vACC+4*mb+3}]")
        e("s_waitcnt lgkmcnt(0)")
        e(f"v_add_u32 v48, v49, v{vLOFF}")
        e(f"v_add_u32 v50, v51, v{vLOFF}")
        e("s_nop 2")
        for r in range(4):
            e(f"v_cvt_pk_bf16_f32 v{56+2*r}, v{vACC+r}, v{vACC+4+r}")
        for r in range(4):
            e(f"v_cvt_pk_bf16_f32 v{57+2*r}, v{vACC+8+r}, v{vACC+12+r}")
        DP = "row_ror:8 row_mask:0xf bank_mask:0xf"
        for i in range(2):
            for k in range(2):
                e(f"v_cndmask_b32_dpp v{64+4*k+i}, v{60+2*k+i}, v{56+2*k+i}, vcc {DP}")
        e("s_not_b64 vcc, vcc")
        for k in range(2):
            for i in range(2):
                e(f"v_cndmask_b32_dpp v{66+4*k+i}, v{56+2*k+i}, v{60+2*k+i}, vcc {DP}")
            e(f"buffer_store_dwordx4 v[{64+4*k}:{67+4*k}], v{48+2*k}, s[{O}:{O+3}], 0 offen {cfg.OUTFLAG}")
    else:
        e(f"v_lshrrev_b32 v{vAD}, 4, v{vLANE}")
        e(f"s_lshl_b32 s{sT}, s{sW}, 7")
        e(f"v_lshl_add_u32 v{vAD}, v{vAD}, 5, s{sT}")
        e(f"ds_read_b128 v[48:51], v{vAD} offset:{L_NT}")
        e(f"ds_read_b128 v[52:55], v{vAD} offset:{L_NT+16}")
        e(f"v_and_b32 v{vAD}, 15, v{vLANE}")
        e(f"v_lshlrev_b32 v{vAD}, 3, v{vAD}")
        e(f"s_waitcnt lgkmcnt({3 if D == 2 else 7})")
        for mb in range(4):
            r = wfrag(mb, 0)
            e(f"v_mfma_f32_16x16x32_bf16 v[{vACC+4*mb}:{vACC+4*mb+3}], v[40:43], v[{r}:{r+3}], 0")
        e("s_waitcnt lgkmcnt(2)")
        for mb in range(4):
            r = wfrag(mb, 1)
            e(f"v_mfma_f32_16x16x32_bf16 v[{vACC+4*mb}:{vACC+4*mb+3}], v[44:47], v[{r}:{r+3}], v[{vACC+4*mb}:{vACC+4*mb+3}]")
        e("s_waitcnt lgkmcnt(0)")
        for r in range(4):
            e(f"v_add_u32 v{48+2*r}, v{49+2*r}, v{vAD}")
        e("s_nop 2")
        for r in range(4):
            e(f"v_cvt_pk_bf16_f32 v{56+2*r}, v{vACC+r}, v{vACC+4+r}")
            e(f"v_cvt_pk_bf16_f32 v{57+2*r}, v{vACC+8+r}, v{vACC+12+r}")
            e(f"buffer_store_dwordx2 v[{56+2*r}:{57+2*r}], v{48+2*r}, s[{O}:{O+3}], 0 offen {cfg.OUTFLAG}")
    e("L_FIN:")
    ts_dump()
    e("s_endpgm")
    e("L_HELPER:")
    assert NW <= 15
    e(f"s_xor_b32 s{sT}, s{sW}, 15")
    e(f"s_xor_b32 s{sT+1}, s2, 255")
    e(f"s_or_b32 s{sT}, s{sT}, s{sT+1}")
    e(f"s_or_b32 s{sT}, s{sT}, s{sBB}")
    e(f"s_or_b32 s{sT}, s{sT}, s{sHOP}")
    e("s_cbranch_scc1 L_HELP1")
    e(f"s_mov_b32 s{sT}, 0x{HS_OFF:x}")
    e(f"s_mov_b32 s{sCNT}, 0")
    e("L_PRB:")
    e(f"s_add_u32 s{sT+1}, s{sT}, 8192")
    e(f"s_memtime s[40:41]")
    e(f"s_load_dword s46, s[{WS}:{WS+1}], s{sT} glc")
    e("s_waitcnt lgkmcnt(0)")
    e(f"s_memtime s[42:43]")
    e(f"s_load_dword s46, s[{WS}:{WS+1}], s{sT+1} glc")
    e("s_waitcnt lgkmcnt(0)")
    e(f"s_memtime s[44:45]")
    e("s_lshl_b32 s42, s42, 1")
    e("s_sub_u32 s40, s42, s40")
    e("s_waitcnt lgkmcnt(0)")
    e("s_sub_u32 s40, s40, s44")
    e("s_lshr_b32 s40, s40, 31")
    e(f"s_add_u32 s{sCNT}, s{sCNT}, s40")
    e(f"s_addk_i32 s{sT}, 1280")
    e(f"s_cmp_lt_u32 s{sT}, 0x{HS_OFF + cfg.NPR*1280:x}")
    e("s_cbranch_scc1 L_PRB")
    e(f"s_cmp_gt_u32 s{sCNT}, {cfg.NPR//2}")
    e(f"s_cselect_b32 s{sT}, 2, 3")
    if cfg.POL >= 0:
        e(f"s_mov_b32 s{sT}, {2+cfg.POL}")
    e(f"v_mov_b32 v40, s{sT}")
    e(f"v_lshlrev_b32 v41, 8, v{vLANE}")
    e(f"s_mov_b32 s{sT}, 0x{QS_OFF:x}")
    e("s_mov_b64 exec, 0xff")
    e(f"buffer_store_dword v40, v41, s[{WS}:{WS+3}], s{sT} offen sc1")
    e("s_mov_b64 exec, -1")
    if cfg.TS:
        ts(9)
        pass
    e("L_HELP1:")
    e(f"s_cmp_le_u32 s{sNBMAX}, {GB}")
    e("s_cbranch_scc1 L_FIN")
    e(f"s_cmp_eq_u32 s{sHOP}, 0")
    e("s_cbranch_scc1 L_HELP2")
    e("s_barrier")
    e("L_HELP2:")
    e(f"s_add_u32 s{sBB}, s{sBB}, {GB}")
    e(f"s_cmp_lt_u32 s{sBB}, s{sNBMAX}")
    e(f"s_cbranch_scc1 L_NEXTB")
    e(f"s_cmp_lg_u32 s{sHOP}, 0")
    e("s_cbranch_scc1 L_FIN")
    e("v_mov_b32 v53, 0")
    e("s_branch L_SYNC2")
    e(f"L_NEXTB:")
    ts(2)
    if cfg.XD == 7:
        for i in range(16):
            e("s_sleep 127")
    e("s_waitcnt vmcnt(0) lgkmcnt(0)")
    e("s_barrier")
    e(f"s_branch L_BATCH")
    e(f"L_END:")
    e("s_endpgm")

DOC = """; ---------------------------------------------------------------------------------------------
;      16-byte granules {3 x (src|norm<<16), 3 x 10-bit key} plus a table row (start,count per bucket).
; ---------------------------------------------------------------------------------------------"""
head = open("standalone__spectral_conv_sgc__graph.s.ref").read().split("; Override")[0]
e(head.rstrip())
e(f"; @launch grid=(256,1,1) block=(1024,1,1) lds={L_END}")
e(DOC)
e('.amdgcn_target "amdgcn-amd-amdhsa--gfx950"')
e(".text")
body()
e('.section .rodata,"a"')
e(".p2align 6")
acc = (NV + 3) // 4 * 4
e(f""".amdhsa_kernel {NAME}
  .amdhsa_next_free_vgpr {NV}
  .amdhsa_next_free_sgpr {NS}
  .amdhsa_accum_offset {acc}
  .amdhsa_group_segment_fixed_size 0
  .amdhsa_kernarg_size 64
  .amdhsa_user_sgpr_count 2
  .amdhsa_user_sgpr_kernarg_segment_ptr 1
  .amdhsa_system_sgpr_workgroup_id_x 1
  .amdhsa_float_denorm_mode_32 3
.end_amdhsa_kernel
""")
LABS = {'L_H0': 'helper waves 13-15: barrier-line zeroing', 'L_E0': 'edge waves: histogram, scatter into granule staging', 'L_P1H1': 'helper waves', 'L_P1_W13': 'wave 13: bucket scan, table row, ready check', 'L_P1_JOIN': 'all waves: constants, arrive at R, early table read', 'L_BATCH': 'next batch / restart: re-zero counters', 'L_DECODE': 'table entries -> granule descriptors', 'L_LD_DONE': 'table re-read, x prefetch, rank atomics', 'L_NODE1_DONE': 'scatter records, degree order', 'L_GDONE': 'end of a gather', 'L_SYNC2': 'barrier H', 'L_G2': 'hop 2 gather', 'L_EPI': 'GEMM epilogue', 'L_HELPER': 'wave without nodes', 'L_MBENC': 'multi-batch hop 2'}
out = [(l + "    ; " + LABS[l[:-1]]) if l.endswith(":") and l[:-1] in LABS else l for l in out]
open(sys.argv[1], "w").write("\n".join(out) + "\n")
```

```python
import sys

class Cfg:
    D = 2
    TS = 0
    PF2 = 5
    DW = 1
    RL = 1
    NPR = 3
    SKP = 1
    XD = 0
    SH = 16
    TE = 0
    R1 = 1
    FF = 1
    LV = 1
    FAIL = 0
    EP = 1
    AE = 0
    KV = 0
    BAL = 1
    O4 = 1
    DB0 = 0
    DB1 = 0
    FB = 0
    WL = 0
    EO = 0
    E2 = 0
    ER = 0
    RB = -1
    FD = 0
    SB = 1
    CB = 0
    DS = 0
    HC = 0
    HN = 1
    PACE = 7
    EFLAG = ""
    OUTFLAG = "sc1"
    SLEEP = 0
    LATE = 1
    HW = 0
    PFE = 0
    SA = 0
    WST = 32
    DEF = 1
    ENT = 0
    CLI = 1
    RN = 4
    TYP = "RS"
    POL = -1
    SPL = 5
    XMASK = 0
    PFA = 0
    PFS = 4
    PFO = 0
    VW0 = 7
    VW1 = 7
    PFB = 0
    PFD = 0
    PFE2 = 0
    PFX = -1
    SP = 7
    PFC = 0
    PEER = 0
    OWN = 2
    RW = 1
    CPF = 1
cfg = Cfg()
for a in sys.argv[2:]:
    k, v = a.split("=")
    cur = getattr(cfg, k)
    setattr(cfg, k, int(v) if isinstance(cur, int) else v.replace("+", " "))

N = 50000; E = 850000
NB = 196; CH = 3328; MAG = 85599
CG = 1280
TAB_OFF = 0x680000
SY_OFF = 0x700000
RP_OFF = 0x710000
HS_OFF = 0x760000
RS_OFF = 0x740000
QS_OFF = 0x770000
PR_OFF = 0x720000
H1_OFF = 0x800000
H1B = 784 * 16384
TS_OFF = 0x1600000
WS_USED = 0x1800000
ROWB = N * 128
SPIN_FAST = 4096
SPIN_MAX = 1 << 21
GB = 128

SPL = cfg.SPL
NW = SPL + -(-(NB - 8 * SPL) // 16)
NNORM = NW - SPL
NSLOT = 8 * SPL + 16 * NNORM
assert NW <= 16
L_NT = 0
L_D = 2048
L_WT = L_D + 8192
L_CNT = L_WT + 8192
NCL = 4 << cfg.SB
L_DH = L_CNT + (257 * NCL * 4 + 255) // 256 * 256
L_MISC = L_DH + 256
L_ZEND2 = L_MISC + 256
L_Q = L_ZEND2
L_HIST = L_ZEND2
L_STAGE = L_HIST + 1024
L_ZEND = L_STAGE + CG * 24
L_RECS = L_STAGE
RDELTA = 27648
L_TILE = L_RECS + 2 * RDELTA
L_END = L_TILE + NW * 2048
assert L_TILE % 128 == 0 and L_RECS + RDELTA < 65536 and RDELTA % 512 == 0 and L_RECS % 16 == 0

Z1 = max(L_CNT, L_STAGE - 16384)
out = []
def e(s=""):
    out.append(s)

def srd(d, lo, nrec, off=0):
    if off:
        e(f"s_add_u32 s{d}, s{lo}, 0x{off:x}")
        e(f"s_addc_u32 s{d+1}, s{lo+1}, 0")
    else:
        e(f"s_mov_b32 s{d}, s{lo}")
        e(f"s_mov_b32 s{d+1}, s{lo+1}")
    e(f"s_mov_b32 s{d+2}, 0x{nrec:x}")
    e(f"s_mov_b32 s{d+3}, 0x20000")

def dpp_add(v, ctl):
    e(f"v_add_u32_dpp v{v}, v{v}, v{v} {ctl}")
SCAN = [f"row_shr:{s} row_mask:0xf bank_mask:0xf bound_ctrl:0" for s in (1, 2, 4, 8)] + \
       ["row_bcast:15 row_mask:0xa bank_mask:0xf", "row_bcast:31 row_mask:0xc bank_mask:0xf"]
def scan64(v, fill=(), steps=SCAN):
    fill = list(fill)
    for ctl in steps:
        dpp_add(v, ctl)
        if len(fill) >= 2:
            e(fill.pop(0)); e(fill.pop(0))
        elif len(fill) == 1:
            e(fill.pop(0)); e("s_nop 0")
        else:
            e("s_nop 1")
    for f in fill:
        e(f)

T3, G, WS, O, T1, T2 = 4, 8, 12, 16, 20, 24
sW, sTB, sBB, sNBMAX, s128, sCNT, sT, sNR = 28, 29, 30, 31, 32, 33, 34, 36
sHOP, sN0, sSPIN = 37, 38, 39
sM = 40
sNODE = 52
sTMP = 54
sI4, sPN = 56, 57
sMODE = 66
sSTR = 64
sQ = 59
sK, sSEL = 60, 61
sVAL = 58
pW, pOUT, pDBG = 60, 62, 64
sC1, sC2, sC3 = 40, 41, 42
sTS = 68
NS = 102 if cfg.TS else 68
vLANE, vE, vP, vSEL0, vSEL1, vLOFF, vONE = 1, 2, 3, 4, 5, 6, 7
vACC = 8
vPA, vEA, vPB, vEB, vROWA, vROWB, vAD, vPFD = 24, 25, 26, 27, 28, 29, 30, 31
vST = 120
vTW, vTR = 36, 37
vQM, vQA = 32, 33
vTP = 38
D = cfg.D
vDATA = 40
vAOP = vDATA + 16 * D
vW = max(vAOP + 8 * D, 88)
NV = 128
assert D == 2 and vW + 32 <= vST
assert NV <= 128
vX = 72
vTA, vE2 = 62, 63

def ts(slot, mode=1):
    if cfg.TS == 4 and slot != 13:
        return
    if cfg.TS == 2 and mode == 1 and slot in (4, 5, 6, 7):
        return
    if cfg.TS != 2 and mode == 2:
        return
    if cfg.TS:
        e(f"s_memrealtime s[{sTS+2*slot}:{sTS+2*slot+1}]")
        e("s_waitcnt lgkmcnt(0)")
def ts_dump():
    if not cfg.TS:
        return
    e("s_waitcnt vmcnt(0)")
    ts(13)
    e(f"s_lshl_b32 s{sT}, s2, 4")
    e(f"s_add_u32 s{sT}, s{sT}, s{sW}")
    e(f"s_lshl_b32 s{sT}, s{sT}, 7")
    e(f"s_add_u32 s{sT}, s{sT}, 0x{TS_OFF:x}")
    if cfg.TS == 3:
        e(f"v_lshl_add_u32 v41, v{vLANE}, 2, s{sT}")
        e("v_add_u32 v41, 0x80000, v41")
        e("s_mov_b64 exec, 0xffff")
        e(f"buffer_store_dword v35, v41, s[{WS}:{WS+3}], 0 offen")
    e("s_mov_b64 exec, 1")
    e(f"v_mov_b32 v40, s{sT}")
    for i in range(8):
        for j in range(4):
            e(f"v_mov_b32 v{44+4*i+j}, s{sTS+4*i+j}")
        e(f"buffer_store_dwordx4 v[{44+4*i}:{47+4*i}], v40, s[{WS}:{WS+3}], 0 offen offset:{16*i}")

lbl = [0]
def newlab(p):
    lbl[0] += 1
    return f"L_{p}{lbl[0]}"
def spin_tail(loop, done):
    slow = newlab("SLW")
    e(f"s_add_u32 s{sSPIN}, s{sSPIN}, 1")
    e(f"s_cmp_ge_u32 s{sSPIN}, {SPIN_FAST}")
    e(f"s_cbranch_scc1 {slow}")
    if cfg.SLEEP:
        e(f"s_sleep {cfg.SLEEP}")
    e(f"s_branch {loop}")
    e(f"{slow}:")
    e(f"s_cmp_ge_u32 s{sSPIN}, {SPIN_MAX}")
    e(f"s_cbranch_scc1 {done}")
    e("s_sleep 64")
    e(f"s_branch {loop}")
def arrive_a(b, v=40):
    e(f"s_and_b32 s{sT}, s2, 7")
    e(f"s_lshl_b32 s{sT}, s{sT}, 8")
    e(f"s_add_u32 s{sT}, s{sT}, 0x{SY_OFF + b*cfg.WST:x}")
    if cfg.SA:
        sa = 67
        e(f"s_mov_b32 s{sa}, 1")
        e(f"s_atomic_add s{sa}, s[{WS}:{WS+1}], s{sT} glc")
        return
    e(f"v_mov_b32 v{v}, s{sT}")
    e(f"v_mov_b32 v{v+1}, 1")
    e("s_mov_b64 exec, 1")
    e(f"buffer_atomic_add v{v+1}, v{v}, s[{WS}:{WS+3}], 0 offen sc0 sc1")
def arrive_b(b, v=40, cnt=0, after=None):
    lab = newlab("ARR")
    sp = cfg.SP >> b & 1
    e("s_mov_b64 exec, -1" if sp else "s_mov_b64 exec, 0xff")
    e(f"v_lshlrev_b32 v{v+2}, 8, v{vLANE}")
    e(f"v_add_u32 v{v+2}, 0x{SY_OFF + 2048 + b*cfg.WST:x}, v{v+2}")
    if cfg.SA:
        e("s_waitcnt lgkmcnt(0)")
        e(f"s_cmp_lg_u32 s67, 31")
    else:
        e(f"s_waitcnt vmcnt({cnt})")
        e(f"v_readfirstlane_b32 s{sT}, v{v+1}")
        e(f"s_cmp_lg_u32 s{sT}, 31")
    e(f"s_cbranch_scc1 {lab}")
    e(f"buffer_atomic_add v{vONE}, v{v+2}, s[{WS}:{WS+3}], 0 offen sc1")
    if after:
        for x in after:
            e(x)
    e(f"{lab}:")
    e("s_mov_b64 exec, -1")
def arrive(b, mid=None):
    arrive_a(b)
    if mid:
        e(mid)
    arrive_b(b)
def rcount():
    lab = newlab("RC")
    e(f"v_mov_b32 v64, {L_MISC+8}")
    e("s_mov_b64 exec, 1")
    e(f"ds_add_rtn_u32 v65, v64, v{vONE}")
    e("s_waitcnt lgkmcnt(0)")
    e("v_cmp_eq_u32 vcc, 13, v65")
    e("s_mov_b64 exec, -1")
    e(f"s_cbranch_vccz {lab}")
    arrive_a(1, 64)
    if cfg.DEF:
        e("s_mov_b64 exec, -1")
        e(f"s_mov_b32 s{sPN}, 1")
    else:
        arrive_b(1, 64)
    e(f"{lab}:")
def poll_a(b):
    if cfg.SP >> b & 1:
        return
    e(f"s_and_b32 s{sSPIN}, s2, 7")
    e(f"s_lshl_b32 s{sSPIN}, s{sSPIN}, 8")
    e(f"s_add_u32 s{sSPIN}, s{sSPIN}, 0x{SY_OFF + 2048 + b*cfg.WST:x}")
    e(f"v_mov_b32 v{vTP}, s{sSPIN}")
    e("s_mov_b64 exec, 1")
    e(f"buffer_load_dword v{vTP+1}, v{vTP}, s[{WS}:{WS+3}], 0 offen sc1")
def poll_b(b):
    lab = newlab("POLL")
    if cfg.SP >> b & 1:
        e(f"s_and_b32 s{sT}, s2, 63")
        e(f"s_lshl_b32 s{sT}, s{sT}, 8")
        e(f"s_add_u32 s{sT}, s{sT}, 0x{SY_OFF + 2048 + b*cfg.WST:x}")
        e(f"s_mov_b32 s{sSPIN}, 0")
        e(f"{lab}:")
        e(f"s_load_dword s{sT+1}, s[{WS}:{WS+1}], s{sT} glc")
        e("s_waitcnt lgkmcnt(0)")
        e(f"s_cmp_eq_u32 s{sT+1}, 8")
        e(f"s_cbranch_scc1 {lab}x")
        spin_tail(lab, lab + "x")
        e(f"{lab}x:")
        return
    e("s_mov_b64 exec, 1")
    e(f"s_mov_b32 s{sSPIN}, 0")
    e(f"s_branch {lab}c")
    e(f"{lab}:")
    e(f"buffer_load_dword v{vTP+1}, v{vTP}, s[{WS}:{WS+3}], 0 offen sc1")
    e(f"{lab}c:")
    e("s_waitcnt vmcnt(0)")
    e(f"v_cmp_eq_u32 vcc, 8, v{vTP+1}")
    e(f"s_cbranch_vccnz {lab}x")
    spin_tail(lab, lab + "x")
    e(f"{lab}x:")
    e("s_mov_b64 exec, -1")
def poll(b):
    poll_a(b)
    poll_b(b)

def probe_off(d):
    e(f"s_lshr_b32 s{d}, s2, 6")
    e(f"s_lshl_b32 s{d}, s{d}, 6")
    e(f"s_add_u32 s{d}, s{d}, s2")
    e(f"s_lshl_b32 s{d}, s{d}, 7")
    e(f"s_add_u32 s{d}, s{d}, 0x{PR_OFF:x}")
S32 = cfg.SH == 32
def bar_bump_addr(v):
    if S32:
        e(f"s_lshr_b32 s{sT}, s2, 3")
        e(f"s_lshl_b32 s{sT}, s{sT}, 6")
        e(f"v_lshl_add_u32 v{v}, v{vLANE}, 11, s{sT}")
        return
    if cfg.SH == 16:
        e(f"s_bfe_u32 s{sT}, s2, 0x40003")
        e(f"s_lshl_b32 s{sT}, s{sT}, 6")
    else:
        e(f"s_bfe_u32 s{sT}, s2, 0x30003")
        e(f"s_lshl_b32 s{sT}, s{sT}, 7")
    e(f"v_lshl_add_u32 v{v}, v{vLANE}, 10, s{sT}")
def bar_bump(v):
    if S32:
        e("s_mov_b32 exec_hi, 0")
    e(f"buffer_atomic_add v{vONE}, v{v}, s[{WS}:{WS+3}], s{sT} offen sc1")
    if S32:
        e("s_mov_b32 exec_hi, -1")
def bar_base(sa):
    if S32:
        e(f"s_add_u32 s{sa}, s{WS}, s{sa}")
        e(f"s_addc_u32 s{sa+1}, s{WS+1}, 0")
    else:
        e(f"s_add_u32 s{sa+1}, s{sa}, 64")
def bar_issue(sa, d):
    if S32:
        for k in range(4):
            e(f"s_load_dword s{d+k}, s[{sa}:{sa+1}], {64*k} glc")
        return
    e(f"s_load_dword s{d}, s[{WS}:{WS+1}], s{sa} glc")
    if cfg.SH == 16:
        e(f"s_load_dword s{d+1}, s[{WS}:{WS+1}], s{sa+1} glc")
def bar_poll(sa, done, issued=False):
    lab = newlab("BP")
    d = 48
    e(f"s_mov_b32 s{sSPIN}, 0")
    if issued:
        e(f"s_branch {lab}c")
    e(f"{lab}:")
    bar_issue(sa, d)
    e("s_waitcnt lgkmcnt(0)")
    e(f"{lab}c:")
    if cfg.SH >= 16:
        e(f"s_add_u32 s{d}, s{d}, s{d+1}")
    if S32:
        e(f"s_add_u32 s{d+2}, s{d+2}, s{d+3}")
        e(f"s_add_u32 s{d}, s{d}, s{d+2}")
    e(f"s_cmp_eq_u32 s{d}, 32")
    e(f"s_cbranch_scc1 {done}")
    spin_tail(lab, done)
def dec_setup():
    e(f"v_and_b32 v{vX+1}, 60, v0")
    e(f"v_lshl_add_u32 v{vX+1}, v{vX+1}, 2, s{sW}")
    e(f"v_mul_u32_u24 v{vX+1}, {CG}, v{vX+1}")
    e(f"v_and_b32 v{vX+3}, 3, v0")
    e(f"v_add_u32 v{vX+1}, v{vX+1}, v{vX+3}")
    e(f"s_lshl_b32 s{sNR}, s{sW}, 9")
    e(f"s_add_u32 s{sNR}, s{sNR}, {L_D}")
    e(f"v_mov_b32 v43, 0")
    e(f"v_mov_b32 v47, 0")
def pf_addr(v, first_wave, base_instr):
    e(f"s_lshr_b32 s{sT}, s2, 3")
    if cfg.PFB:
        e(f"s_and_b32 s{sT+1}, s{sW}, 1")
        e(f"s_xor_b32 s{sT}, s{sT}, s{sT+1}")
    e(f"s_lshl_b32 s{sT}, s{sT}, 6")
    e(f"s_sub_u32 s{sT+1}, s{sW}, {first_wave - base_instr}")
    e(f"s_lshl_b32 s{sT+1}, s{sT+1}, 11")
    e(f"s_add_u32 s{sT}, s{sT}, s{sT+1}")
    if cfg.PFX >= 0:
        e(f"s_lshl_b32 s{sT}, s{sT}, 1")
    e(f"v_add_u32 v{v}, s{sT}, v{vLANE}")
    if cfg.PFS != 4:
        e(f"v_mul_u32_u24 v{v}, {cfg.PFS}, v{v}")
        e(f"v_lshrrev_b32 v{v}, 2, v{v}")
    if cfg.PFO:
        e(f"v_add_u32 v{v}, {cfg.PFO}, v{v}")
    e(f"s_and_b32 s{sT}, s2, 7")
    e(f"s_mul_i32 s{sT}, s{sT}, 6272")
    e(f"v_add_u32 v{v}, s{sT}, v{v}")
    e(f"v_subrev_u32 v{v+1}, 50176, v{v}")
    e(f"v_min_u32 v{v}, v{v}, v{v+1}")
    e(f"v_lshlrev_b32 v{v}, 7, v{v}")
    if cfg.PFX >= 0:
        e(f"s_lshl_b32 s{sT}, s2, 11")
        e(f"s_xor_b32 s{sT}, s{sT}, {cfg.PFX << 13}")
        e(f"v_lshrrev_b32 v{v+1}, 8, v{v}")
        e(f"v_xor_b32 v{v+1}, s{sT}, v{v+1}")
        e(f"v_and_b32 v{v+1}, 0x2000, v{v+1}")
        e(f"v_or_b32 v{v}, v{v}, v{v+1}")

NAME = "standalone__spectral_conv_sgc__graph_kernel"
def body():
    e(f".globl {NAME}")
    e(".p2align 8")
    e(f".type {NAME},@function")
    e(f"{NAME}:")
    def cpf():
        if cfg.CPF:
            e("s_getpc_b64 s[54:55]")
            e("L_PC0:")
            e("v_lshlrev_b32 v43, 7, v0")
            e("v_cmp_gt_u32 vcc, L_END-L_PC0, v43")
            e("s_and_saveexec_b64 s[40:41], vcc")
            e("s_cbranch_execz L_NOCPF")
            e(f"global_load_dword v{vPFD}, v43, s[54:55]")
            e("L_NOCPF:")
            e("s_mov_b64 exec, -1")
    def zero1():
        for i in range(4):
            e(f"v_mov_b32 v{vACC+i}, 0")
        e(f"v_lshlrev_b32 v54, 4, v0")
        e(f"ds_write_b128 v54, v[{vACC}:{vACC+3}] offset:{Z1}")
    def ld_dst():
        e(f"buffer_load_dwordx4 v[44:47], v41, s[{T1}:{T1+3}], 0 offen {cfg.EFLAG}")
    def ld_sn():
        e(f"buffer_load_dwordx4 v[48:51], v41, s[{T2}:{T2+3}], 0 offen {cfg.EFLAG}")
        e(f"buffer_load_dwordx2 v[52:53], v42, s[{T3}:{T3+3}], 0 offen {cfg.EFLAG}")
    def sn_consts():
        e("v_lshrrev_b32 v42, 1, v41")
        e(f"s_mov_b64 s[{T2+2}:{T2+3}], s[{T1+2}:{T1+3}]")
        e(f"s_lshr_b32 s{T3+2}, s{T1+2}, 1")
        e(f"s_mov_b32 s{T3+3}, s{T1+3}")
    if cfg.TS:
        e(f"s_memrealtime s[{sTS}:{sTS+1}]")
    e(f"s_load_dwordx2 s[{T1}:{T1+1}], s[0:1], 16")
    if cfg.ENT != 1:
        e(f"s_load_dwordx2 s[{T2}:{T2+1}], s[0:1], 8")
        e(f"s_load_dwordx2 s[{T3}:{T3+1}], s[0:1], 24")
    e("s_cmpk_ge_u32 s2, 256")
    e("s_cbranch_scc1 L_END")
    if cfg.ENT == 0:
        e(f"s_load_dwordx2 s[{WS}:{WS+1}], s[0:1], 56")
        e(f"s_load_dwordx2 s[{O}:{O+1}], s[0:1], 48")
        cpf()
        zero1()
    e(f"s_lshl_b32 s{sT}, s2, 4")
    e(f"v_and_or_b32 v41, v0, 15, s{sT}")
    e(f"v_lshrrev_b32 v40, 4, v0")
    e(f"v_lshl_add_u32 v40, v40, 12, v41")
    if cfg.BAL:
        e(f"v_and_b32 v41, {16 if cfg.BAL == 1 else 64}, v0")
        e(f"v_mul_u32_u24 v41, {0x60 if cfg.BAL == 1 else 0x18}, v41")
        e(f"v_xor_b32 v40, v40, v41")
    e("v_lshlrev_b32 v41, 4, v40")
    e(f"s_mov_b32 s{T1+2}, 0x{E*4:x}")
    e(f"s_mov_b32 s{T1+3}, 0x20000")
    if cfg.ENT == 2:
        sn_consts()
    e("s_waitcnt lgkmcnt(0)")
    ld_dst()
    if cfg.ENT == 2:
        ld_sn()
    if cfg.ENT == 1:
        e(f"s_load_dwordx2 s[{T2}:{T2+1}], s[0:1], 8")
        e(f"s_load_dwordx2 s[{T3}:{T3+1}], s[0:1], 24")
    if cfg.ENT != 0:
        e(f"s_load_dwordx2 s[{WS}:{WS+1}], s[0:1], 56")
        cpf()
        zero1()
    if cfg.ENT != 2:
        sn_consts()
    e(f"v_cmp_gt_u32 vcc, 832, v0")
    e(f"s_mov_b32 s{WS+2}, 0x{WS_USED:x}")
    e(f"s_mov_b32 s{WS+3}, s{T1+3}")
    if cfg.TS:
        for i in range(1, 16):
            e(f"s_mov_b64 s[{sTS+2*i}:{sTS+2*i+1}], 0")
    if cfg.R1:
        e(f"s_and_b32 s{sT}, s2, 0xc7")
    else:
        e(f"s_and_b32 s{sT}, s2, 0xff")
    e("s_waitcnt lgkmcnt(0)")
    e("s_cbranch_vccz L_H0")
    LS = f"buffer_load_dwordx4 v[48:51], v41, s[{T2}:{T2+3}], 0 offen {cfg.EFLAG}"
    LN = f"buffer_load_dwordx2 v[52:53], v42, s[{T3}:{T3+3}], 0 offen {cfg.EFLAG}"
    if cfg.EO == 1: e(LN)
    if cfg.EO == 2: e(LS)
    e("s_barrier")
    if cfg.EO == 0: ld_sn()
    if cfg.EO == 1: e(LS)
    if cfg.EO == 2: e(LN)
    if cfg.EO == 3: e(LN); e(LS)
    e("s_branch L_E0")
    e("L_H0:")
    e(f"s_movk_i32 s{O+2}, 256")
    e(f"s_mov_b32 s{O+3}, s{T1+3}")
    e("s_cbranch_scc1 L_H05")
    e(f"v_cmp_gt_u32 vcc, 960, v0")
    e("s_cbranch_vccnz L_H05")
    if cfg.R1:
        e(f"s_lshl_b32 s{sT}, s2, 10")
        e(f"s_add_u32 s{sT}, s{sT}, 0x{RS_OFF - 960*16:x}")
        e(f"s_add_u32 s{sT+1}, s{sT}, 8192")
        e("L_ZLOOP:")
        e(f"buffer_store_dwordx4 v[{vACC}:{vACC+3}], v54, s[{WS}:{WS+3}], s{sT} offen sc1")
        e(f"s_addk_i32 s{sT}, 1024")
    else:
        e(f"v_and_b32 v40, 7, v0")
        e(f"v_and_b32 v43, 56, v0")
        e(f"v_lshl_add_u32 v43, v43, 1, v40")
        e(f"v_lshlrev_b32 v43, 4, v43")
        e(f"s_mov_b32 s{sT}, 0x{SY_OFF:x}")
        e(f"s_add_u32 s{sT+1}, s{sT}, {9*2048}")
        e("L_ZLOOP:")
        e(f"buffer_store_dwordx4 v[{vACC}:{vACC+3}], v43, s[{WS}:{WS+3}], s{sT} offen sc1")
        e(f"s_addk_i32 s{sT}, 2048")
    e(f"s_cmp_lt_u32 s{sT}, s{sT+1}")
    e("s_cbranch_scc1 L_ZLOOP")
    e("L_H05:")
    if cfg.DW:
        e(f"buffer_load_dword v{vPFD}, v{vACC}, s[{O}:{O+3}], 0 offen offset:128")
    e("L_H1:")
    e("s_barrier")
    e("s_branch L_P1H1")
    e("L_E0:")
    todo = []
    pos = L_CNT
    while pos < Z1:
        todo.append(min(pos, Z1 + 16384 - 1024 - 13312 - 1024)); pos += 13312
    pos = Z1 + 16384
    while pos < L_ZEND:
        todo.append(min(pos, L_ZEND - 13312)); pos += 13312
    for o in todo:
        assert o + 13312 <= L_HIST or o >= L_HIST + 1024
        if o < 65536:
            e(f"ds_write_b128 v54, v[{vACC}:{vACC+3}] offset:{o}")
        else:
            e(f"v_add_u32 v55, {o}, v54")
            e(f"ds_write_b128 v55, v[{vACC}:{vACC+3}]")
    e(f"v_cmp_gt_u32 vcc, {E//4}, v40")
    e(f"v_mov_b32 v{vONE}, 1")
    e(f"s_mov_b32 s{sC1}, -196")
    e(f"s_mov_b32 s{sC2}, 0x05040100")
    e(f"s_mov_b32 s{sC3}, 0x07060100")
    e(f"v_mov_b32 v43, {L_MISC+12}")
    e(f"v_mul_u32_u24 v80, 24, v0")
    e(f"v_add_u32 v80, {L_STAGE}, v80")
    e(f"v_add_u32 v81, {832*24}, v80")
    e(f"s_mul_i32 s{sT}, s2, {CG*16}")
    e(f"v_lshl_add_u32 v41, v0, 4, s{sT}")
    e(f"v_add_u32 v42, {832*16}, v41")
    e(f"v_add_u32 v82, 832, v0")
    e(f"s_mov_b64 exec, vcc")
    e(f"s_waitcnt vmcnt(2)")
    for i in range(4):
        e(f"v_mul_u32_u24 v{74+i}, {MAG}, v{44+i}")
    for i in range(4):
        e(f"v_lshrrev_b32 v{70+i}, 24, v{74+i}")
        e(f"v_lshlrev_b32 v{54+i}, 2, v{70+i}")
        e(f"ds_add_rtn_u32 v{58+i}, v{54+i}, v{vONE} offset:{L_HIST}")
    e("s_waitcnt lgkmcnt(0)")
    ts(1)
    e("s_barrier")
    for i in range(4):
        e(f"v_mad_i32_i24 v{44+i}, v{70+i}, s{sC1}, v{44+i}")
        e(f"v_and_b32 v{74+i}, 0xe0000000, v{74+i}")
        e(f"v_add_u32 v{44+i}, 1, v{44+i}")
    def keys():
        e(f"s_waitcnt vmcnt({0 if cfg.EO in (1, 3) else 1})")
        ts(5, 2)
        for i in range(4):
            e(f"v_mul_u32_u24 v78, {MAG}, v{48+i}")
            e(f"v_sub_u32 v78, v78, v{74+i}")
            e(f"v_bfe_u32 v78, v78, 29, 2")
            e(f"v_lshl_or_b32 v{63+2*i}, v{44+i}, 2, v78")
    def perms():
        e(f"s_waitcnt vmcnt(0)")
        for i in range(4):
            e(f"v_perm_b32 v{62+2*i}, v{52+i//2}, v{48+i}, s{sC2 if i%2==0 else sC3}")
    if cfg.KV:
        keys()
    if cfg.KV == 2:
        perms()
    e("s_barrier")
    ts(4, 2)
    for i in range(4):
        e(f"ds_read_b32 v{54+i}, v{54+i} offset:{L_HIST}")
    e("s_mov_b64 exec, -1")
    e(f"ds_read_b32 v43, v43")
    e(f"s_mov_b64 exec, vcc")
    if not cfg.KV:
        keys()
    if cfg.KV != 2:
        perms()
    ts(6, 2)
    for i in range(4):
        e(f"s_waitcnt lgkmcnt(4)")
        e(f"v_lshl_add_u32 v{58+i}, v{58+i}, 3, v{54+i}")
        e(f"ds_write_b64 v{58+i}, v[{62+2*i}:{63+2*i}] offset:{L_STAGE}")
    e("s_mov_b64 exec, -1")
    e("s_waitcnt lgkmcnt(0)")
    e(f"v_cmp_lt_u32 vcc, v82, v43")
    ts(7, 2)
    if cfg.XD == 1:
        e("s_sleep 16")
    e("s_barrier")
    def rd3(d, a):
        e(f"ds_read_b64 v[{d}:{d+1}], v{a}")
        e(f"ds_read_b64 v[{d+4}:{d+5}], v{a} offset:8")
        e(f"ds_read_b64 v[{d+2}:{d+3}], v{a} offset:16")
    def pk3(d):
        e(f"v_lshl_or_b32 v{d+3}, v{d+3}, 10, v{d+5}")
        e(f"v_lshl_or_b32 v{d+3}, v{d+3}, 10, v{d+1}")
        e(f"v_mov_b32 v{d+1}, v{d+4}")
    rd3(44, 80)
    e("s_cbranch_vccz L_ST1")
    e("s_mov_b64 exec, vcc")
    rd3(56, 81)
    e("s_waitcnt lgkmcnt(0)")
    pk3(56)
    e(f"buffer_store_dwordx4 v[56:59], v42, s[{WS}:{WS+3}], 0 offen sc1")
    e("s_mov_b64 exec, -1")
    e("L_ST1:")
    e("s_waitcnt lgkmcnt(0)")
    pk3(44)
    e(f"buffer_store_dwordx4 v[44:47], v41, s[{WS}:{WS+3}], 0 offen sc1")
    ts(2)
    e("s_branch L_P1_JOIN")
    def consts():
        e(f"s_load_dwordx2 s[{G}:{G+1}], s[0:1], 0")
        e(f"s_load_dwordx2 s[{pOUT}:{pOUT+1}], s[0:1], 40")
        e(f"v_lshrrev_b32 v{vX+5}, 6, v0")
        e("s_and_b32 s3, s2, 7")
        e(f"v_readfirstlane_b32 s{sW}, v{vX+5}")
        e("s_lshl_b32 s3, s3, 5")
        e(f"s_lshr_b32 s{sT}, s2, 3")
        e(f"s_or_b32 s3, s3, s{sT}")
        e(f"v_and_b32 v{vLANE}, 63, v0")
        e(f"v_and_b32 v{vX}, 60, v0")
        e(f"v_lshl_add_u32 v{vX}, v{vX}, 2, s{sW}")
        e(f"s_lshl_b32 s{sT}, s3, 2")
        e(f"s_add_u32 s{sT}, s{sT}, 0x{TAB_OFF:x}")
        e(f"v_lshl_add_u32 v{vTA}, v{vX}, 10, s{sT}")
        bar_bump_addr(64)
    def consts_b():
        e(f"s_mov_b32 s{s128}, 128")
        e(f"s_mov_b32 s{sBB}, 0")
        e(f"s_mov_b32 s{sHOP}, 0")
        e(f"s_mov_b32 s{sMODE}, 0")
        for i in range(4, 16):
            e(f"v_mov_b32 v{vACC+i}, 0")
        e(f"v_and_b32 v{vX+4}, 7, v0")
        e(f"v_lshlrev_b32 v{vLOFF}, 4, v{vX+4}")
        e(f"v_and_b32 v{vX+4}, 1, v0")
        e(f"v_mov_b32 v{vX+5}, 0x0c0c0302")
        e(f"v_mov_b32 v{vX+6}, 0x03020c0c")
        e(f"v_cmp_eq_u32 vcc, 1, v{vX+4}")
        e(f"v_mov_b32 v{vX+7}, 0x0c0c0c0c")
        e(f"v_and_b32 v{vX+4}, 2, v0")
        e(f"v_cndmask_b32 v{vX+5}, v{vX+5}, v{vX+6}, vcc")
        e(f"v_cmp_eq_u32 vcc, 2, v{vX+4}")
        e(f"v_mov_b32 v{vP}, 0")
        e(f"s_and_b32 s{sT}, s2, 7")
        e(f"s_lshl_b32 s{sT}, s{sT}, 8")
        e(f"s_add_u32 s{sQ-1}, s{sT}, 0x{QS_OFF:x}")
        e(f"s_mov_b32 s{G+2}, 0x{ROWB:x}")
        e(f"v_cndmask_b32 v{vSEL0}, v{vX+5}, v{vX+7}, vcc")
        e(f"v_cndmask_b32 v{vSEL1}, v{vX+7}, v{vX+5}, vcc")
        e(f"v_cmp_gt_u32 vcc, {NSLOT}, v0")
        e(f"s_mov_b64 s[{sNODE}:{sNODE+1}], vcc")
        e(f"s_mov_b32 s{G+3}, 0x20000")
        srd(O, WS, H1B, H1_OFF)
        e(f"s_sub_u32 s{sI4}, s{sW}, 1")
        e(f"s_and_b32 s{sI4}, s{sI4}, 7")
        e(f"s_and_b32 s{sT}, s2, {31 if S32 else 63}")
        e(f"s_lshl_b32 s{sT}, s{sT}, 3")
        e(f"s_add_u32 s{sI4}, s{sI4}, s{sT}")
        e(f"s_lshl_b32 s{sI4}, s{sI4}, {8 if S32 else 7}")
        e(f"s_add_u32 s{sI4}, s{sI4}, 0x{RS_OFF:x}")
        bar_base(sI4)
        if cfg.DS:
            dec_setup()
    e("L_P1H1:")
    e(f"v_and_b32 v{vLANE}, 63, v0")
    e(f"v_and_b32 v40, 7, v0")
    e(f"v_lshlrev_b32 v{vLOFF}, 4, v40")
    e(f"v_mov_b32 v{vONE}, 1")
    e(f"v_cmp_gt_u32 vcc, 960, v0")
    e("s_cbranch_vccnz L_P1H2")
    e(f"s_and_b32 s{sT}, s2, {'0xc7' if cfg.R1 else '0xff'}")
    e("s_cbranch_scc1 L_W15_B")
    for i in range(4):
        e(f"v_mov_b32 v{56+i}, 1")
    e(f"s_lshl_b32 s{sT}, s2, 1")
    e(f"s_mov_b64 exec, {'1' if cfg.R1 else '0xff'}")
    e(f"s_waitcnt vmcnt({1 if cfg.DW else 0})")
    e(f"buffer_store_dwordx4 v[56:59], v{vLOFF}, s[{O}:{O+3}], s{sT} offen sc1")
    e("L_W15_B:")
    e(f"s_lshl_b32 s{sT}, s2, 8")
    e(f"s_add_u32 s{sT}, s{sT}, 0x{HS_OFF - 960*16:x}")
    e(f"s_add_u32 s{sT+1}, s{sT}, 0x{QS_OFF - HS_OFF:x}")
    e("s_mov_b64 exec, 0xffff")
    e(f"buffer_store_dwordx4 v[{vACC}:{vACC+3}], v54, s[{WS}:{WS+3}], s{sT} offen sc1")
    e("s_cmp_ge_u32 s2, 8")
    e("s_cbranch_scc1 L_W15_C")
    e(f"buffer_store_dwordx4 v[{vACC}:{vACC+3}], v54, s[{WS}:{WS+3}], s{sT+1} offen sc1")
    e("L_W15_C:")
    e("s_mov_b64 exec, -1")
    e("s_barrier")
    if cfg.HC:
        e("s_branch L_HC")
    else:
        e("s_barrier")
        e("s_barrier")
        e("s_waitcnt lgkmcnt(0)")
        e("s_branch L_P1_JOIN")
    e("L_P1H2:")
    e(f"s_load_dwordx2 s[{pW}:{pW+1}], s[0:1], 32")
    e(f"v_cmp_gt_u32 vcc, 896, v0")
    e("s_waitcnt lgkmcnt(0)")
    e("s_cbranch_vccnz L_P1_W13")
    srd(T1, pW, 8192)
    WB = 88
    e(f"v_lshlrev_b32 v40, 4, v{vLANE}")
    e(f"v_add_u32 v41, 4096, v40")
    def wload():
        for i in range(8):
            e(f"buffer_load_dwordx4 v[{WB+4*i}:{WB+3+4*i}], v{40+i//4}, s[{T1}:{T1+3}], 0 offen offset:{1024*(i%4)}")
    def wstore():
        e(f"v_lshrrev_b32 v{vTP}, 3, v{vLANE}")
        e(f"v_lshl_add_u32 v{vTP}, v{vTP}, 1, v{vLOFF}")
        for i in range(8):
            for el in range(8):
                off = L_WT + (el & 3) * 2048 + (el >> 2) * 128 + (i & 3) * 256 + (i >> 2) * 1024
                op = "ds_write_b16" if el % 2 == 0 else "ds_write_b16_d16_hi"
                e(f"{op} v{vTP}, v{WB+4*i+el//2} offset:{off}")
    assert cfg.O4
    wload()
    e("s_barrier")
    if cfg.HC:
        e("s_branch L_HC")
        e("L_W14B:")
    else:
        e("s_barrier")
        e("s_barrier")
    e(f"s_waitcnt vmcnt(0)")
    wstore()
    e("s_branch L_JOIN2" if cfg.HC else "s_branch L_P1_JOIN")
    e("L_P1_W13:")
    e("s_setprio 3")
    e("s_memtime s[40:41]")
    e(f"v_lshlrev_b32 v79, 4, v{vLANE}")
    e(f"s_lshl_b32 s{sT}, s2, 10")
    e(f"s_add_u32 s{sT}, s{sT}, 0x{TAB_OFF:x}")
    e(f"v_add_u32 v78, s{sT}, v79")
    e(f"v_mov_b32 v75, {L_MISC+12}")
    e(f"s_mov_b32 s{sT}, 43691")
    e(f"v_mov_b32 v74, {2*43691}")
    e("s_waitcnt lgkmcnt(0)")
    e("s_lshr_b32 s40, s40, 2")
    e("s_mul_i32 s40, s40, 0x400800")
    e("s_and_b32 s40, s40, 0xf800f800")
    e("s_barrier")
    e(f"ds_read_b128 v[80:83], v79 offset:{L_HIST}")
    e("s_waitcnt lgkmcnt(0)")
    for i in range(4):
        e(f"v_mad_u32_u24 v{80+i}, v{80+i}, s{sT}, v74")
    for i in range(4):
        e(f"v_lshrrev_b32 v{80+i}, 17, v{80+i}")
    e("v_add_u32 v85, v80, v81")
    e("v_add3_u32 v84, v85, v82, v83")
    e("v_add_u32 v86, v85, v82")
    e("v_mov_b32 v87, v84")
    scan64(84, fill=["v_mul_u32_u24 v69, 24, v80", "v_mul_u32_u24 v70, 24, v85", "v_mul_u32_u24 v71, 24, v86",
                     "v_lshl_or_b32 v83, v83, 16, s40", "v_lshl_or_b32 v82, v82, 16, s40", "v_lshl_or_b32 v81, v81, 16, s40",
                     "v_add_u32 v83, v83, v86", "v_add_u32 v82, v82, v85", "v_add_u32 v81, v81, v80",
                     "v_lshl_or_b32 v80, v80, 16, s40"], steps=SCAN[:5])
    dpp_add(84, SCAN[5])
    e("v_sub_u32 v85, v84, v87")
    e("v_mul_u32_u24 v68, 24, v85")
    for i in range(1, 4):
        e(f"v_add_u32 v{68+i}, v{68+i}, v68")
    e(f"ds_write_b128 v79, v[68:71] offset:{L_HIST}")
    e(f"s_mov_b32 exec_lo, 0")
    e(f"s_mov_b32 exec_hi, 0x80000000")
    e("ds_write_b32 v75, v84")
    e("s_mov_b64 exec, -1")
    for i in range(4):
        e(f"v_add_u32 v{80+i}, v{80+i}, v85")
    e(f"buffer_store_dwordx4 v[80:83], v78, s[{WS}:{WS+3}], 0 offen sc1")
    e("s_waitcnt lgkmcnt(0)")
    if cfg.HC:
        e("L_HC:")
    e("s_barrier")
    if cfg.HC:
        consts()
        e(f"s_cmp_eq_u32 s{sW}, 14")
        e("s_barrier")
        e("s_cbranch_scc1 L_W14B")
        e(f"s_cmp_eq_u32 s{sW}, 15")
        e("s_cbranch_scc1 L_JOIN2")
        e("s_mov_b64 exec, 0xff")
    else:
        e("s_mov_b64 exec, 0xff")
        e("s_barrier")
    e(f"s_mov_b32 s{sSPIN}, 0")
    if not cfg.RL:
        e("s_branch L_RDY1")
    if cfg.ER:
        e(f"s_and_b32 s{sI4}, s2, 63")
        e(f"s_lshl_b32 s{sI4}, s{sI4}, 10")
        e(f"s_add_u32 s{sI4}, s{sI4}, 0x{RS_OFF:x}")
        bar_base(sI4)
    e("L_RDY:")
    e(f"buffer_load_dword v76, v{vLOFF}, s[{O}:{O+3}], 0 offen sc1")
    if cfg.ER:
        bar_issue(sI4, 48)
    e("L_RDY1:")
    e("s_waitcnt vmcnt(0) lgkmcnt(0)")
    e("v_cmp_ne_u32 vcc, 1, v76")
    e("s_cbranch_vccz L_RDYX")
    spin_tail("L_RDY", "L_RDYX")
    e("L_RDYX:")
    e("s_setprio 0")
    if cfg.ER:
        e("s_add_u32 s48, s48, s49")
        e(f"s_cmp_lt_u32 s48, {cfg.ER}")
        e("s_cselect_b32 s48, 1, 0")
        e("v_mov_b32 v76, s48")
        e("ds_write_b32 v75, v76 offset:4")
    e("s_mov_b64 exec, -1")
    ts(1)
    if cfg.HC:
        e("s_branch L_JOIN2")
    e("L_P1_JOIN:")
    consts()
    e("L_JOIN2:")
    if cfg.CB == 0:
        consts_b()
    e(f"s_mov_b32 s{sT}, 0x{RS_OFF:x}")
    e(f"s_cmp_lg_u32 s{sW}, 0")
    e("s_waitcnt vmcnt(0) lgkmcnt(0)")
    ts(14)
    e("s_barrier")
    e(f"buffer_load_dword v{vE}, v{vTA}, s[{WS}:{WS+3}], 0 offen sc1")
    e("s_cbranch_scc1 L_NOARR")
    bar_bump(64)
    e("L_NOARR:")
    if cfg.CB == 1:
        consts_b()
    e(f"s_cmp_eq_u32 s{sW}, 0")
    e("s_waitcnt vmcnt(1)")
    e("s_cbranch_scc1 L_DECODE")
    e(f"s_cmp_gt_u32 s{sW}, 8")
    e("s_waitcnt vmcnt(0)")
    e("s_cbranch_scc1 L_DECODE")
    bar_issue(sI4, 48)
    e("s_branch L_DECODE")

    e("L_BATCH:")
    e(f"s_mov_b32 s{sMODE}, 2")
    e(f"v_mov_b32 v{vX}, 0")
    e(f"v_mov_b32 v{vX+1}, 0")
    e(f"v_mov_b32 v{vX+2}, 0")
    e(f"v_mov_b32 v{vX+3}, 0")
    e(f"v_lshlrev_b32 v{vX+4}, 4, v0")
    nzb = (L_ZEND2 - L_CNT) // 16
    zo = 0
    while nzb > 1024:
        e(f"ds_write_b128 v{vX+4}, v[{vX}:{vX+3}] offset:{L_CNT+zo}")
        nzb -= 1024; zo += 16384
    e(f"v_cmp_gt_u32 vcc, {nzb}, v0")
    e(f"s_mov_b64 exec, vcc")
    e(f"ds_write_b128 v{vX+4}, v[{vX}:{vX+3}] offset:{L_CNT+zo}")
    e("s_mov_b64 exec, -1")
    if cfg.DS:
        dec_setup()
    e("L_DECODE:")
    if not cfg.DS:
        dec_setup()
    if cfg.FAIL:
        e(f"s_cmp_lg_u32 s{sMODE}, 0")
        e("s_cbranch_scc1 L_NOFAIL")
        e(f"s_and_b32 s{sT}, s2, 3")
        e(f"s_cmp_lg_u32 s{sT}, 1")
        e("s_cbranch_scc1 L_NOFAIL")
        e(f"s_cmp_lt_u32 s{sW}, {16 - cfg.FAIL}")
        e("s_cbranch_scc1 L_NOFAIL")
        e(f"v_mul_u32_u24 v{vE}, 0x9e3b, v{vE}")
        e(f"v_xor_b32 v{vE}, v{vE}, v0")
        e("L_NOFAIL:")
    vNG, vG0, vQ, vT, vB, vA = vX, vX+1, vX+2, vX+3, vX+4, vX+5
    vGR = 40
    vKEY = 48
    vRANK = 54
    vDS = 60
    ts(4)
    e(f"v_bfe_u32 v{vNG}, v{vE}, 16, 11")
    e(f"v_bfe_u32 v{vQ}, v{vE}, 16, 11")
    e(f"v_and_b32 v{vB}, 0x7ff, v{vE}")
    e(f"v_add_u32 v{vG0}, v{vG0}, v{vB}")
    scan64(vQ, fill=[f"v_sub_u32 v{vB}, v{vT}, v{vNG}", f"v_subrev_u32 v{vB}, s{sBB}, v{vB}",
                     f"v_cmp_lt_u32 s[{sTMP}:{sTMP+1}], v{vT}, v{vNG}", f"v_lshl_add_u32 v{vDS}, v{vLANE}, 2, s{sNR}"], steps=SCAN[2:])
    e(f"v_readlane_b32 s{sTB}, v{vQ}, 63")
    e(f"v_add_u32 v{vB}, v{vB}, v{vQ}")
    if cfg.FD:
        e(f"v_sub_u32 v{vA}, 3, v{vB}")
        e(f"v_max_i32 v{vA}, 0, v{vA}")
        e(f"v_and_b32 v{vA}, -4, v{vA}")
        e(f"v_add_u32 v{vB}, v{vB}, v{vA}")
        e(f"v_add_u32 v{vG0}, v{vG0}, v{vA}")
        e(f"v_add_u32 v{vT}, v{vT}, v{vA}")
        e(f"v_sub_u32 v{vT}, v{vNG}, v{vT}")
        e(f"v_sub_u32 v{vA}, s{s128}, v{vB}")
        e(f"v_min_i32 v{vT}, v{vT}, v{vA}")
        e(f"v_lshl_add_u32 v{vA}, v{vB}, 2, s{sNR}")
        e("L_DLOOP:")
        for k in range(2):
            e(f"v_cmpx_lt_i32 vcc, {4*k}, v{vT}")
            e("s_cbranch_execz L_DLOOPX")
            e(f"ds_write_b32 v{vA}, v{vG0} offset:{16*k}")
            e(f"v_add_u32 v{vG0}, 4, v{vG0}")
        e(f"v_add_u32 v{vA}, 32, v{vA}")
        e(f"v_subrev_u32 v{vT}, 8, v{vT}")
        e("s_branch L_DLOOP")
        e("L_DLOOPX:")
        e("s_mov_b64 exec, -1")
    else:
        e(f"L_DLOOP:")
        e(f"v_cmp_gt_u32 vcc, s{s128}, v{vB}")
        e(f"v_lshl_add_u32 v{vA}, v{vB}, 2, s{sNR}")
        e(f"v_add_u32 v{vT}, 4, v{vT}")
        e(f"v_add_u32 v{vB}, 4, v{vB}")
        e(f"s_and_b64 exec, vcc, s[{sTMP}:{sTMP+1}]")
        e(f"ds_write_b32 v{vA}, v{vG0}")
        e("s_mov_b64 exec, -1")
        e(f"v_cmp_lt_u32 s[{sTMP}:{sTMP+1}], v{vT}, v{vNG}")
        e(f"v_cmp_gt_i32 vcc, s{s128}, v{vB}")
        e(f"v_add_u32 v{vG0}, 4, v{vG0}")
        e(f"s_and_b64 s[{sTMP}:{sTMP+1}], s[{sTMP}:{sTMP+1}], vcc")
        e(f"s_cbranch_scc1 L_DLOOP")
    e(f"ds_read2st64_b32 v[{vDS}:{vDS+1}], v{vDS} offset0:0 offset1:1")
    e(f"s_sub_i32 s{sNR}, s{sTB}, s{sBB}")
    e(f"v_add_u32 v{vA}, 64, v{vLANE}")
    e(f"v_cmp_gt_i32 s[{sM}:{sM+1}], s{sNR}, v{vLANE}")
    e(f"v_cmp_gt_i32 s[{sM+6}:{sM+7}], s{sNR}, v{vA}")
    ts(3)
    e("s_waitcnt lgkmcnt(0)")
    e(f"v_lshlrev_b32 v{vDS}, 4, v{vDS}")
    e(f"v_lshlrev_b32 v{vDS+1}, 4, v{vDS+1}")
    e(f"s_cmp_eq_u32 s{sMODE}, 1")
    e("s_cbranch_scc1 L_NOA6")
    if cfg.PFA:
        e(f"s_cmp_lt_u32 s{sW}, {16-cfg.PFA}")
        e("s_cbranch_scc1 L_NOPFA")
        pf_addr(vX+8, 16-cfg.PFA, 0)
        e(f"buffer_load_dword v{vPFD}, v{vX+8}, s[{G}:{G+3}], 0 offen")
        e("L_NOPFA:")
    if cfg.R1:
        e(f"s_cmp_lg_u32 s{sMODE}, 0")
        e("s_cbranch_scc1 L_NORPOLL")
        if cfg.WL:
            e(f"s_cmp_eq_u32 s{sW}, 14")
            e("s_cbranch_scc1 L_WST")
        e(f"s_sub_u32 s{sT}, s{sW}, 1")
        e(f"s_cmp_ge_u32 s{sT}, 8")
        e("s_cbranch_scc1 L_NORPOLL")
        bar_poll(sI4, "L_NORPOLL", cfg.EP)
    else:
        e(f"s_cmp_lg_u32 s{sW}, {cfg.RW}")
        e("s_cbranch_scc1 L_NORPOLL")
        poll(1)
    e("L_NORPOLL:")
    e("s_barrier")
    e("L_NOA6:")
    e(f"s_cmp_le_i32 s{sNR}, 0")
    e("s_cbranch_scc1 L_LD_DONE")
    e(f"s_mov_b64 exec, s[{sM}:{sM+1}]")
    e(f"buffer_load_dwordx4 v[{vGR}:{vGR+3}], v{vDS}, s[{WS}:{WS+3}], 0 offen sc1")
    e(f"s_cmp_le_i32 s{sNR}, 64")
    e("s_cbranch_scc1 L_LD_DONE")
    e(f"s_mov_b64 exec, s[{sM+6}:{sM+7}]")
    e(f"buffer_load_dwordx4 v[{vGR+4}:{vGR+7}], v{vDS+1}, s[{WS}:{WS+3}], 0 offen sc1")
    e(f"L_LD_DONE:")
    e("s_mov_b64 exec, -1")
    e(f"s_cmp_lg_u32 s{sMODE}, 0")
    e("s_cbranch_scc1 L_NOVER")
    if cfg.LV == 1:
        e("s_barrier")
    e(f"buffer_load_dword v{vE2}, v{vTA}, s[{WS}:{WS+3}], 0 offen sc1")
    ts(15)
    if cfg.PF2:
        pf_addr(vX+8, 16-cfg.PF2, cfg.PFA)
    if cfg.LV:
        e(f"s_waitcnt vmcnt(1)")
    else:
        e(f"s_mov_b32 s{sMODE}, 1")
        e(f"s_waitcnt vmcnt(0)")
        e(f"v_cmp_ne_u32 vcc, v{vE}, v{vE2}")
        e(f"v_mov_b32 v{vE}, v{vE2}")
        e("s_cbranch_vccnz L_DECODE")
    if cfg.PF2:
        e(f"s_cmp_lt_u32 s{sW}, {16-cfg.PF2}")
        e("s_cbranch_scc1 L_NOPF2")
        e(f"buffer_load_dword v{vPFD}, v{vX+8}, s[{G}:{G+3}], 0 offen")
    e("s_branch L_NOPF2")
    e("L_NOVER:")
    e(f"v_mov_b32 v{vE2}, v{vE}")
    e(f"s_waitcnt vmcnt(0)")
    e("L_NOPF2:")
    ts(5)
    e(f"s_mov_b32 s{sCNT}, 42800")
    def second(lab):
        e(f"s_cmp_le_i32 s{sNR}, 64")
        e(f"s_cbranch_scc1 {lab}")
    for r in range(2):
        if r == 1:
            second("L_RK_DONE")
            e("s_mov_b64 exec, -1")
        for s_ in range(3):
            k = 3 * r + s_
            e(f"v_bfe_u32 v{vKEY+k}, v{vGR+4*r+3}, {10*s_}, 10")
        for s_ in range(3):
            k = 3 * r + s_
            e(f"v_cmp_lt_u32 s[{sM+2*k}:{sM+2*k+1}], 3, v{vKEY+k}")
            e(f"v_mad_u32_u16 v{vX}, v{vGR+4*r+s_}, s{sCNT}, 0")
            e(f"v_bfe_u32 v{vX}, v{vX}, {28-cfg.SB}, {cfg.SB}")
            e(f"v_lshl_or_b32 v{vKEY+k}, v{vKEY+k}, {cfg.SB}, v{vX}")
            e(f"v_lshlrev_b32 v{vKEY+k}, 2, v{vKEY+k}")
        for s_ in range(3):
            k = 3 * r + s_
            e(f"s_mov_b64 exec, s[{sM+2*k}:{sM+2*k+1}]")
            e(f"ds_add_rtn_u32 v{vRANK+k}, v{vKEY+k}, v{vONE} offset:{L_CNT}")
    e("L_RK_DONE:")
    if cfg.LV:
        e("s_mov_b64 exec, -1")
        e(f"s_cmp_ge_u32 s{sW}, {16-cfg.PF2}")
        e("s_waitcnt vmcnt(1)")
        e("s_cbranch_scc1 L_VER2")
        e("s_waitcnt vmcnt(0)")
        e("L_VER2:")
        e(f"v_cmp_ne_u32 vcc, v{vE}, v{vE2}")
        e(f"v_mov_b32 v{vE}, v{vE2}")
        e("s_cmp_lg_u64 vcc, 0")
        e(f"s_cselect_b32 s{sTB}, -1, s{sTB}")
    e("s_mov_b64 exec, 1")
    e(f"v_mov_b32 v{vA}, s{sTB}")
    e(f"v_mov_b32 v{vB}, {L_MISC+4}")
    e(f"ds_max_u32 v{vB}, v{vA}")
    e("s_mov_b64 exec, -1")
    def slots(bodyf, lab):
        for k in range(6):
            if k == 3:
                second(lab)
            e(f"s_mov_b64 exec, s[{sM+2*k}:{sM+2*k+1}]")
            bodyf(k)
        e(f"{lab}:")
        e("s_mov_b64 exec, -1")
    vC = vX
    vDEG, vNP, vSC, vBIN, vDR, vSB, vNA = vX+4, vX+5, vX+6, vX+7, vX+8, vX+9, vX+10
    vBS = vX + 12
    RB_ = NCL * 4
    vK = 88
    e(f"v_lshlrev_b32 v{vNA}, {4+cfg.SB}, v0")
    e(f"v_mov_b32 v{vX+11}, {L_MISC}")
    e(f"v_mov_b32 v{vTP}, 0xffff")
    e(f"v_mov_b32 v{vTP+1}, 0xffff")
    e(f"s_cmp_ge_u32 s{sW}, 4")
    e("s_waitcnt lgkmcnt(0)")
    e("s_barrier")
    e(f"s_cbranch_scc1 L_NODE1_DONE")
    for q in range(NCL // 4):
        e(f"ds_read_b128 v[{vK+4*q}:{vK+4*q+3}], v{vNA} offset:{L_CNT+RB_+16*q}")
    ts(6)
    for i in range(1, NCL):
        if i == 1 or i % 4 == 0:
            e(f"s_waitcnt lgkmcnt({NCL//4 - 1 - i//4})")
        e(f"v_add_u32 v{vK+i}, v{vK+i-1}, v{vK+i}")
    e(f"v_add_u32 v{vSC}, 3, v{vK+NCL-1}")
    e(f"v_lshrrev_b32 v{vSC}, 1, v{vSC}")
    e(f"v_mov_b32 v{vDEG}, v{vK+NCL-1}")
    e(f"v_mov_b32 v{vNP}, v{vSC}")
    scan64(vSC, fill=[f"v_min_u32 v{vBIN}, 63, v{vDEG}", f"v_sub_u32 v{vBIN}, 63, v{vBIN}",
                      f"v_lshlrev_b32 v{vBIN}, 2, v{vBIN}", f"s_mov_b64 exec, s[{sNODE}:{sNODE+1}]"], steps=SCAN[:2])
    e(f"ds_add_rtn_u32 v{vDR}, v{vBIN}, v{vONE} offset:{L_DH}")
    e("s_mov_b64 exec, -1")
    scan64(vSC, steps=SCAN[2:])
    e(f"s_mov_b32 exec_lo, 0")
    e(f"s_mov_b32 exec_hi, 0x80000000")
    e(f"ds_add_rtn_u32 v{vSB}, v{vX+11}, v{vSC}")
    e("s_mov_b64 exec, -1")
    e(f"v_lshlrev_b32 v{vSC}, 1, v{vSC}")
    e(f"v_sub_u32 v{vC+3}, v{vSC}, v{vDEG}")
    e(f"v_lshlrev_b32 v{vX+11}, 1, v{vNP}")
    e(f"v_sub_u32 v{vSC}, v{vSC}, v{vX+11}")
    e("s_waitcnt lgkmcnt(0)")
    e(f"v_readlane_b32 s{sT}, v{vSB}, 63")
    e(f"s_lshl_b32 s{sT}, s{sT}, 3")
    e(f"s_add_u32 s{sT}, s{sT}, {L_RECS}")
    e(f"v_lshl_add_u32 v{vK+16}, v{vC+3}, 2, s{sT}")
    for i in range(1, NCL):
        e(f"v_lshl_add_u32 v{vK+16+i}, v{vK+i-1}, 2, v{vK+16}")
        if i % 4 == 3:
            e(f"ds_write_b128 v{vNA}, v[{vK+16+i-3}:{vK+16+i}] offset:{L_CNT+RB_+4*(i-3)}")
    e(f"v_lshl_add_u32 v{vSC}, v{vSC}, 2, s{sT}")
    e(f"ds_write_b64 v{vSC}, v[{vTP}:{vTP+1}]")
    e(f"ds_write_b32 v{vSC}, v{vTP} offset:8")
    e(f"L_NODE1_DONE:")
    e(f"v_mov_b32 v{vC}, {L_MISC+4}")
    e(f"v_lshlrev_b32 v{vC+1}, 2, v{vLANE}")
    e("s_waitcnt lgkmcnt(0)")
    e("s_barrier")
    if cfg.XD == 2:
        e("s_sleep 16")
    ts(7)
    e(f"ds_read_b32 v{vC+1}, v{vC+1} offset:{L_DH}")
    e(f"ds_read_b32 v{vC+3}, v{vC}")
    for k in range(6):
        if k == 3:
            second("L_RB_DONE")
        e(f"ds_read_b32 v{vKEY+k}, v{vKEY+k} offset:{L_CNT}")
    e("L_RB_DONE:")
    e(f"s_cmp_ge_u32 s{sW}, 4")
    e(f"s_cbranch_scc1 L_NODE2_DONE")
    e(f"s_cmp_lg_u32 s{sBB}, 0")
    e(f"s_cbranch_scc1 L_NODE2_NOSORT")
    e("s_waitcnt lgkmcnt(4)")
    e(f"v_mov_b32 v{vC}, v{vC+1}")
    e("s_nop 1")
    scan64(vC)
    e(f"v_sub_u32 v{vC}, v{vC}, v{vC+1}")
    e(f"ds_bpermute_b32 v{vC}, v{vBIN}, v{vC}")
    e(f"s_movk_i32 s{sT}, {NNORM*16}")
    e("s_waitcnt lgkmcnt(0)")
    if SPL:
        e(f"v_add_u32 v{vP}, v{vC}, v{vDR}")
        e(f"v_and_b32 v{vC}, 0xf8, v{vP}")
        e(f"v_add3_u32 v{vC}, v{vC}, v{vP}, s{sT}")
        e(f"v_cmp_gt_u32 vcc, {8*SPL}, v{vP}")
        e(f"v_subrev_u32 v{vP}, {8*SPL}, v{vP}")
        e("s_nop 0")
        e(f"v_cndmask_b32 v{vP}, v{vP}, v{vC}, vcc")
        e(f"v_lshlrev_b32 v{vP}, 3, v{vP}")
    else:
        e(f"v_add_lshl_u32 v{vP}, v{vC}, v{vDR}, 3")
    e(f"L_NODE2_NOSORT:")
    e(f"v_lshl_or_b32 v{vC}, v{vNP}, 16, v{vSC}")
    e(f"s_mul_i32 s{sT}, s3, {NB*128}")
    e(f"v_lshl_add_u32 v{vC+1}, v0, 7, s{sT}")
    e(f"v_cmp_gt_u32 vcc, {NB}, v0")
    e(f"v_mov_b32 v{vC+2}, 0x80000000")
    e(f"s_mov_b64 exec, s[{sNODE}:{sNODE+1}]")
    e(f"v_cndmask_b32 v{vC+1}, v{vC+2}, v{vC+1}, vcc")
    e(f"ds_write_b64 v{vP}, v[{vC}:{vC+1}] offset:{L_NT}")
    if SPL:
        e(f"v_cmp_le_u32 vcc, {NNORM*128}, v{vP}")
        e(f"v_mov_b32 v{vC+1}, v{vC+2}")
        e("s_and_b64 exec, exec, vcc")
        e(f"ds_write_b64 v{vP}, v[{vC}:{vC+1}] offset:{L_NT+64}")
    e("s_mov_b64 exec, -1")
    e(f"L_NODE2_DONE:")
    e("s_waitcnt lgkmcnt(0)")
    def wr(k):
        e(f"v_lshl_add_u32 v{vRANK+k}, v{vRANK+k}, 2, v{vKEY+k}")
        e(f"ds_write_b32 v{vRANK+k}, v{vGR+4*(k//3)+k%3}")
    slots(wr, "L_RW_DONE")
    e(f"v_readfirstlane_b32 s{sNBMAX}, v{vC+3}")
    e(f"v_lshrrev_b32 v{vX}, 3, v{vLANE}")
    e(f"s_lshl_b32 s{sT}, s{sW}, 7")
    e(f"v_lshl_add_u32 v{vX}, v{vX}, 3, s{sT}")
    if cfg.LV:
        e(f"s_cmp_eq_u32 s{sNBMAX}, -1")
        e("s_cbranch_scc1 L_NEXTB")
    e(f"s_cmp_ge_u32 s{sW}, {NNORM}")
    e(f"s_cselect_b32 s{sSTR+1}, 1, 0")
    e(f"s_lshl_b32 s{sSTR}, 8, s{sSTR+1}")
    e(f"s_cmp_ge_u32 s{sW}, {NW}")
    e("s_waitcnt lgkmcnt(0)")
    e("s_barrier")
    e(f"s_cbranch_scc1 L_HELPER")
    e(f"ds_read_b64 v[{vX+2}:{vX+3}], v{vX} offset:{L_NT}")
    e(f"ds_read_b64 v[{vX+4}:{vX+5}], v{vX} offset:{L_NT+64}")
    ts(8)
    e("s_waitcnt lgkmcnt(0)")
    e(f"v_lshrrev_b32 v{vX}, 16, v{vX+2}")
    e(f"v_lshrrev_b32 v{vX+1}, 16, v{vX+4}")
    e(f"v_max_u32 v{vX+6}, v{vX}, v{vX+1}")
    e(f"v_and_b32 v{vEA}, 0xffff, v{vX+2}")
    e(f"v_and_b32 v{vEB}, 0xffff, v{vX+4}")
    e(f"v_max_u32_dpp v{vX+6}, v{vX+6}, v{vX+6} row_ror:8 row_mask:0xf bank_mask:0xf")
    e(f"v_lshl_add_u32 v{vPA}, v{vX}, 3, v{vEA}")
    e(f"v_lshl_add_u32 v{vPB}, v{vX+1}, 3, v{vEB}")
    e(f"v_readlane_b32 s{sN0}, v{vX+6}, 0")
    e(f"v_readlane_b32 s{sT}, v{vX+6}, 16")
    e(f"v_readlane_b32 s{sT+1}, v{vX+6}, 32")
    e(f"v_readlane_b32 s{sCNT}, v{vX+6}, 48")
    e(f"s_max_u32 s{sN0}, s{sN0}, s{sT}")
    e(f"s_max_u32 s{sCNT}, s{sCNT}, s{sT+1}")
    e(f"s_max_u32 s{sN0}, s{sN0}, s{sCNT}")
    e(f"s_sub_u32 s{sN0}, s{sN0}, 1")
    e(f"s_add_u32 s{sN0}, s{sN0}, s{sSTR+1}")
    e(f"s_lshr_b32 s{sN0}, s{sN0}, s{sSTR+1}")
    e(f"s_max_u32 s{sN0}, s{sN0}, {D}")
    e(f"s_mul_i32 s{sT}, s{sN0}, s{sSTR}")
    e(f"s_sub_u32 s{sT+1}, s{sT}, s{sSTR}")
    e(f"s_add_u32 s{sT+1}, s{sT+1}, 8")
    e(f"v_subrev_u32 v{vPA}, s{sT}, v{vPA}")
    e(f"v_subrev_u32 v{vPB}, s{sT+1}, v{vPB}")
    def rdrec(h):
        for pv, ev, d in ((vPA, vEA, vST), (vPB, vEB, vST + 4)):
            e(f"v_max_i32 v{vAD}, v{pv}, v{ev}")
            if h == 0:
                e(f"ds_read_b64 v[{d}:{d+1}], v{vAD}")
            else:
                e(f"ds_read2st64_b64 v[{d}:{d+3}], v{vAD} offset0:0 offset1:{RDELTA//512}")
        e(f"v_add_u32 v{vPA}, s{sSTR}, v{vPA}")
        e(f"v_add_u32 v{vPB}, s{sSTR}, v{vPB}")
    e(f"s_cmp_lg_u32 s{sHOP}, 0")
    e("s_cbranch_scc1 L_MBENC")
    rdrec(0)
    for src, d0 in ((vX+3, vROWA), (vX+5, vROWB)):
        e(f"v_add_u32 v{d0}, v{src}, v{vLOFF}")
    def pace():
        if cfg.PACE > 1:
            lab = newlab("PACE")
            e(f"s_add_i32 s{sI4}, s{sI4}, {cfg.PACE}")
            e(f"{lab}a:")
            e(f"s_cmp_lt_i32 s{sI4}, 0")
            e(f"s_cbranch_scc1 {lab}")
            e(f"s_cmp_eq_u32 s{sPN}, 0")
            e(f"s_cbranch_scc1 {lab}")
            e(f"s_sub_i32 s{sI4}, s{sI4}, s{sN0}")
            e(f"s_sub_u32 s{sPN}, s{sPN}, 1")
            e("s_barrier")
            if cfg.TS == 3:
                e("s_memrealtime s[100:101]")
                e(f"s_lshl_b32 s{sT}, s{sHOP}, 3")
                e(f"s_add_u32 s{sT}, s{sT}, s{sPN}")
                e(f"s_mov_b32 m0, s{sT}")
                e("s_waitcnt lgkmcnt(0)")
                e("v_writelane_b32 v35, s100, m0")
            e(f"s_branch {lab}a")
            e(f"{lab}:")
    recreg = [vST, vST + 4, vST + 1, vST + 5]
    def mm(slot, k):
        d = vDATA + 16 * slot + 4 * k
        a = vAOP + 8 * slot + 2 * k
        acc = vACC + (8 if k & 1 else 0)
        e(f"v_mfma_f32_4x4x4_16b_bf16 v[{acc}:{acc+3}], v[{a}:{a+1}], v[{d}:{d+1}], v[{acc}:{acc+3}]")
        e(f"v_mfma_f32_4x4x4_16b_bf16 v[{acc+4}:{acc+7}], v[{a}:{a+1}], v[{d+2}:{d+3}], v[{acc+4}:{acc+7}]")
    def step(h, slot, consume, skip=False):
        e("s_waitcnt lgkmcnt(0)")
        for k in range(4):
            r = recreg[k]
            d = vDATA + 16 * slot + 4 * k
            a = vAOP + 8 * slot + 2 * k
            if h == 0:
                e(f"v_mad_u32_u16 v{vAD}, v{r}, s{s128}, v{vLOFF}")
            else:
                e(f"v_add_u32 v{vAD}, v{r+2}, v{vLOFF}")
            if consume:
                e(f"s_waitcnt vmcnt({cfg.VW1 if h else cfg.VW0})")
                mm(slot, k)
            if skip:
                lab = newlab("SK")
                e(f"v_cmp_ne_u32 vcc, 0xffff, v{r}")
                for i in range(4):
                    e(f"v_mov_b32 v{d+i}, 0")
                e(f"s_cbranch_vccz {lab}")
            e(f"buffer_load_dwordx4 v[{d}:{d+3}], v{vAD}, s[{G}:{G+3}], 0 offen" + (" sc1" if h else ""))
            if skip:
                e(f"{lab}:")
            e(f"v_perm_b32 v{a}, v{r}, v{r}, v{vSEL0}")
            e(f"v_perm_b32 v{a+1}, v{r}, v{r}, v{vSEL1}")
        rdrec(h)
        pace()
    def gloop(h):
        e(f"s_sub_u32 s{sCNT}, s{sN0}, {D}")
        if cfg.PACE > 1:
            e(f"s_mul_i32 s{sI4}, s{sN0}, {-1-cfg.FB}")
            e(f"s_cmp_le_u32 s{sNBMAX}, {GB}")
            e(f"s_cselect_b32 s{sPN}, {cfg.PACE-1-cfg.FB-(cfg.DB1 if h else cfg.DB0)}, 0")
        for s_ in range(D):
            step(h, s_, False, cfg.SKP and s_ == 0)
        if cfg.SKP:
            e(f"s_waitcnt vmcnt({4*(D-1)})")
        e(f"L_GLOOP{h}:")
        for p in range(D):
            e(f"s_cmp_le_i32 s{sCNT}, {p}")
            e(f"s_cbranch_scc1 L_DRAIN{p}")
            step(h, p, True)
        e(f"s_sub_i32 s{sCNT}, s{sCNT}, {D}")
        e(f"s_branch L_GLOOP{h}")
    gloop(0)
    for p in range(D):
        e(f"L_DRAIN{p}:")
        e(f"s_load_dword s{sQ}, s[{WS}:{WS+1}], s{sQ-1}")
        for j in range(4 * D):
            e(f"s_waitcnt vmcnt({4*D-1-j})")
            mm((p + j // 4) % D, j % 4)
        if p != D - 1:
            e(f"s_branch L_GDONE")
    e(f"L_GDONE:")
    e("s_waitcnt lgkmcnt(0)")
    e(f"s_add_u32 s{sBB}, s{sBB}, {GB}")
    e(f"s_cmp_lt_u32 s{sBB}, s{sNBMAX}")
    e(f"s_cbranch_scc1 L_NEXTB")
    if SPL:
        e(f"s_cmp_eq_u32 s{sSTR+1}, 0")
        e("s_cbranch_scc1 L_NOCOMB")
        for i in range(8):
            e(f"v_add_f32 v{vACC+i}, v{vACC+i}, v{vACC+8+i}")
        e("L_NOCOMB:")
    e(f"s_cmp_lg_u32 s{sHOP}, 0")
    e("s_nop 0")
    for i in range(8):
        e(f"v_cvt_pk_bf16_f32 v{40+i}, v{vACC+2*i}, v{vACC+2*i+1}")
    e(f"s_cbranch_scc1 L_EPI")
    e(f"s_mov_b32 s{sT}, {25088*128}")
    e(f"s_movk_i32 s{sT+1}, {cfg.RN*128 if cfg.RB < 0 else 1}")
    for o, d, m in ((vROWA, 50, "vcc"), (vROWB, 51, f"s[{sTMP}:{sTMP+1}]")):
        e(f"v_cmp_le_u32 {m}, s{sT}, v{o}")
        e(f"v_and_b32 v48, 0x7fffe000, v{o}")
        e(f"v_lshrrev_b32 v49, 7, v{o}")
        e(f"v_add_u32 v{d}, v48, v{o}")
        e(f"v_cndmask_b32 v48, 0, -1, {m}")
        e(f"v_xor_b32 v{d+2}, v48, v49")
    e(f"s_mov_b32 s{sSPIN}, 0")
    e("s_branch L_QC")
    e("L_QP:")
    e(f"s_load_dword s{sQ}, s[{WS}:{WS+1}], s{sQ-1} glc")
    e("s_waitcnt lgkmcnt(0)")
    e("L_QC:")
    e(f"s_cmp_lg_u32 s{sQ}, 0")
    e("s_cbranch_scc1 L_QX")
    spin_tail("L_QP", "L_QX")
    e("L_QX:")
    e(f"v_bfe_i32 v{vQM}, s{sQ}, 0, 1")
    for d in (50, 51):
        e(f"v_xor_b32 v{d+2}, v{d+2}, v{vQM}")
        e(f"v_and_b32 v{d+2}, 0x2000, v{d+2}")
        e(f"v_or_b32 v{d}, v{d}, v{d+2}")
    def home():
        e(f"buffer_store_dwordx4 v[40:43], v50, s[{O}:{O+3}], 0 offen sc1")
        e(f"s_cmp_lg_u32 s{sSTR+1}, 0")
        e("s_cbranch_scc1 L_NOHB")
        e(f"buffer_store_dwordx4 v[44:47], v51, s[{O}:{O+3}], 0 offen sc1")
        e("L_NOHB:")
    if not cfg.FF:
        home()
    if cfg.RN:
        for o, d, q in ((vROWA, 50, 40), (vROWB, 51, 44)):
            lab = newlab("ST")
            e(f"v_and_b32 v48, 0x{0x80000000 | (0x380 if cfg.RB < 0 else 128 << cfg.RB):x}, v{o}")
            e(f"v_cmp_gt_u32 vcc, s{sT+1}, v48")
            e(f"v_xor_b32 v{d+2}, 0x2000, v{d}")
            e(f"s_and_saveexec_b64 s[{sTMP}:{sTMP+1}], vcc")
            e(f"s_cbranch_execz {lab}")
            e(f"buffer_store_dwordx4 v[{q}:{q+3}], v{d+2}, s[{O}:{O+3}], 0 offen sc1")
            e(f"{lab}:")
            e("s_mov_b64 exec, -1")
    if cfg.FF:
        home()
    ts(9)
    for i in range(16):
        e(f"v_mov_b32 v{vACC+i}, 0")
    e(f"s_add_u32 s{sT}, s{sN0}, 1")
    e(f"s_mul_i32 s{sT}, s{sT}, s{sSTR}")
    e(f"v_subrev_u32 v{vPA}, s{sT}, v{vPA}")
    e(f"v_subrev_u32 v{vPB}, s{sT}, v{vPB}")
    e(f"v_lshlrev_b32 v48, 4, v{vLANE}")
    NWPRE = 8 if D == 2 else 4
    def wfrag(mb, kh):
        if D == 2: return vW + 8 * mb + 4 * kh
        return vW + 4 * mb if kh == 0 else 64 + 4 * mb
    for mb in range(4):
        for kh in range(2 if D == 2 else 1):
            r = wfrag(mb, kh)
            e(f"ds_read_b128 v[{r}:{r+3}], v48 offset:{L_WT + 1024*(2*mb+kh)}")
    e(f"s_lshl_b32 s{sT}, s{sW}, 11")
    e(f"s_add_u32 s{sT}, s{sT}, {L_TILE}")
    e(f"v_lshrrev_b32 v48, 3, v{vLANE}")
    e(f"v_xor_b32 v49, v48, v{vLANE}")
    e(f"v_and_b32 v49, 7, v49")
    e(f"v_lshlrev_b32 v49, 4, v49")
    e(f"v_lshl_add_u32 v49, v48, 7, v49")
    e(f"v_add_u32 v{vTW}, s{sT}, v49")
    e(f"v_and_b32 v48, 15, v{vLANE}")
    e(f"v_lshrrev_b32 v49, 4, v{vLANE}")
    e(f"v_xor_b32 v49, v49, v48")
    e(f"v_and_b32 v49, 7, v49")
    e(f"v_lshlrev_b32 v49, 4, v49")
    e(f"v_lshl_add_u32 v49, v48, 7, v49")
    e(f"v_add_u32 v{vTR}, s{sT}, v49")
    if cfg.OWN == 1:
        e("s_waitcnt vmcnt(0)")
        e(f"buffer_load_dword v{vPFD}, v{vROWA}, s[{O}:{O+3}], 0 offen sc1")
        e(f"buffer_load_dword v{vPFD}, v{vROWB}, s[{O}:{O+3}], 0 offen sc1")
    def enc(w, d, t):
        e(f"v_and_b32 v{d}, 0xffff, v{w}")
        e(f"v_and_b32 v{t}, {7 if cfg.RB < 0 else 1 << cfg.RB}, v{w}")
        e(f"v_cmp_le_u32 vcc, s{sT}, v{d}")
        e(f"v_cmp_gt_u32 s[{sTMP}:{sTMP+1}], {cfg.RN if cfg.RB < 0 else 1}, v{t}")
        e(f"v_and_b32 v{t}, 0xffc0, v{w}")
        e(f"v_add_lshl_u32 v{d}, v{d}, v{t}, 7")
        e(f"s_andn2_b64 vcc, vcc, s[{sTMP}:{sTMP+1}]")
        e(f"s_and_b64 s[{sTMP}:{sTMP+1}], s[{sTMP}:{sTMP+1}], s[{sK}:{sK+1}]")
        e(f"s_or_b64 vcc, vcc, s[{sTMP}:{sTMP+1}]")
        e(f"v_cndmask_b32 v{t}, v{vQM}, v{vTP+1}, vcc")
        e(f"v_xor_b32 v{t}, v{t}, v{w}")
        e(f"v_and_or_b32 v{d}, v{t}, s{sT+1}, v{d}")
    def enc_setup():
        e(f"v_mov_b32 v48, {L_MISC}")
        e("ds_read_b32 v48, v48")
        e(f"s_bfe_i32 s{sK}, s2, 0x10002")
        e(f"s_mov_b32 s{sK+1}, s{sK}")
        e(f"s_movk_i32 s{sT}, 25088")
        e(f"s_movk_i32 s{sT+1}, 0x2000")
        e(f"v_lshlrev_b32 v49, 4, v0")
        e("s_waitcnt lgkmcnt(0)")
        e(f"v_readfirstlane_b32 s{sSPIN}, v48")
        e(f"v_not_b32 v{vTP+1}, v{vQM}")
        e(f"s_lshl_b32 s{sSPIN}, s{sSPIN}, 3")
        e(f"s_lshl_b32 s{sI4}, s{sW}, 10")
    def enc_pass(nwaves):
        lab = newlab("ENC")
        e(f"{lab}:")
        e(f"s_cmp_ge_u32 s{sI4}, s{sSPIN}")
        e(f"s_cbranch_scc1 {lab}x")
        e(f"ds_read_b128 v[52:55], v49 offset:{L_RECS}")
        e(f"s_add_u32 s{sI4}, s{sI4}, {nwaves*1024}")
        e("s_waitcnt lgkmcnt(0)")
        for i in range(4):
            enc(52 + i, 56 + i, 60)
        e(f"ds_write_b128 v49, v[56:59] offset:{L_RECS+RDELTA}")
        e(f"v_add_u32 v49, {nwaves*1024}, v49")
        e(f"s_branch {lab}")
        e(f"{lab}x:")
    enc_setup()
    enc_pass(NW)
    if cfg.OWN:
        e(f"v_subrev_u32 v48, 512, v0")
        e(f"s_mul_i32 s{sI4}, s3, {NB}")
        e(f"v_add_u32 v52, s{sI4}, v48")
        enc(52, 53, 60)
    e("L_SYNC2:")
    srd(G, WS, H1B, H1_OFF)
    e(f"s_mov_b32 s{sBB}, 0")
    e(f"s_mov_b32 s{sHOP}, 1")
    e(f"s_lshr_b32 s{sI4}, s2, 2")
    e(f"s_xnor_b32 s{sI4}, s{sI4}, s{sQ}")
    e(f"s_and_b32 s{sI4}, s{sI4}, 1")
    if S32:
        e(f"s_lshl_b32 s{sI4}, s{sI4}, 2")
        e(f"s_and_b32 s{sT}, s2, 0x1b")
        e(f"s_or_b32 s{sI4}, s{sI4}, s{sT}")
    else:
        e(f"s_lshl_b32 s{sI4}, s{sI4}, 3")
        e(f"s_and_b32 s{sT}, s2, 0x33")
        e(f"s_or_b32 s{sI4}, s{sI4}, s{sT}")
        e(f"s_bfe_u32 s{sT}, s2, 0x10003")
        e(f"s_lshl_b32 s{sT}, s{sT}, 2")
        e(f"s_or_b32 s{sI4}, s{sI4}, s{sT}")
    e(f"s_lshl_b32 s{sI4}, s{sI4}, 3")
    e(f"s_add_u32 s{sI4}, s{sI4}, s{sW}")
    e(f"s_lshl_b32 s{sI4}, s{sI4}, {8 if S32 else 7}")
    e(f"s_add_u32 s{sI4}, s{sI4}, 0x{HS_OFF:x}")
    bar_base(sI4)
    bar_bump_addr(54)
    e(f"s_mov_b32 s{sT}, 0x{HS_OFF:x}")
    e(f"s_cmp_lg_u32 s{sW}, 0")
    e("s_waitcnt vmcnt(0) lgkmcnt(0)")
    ts(10)
    e("s_barrier")
    e("s_cbranch_scc1 L_FNB")
    bar_bump(54)
    e("L_FNB:")
    e(f"s_cmp_lt_u32 s{sW}, 8")
    e("s_cbranch_scc1 L_FPOLL")
    if cfg.OWN:
        e(f"s_cmp_ge_u32 s{sW}, 12")
        e(f"s_cbranch_scc1 L_FDONE")
        e(f"v_cmp_gt_u32 vcc, {NB}, v48")
        e("s_mov_b64 exec, vcc")
        e(f"buffer_load_dword v{vPFD}, v53, s[{G}:{G+3}], 0 offen sc1")
        e("s_mov_b64 exec, -1")
    e("s_branch L_FDONE")
    e("L_FPOLL:")
    bar_poll(sI4, "L_FDONE")
    e("L_FDONE:")
    srd(O, pOUT, ROWB)
    e(f"s_cmp_gt_u32 s{sNBMAX}, {GB}")
    e("s_cbranch_scc1 L_C1MB")
    rdrec(1)
    e("s_barrier")
    ts(11)
    e("L_G2:")
    gloop(1)
    e("L_C1MB:")
    e("s_barrier")
    e("s_branch L_BATCH")
    e("L_MBENC:")
    e(f"v_lshlrev_b32 v48, 4, v{vLANE}")
    for mb in range(4):
        for kh in range(2):
            r = wfrag(mb, kh)
            e(f"ds_read_b128 v[{r}:{r+3}], v48 offset:{L_WT + 1024*(2*mb+kh)}")
    enc_setup()
    enc_pass(NW)
    e("s_waitcnt lgkmcnt(0)")
    e("s_barrier")
    rdrec(1)
    e("s_branch L_G2")

    e("L_EPI:")
    ts(12)
    e(f"ds_write_b128 v{vTW}, v[40:43]")
    e(f"ds_write_b128 v{vTW}, v[44:47] offset:1024")
    e(f"v_xor_b32 v{vAD}, 64, v{vTR}")
    e(f"ds_read_b128 v[40:43], v{vTR}")
    e(f"ds_read_b128 v[44:47], v{vAD}")
    if D != 2:
        e(f"v_lshlrev_b32 v{vAD}, 4, v{vLANE}")
        for mb in range(4):
            r = wfrag(mb, 1)
            e(f"ds_read_b128 v[{r}:{r+3}], v{vAD} offset:{L_WT + 1024*(2*mb+1)}")
    if cfg.O4:
        e(f"v_lshrrev_b32 v{vAD}, 3, v{vLANE}")
        e(f"s_lshl_b32 s{sT}, s{sW}, 7")
        e(f"v_lshl_add_u32 v{vAD}, v{vAD}, 4, s{sT}")
        e(f"ds_read_b128 v[48:51], v{vAD} offset:{L_NT}")
        e("s_mov_b32 vcc_lo, 0x00ff00ff")
        e("s_mov_b32 vcc_hi, 0x00ff00ff")
        e(f"s_waitcnt lgkmcnt(2)")
        for mb in range(4):
            r = wfrag(mb, 0)
            e(f"v_mfma_f32_16x16x32_bf16 v[{vACC+4*mb}:{vACC+4*mb+3}], v[40:43], v[{r}:{r+3}], 0")
        e("s_waitcnt lgkmcnt(1)")
        for mb in range(4):
            r = wfrag(mb, 1)
            e(f"v_mfma_f32_16x16x32_bf16 v[{vACC+4*mb}:{vACC+4*mb+3}], v[44:47], v[{r}:{r+3}], v[{vACC+4*mb}:{vACC+4*mb+3}]")
        e("s_waitcnt lgkmcnt(0)")
        e(f"v_add_u32 v48, v49, v{vLOFF}")
        e(f"v_add_u32 v50, v51, v{vLOFF}")
        e("s_nop 2")
        for r in range(4):
            e(f"v_cvt_pk_bf16_f32 v{56+2*r}, v{vACC+r}, v{vACC+4+r}")
        for r in range(4):
            e(f"v_cvt_pk_bf16_f32 v{57+2*r}, v{vACC+8+r}, v{vACC+12+r}")
        DP = "row_ror:8 row_mask:0xf bank_mask:0xf"
        for i in range(2):
            for k in range(2):
                e(f"v_cndmask_b32_dpp v{64+4*k+i}, v{60+2*k+i}, v{56+2*k+i}, vcc {DP}")
        e("s_not_b64 vcc, vcc")
        for k in range(2):
            for i in range(2):
                e(f"v_cndmask_b32_dpp v{66+4*k+i}, v{56+2*k+i}, v{60+2*k+i}, vcc {DP}")
            e(f"buffer_store_dwordx4 v[{64+4*k}:{67+4*k}], v{48+2*k}, s[{O}:{O+3}], 0 offen {cfg.OUTFLAG}")
    else:
        e(f"v_lshrrev_b32 v{vAD}, 4, v{vLANE}")
        e(f"s_lshl_b32 s{sT}, s{sW}, 7")
        e(f"v_lshl_add_u32 v{vAD}, v{vAD}, 5, s{sT}")
        e(f"ds_read_b128 v[48:51], v{vAD} offset:{L_NT}")
        e(f"ds_read_b128 v[52:55], v{vAD} offset:{L_NT+16}")
        e(f"v_and_b32 v{vAD}, 15, v{vLANE}")
        e(f"v_lshlrev_b32 v{vAD}, 3, v{vAD}")
        e(f"s_waitcnt lgkmcnt({3 if D == 2 else 7})")
        for mb in range(4):
            r = wfrag(mb, 0)
            e(f"v_mfma_f32_16x16x32_bf16 v[{vACC+4*mb}:{vACC+4*mb+3}], v[40:43], v[{r}:{r+3}], 0")
        e("s_waitcnt lgkmcnt(2)")
        for mb in range(4):
            r = wfrag(mb, 1)
            e(f"v_mfma_f32_16x16x32_bf16 v[{vACC+4*mb}:{vACC+4*mb+3}], v[44:47], v[{r}:{r+3}], v[{vACC+4*mb}:{vACC+4*mb+3}]")
        e("s_waitcnt lgkmcnt(0)")
        for r in range(4):
            e(f"v_add_u32 v{48+2*r}, v{49+2*r}, v{vAD}")
        e("s_nop 2")
        for r in range(4):
            e(f"v_cvt_pk_bf16_f32 v{56+2*r}, v{vACC+r}, v{vACC+4+r}")
            e(f"v_cvt_pk_bf16_f32 v{57+2*r}, v{vACC+8+r}, v{vACC+12+r}")
            e(f"buffer_store_dwordx2 v[{56+2*r}:{57+2*r}], v{48+2*r}, s[{O}:{O+3}], 0 offen {cfg.OUTFLAG}")
    e("L_FIN:")
    ts_dump()
    e("s_endpgm")
    e("L_HELPER:")
    assert NW <= 15
    e(f"s_xor_b32 s{sT}, s{sW}, 15")
    e(f"s_xor_b32 s{sT+1}, s2, 255")
    e(f"s_or_b32 s{sT}, s{sT}, s{sT+1}")
    e(f"s_or_b32 s{sT}, s{sT}, s{sBB}")
    e(f"s_or_b32 s{sT}, s{sT}, s{sHOP}")
    e("s_cbranch_scc1 L_HELP1")
    e(f"s_mov_b32 s{sT}, 0x{HS_OFF:x}")
    e(f"s_mov_b32 s{sCNT}, 0")
    e("L_PRB:")
    e(f"s_add_u32 s{sT+1}, s{sT}, 8192")
    e(f"s_memtime s[40:41]")
    e(f"s_load_dword s46, s[{WS}:{WS+1}], s{sT} glc")
    e("s_waitcnt lgkmcnt(0)")
    e(f"s_memtime s[42:43]")
    e(f"s_load_dword s46, s[{WS}:{WS+1}], s{sT+1} glc")
    e("s_waitcnt lgkmcnt(0)")
    e(f"s_memtime s[44:45]")
    e("s_lshl_b32 s42, s42, 1")
    e("s_sub_u32 s40, s42, s40")
    e("s_waitcnt lgkmcnt(0)")
    e("s_sub_u32 s40, s40, s44")
    e("s_lshr_b32 s40, s40, 31")
    e(f"s_add_u32 s{sCNT}, s{sCNT}, s40")
    e(f"s_addk_i32 s{sT}, 1280")
    e(f"s_cmp_lt_u32 s{sT}, 0x{HS_OFF + cfg.NPR*1280:x}")
    e("s_cbranch_scc1 L_PRB")
    e(f"s_cmp_gt_u32 s{sCNT}, {cfg.NPR//2}")
    e(f"s_cselect_b32 s{sT}, 2, 3")
    if cfg.POL >= 0:
        e(f"s_mov_b32 s{sT}, {2+cfg.POL}")
    e(f"v_mov_b32 v40, s{sT}")
    e(f"v_lshlrev_b32 v41, 8, v{vLANE}")
    e(f"s_mov_b32 s{sT}, 0x{QS_OFF:x}")
    e("s_mov_b64 exec, 0xff")
    e(f"buffer_store_dword v40, v41, s[{WS}:{WS+3}], s{sT} offen sc1")
    e("s_mov_b64 exec, -1")
    if cfg.TS:
        ts(9)
        pass
    e("L_HELP1:")
    e(f"s_cmp_le_u32 s{sNBMAX}, {GB}")
    e("s_cbranch_scc1 L_FIN")
    e(f"s_cmp_eq_u32 s{sHOP}, 0")
    e("s_cbranch_scc1 L_HELP2")
    e("s_barrier")
    e("L_HELP2:")
    e(f"s_add_u32 s{sBB}, s{sBB}, {GB}")
    e(f"s_cmp_lt_u32 s{sBB}, s{sNBMAX}")
    e(f"s_cbranch_scc1 L_NEXTB")
    e(f"s_cmp_lg_u32 s{sHOP}, 0")
    e("s_cbranch_scc1 L_FIN")
    e("v_mov_b32 v53, 0")
    e("s_branch L_SYNC2")
    e(f"L_NEXTB:")
    ts(2)
    if cfg.XD == 7:
        for i in range(16):
            e("s_sleep 127")
    e("s_waitcnt vmcnt(0) lgkmcnt(0)")
    e("s_barrier")
    e(f"s_branch L_BATCH")
    e(f"L_END:")
    e("s_endpgm")

DOC = """; ---------------------------------------------------------------------------------------------
;      16-byte granules {3 x (src|norm<<16), 3 x 10-bit key} plus a table row (start,count per bucket).
; ---------------------------------------------------------------------------------------------"""
head = open("standalone__spectral_conv_sgc__graph.s.ref").read().split("; Override")[0]
e(head.rstrip())
e(f"; @launch grid=(256,1,1) block=(1024,1,1) lds={L_END}")
e(DOC)
e('.amdgcn_target "amdgcn-amd-amdhsa--gfx950"')
e(".text")
body()
e('.section .rodata,"a"')
e(".p2align 6")
acc = (NV + 3) // 4 * 4
e(f""".amdhsa_kernel {NAME}
  .amdhsa_next_free_vgpr {NV}
  .amdhsa_next_free_sgpr {NS}
  .amdhsa_accum_offset {acc}
  .amdhsa_group_segment_fixed_size 0
  .amdhsa_kernarg_size 64
  .amdhsa_user_sgpr_count 2
  .amdhsa_user_sgpr_kernarg_segment_ptr 1
  .amdhsa_system_sgpr_workgroup_id_x 1
  .amdhsa_float_denorm_mode_32 3
.end_amdhsa_kernel
""")
LABS = {'L_H0': 'helper waves 13-15: barrier-line zeroing', 'L_E0': 'edge waves: histogram, scatter into granule staging', 'L_P1H1': 'helper waves', 'L_P1_W13': 'wave 13: bucket scan, table row, ready check', 'L_P1_JOIN': 'all waves: constants, arrive at R, early table read', 'L_BATCH': 'next batch / restart: re-zero counters', 'L_DECODE': 'table entries -> granule descriptors', 'L_LD_DONE': 'table re-read, x prefetch, rank atomics', 'L_NODE1_DONE': 'scatter records, degree order', 'L_GDONE': 'end of a gather', 'L_SYNC2': 'barrier H', 'L_G2': 'hop 2 gather', 'L_EPI': 'GEMM epilogue', 'L_HELPER': 'wave without nodes', 'L_MBENC': 'multi-batch hop 2'}
out = [(l + "    ; " + LABS[l[:-1]]) if l.endswith(":") and l[:-1] in LABS else l for l in out]
open(sys.argv[1], "w").write("\n".join(out) + "\n")
```
